```python
import torch

def _softmax(x, axis=-1):
    return torch.softmax(x, dim=axis)
def _gelu(x):
    return torch.nn.functional.gelu(x, approximate="tanh")
def _silu(x):
    return torch.nn.functional.silu(x)
def _sigmoid(x):
    return torch.sigmoid(x)
def _layernorm(x, axis=-1, eps=1e-5):
    m = x.mean(dim=axis, keepdim=True)
    v = x.var(dim=axis, keepdim=True, unbiased=False)
    return (x - m) / torch.sqrt(v + eps)
def _scatter_add(tgt, idx, src, axis=0):
    return tgt.clone().index_add_(axis, idx, src)
def _segment_sum(src, seg, n):
    out = torch.zeros((n,) + src.shape[1:], dtype=src.dtype)
    return out.index_add_(0, seg, src)
def _pad(x, pw):
    flat = tuple(v for pair in reversed(pw) for v in pair)
    return torch.nn.functional.pad(x, flat)

kernel_name = 'sequential_preLN__compressed_kv_cla__dense_activation_squared_relu__prompt'

def setup_inputs():

    _w = (lambda a: (lambda t: t.to(torch.bfloat16) if t.is_floating_point() else t)(torch.as_tensor(a)))
    def _A_setup():
        B, H, Sq, Sk, D, M = 1, 32, 2048, 2048, 128, 512
        Dc = 4 * D
        return {
            "x": _w((lambda *s: torch.randn(*s, dtype=torch.bfloat16) * 0.05)(B, Sq, M)),
            "c_kv": _w((lambda *s: torch.randn(*s, dtype=torch.bfloat16) * 0.4)(B, Sk, Dc)),
            "w_q": _w((lambda *s: torch.randn(*s, dtype=torch.bfloat16) * 3.2)(M, H, D) * (M ** -0.5)),
            "w_uk": _w((lambda *s: torch.randn(*s, dtype=torch.bfloat16) * 3.2)(Dc, H, D) * (Dc ** -0.5)),
            "w_uv": _w((lambda *s: torch.randn(*s, dtype=torch.bfloat16) * 0.4)(Dc, H, D) * (Dc ** -0.5)),
            "w_o": _w((lambda *s: torch.randn(*s, dtype=torch.bfloat16) * 0.4)(H, D, M) * ((H * D) ** -0.5)),
        }
    _A_in = _A_setup()

    def _B_setup():
        B, S, D, F = 1, 2048, 512, 1792
        return {
            "x": _w((lambda *s: torch.randn(*s, dtype=torch.bfloat16) * 0.05)(B, S, D)),
            "w1": _w((lambda *s: torch.randn(*s, dtype=torch.bfloat16) * 0.05)(D, F)),
            "b1": _w((lambda *s: torch.randn(*s, dtype=torch.bfloat16) * 0.4)(F)),
            "w2": _w((lambda *s: torch.randn(*s, dtype=torch.bfloat16) * 0.05)(F, D)),
            "b2": _w((lambda *s: torch.randn(*s, dtype=torch.bfloat16) * 1.6)(D)),
        }
    _B_in = _B_setup()

    return {
        "A_x": _A_in["x"],
        "A_c_kv": _A_in["c_kv"],
        "A_w_q": _A_in["w_q"],
        "A_w_uk": _A_in["w_uk"],
        "A_w_uv": _A_in["w_uv"],
        "A_w_o": _A_in["w_o"],
        "B_x": _B_in["x"],
        "B_w1": _B_in["w1"],
        "B_b1": _B_in["b1"],
        "B_w2": _B_in["w2"],
        "B_b2": _B_in["b2"],
    }

def reference(A_x, A_c_kv, A_w_q, A_w_uk, A_w_uv, A_w_o, B_x, B_w1, B_b1, B_w2, B_b2):
    def _A_ref(x, c_kv, w_q, w_uk, w_uv, w_o):
        B, Sq, M = x.shape[0], x.shape[1], x.shape[2]
        Sk = c_kv.shape[1]
        H, D = w_q.shape[1], w_q.shape[2]
        q = torch.einsum("bqm,mhd->bhqd", x, w_q)
        k = torch.einsum("bkc,chd->bhkd", c_kv, w_uk)
        v = torch.einsum("bkc,chd->bhkd", c_kv, w_uv)
        scores = torch.einsum("bhqd,bhkd->bhqk", q, k) * (D ** -0.5)
        off = Sk - Sq
        qi = torch.arange(Sq)[:, None]
        kj = torch.arange(Sk)[None, :]
        cmask = kj <= (qi + off)
        scores = torch.where(cmask[None, None], scores, -1e9)
        p = _softmax(scores, axis=-1)
        ctx = torch.einsum("bhqk,bhkd->bhqd", p, v)
        return torch.einsum("bhqd,hdm->bqm", ctx, w_o)

    def _B_ref(x, w1, b1, w2, b2):
        h = torch.einsum("bsd,df->bsf", x, w1) + b1
        zero = torch.zeros_like(h)
        r = torch.where(h > zero, h, zero)
        h = r * r
        out = torch.einsum("bsf,fd->bsd", h, w2) + b2
        return out

    x = A_x
    h = x + _A_ref(_layernorm(x, axis=-1), A_c_kv, A_w_q, A_w_uk, A_w_uv, A_w_o)
    h2 = h + _B_ref(_layernorm(h, axis=-1), B_w1, B_b1, B_w2, B_b2)
    return h2
```

```python
class Asm:
    def __init__(self):
        self.lines = []
        self.nlabel = 0
    def __call__(self, s=""):
        for l in s.split("\n"):
            self.lines.append(l)
    def e(self, fmt, *a):
        self.lines.append("  " + (fmt % a if a else fmt))
    def label(self, name):
        self.lines.append(name + ":")
    def newlabel(self, base="L"):
        self.nlabel += 1
        return "%s_%d" % (base, self.nlabel)
    def text(self):
        return "\n".join(self.lines) + "\n"

def vr(b, n=1):
    return "v%d" % b if n == 1 else "v[%d:%d]" % (b, b + n - 1)
def sr(b, n=1):
    return "s%d" % b if n == 1 else "s[%d:%d]" % (b, b + n - 1)
def ar(b, n=1):
    return "a%d" % b if n == 1 else "a[%d:%d]" % (b, b + n - 1)

def kernel_begin(a, name):
    a(".globl %s" % name)
    a(".p2align 8")
    a(".type %s,@function" % name)
    a("%s:" % name)

def kernel_desc(name, vgpr, sgpr=102, accum=None):
    if accum is None:
        accum = min(256, (vgpr + 3) // 4 * 4)
    return ("\n".join([
        ".p2align 6",
        ".amdhsa_kernel %s" % name,
        "  .amdhsa_next_free_vgpr %d" % vgpr,
        "  .amdhsa_next_free_sgpr %d" % sgpr,
        "  .amdhsa_accum_offset %d" % accum,
        "  .amdhsa_group_segment_fixed_size 0",
        "  .amdhsa_kernarg_size 112",
        "  .amdhsa_user_sgpr_count 2",
        "  .amdhsa_user_sgpr_kernarg_segment_ptr 1",
        "  .amdhsa_system_sgpr_workgroup_id_x 1",
        "  .amdhsa_float_denorm_mode_32 3",
        ".end_amdhsa_kernel"]) + "\n")
```

```python
from asmlib import *

A_X, A_CKV, A_WQ, A_WUK, A_WUV, A_WO, B_X, B_W1, B_B1, B_W2, B_B2, OUT, DBG, WS = [8*i for i in range(14)]

WS_K    = 0
WS_V    = 16 << 20
WS_CTX  = 32 << 20
WS_XN   = 48 << 20
WS_H    = 50 << 20
WS_F    = 52 << 20
WS_CS   = 60 << 20
WS_ST   = 61 << 20
WS_STAMP= 100 << 20
WS_BYTES = 268435456

def srd(a, s, ptr_s, nbytes):
    if ptr_s != s:
        a.e("s_mov_b32 s%d, s%d", s, ptr_s)
        a.e("s_mov_b32 s%d, s%d", s + 1, ptr_s + 1)
    a.e("s_mov_b32 s%d, 0x%x", s + 2, nbytes)
    a.e("s_mov_b32 s%d, 0x20000", s + 3)

def rowsum16(a, regs):
    steps = ["quad_perm:[1,0,3,2]", "quad_perm:[2,3,0,1]", "row_half_mirror", "row_mirror"]
    for st in steps:
        if len(regs) < 3:
            a.e("s_nop 1")
        for r in regs:
            a.e("v_add_f32_dpp v%d, v%d, v%d %s row_mask:0xf bank_mask:0xf", r, r, r, st)

def allsum64(a, r, t):
    rowsum16(a, [r])
    a.e("v_mov_b32 v%d, v%d", t, r)
    a.e("s_nop 1")
    a.e("v_permlane16_swap_b32 v%d, v%d", r, t)
    a.e("s_nop 1")
    a.e("v_add_f32 v%d, v%d, v%d", r, r, t)
    a.e("v_mov_b32 v%d, v%d", t, r)
    a.e("s_nop 1")
    a.e("v_permlane32_swap_b32 v%d, v%d", r, t)
    a.e("s_nop 1")
    a.e("v_add_f32 v%d, v%d, v%d", r, r, t)


class Stamps:
    def __init__(self, a, enabled, kidx, base=48, maxn=12):
        self.a, self.en, self.kidx, self.base, self.n, self.maxn = a, enabled, kidx, base, 0, maxn
    def mark(self):
        if not self.en: return
        assert self.n < self.maxn
        self.a.e("s_memrealtime s[%d:%d]", self.base + 4 * self.n, self.base + 4 * self.n + 1)
        self.a.e("s_memtime s[%d:%d]", self.base + 4 * self.n + 2, self.base + 4 * self.n + 3)
        self.n += 1
    def dump(self, s_ws, s_w, vtmp, stmp, wave=0):
        if not self.en: return
        a = self.a
        l = a.newlabel("Lst")
        a.e("s_cmp_lg_u32 s%d, %d", s_w, wave)
        a.e("s_cbranch_scc1 %s", l)
        a.e("s_waitcnt lgkmcnt(0)")
        a.e("s_lshl_b32 s%d, s2, 7", stmp)
        a.e("s_add_u32 s%d, s%d, 0x%x", stmp, stmp, WS_STAMP + self.kidx * 65536)
        a.e("v_mov_b32 v%d, 0", vtmp + 1)
        for i in range(self.n):
            a.e("v_mov_b32 v%d, s%d", vtmp, self.base + 4 * i)
            a.e("buffer_store_dword v%d, v%d, s[%d:%d], s%d offen offset:%d", vtmp, vtmp + 1, s_ws, s_ws + 3, stmp, 8 * i)
            a.e("s_nop 1")
            a.e("v_mov_b32 v%d, s%d", vtmp, self.base + 4 * i + 2)
            a.e("buffer_store_dword v%d, v%d, s[%d:%d], s%d offen offset:%d", vtmp, vtmp + 1, s_ws, s_ws + 3, stmp, 8 * i + 4)
            a.e("s_nop 1")
        a.label(l)

class Cnt:
    def __init__(self, a, name, maxn):
        self.a, self.name, self.maxn, self.ops = a, name, maxn, []
    def issue(self, tag):
        self.ops.append(tag)
        assert len(self.ops) <= self.maxn, "too many outstanding %s: %d" % (self.name, len(self.ops))
    def need(self, tags):
        if not isinstance(tags, (list, set)): tags = [tags]
        idx = -1
        for i, t in enumerate(self.ops):
            if t in tags: idx = i
        if idx < 0: return None
        return len(self.ops) - 1 - idx
    def wait(self, tags):
        n = self.need(tags)
        if n is None: return
        self.a.e("s_waitcnt %s(%d)", self.name, n)
        self.ops = self.ops[len(self.ops) - n:] if n > 0 else []
    def waitall(self):
        if self.ops:
            self.a.e("s_waitcnt %s(0)", self.name)
        self.ops = []
```

```python
from gen_common import *

def gen_k1(a, name="kv_kernel", diag=False, exp=""):
    kernel_begin(a, name)
    st = Stamps(a, diag, 0)
    vm = Cnt(a, "vmcnt", 63); lg = Cnt(a, "lgkmcnt", 15)
    S_X, S_C, S_WUK, S_WUV, S_W1, S_WS = 4, 8, 12, 16, 20, 24
    s_h, s_j, s_w, s_t0, s_t1, s_t2, s_kk0, s_wof, s_kst, s_vst, s_oct = 28, 29, 30, 31, 32, 33, 34, 35, 36, 37, 38
    s_c0, s_wm0, s_cm0, s_t3 = 39, 40, 41, 42
    v_lane, v_wdma, v_cdE, v_cdO, v_trE, v_trO, v_cr0, v_cr1, v_kst, v_vst, v_t = 0, 1, 2, 3, 4, 5, 6, 7, 8, 9, 10
    WF, NRING = 12, 5
    ACCA, ACCB, CF = 32, 96, 128
    LDS_W, LDS_C, LDS_SCR = 0, 65536, 131072
    T = ACCB

    a.e("s_cmp_ge_u32 s2, 256")
    a.e("s_cbranch_scc1 %s_end", name)
    st.mark()
    a.e("s_load_dwordx4 s[4:7], s[0:1], %d", A_X)
    a.e("s_load_dwordx4 s[12:15], s[0:1], %d", A_WUK)
    a.e("s_load_dwordx2 s[20:21], s[0:1], %d", B_W1)
    a.e("s_load_dwordx2 s[24:25], s[0:1], %d", WS)
    a.e("v_lshrrev_b32 v%d, 6, v0", v_t)
    a.e("v_mov_b32 v%d, v0", T + 31)
    a.e("v_readfirstlane_b32 s%d, v%d", s_w, v_t)
    a.e("v_and_b32 v%d, 63, v0", v_lane)
    v_x16, v_g = T + 29, T + 30
    a.e("v_and_b32 v%d, 15, v%d", v_x16, v_lane)
    a.e("v_lshrrev_b32 v%d, 4, v%d", v_g, v_lane)
    a.e("s_and_b32 s%d, s2, 31", s_h)
    a.e("s_lshr_b32 s%d, s2, 5", s_j)
    a.e("s_lshr_b32 s%d, s%d, 3", s_t0, s_h)
    a.e("s_lshl_b32 s%d, s%d, 1", s_t0, s_t0)
    a.e("s_add_u32 s%d, s%d, s%d", s_kk0, s_t0, s_j)
    a.e("s_and_b32 s%d, s%d, 7", s_kk0, s_kk0)
    if "norot" in exp: a.e("s_mov_b32 s%d, 0", s_kk0)
    a.e("v_bfe_u32 v%d, v%d, 2, 2", v_t, v_lane)
    a.e("v_bfe_u32 v%d, v%d, 4, 1", v_t + 1, v_lane)
    a.e("v_lshl_add_u32 v%d, v%d, 2, v%d", v_t, v_t + 1, v_t)
    a.e("v_lshlrev_b32 v%d, 13, v%d", v_t, v_t)
    a.e("s_and_b32 s%d, s%d, 1", s_t0, s_w)
    a.e("s_lshl_b32 s%d, s%d, 1", s_t0, s_t0)
    a.e("v_and_b32 v%d, 3, v%d", v_t + 1, v_lane)
    a.e("v_xor_b32 v%d, s%d, v%d", v_t + 1, s_t0, v_t + 1)
    a.e("v_lshrrev_b32 v%d, 5, v%d", v_wdma, v_lane)
    a.e("v_lshl_add_u32 v%d, v%d, 2, v%d", v_t + 1, v_wdma, v_t + 1)
    a.e("v_lshl_add_u32 v%d, v%d, 4, v%d", v_wdma, v_t + 1, v_t)
    a.e("v_lshrrev_b32 v%d, 3, v%d", v_t, v_lane)
    a.e("v_lshrrev_b32 v%d, 1, v%d", v_t + 1, v_t)
    a.e("v_and_b32 v%d, 7, v%d", v_cdE, v_lane)
    a.e("v_xor_b32 v%d, v%d, v%d", v_cdE, v_cdE, v_t + 1)
    a.e("v_lshlrev_b32 v%d, 4, v%d", v_cdE, v_cdE)
    a.e("v_lshl_add_u32 v%d, v%d, 10, v%d", v_cdE, v_t, v_cdE)
    a.e("v_xor_b32 v%d, 64, v%d", v_cdO, v_cdE)
    a.e("s_waitcnt lgkmcnt(0)")
    st.mark()
    a.e("s_mov_b32 s8, s6"); a.e("s_mov_b32 s9, s7")
    a.e("s_mov_b32 s16, s14"); a.e("s_mov_b32 s17, s15")
    srd(a, S_X, S_X, 2 << 20); srd(a, S_C, S_C, 2 << 20)
    srd(a, S_WUK, S_WUK, 4 << 20); srd(a, S_WUV, S_WUV, 4 << 20)
    srd(a, S_W1, S_W1, 512 * 1792 * 2); srd(a, S_WS, S_WS, WS_BYTES)
    a.e("s_lshl_b32 s%d, s%d, 16", s_wof, s_w)
    a.e("s_lshl_b32 s%d, s%d, 8", s_t0, s_h)
    a.e("s_add_u32 s%d, s%d, s%d", s_wof, s_wof, s_t0)
    a.e("s_lshl_b32 s%d, s%d, 10", s_wm0, s_w)
    a.e("s_lshl_b32 s%d, s%d, 18", s_c0, s_j)
    a.e("s_lshl_b32 s%d, s%d, 15", s_t0, s_w)
    a.e("s_add_u32 s%d, s%d, s%d", s_c0, s_c0, s_t0)
    a.e("s_lshl_b32 s%d, s%d, 13", s_cm0, s_w)
    a.e("s_add_u32 s%d, s%d, %d", s_cm0, s_cm0, LDS_C)

    def kk_of(i, dst):
        a.e("s_add_u32 s%d, s%d, %d", dst, s_kk0, i)
        a.e("s_and_b32 s%d, s%d, 7", dst, dst)
    def w_dma(step):
        slot = step & 3
        L = []
        for hf in range(2):
            if step < 8:
                S, kki, col = S_WUK, step, hf * 128
            else:
                cv = (step - 8) >> 2
                S, kki, col = S_WUV, 2 * ((step - 8) & 3) + hf, cv * 128
            def em(S=S, kki=kki, col=col, hf=hf):
                kk_of(kki, s_t0)
                a.e("s_lshl_b32 s%d, s%d, 19", s_t0, s_t0)
                a.e("s_add_u32 m0, s%d, %d", s_wm0, LDS_W + slot * 16384 + hf * 8192)
                a.e("s_add_u32 s%d, s%d, s%d", s_t0, s_t0, s_wof)
                if col: a.e("s_add_u32 s%d, s%d, %d", s_t0, s_t0, col)
                a.e("buffer_load_dwordx4 v%d, s[%d:%d], s%d offen lds", v_wdma, S, S + 3, s_t0)
                vm.issue(("W", step))
            L.append(em)
        return L
    def c_dma(step):
        slot = step & 1
        L = []
        for q in range(4):
            def em(q=q):
                if q == 0:
                    kk_of(step, s_t1)
                    a.e("s_lshl_b32 s%d, s%d, 7", s_t1, s_t1)
                    a.e("s_add_u32 s%d, s%d, s%d", s_t1, s_t1, s_c0)
                else:
                    a.e("s_add_u32 s%d, s%d, 8192", s_t1, s_t1)
                a.e("s_add_u32 m0, s%d, %d", s_cm0, slot * 4096 + q * 1024)
                a.e("s_nop 0")
                a.e("buffer_load_dwordx4 v%d, s[%d:%d], s%d offen lds", v_cdE if (q & 1) == 0 else v_cdO, S_C, S_C + 3, s_t1)
                vm.issue(("c", step))
            L.append(em)
        return L

    for em in c_dma(0) + w_dma(0): em()
    a.e("s_lshl_b32 s%d, s2, 3", s_t0)
    a.e("s_add_u32 s%d, s%d, s%d", s_t0, s_t0, s_w)
    a.e("s_lshl_b32 s%d, s%d, 10", s_t0, s_t0)
    a.e("v_lshlrev_b32 v%d, 4, v%d", v_t, v_lane)
    a.e("buffer_load_dwordx4 v[%d:%d], v%d, s[%d:%d], s%d offen", T, T + 3, v_t, S_X, S_X + 3, s_t0)
    vm.issue("x")
    for em in c_dma(1) + w_dma(1): em()
    a.e("s_and_b32 s%d, s2, 7", s_t1)
    a.e("s_mul_i32 s%d, s%d, 28", s_t1, s_t1)
    a.e("s_lshr_b32 s%d, s2, 3", s_t2)
    a.e("s_min_u32 s%d, s%d, 27", s_oct, s_t2)
    a.e("s_add_u32 s%d, s%d, s%d", s_oct, s_oct, s_t1)
    a.e("s_lshl_b32 s%d, s%d, 4", s_t1, s_oct)
    a.e("s_movk_i32 s%d, 3584", s_t2)
    a.e("v_mul_lo_u32 v%d, v%d, s%d", v_t + 1, T + 31, s_t2)
    a.e("buffer_load_dwordx4 v[%d:%d], v%d, s[%d:%d], s%d offen", T + 4, T + 7, v_t + 1, S_W1, S_W1 + 3, s_t1)
    vm.issue("w1")
    for em in w_dma(2): em()
    st.mark()

    a.e("v_bfe_u32 v%d, v%d, 2, 2", v_t, v_lane)
    a.e("v_lshlrev_b32 v%d, 6, v%d", v_t, v_t)
    a.e("v_and_b32 v%d, 3, v%d", v_t + 1, v_lane)
    a.e("v_lshl_add_u32 v%d, v%d, 3, v%d", v_t, v_t + 1, v_t)
    a.e("v_lshl_add_u32 v%d, v%d, 10, v%d", v_t, v_g, v_t)
    a.e("v_and_b32 v%d, 1, v%d", v_t + 1, v_g)
    a.e("v_lshl_add_u32 v%d, v%d, 5, v%d", v_trE, v_t + 1, v_t)
    a.e("v_xor_b32 v%d, 32, v%d", v_trO, v_trE)
    a.e("v_lshrrev_b32 v%d, 1, v%d", v_t, v_x16)
    a.e("v_xor_b32 v%d, v%d, v%d", v_t, v_t, v_g)
    a.e("v_lshlrev_b32 v%d, 4, v%d", v_t, v_t)
    a.e("v_lshl_add_u32 v%d, v%d, 7, v%d", v_t, v_x16, v_t)
    a.e("v_add_u32 v%d, s%d, v%d", v_cr0, s_cm0, v_t)
    a.e("v_xor_b32 v%d, 64, v%d", v_cr1, v_cr0)
    a.e("v_and_b32 v%d, 1, v%d", v_t, v_g)
    a.e("v_lshlrev_b32 v%d, 10, v%d", v_kst, v_t)
    a.e("v_lshrrev_b32 v%d, 1, v%d", v_t, v_g)
    a.e("v_lshl_add_u32 v%d, v%d, 9, v%d", v_kst, v_t, v_kst)
    a.e("v_lshrrev_b32 v%d, 3, v%d", v_t, v_x16)
    a.e("v_lshl_add_u32 v%d, v%d, 8, v%d", v_kst, v_t, v_kst)
    a.e("v_and_b32 v%d, 7, v%d", v_t, v_x16)
    a.e("v_lshl_add_u32 v%d, v%d, 4, v%d", v_kst, v_t, v_kst)
    a.e("v_lshrrev_b32 v%d, 1, v%d", v_t, v_g)
    a.e("v_lshlrev_b32 v%d, 12, v%d", v_vst, v_t)
    a.e("v_and_b32 v%d, 1, v%d", v_t, v_g)
    a.e("v_lshl_add_u32 v%d, v%d, 9, v%d", v_vst, v_t, v_vst)
    a.e("v_lshl_add_u32 v%d, v%d, 4, v%d", v_vst, v_x16, v_vst)
    a.e("s_lshl_b32 s%d, s%d, 19", s_kst, s_h)
    a.e("s_lshl_b32 s%d, s%d, 16", s_t0, s_j)
    a.e("s_add_u32 s%d, s%d, s%d", s_kst, s_kst, s_t0)
    a.e("s_lshl_b32 s%d, s%d, 13", s_t0, s_w)
    a.e("s_add_u32 s%d, s%d, s%d", s_kst, s_kst, s_t0)
    a.e("s_add_u32 s%d, s%d, 0x%x", s_vst, s_kst, WS_V)

    vm.wait("x")
    st.mark()
    F = T + 8
    for i in range(4):
        a.e("v_lshlrev_b32 v%d, 16, v%d", F + 2 * i, T + i)
        a.e("v_and_b32 v%d, 0xffff0000, v%d", F + 2 * i + 1, T + i)
    M, TT, V2, RS = T + 16, T + 17, T + 18, T + 19
    a.e("v_add_f32 v%d, v%d, v%d", M, F, F + 1)
    for i in range(2, 8):
        a.e("v_add_f32 v%d, v%d, v%d", M, M, F + i)
    allsum64(a, M, TT)
    a.e("v_mul_f32 v%d, 0x3b000000, v%d", M, M)
    for i in range(8):
        a.e("v_sub_f32 v%d, v%d, v%d", F + i, F + i, M)
    a.e("v_mul_f32 v%d, v%d, v%d", V2, F, F)
    for i in range(1, 8):
        a.e("v_fmac_f32 v%d, v%d, v%d", V2, F + i, F + i)
    allsum64(a, V2, TT)
    a.e("v_mov_b32 v%d, 0x3727c5ac", RS)
    a.e("v_fmac_f32 v%d, 0x3b000000, v%d", RS, V2)
    a.e("v_rsq_f32 v%d, v%d", RS, RS)
    a.e("s_nop 0")
    for i in range(8):
        a.e("v_mul_f32 v%d, v%d, v%d", F + i, F + i, RS)
    for i in range(4):
        a.e("v_cvt_pk_bf16_f32 v%d, v%d, v%d", T + i, F + 2 * i, F + 2 * i + 1)
    a.e("s_lshl_b32 s%d, s%d, 10", s_t0, s_w)
    a.e("s_add_u32 s%d, s%d, %d", s_t0, s_t0, LDS_SCR)
    a.e("v_lshl_add_u32 v%d, v%d, 4, s%d", v_t, v_lane, s_t0)
    a.e("ds_write_b128 v%d, v[%d:%d]", v_t, T, T + 3)
    vm.wait("w1")
    for i in range(4):
        a.e("v_lshlrev_b32 v%d, 16, v%d", F + 2 * i, T + 4 + i)
        a.e("v_and_b32 v%d, 0xffff0000, v%d", F + 2 * i + 1, T + 4 + i)
    rowsum16(a, [F + i for i in range(8)])
    a.e("s_lshl_b32 s%d, s%d, 7", s_t0, s_w)
    a.e("s_add_u32 s%d, s%d, %d", s_t0, s_t0, LDS_SCR + 8192)
    a.e("v_lshl_add_u32 v%d, v%d, 5, s%d", v_t, v_g, s_t0)
    a.e("ds_write_b128 v%d, v[%d:%d]", v_t, F, F + 3)
    a.e("ds_write_b128 v%d, v[%d:%d] offset:16", v_t, F + 4, F + 7)
    st.mark()

    def c_reads(step):
        for u in range(2):
            for kb in range(2):
                r = CF + ((step * 2 + u) * 2 + kb) * 4
                a.e("ds_read_b128 v[%d:%d], v%d offset:%d", r, r + 3, v_cr0 if u == 0 else v_cr1, (step & 1) * 4096 + kb * 2048)
                lg.issue(("c", step))

    vm.wait([("c", 0), ("W", 0), ("W", 1), ("c", 1)])
    a.e("s_waitcnt lgkmcnt(0)")
    c_reads(0)
    st.mark()
    a.e("s_barrier")
    st.mark()
    a.e("v_and_b32 v%d, 7, v%d", v_t, v_lane)
    a.e("v_lshrrev_b32 v%d, 3, v%d", v_t + 1, v_lane)
    a.e("s_lshl_b32 s%d, s%d, 3", s_t0, s_w)
    a.e("v_add_u32 v%d, s%d, v%d", v_t + 1, s_t0, v_t + 1)
    a.e("v_lshlrev_b32 v%d, 10, v%d", F, v_t)
    a.e("v_lshl_add_u32 v%d, v%d, 4, v%d", F, v_t + 1, F)
    a.e("v_add_u32 v%d, %d, v%d", F, LDS_SCR, F)
    a.e("ds_read_b128 v[%d:%d], v%d", T, T + 3, F)
    a.e("v_lshrrev_b32 v%d, 2, v%d", F + 1, v_t + 1)
    a.e("v_lshlrev_b32 v%d, 10, v%d", F + 1, F + 1)
    a.e("v_and_b32 v%d, 3, v%d", v_t + 1, v_t + 1)
    a.e("v_lshl_add_u32 v%d, v%d, 8, v%d", F + 1, v_t + 1, F + 1)
    a.e("v_lshl_add_u32 v%d, v%d, 4, v%d", F + 1, v_t, F + 1)
    a.e("s_lshr_b32 s%d, s2, 1", s_t0)
    a.e("s_lshl_b32 s%d, s%d, 14", s_t0, s_t0)
    a.e("s_and_b32 s%d, s2, 1", s_t1)
    a.e("s_lshl_b32 s%d, s%d, 7", s_t1, s_t1)
    a.e("s_add_u32 s%d, s%d, s%d", s_t0, s_t0, s_t1)
    a.e("s_add_u32 s%d, s%d, 0x%x", s_t0, s_t0, WS_XN)
    a.e("s_waitcnt lgkmcnt(0)")
    lg.ops = []
    a.e("buffer_store_dwordx4 v[%d:%d], v%d, s[%d:%d], s%d offen", T, T + 3, F + 1, S_WS, S_WS + 3, s_t0)
    vm.issue("xn")
    lskip = name + "_skipcs"
    a.e("s_cmp_lg_u32 s%d, 0", s_w)
    a.e("s_cbranch_scc1 %s", lskip)
    a.e("s_cmp_ge_u32 s2, 224")
    a.e("s_cbranch_scc1 %s", lskip)
    a.e("v_and_b32 v%d, 7, v%d", v_t, v_lane)
    a.e("v_lshrrev_b32 v%d, 3, v%d", v_t + 1, v_lane)
    a.e("v_lshlrev_b32 v%d, 7, v%d", v_t + 1, v_t + 1)
    a.e("v_lshl_add_u32 v%d, v%d, 2, v%d", v_t + 1, v_t, v_t + 1)
    a.e("v_add_u32 v%d, %d, v%d", v_t + 1, LDS_SCR + 8192, v_t + 1)
    for i in range(4):
        a.e("ds_read_b32 v%d, v%d offset:%d", F + i, v_t + 1, i * 32)
    a.e("s_waitcnt lgkmcnt(0)")
    a.e("v_add_f32 v%d, v%d, v%d", F, F, F + 1)
    a.e("v_add_f32 v%d, v%d, v%d", F + 2, F + 2, F + 3)
    a.e("v_add_f32 v%d, v%d, v%d", F, F, F + 2)
    a.e("s_nop 1")
    a.e("v_add_f32_dpp v%d, v%d, v%d row_ror:8 row_mask:0xf bank_mask:0xf", F, F, F)
    a.e("v_mov_b32 v%d, v%d", F + 1, F)
    a.e("s_nop 1")
    a.e("v_permlane16_swap_b32 v%d, v%d", F, F + 1)
    a.e("s_nop 1")
    a.e("v_add_f32 v%d, v%d, v%d", F, F, F + 1)
    a.e("v_mov_b32 v%d, v%d", F + 1, F)
    a.e("s_nop 1")
    a.e("v_permlane32_swap_b32 v%d, v%d", F, F + 1)
    a.e("s_nop 1")
    a.e("v_add_f32 v%d, v%d, v%d", F, F, F + 1)
    a.e("v_lshlrev_b32 v%d, 2, v%d", v_t + 1, v_lane)
    a.e("v_cmp_gt_u32 vcc, 8, v%d", v_lane)
    a.e("s_lshl_b32 s%d, s%d, 5", s_t0, s_oct)
    a.e("s_add_u32 s%d, s%d, 0x%x", s_t0, s_t0, WS_CS)
    a.e("s_and_saveexec_b64 s[44:45], vcc")
    a.e("buffer_store_dword v%d, v%d, s[%d:%d], s%d offen", F, v_t + 1, S_WS, S_WS + 3, s_t0)
    a.e("s_mov_b64 exec, s[44:45]")
    a.label(lskip)

    def step_frags(step):
        L = []
        if step < 8:
            for u in range(2):
                for cb in range(8):
                    off = (cb >> 2) * 8192 + u * 4096 + ((cb >> 1) & 1) * 512
                    dg = cb >> 1
                    accs = [ACCA + ((dg * 2 + kb) * 2 + (cb & 1)) * 4 for kb in range(2)]
                    cfs = [CF + ((step * 2 + u) * 2 + kb) * 4 for kb in range(2)]
                    L.append((off, cb & 1, accs, cfs, step == 0 and u == 0))
        else:
            base = ACCB if step < 12 else ACCA
            i2 = (step - 8) & 3
            for hf in range(2):
                for u in range(2):
                    for cb in range(4):
                        off = hf * 8192 + u * 4096 + (cb >> 1) * 512
                        accs = [base + (cb * 2 + kb) * 4 for kb in range(2)]
                        ci = (2 * i2 + hf)
                        cfs = [CF + ((ci * 2 + u) * 2 + kb) * 4 for kb in range(2)]
                        L.append((off, cb & 1, accs, cfs, i2 == 0 and hf == 0 and u == 0))
        return L
    frags = [(s, f) for s in range(16) for f in step_frags(s)]
    def w_read(gi):
        s, (off, odd, accs, cfs, first) = frags[gi]
        r = WF + (gi % NRING) * 4
        for t in range(2):
            a.e("ds_read_b64_tr_b16 v[%d:%d], v%d offset:%d", r + 2 * t, r + 2 * t + 1, v_trO if odd else v_trE,
                LDS_W + (s & 3) * 16384 + off + t * 256)
            lg.issue(("W", gi))
    def epi(kind):
        L = []
        if kind == "K":
            for dg in range(4):
                for kb in range(2):
                    A = ACCA + (dg * 2 + kb) * 8
                    g = []
                    for i in range(4):
                        g.append("v_cvt_pk_bf16_f32 v%d, v%d, v%d" % (A + i, A + 2 * i, A + 2 * i + 1))
                    g.append("s_add_u32 s%d, s%d, %d" % (s_t2, s_kst, (dg >> 1) * 4096))
                    g.append(("st", "buffer_store_dwordx4 v[%d:%d], v%d, s[%d:%d], s%d offen offset:%d" % (A, A + 3, v_kst, S_WS, S_WS + 3, s_t2, kb * 128 + (dg & 1) * 2048)))
                    L += g
        else:
            cv = 0 if kind == "V0" else 1
            base = ACCB if cv == 0 else ACCA
            for cb in range(4):
                A = base + cb * 8
                for i in range(4):
                    L.append("v_cvt_pk_bf16_f32 v%d, v%d, v%d" % (A + i, A + 2 * i, A + 2 * i + 1))
                L.append("s_add_u32 s%d, s%d, %d" % (s_t2, s_vst, cv * 2048))
                L.append(("st", "buffer_store_dwordx4 v[%d:%d], v%d, s[%d:%d], s%d offen offset:%d" % (A, A + 3, v_vst, S_WS, S_WS + 3, s_t2, (cb >> 1) * 1024 + (cb & 1) * 256)))
        return L
    def emit_epi(x):
        if isinstance(x, tuple):
            a.e(x[1]); vm.issue("st")
        else:
            a.e(x)

    PRE = NRING - 1
    for gi in range(PRE): w_read(gi)
    pend_epi = []
    for gi, (s, (off, odd, accs, cfs, first)) in enumerate(frags):
        k = gi % 16
        dmas = []
        if k == 0:
            a("; ---- step %d" % s)
            if s in (4, 8, 12): st.mark()
            if s > 0:
                a.e("s_barrier")
            if s == 8: pend_epi = epi("K")
            if s == 12: pend_epi = epi("V0")
            step_dmas = []
            if s + 3 < 16: step_dmas += w_dma(s + 3)
            if s + 2 < 8: step_dmas += c_dma(s + 2)
        if gi + PRE < len(frags):
            w_read(gi + PRE)
        lg.wait([("W", gi), ("c", s)] if k == 0 else ("W", gi))
        wf = WF + (gi % NRING) * 4
        for kb in range(2):
            d, cf = accs[kb], cfs[kb]
            c = "0" if first else "v[%d:%d]" % (d, d + 3)
            if s < 8:
                a.e("v_mfma_f32_16x16x32_bf16 v[%d:%d], v[%d:%d], v[%d:%d], %s", d, d + 3, wf, wf + 3, cf, cf + 3, c)
            else:
                a.e("v_mfma_f32_16x16x32_bf16 v[%d:%d], v[%d:%d], v[%d:%d], %s", d, d + 3, cf, cf + 3, wf, wf + 3, c)
        if k >= 1 and step_dmas:
            step_dmas.pop(0)()
        if k == 11 and s + 1 < 16:
            tags = [("W", s + 2), ("c", s + 1)]
            vm.wait(tags)
            if s + 1 < 8: c_reads(s + 1)
        if pend_epi and k >= 3:
            emit_epi(pend_epi.pop(0))
            if pend_epi and s >= 12: emit_epi(pend_epi.pop(0))
    assert not pend_epi
    st.mark()
    a.e("s_nop 7")
    for x in epi("V1"): emit_epi(x)
    if diag:
        a.e("s_waitcnt vmcnt(0)")
        st.mark()
        st.dump(S_WS, s_w, 10, s_t0)
    a.label(name + "_end")
    a.e("s_endpgm")
```

```python
from gen_common import *
import math, struct

def f32bits(x):
    return struct.unpack("<I", struct.pack("<f", x))[0]

def gen_k2(a, name="attn_kernel", diag=False, exp="", thr_log2=40):
    kernel_begin(a, name)
    st = Stamps(a, diag, 1, base=56, maxn=11)
    vm = Cnt(a, "vmcnt", 63); lg = Cnt(a, "lgkmcnt", 15)
    QSCALE = f32bits(math.log2(math.e) / math.sqrt(128.0))
    THR = f32bits(2.0 ** thr_log2)
    S_WQ, S_WS = 4, 8
    s_h, s_x, s_w, s_t0, s_t1, s_t2, s_kk0, s_wof, s_wm0 = 12, 13, 14, 15, 16, 17, 18, 19, 20
    s_xn, s_T, s_TB, s_t, s_cur, s_nxt, s_ld, s_kof, s_vof, s_wl = 21, 22, 23, 24, 25, 26, 27, 28, 29, 30
    s_qb, s_mfrom, s_kb, s_isA, s_lslot, s_lst, s_thr, s_oob = 31, 32, 33, 34, 35, 36, 37, 38
    s_ret = 40
    s_m = 42
    s_hb = 50
    s_n = 51
    s_cnt = 52
    v_lane, v_wdma, v_trE, v_trO, v_l16, v_rd, v_rdn, v_qrel, v_t = 0, 1, 2, 3, 4, 5, 6, 7, 8
    WF, NRW = 12, 5
    ACC = 32
    XN = 128
    Q = 96
    RING, NR, PD = 12, 16, 12
    TT = 80
    v_ps, v_l, v_D, v_ninf, v_mx, v_f = [84, 85], 86, 87, 88, 89, 90
    U = 76
    NEGM, P, S, O = 128, [144, 152], [160, 176], 192
    SLOT = 32768

    a.e("s_cmp_ge_u32 s2, 256")
    a.e("s_cbranch_scc1 %s_end", name)
    st.mark()
    a.e("s_load_dwordx2 s[4:5], s[0:1], %d", A_WQ)
    a.e("s_load_dwordx2 s[8:9], s[0:1], %d", WS)
    a.e("v_lshrrev_b32 v%d, 6, v0", v_t)
    a.e("v_and_b32 v%d, 63, v0", v_lane)
    a.e("v_readfirstlane_b32 s%d, v%d", s_w, v_t)
    a.e("s_and_b32 s%d, s2, 31", s_h)
    a.e("s_lshr_b32 s%d, s2, 5", s_x)
    a.e("s_lshr_b32 s%d, s%d, 3", s_t0, s_h)
    a.e("s_lshl_b32 s%d, s%d, 1", s_t0, s_t0)
    a.e("s_add_u32 s%d, s%d, s%d", s_kk0, s_t0, s_x)
    a.e("s_and_b32 s%d, s%d, 7", s_kk0, s_kk0)
    a.e("s_lshr_b32 s%d, s%d, 2", s_isA, s_w)
    a.e("s_sub_u32 s%d, 15, s%d", s_t0, s_x)
    a.e("s_lshl_b32 s%d, s%d, 1", s_TB, s_t0)
    a.e("s_add_u32 s%d, s%d, 2", s_TB, s_TB)
    a.e("s_sub_u32 s%d, 7, s%d", s_t1, s_w)
    a.e("s_cmp_eq_u32 s%d, 0", s_isA)
    a.e("s_cselect_b32 s%d, s%d, s%d", s_t0, s_t0, s_x)
    a.e("s_cselect_b32 s%d, s%d, s%d", s_t1, s_w, s_t1)
    a.e("s_lshl_b32 s%d, s%d, 1", s_T, s_t0)
    a.e("s_add_u32 s%d, s%d, 2", s_T, s_T)
    a.e("s_lshl_b32 s%d, s%d, 2", s_qb, s_t0)
    a.e("s_add_u32 s%d, s%d, s%d", s_qb, s_qb, s_t1)
    a.e("s_sub_u32 s%d, s%d, 3", s_mfrom, s_T)
    a.e("s_and_b32 s%d, s%d, 3", s_wl, s_w)
    a.e("v_bfe_u32 v%d, v%d, 2, 2", v_t, v_lane)
    a.e("v_bfe_u32 v%d, v%d, 4, 1", v_t + 1, v_lane)
    a.e("v_lshl_add_u32 v%d, v%d, 2, v%d", v_t, v_t + 1, v_t)
    a.e("v_lshlrev_b32 v%d, 13, v%d", v_t, v_t)
    a.e("s_and_b32 s%d, s%d, 1", s_t0, s_w)
    a.e("s_lshl_b32 s%d, s%d, 1", s_t0, s_t0)
    a.e("v_and_b32 v%d, 3, v%d", v_t + 1, v_lane)
    a.e("v_xor_b32 v%d, s%d, v%d", v_t + 1, s_t0, v_t + 1)
    a.e("v_lshrrev_b32 v%d, 5, v%d", v_wdma, v_lane)
    a.e("v_lshl_add_u32 v%d, v%d, 2, v%d", v_t + 1, v_wdma, v_t + 1)
    a.e("v_lshl_add_u32 v%d, v%d, 4, v%d", v_wdma, v_t + 1, v_t)
    a.e("v_lshlrev_b32 v%d, 4, v%d", v_l16, v_lane)
    a.e("s_waitcnt lgkmcnt(0)")
    srd(a, S_WQ, S_WQ, 4 << 20); srd(a, S_WS, S_WS, WS_BYTES)
    a.e("s_lshl_b32 s%d, s%d, 16", s_wof, s_w)
    a.e("s_lshl_b32 s%d, s%d, 8", s_t0, s_h)
    a.e("s_add_u32 s%d, s%d, s%d", s_wof, s_wof, s_t0)
    a.e("s_lshl_b32 s%d, s%d, 10", s_wm0, s_w)
    a.e("s_lshl_b32 s%d, s%d, 15", s_xn, s_qb)
    a.e("s_add_u32 s%d, s%d, 0x%x", s_xn, s_xn, WS_XN)
    a.e("s_lshl_b32 s%d, s%d, 19", s_hb, s_h)
    a.e("s_lshl_b32 s%d, s%d, 12", s_t0, s_wl)
    a.e("s_add_u32 s%d, s%d, s%d", s_hb, s_hb, s_t0)
    a.e("s_mov_b32 s%d, 0x7ff00000", s_oob)
    a.e("s_mov_b32 s%d, 0x%x", s_thr, THR)

    def kk_of(i, dst):
        a.e("s_add_u32 s%d, s%d, %d", dst, s_kk0, i)
        a.e("s_and_b32 s%d, s%d, 7", dst, dst)
    def wq_lds(step):
        return step * 16384
    def w_dma(step):
        for hf in range(2):
            kk_of(step, s_t0)
            a.e("s_lshl_b32 s%d, s%d, 19", s_t0, s_t0)
            a.e("s_add_u32 m0, s%d, %d", s_wm0, wq_lds(step) + hf * 8192)
            a.e("s_add_u32 s%d, s%d, s%d", s_t0, s_t0, s_wof)
            if hf: a.e("s_add_u32 s%d, s%d, 128", s_t0, s_t0)
            a.e("buffer_load_dwordx4 v%d, s[%d:%d], s%d offen lds", v_wdma, S_WQ, S_WQ + 3, s_t0)
            vm.issue(("W", step))
    def xn_load(step):
        kk_of(step, s_t1)
        a.e("s_lshl_b32 s%d, s%d, 11", s_t1, s_t1)
        a.e("s_add_u32 s%d, s%d, s%d", s_t1, s_t1, s_xn)
        a.e("s_add_u32 s%d, s%d, 16384", s_t2, s_t1)
        for u in range(2):
            for qb in range(2):
                r = XN + ((step * 2 + u) * 2 + qb) * 4
                a.e("buffer_load_dwordx4 v[%d:%d], v%d, s[%d:%d], s%d offen offset:%d", r, r + 3, v_l16, S_WS, S_WS + 3,
                    s_t1 if qb == 0 else s_t2, u * 1024)
                vm.issue(("x", step))
    def stage_addr_static(stage):
        a.e("s_add_u32 s%d, s%d, 0x%x", s_kof, s_hb, WS_K + (stage + 1) * 16384)
        a.e("s_add_u32 s%d, s%d, 0x%x", s_vof, s_hb, WS_V + max(stage, 0) * 16384)
        a.e("s_lshl_b32 s%d, s%d, 12", s_lslot, s_wl)
        a.e("s_add_u32 s%d, s%d, %d", s_lslot, s_lslot, (stage % 4) * SLOT if stage >= 0 else 4 * SLOT)
    def stage_loads(part, tag=None, track=True):
        L = []
        for i in range(4):
            def em(i=i):
                if i == 0:
                    a.e("s_add_u32 m0, s%d, %d", s_lslot, 0 if part == "K" else 16384)
                    a.e("s_nop 0")
                a.e("buffer_load_dwordx4 v%d, s[%d:%d], s%d offen offset:%d lds", v_l16, S_WS, S_WS + 3,
                    s_kof if part == "K" else s_vof, i * 1024)
                if track: vm.issue(tag)
            L.append(em)
        return L
    def only_A(fn):
        l = a.newlabel("LnA")
        a.e("s_cmp_eq_u32 s%d, 0", s_isA)
        a.e("s_cbranch_scc1 %s", l)
        fn()
        a.label(l)

    vmB = Cnt(a, "vmcnt", 63)
    class Both:
        def issue(self, tag, onlyA=False):
            pass
    def issue_both(tag):
        vmB.ops.append(tag)
    _issue = vm.issue
    state = {"A_only": False}
    def issue2(tag):
        _issue(tag)
        if not state["A_only"]: vmB.ops.append(tag)
    vm.issue = issue2
    def wait_common(tags):
        nA, nB = vm.need(tags), vmB.need(tags)
        if nA is None and nB is None: return
        if nA == nB or nB is None or nA is None:
            n = min(x for x in (nA, nB) if x is not None)
            a.e("s_waitcnt vmcnt(%d)", n)
        else:
            l1, l2 = a.newlabel("Lw"), a.newlabel("Lw")
            a.e("s_cmp_eq_u32 s%d, 0", s_isA)
            a.e("s_cbranch_scc1 %s", l1)
            a.e("s_waitcnt vmcnt(%d)", nA)
            a.e("s_branch %s", l2)
            a.label(l1)
            a.e("s_waitcnt vmcnt(%d)", nB)
            a.label(l2)
        for tr, n in ((vm, nA), (vmB, nB)):
            if n is not None: tr.ops = tr.ops[len(tr.ops) - n:] if n > 0 else []
    def a_loads(stage):
        def fn():
            state["A_only"] = True
            stage_addr_static(stage)
            for em in stage_loads("K", ("st", stage)): em()
            if stage >= 0:
                for em in stage_loads("V", ("st", stage)): em()
            state["A_only"] = False
        only_A(fn)

    for s in range(3):
        w_dma(s); xn_load(s)
    a_loads(-1)
    st.mark()
    a.e("v_bfe_u32 v%d, v%d, 2, 2", v_t, v_lane)
    a.e("v_lshlrev_b32 v%d, 6, v%d", v_t, v_t)
    a.e("v_and_b32 v%d, 3, v%d", v_t + 1, v_lane)
    a.e("v_lshl_add_u32 v%d, v%d, 3, v%d", v_t, v_t + 1, v_t)
    a.e("v_lshrrev_b32 v%d, 4, v%d", v_t + 1, v_lane)
    a.e("v_lshl_add_u32 v%d, v%d, 10, v%d", v_t, v_t + 1, v_t)
    a.e("v_and_b32 v%d, 1, v%d", v_t + 1, v_t + 1)
    a.e("v_lshl_add_u32 v%d, v%d, 5, v%d", v_trE, v_t + 1, v_t)
    a.e("v_xor_b32 v%d, 32, v%d", v_trO, v_trE)
    a.e("v_add_u32 v%d, 0x10000, v%d", v_rd, v_trE)
    a.e("v_add_u32 v%d, 0x10000, v%d", v_rdn, v_trO)
    a.e("v_and_b32 v%d, 31, v%d", v_qrel, v_lane)
    a.e("s_lshl_b32 s%d, s%d, 5", s_t0, s_qb)
    a.e("v_add_u32 v%d, s%d, v%d", v_qrel, s_t0, v_qrel)
    a.e("v_lshrrev_b32 v%d, 5, v%d", v_t, v_lane)
    a.e("v_lshlrev_b32 v%d, 2, v%d", v_t, v_t)
    a.e("v_sub_u32 v%d, v%d, v%d", v_qrel, v_qrel, v_t)

    qfr = []
    for s in range(8):
        for u in range(2):
            for cb in range(8):
                off = wq_lds(s) - (65536 if s >= 4 else 0) + (cb >> 2) * 8192 + u * 4096 + ((cb >> 1) & 1) * 512
                dg = cb >> 1
                accs = [ACC + ((dg * 2 + qb) * 2 + (cb & 1)) * 4 for qb in range(2)]
                xfs = [XN + ((s * 2 + u) * 2 + qb) * 4 for qb in range(2)]
                qfr.append((s, off, cb & 1, accs, xfs, s == 0 and u == 0))
    def w_read(gi):
        s, off, odd, accs, xfs, first = qfr[gi]
        r = WF + (gi % NRW) * 4
        base = (v_trO if odd else v_trE) if s < 4 else (v_rdn if odd else v_rd)
        for t in range(2):
            a.e("ds_read_b64_tr_b16 v[%d:%d], v%d offset:%d", r + 2 * t, r + 2 * t + 1, base, off + t * 256)
            lg.issue(("W", gi))
    wait_common([("W", 0), ("W", 1), ("x", 0)])
    a.e("s_barrier")
    st.mark()
    PRE = NRW - 1
    for gi in range(PRE): w_read(gi)
    for gi, (s, off, odd, accs, xfs, first) in enumerate(qfr):
        k = gi % 16
        if k == 0:
            if s > 0: a.e("s_barrier")
            if s + 3 < 8:
                w_dma(s + 3); xn_load(s + 3)
            if s in (2, 4, 6): a_loads(s // 2 - 1)
        if gi + PRE < len(qfr): w_read(gi + PRE)
        lg.wait(("W", gi))
        wf = WF + (gi % NRW) * 4
        for qb in range(2):
            d, xf = accs[qb], xfs[qb]
            c = "0" if first else "v[%d:%d]" % (d, d + 3)
            a.e("v_mfma_f32_16x16x32_bf16 v[%d:%d], v[%d:%d], v[%d:%d], %s", d, d + 3, wf, wf + 3, xf, xf + 3, c)
        if k == 11 and s + 1 < 8:
            tags = [("x", s + 1)] + ([("W", s + 2)] if s + 2 < 8 else [])
            wait_common(tags)
    st.mark()
    a.e("s_nop 7")
    a.e("s_mov_b32 s%d, 0x%x", s_t0, QSCALE)
    for i in range(64):
        a.e("v_mul_f32 v%d, s%d, v%d", ACC + i, s_t0, ACC + i)
    for blk in range(8):
        for i in range(4):
            a.e("v_cvt_pk_bf16_f32 v%d, v%d, v%d", Q + blk * 4 + i, ACC + blk * 8 + 2 * i, ACC + blk * 8 + 2 * i + 1)
    a.e("s_nop 1")
    for dg in range(4):
        for i in range(4):
            a.e("v_permlane16_swap_b32 v%d, v%d", Q + (dg * 2) * 4 + i, Q + (dg * 2 + 1) * 4 + i)
    wait_common([("st", -1), ("st", 0)])
    a.e("s_barrier")
    for i in range(64): a.e("v_mov_b32 v%d, 0", O + i)
    a.e("v_mov_b32 v%d, 0", v_l)
    a.e("v_mov_b32 v%d, 0xff800000", v_ninf)
    a.e("s_mov_b32 s%d, 0", s_cur)
    a.e("v_mov_b32 v%d, v%d", v_rd, v_l16)
    a.e("s_mov_b32 s%d, 3", s_ld)
    a.e("s_mov_b32 s%d, %d", s_lst, 3 * SLOT)
    st.mark()

    def dyn_stage_setup():
        L = []
        L.append("s_lshl_b32 s%d, s%d, 14" % (s_t0, s_ld))
        L.append("s_add_u32 s%d, s%d, s%d" % (s_t0, s_t0, s_hb))
        L.append("s_add_u32 s%d, s%d, 0x%x" % (s_kof, s_t0, WS_K + 16384))
        L.append("s_add_u32 s%d, s%d, 0x%x" % (s_vof, s_t0, WS_V))
        L.append("s_cmp_lt_u32 s%d, s%d" % (s_ld, s_TB))
        L.append("s_cselect_b32 s%d, s%d, s%d" % (s_kof, s_kof, s_oob))
        L.append("s_cselect_b32 s%d, s%d, s%d" % (s_vof, s_vof, s_oob))
        L.append("s_lshl_b32 s%d, s%d, 12" % (s_lslot, s_wl))
        L.append("s_add_u32 s%d, s%d, s%d" % (s_lslot, s_lslot, s_lst))
        return L
    def dyn_stage_advance():
        return ["s_add_u32 s%d, s%d, 1" % (s_ld, s_ld),
                "s_add_u32 s%d, s%d, %d" % (s_lst, s_lst, SLOT),
                "s_and_b32 s%d, s%d, %d" % (s_lst, s_lst, 4 * SLOT - 1)]
    def kfrag_off(b, ks): return (b * 8 + ks) * 1024
    def vfrag_off(b, s_, db): return 16384 + (b * 8 + s_ * 4 + db) * 1024
    seq = []
    for ks in range(8): seq.append(("QK", 0, ks, kfrag_off(0, ks)))
    for s_ in range(2):
        for db in range(4): seq.append(("PV", 0, (s_, db), vfrag_off(0, s_, db)))
    for ks in range(8): seq.append(("QK", 1, ks, kfrag_off(1, ks)))
    for s_ in range(2):
        for db in range(4): seq.append(("PV", 1, (s_, db), vfrag_off(1, s_, db)))
    def mfma(item, reg, c0=None):
        kind, b, idx, off = item
        if kind == "QK":
            c = ("v[%d:%d]" % (NEGM, NEGM + 15) if c0 is None else c0) if idx == 0 else "v[%d:%d]" % (S[b], S[b] + 15)
            a.e("v_mfma_f32_32x32x16_bf16 v[%d:%d], v[%d:%d], v[%d:%d], %s", S[b], S[b] + 15, reg, reg + 3, Q + idx * 4, Q + idx * 4 + 3, c)
        else:
            s_, db = idx
            a.e("v_mfma_f32_32x32x16_bf16 v[%d:%d], v[%d:%d], v[%d:%d], v[%d:%d]", O + db * 16, O + db * 16 + 15, reg, reg + 3,
                P[b] + 4 * s_, P[b] + 4 * s_ + 3, O + db * 16, O + db * 16 + 15)
    def sm_stream(b):
        L = []
        for r in range(17):
            if r < 16: L.append((r, 0, "v_exp_f32 v%d, v%d" % (TT + r % 4, S[b] + r)))
            if r == 2: L.append((r, 1, "v_add_f32 v%d, v%d, v%d" % (v_ps[b], TT + 0, TT + 1)))
            elif r >= 3: L.append((r, 1, "v_add_f32 v%d, v%d, v%d" % (v_ps[b], v_ps[b], TT + (r - 1) % 4)))
            if r >= 2 and r % 2 == 0:
                i = r // 2 - 1
                L.append((r, 2, "v_cvt_pk_bf16_f32 v%d, v%d, v%d" % (P[b] + i, TT + (2 * i) % 4, TT + (2 * i + 1) % 4)))
        return L
    def sm_plain(b, lo=0, hi=16):
        for r in range(lo, hi + 1):
            for (rr, pos, ins) in sm_stream(b):
                if rr == r: a.e(ins)
            if r == 15 or r == hi: a.e("s_nop 0")
    START = [12, 28]
    stubs = []
    def cmp_ps(b): a.e("v_cmp_lt_f32 vcc, s%d, v%d", s_thr, v_ps[b])
    def br_slow(b, tag, replay):
        lab = "%s_chk%d_%s" % (name, b, tag)
        a.e("s_cbranch_vccnz %s", lab)
        a.label(lab + "_ret")
        stubs.append((lab, "%s_slow%d_%d" % (name, b, replay), lab + "_ret"))
    def ladd(b): a.e("v_add_f32 v%d, v%d, v%d", v_l, v_l, v_ps[b])

    def emit_mask(b, tile_expr_off):
        a.e("s_add_u32 s%d, s%d, %d", s_kb, s_t, tile_expr_off)
        a.e("s_lshl_b32 s%d, s%d, 6", s_kb, s_kb)
        a.e("s_add_u32 s%d, s%d, %d", s_kb, s_kb, 32 * b)
        a.e("v_subrev_u32 v%d, s%d, v%d", v_D, s_kb, v_qrel)
        for r0 in range(0, 16, 4):
            for j in range(4):
                r = r0 + j; i = r >> 2
                cst = 16 * (i & 1) + 8 * (i >> 1) + (r & 3)
                a.e("v_cmp_le_i32 s[%d:%d], %d, v%d", s_m + 2 * j, s_m + 2 * j + 1, cst, v_D)
            a.e("s_nop 1")
            for j in range(4):
                r = r0 + j
                a.e("v_cndmask_b32 v%d, v%d, v%d, s[%d:%d]", S[b] + r, v_ninf, S[b] + r, s_m + 2 * j, s_m + 2 * j + 1)

    def max16(dst, regs):
        a.e("v_max3_f32 v%d, v%d, v%d, v%d", dst, regs[0], regs[1], regs[2])
        i = 3
        while i < len(regs):
            if i + 1 < len(regs):
                a.e("v_max3_f32 v%d, v%d, v%d, v%d", dst, dst, regs[i], regs[i + 1]); i += 2
            else:
                a.e("v_max_f32 v%d, v%d, v%d", dst, dst, regs[i]); i += 1
    def crosshalf_max(r, t):
        a.e("v_mov_b32 v%d, v%d", t, r)
        a.e("s_nop 1")
        a.e("v_permlane32_swap_b32 v%d, v%d", r, t)
        a.e("s_nop 1")
        a.e("v_max_f32 v%d, v%d, v%d", r, r, t)

    def kv_read(i, base):
        item = seq[i % 32]
        r = RING + (i % NR) * 4
        a.e("ds_read_b128 v[%d:%d], v%d offset:%d", r, r + 3, base, item[3])

    def preloop(tag):
        for b in range(2):
            for ks in range(8):
                r = RING + (8 * b + ks) * 4
                a.e("ds_read_b128 v[%d:%d], v%d offset:%d", r, r + 3, v_rdn, kfrag_off(b, ks))
            for ks in range(8):
                a.e("s_waitcnt lgkmcnt(%d)", 7 - ks)
                mfma(("QK", b, ks, 0), RING + (8 * b + ks) * 4, c0="0")
        for i in range(PD): kv_read(i, v_rd)
        a.e("s_nop 3")
        l = a.newlabel("Lpm")
        a.e("s_cmp_lg_u32 s%d, 2", s_T)
        a.e("s_cbranch_scc1 %s", l)
        a.e("s_mov_b32 s%d, -1", s_t)
        for b in range(2): emit_mask(b, 1)
        a.label(l)
        max16(v_mx, [S[0] + i for i in range(16)])
        max16(v_f, [S[1] + i for i in range(16)])
        a.e("v_max_f32 v%d, v%d, v%d", v_mx, v_mx, v_f)
        crosshalf_max(v_mx, v_f)
        for b in range(2):
            for i in range(16):
                a.e("v_sub_f32 v%d, v%d, v%d", S[b] + i, S[b] + i, v_mx)
        for i in range(16):
            a.e("v_sub_f32 v%d, 0, v%d", NEGM + i, v_mx)
        sm_plain(0)
        sm_plain(1, 0, 3)
        a.e("s_waitcnt lgkmcnt(0)")

    def iteration(tag, masked):
        tg = tag + ("m" if masked else "")
        top = "%s_loop%s" % (name, tg)
        streams = {}
        for b in range(2):
            for (r, pos, ins) in sm_stream(b):
                streams.setdefault(((START[b] + r) % 32, pos), []).append(ins)
        misc = {k: [] for k in range(32)}
        misc[1].append("s_waitcnt lgkmcnt(4)"); misc[9].append("s_waitcnt lgkmcnt(4)")
        misc[17].append("s_waitcnt lgkmcnt(4)"); misc[25].append("s_waitcnt lgkmcnt(4)")
        misc[3].append(lambda: ladd(0)); misc[21].append(lambda: ladd(1))
        misc[5].append("s_add_u32 s%d, s%d, %d" % (s_cur, s_cur, SLOT))
        misc[7].append("s_and_b32 s%d, s%d, %d" % (s_cur, s_cur, 4 * SLOT - 1))
        if tag == "A": misc[13].append("s_waitcnt vmcnt(8)")
        if "nobar" not in exp: misc[13].append("s_barrier")
        misc[15].append(lambda: br_slow(1, tg, 3))
        misc[19].append("v_add_u32 v%d, s%d, v%d" % (v_rd, s_cur, v_l16))
        misc[31].append(lambda: br_slow(0, tg, 3))
        if masked: misc[23].append("s_add_u32 s%d, s%d, 1" % (s_t, s_t))
        if tag == "A":
            setup = dyn_stage_setup()
            ld = stage_loads("K", track=False) + stage_loads("V", track=False)
            adv = dyn_stage_advance()
            for l_ in setup[:5]: misc[14].append(l_)
            for l_ in setup[5:]: misc[16].append(l_)
            for i, em in enumerate(ld): misc[[18, 20, 22, 23, 24, 26, 27, 28][i]].append(em)
            for l_ in adv: misc[29].append(l_)
        a(".p2align 3")
        a.label(top)
        for k in range(32):
            mfma(seq[k], RING + (k % NR) * 4)
            if "nords" not in exp: kv_read(k + PD, v_rd)
            if masked and k == START[0]: emit_mask(0, 1)
            if masked and k == START[1]: emit_mask(1, 0)
            for pos in range(3):
                if pos == 1 and k == 29: cmp_ps(0)
                if pos == 1 and k == 13: cmp_ps(1)
                for ins in streams.get((k, pos), []):
                    if "nosm" in exp: continue
                    a.e(ins)
            for m_ in misc[k]:
                if callable(m_): m_()
                else: a.e(m_)
        a.e("s_sub_u32 s%d, s%d, 1", s_cnt, s_cnt)
        a.e("s_cbranch_scc0 %s", top)

    def mainloop(tag):
        lsk = a.newlabel("Lsk")
        a.e("s_mov_b32 s%d, 0", s_t)
        a.e("s_mov_b32 s%d, 0", s_n)
        a.e("s_cmp_lt_u32 s%d, 4", s_T)
        a.e("s_cbranch_scc1 %s", lsk)
        a.e("s_sub_u32 s%d, s%d, 4", s_cnt, s_T)
        iteration(tag, False)
        a.e("s_sub_u32 s%d, s%d, 3", s_t, s_T)
        a.e("s_mov_b32 s%d, 1", s_n)
        a.label(lsk)
        a.e("s_mov_b32 s%d, s%d", s_cnt, s_n)
        iteration(tag, True)

    def final(tag):
        a.e("s_waitcnt lgkmcnt(0)")
        pv = [it for it in seq if it[0] == "PV"]
        for i in range(12):
            r = RING + i * 4
            a.e("ds_read_b128 v[%d:%d], v%d offset:%d", r, r + 3, v_rd, pv[i][3])
        ladd(0)
        sm_plain(1, 4, 16)
        cmp_ps(1)
        a.e("s_nop 1")
        br_slow(1, "fin" + tag, 9)
        ladd(1)
        for i in range(16):
            if i % 4 == 0:
                a.e("s_waitcnt lgkmcnt(%d)", {0: 8, 4: 8, 8: 4, 12: 0}[i])
            mfma(pv[i], RING + i * 4)
            if i < 4:
                r = RING + (12 + i) * 4
                a.e("ds_read_b128 v[%d:%d], v%d offset:%d", r, r + 3, v_rd, pv[12 + i][3])
        a.e("v_mov_b32 v%d, v%d", v_f, v_l)
        a.e("s_nop 1")
        a.e("v_permlane32_swap_b32 v%d, v%d", v_l, v_f)
        a.e("s_nop 1")
        a.e("v_add_f32 v%d, v%d, v%d", v_l, v_l, v_f)
        a.e("v_rcp_f32 v%d, v%d", v_l, v_l)
        a.e("s_lshl_b32 s%d, s%d, 5", s_t0, s_qb)
        a.e("s_add_u32 s%d, s%d, s%d", s_t0, s_t0, s_h)
        a.e("s_lshl_b32 s%d, s%d, 13", s_t0, s_t0)
        a.e("s_add_u32 s%d, s%d, 0x%x", s_t0, s_t0, WS_CTX)
        a.e("s_add_u32 s%d, s%d, 4096", s_t1, s_t0)
        a.e("s_nop 7")
        for db in range(4):
            for hfz in range(2):
                base = O + db * 16 + hfz * 8
                for i in range(8):
                    a.e("v_mul_f32 v%d, v%d, v%d", base + i, base + i, v_l)
                for i in range(4):
                    a.e("v_cvt_pk_bf16_f32 v%d, v%d, v%d", base + i, base + 2 * i, base + 2 * i + 1)
                ds = 2 * db + hfz
                a.e("buffer_store_dwordx4 v[%d:%d], v%d, s[%d:%d], s%d offen offset:%d", base, base + 3, v_l16, S_WS, S_WS + 3,
                    s_t0 if ds < 4 else s_t1, (ds & 3) * 1024)

    LA = name + "_roleA"
    a.e("v_add_u32 v%d, %d, v%d", v_rdn, 4 * SLOT, v_l16)
    a.e("s_cmp_lg_u32 s%d, 0", s_isA)
    a.e("s_cbranch_scc1 %s", LA)
    if "prioB" in exp: a.e("s_setprio 1")
    preloop("B")
    st.mark()
    mainloop("B")
    st.mark()
    final("B")
    if diag:
        a.e("s_waitcnt vmcnt(0)")
        st.mark()
        st.dump(S_WS, s_w, 8, s_t0)
    a.e("s_endpgm")
    a.label(LA)
    preloop("A")
    mainloop("A")
    final("A")
    a.e("s_mov_b32 s%d, 0", s_n)
    ll = name + "_ldloop"
    a.label(ll)
    a.e("s_cmp_lt_u32 s%d, 2", s_n)
    a.e("s_cbranch_scc1 %s_w16", ll)
    a.e("s_waitcnt vmcnt(8)")
    a.e("s_branch %s_go", ll)
    a.label(ll + "_w16")
    a.e("s_waitcnt vmcnt(16)")
    a.label(ll + "_go")
    if "nobar" not in exp: a.e("s_barrier")
    for l in dyn_stage_setup(): a.e(l)
    for em in stage_loads("K", track=False) + stage_loads("V", track=False): em()
    for l in dyn_stage_advance(): a.e(l)
    a.e("s_add_u32 s%d, s%d, 1", s_n, s_n)
    a.e("s_add_u32 s%d, s%d, s%d", s_t0, s_n, s_T)
    a.e("s_cmp_lt_u32 s%d, s%d", s_t0, s_TB)
    a.e("s_cbranch_scc1 %s", ll)
    a.label(name + "_end")
    a.e("s_endpgm")

    done = set()
    for (lab, target, ret) in stubs:
        a.label(lab)
        a.e("s_call_b64 s[%d:%d], %s", s_ret, s_ret + 1, target)
        a.e("s_branch %s", ret)
    for (lab, target, ret) in stubs:
        if target in done: continue
        done.add(target)
        b = int(target.split("_slow")[1][0]); replay = int(target.split("_slow")[1][2:])
        a.label(target)
        a.e("s_nop 15")
        max16(v_mx, [S[b] + i for i in range(16)])
        crosshalf_max(v_mx, v_f)
        a.e("v_ceil_f32 v%d, v%d", v_mx, v_mx)
        a.e("v_max_f32 v%d, 0, v%d", v_mx, v_mx)
        a.e("v_sub_f32 v%d, 0, v%d", v_f, v_mx)
        a.e("v_exp_f32 v%d, v%d", v_f, v_f)
        a.e("s_nop 0")
        for i in range(64): a.e("v_mul_f32 v%d, v%d, v%d", O + i, O + i, v_f)
        a.e("v_mul_f32 v%d, v%d, v%d", v_l, v_l, v_f)
        if replay == 9:
            o = 1 - b
            for i in range(8):
                a.e("v_lshlrev_b32 v%d, 16, v%d", U, P[o] + i)
                a.e("v_and_b32 v%d, 0xffff0000, v%d", U + 1, P[o] + i)
                a.e("v_mul_f32 v%d, v%d, v%d", U, U, v_f)
                a.e("v_mul_f32 v%d, v%d, v%d", U + 1, U + 1, v_f)
                a.e("v_cvt_pk_bf16_f32 v%d, v%d, v%d", P[o] + i, U, U + 1)
        for bb in range(2):
            for i in range(16): a.e("v_sub_f32 v%d, v%d, v%d", S[bb] + i, S[bb] + i, v_mx)
        for i in range(16): a.e("v_sub_f32 v%d, v%d, v%d", NEGM + i, NEGM + i, v_mx)
        sm_plain(b)
        if replay != 9: sm_plain(1 - b, 0, replay)
        a.e("s_nop 1")
        a.e("s_setpc_b64 s[%d:%d]", s_ret, s_ret + 1)
```

```python
from gen_common import *

def gen_k35(a, kind, name, kidx, diag=False, exp=""):
    kernel_begin(a, name)
    st = Stamps(a, diag, kidx, base=56, maxn=10)
    vm = Cnt(a, "vmcnt", 63); lg = Cnt(a, "lgkmcnt", 15)
    proj = kind == "proj"
    NKS = 32 if proj else 14
    ACT_QB = 256 * 1024 if proj else 112 * 1024
    WS_ACT = WS_CTX if proj else WS_F
    S_W, S_WS, S_X, S_O, S_B = 4, 8, 12, 16, 20
    s_w, s_rt, s_ct, s_t0, s_t1, s_t2, s_a0, s_a1, s_wb, s_m0, s_rot = 24, 25, 26, 27, 28, 29, 30, 31, 32, 33, 34
    v_lane, v_l16, v_wd, v_tr, v_t = 0, 1, 2, 3, 4
    ACC = 64
    DEPTH = 6 if proj else 7
    AF = 128
    WFR = 16
    LDSW = DEPTH * 2048

    a.e("s_cmp_ge_u32 s2, 256")
    a.e("s_cbranch_scc1 %s_end", name)
    st.mark()
    if proj:
        a.e("s_load_dwordx2 s[4:5], s[0:1], %d", A_WO)
        a.e("s_load_dwordx2 s[12:13], s[0:1], %d", A_X)
    else:
        a.e("s_load_dwordx2 s[4:5], s[0:1], %d", B_W2)
        a.e("s_load_dwordx2 s[16:17], s[0:1], %d", OUT)
        a.e("s_load_dwordx2 s[20:21], s[0:1], %d", B_B2)
    a.e("s_load_dwordx2 s[8:9], s[0:1], %d", WS)
    a.e("v_lshrrev_b32 v%d, 6, v0", v_t)
    a.e("v_and_b32 v%d, 63, v0", v_lane)
    a.e("v_readfirstlane_b32 s%d, v%d", s_w, v_t)
    a.e("s_and_b32 s%d, s2, 31", s_rt)
    a.e("s_lshr_b32 s%d, s2, 5", s_ct)
    a.e("v_lshlrev_b32 v%d, 4, v%d", v_l16, v_lane)
    a.e("v_lshrrev_b32 v%d, 5, v%d", v_t, v_lane)
    a.e("v_bfe_u32 v%d, v%d, 2, 2", v_t + 1, v_lane)
    a.e("v_lshl_add_u32 v%d, v%d, 2, v%d", v_t, v_t, v_t + 1)
    a.e("v_lshlrev_b32 v%d, 10, v%d", v_wd, v_t)
    a.e("v_bfe_u32 v%d, v%d, 4, 1", v_t, v_lane)
    a.e("v_lshl_add_u32 v%d, v%d, 6, v%d", v_wd, v_t, v_wd)
    a.e("v_and_b32 v%d, 3, v%d", v_t, v_lane)
    a.e("v_lshl_add_u32 v%d, v%d, 4, v%d", v_wd, v_t, v_wd)
    a.e("v_lshrrev_b32 v%d, 5, v%d", v_t, v_lane)
    a.e("v_lshlrev_b32 v%d, 9, v%d", v_tr, v_t)
    a.e("v_bfe_u32 v%d, v%d, 2, 2", v_t, v_lane)
    a.e("v_lshl_add_u32 v%d, v%d, 6, v%d", v_tr, v_t, v_tr)
    a.e("v_bfe_u32 v%d, v%d, 4, 1", v_t, v_lane)
    a.e("v_lshl_add_u32 v%d, v%d, 5, v%d", v_tr, v_t, v_tr)
    a.e("v_and_b32 v%d, 3, v%d", v_t, v_lane)
    a.e("v_lshl_add_u32 v%d, v%d, 3, v%d", v_tr, v_t, v_tr)
    a.e("s_mul_i32 s%d, s%d, %d", s_m0, s_w, LDSW)
    a.e("v_add_u32 v%d, s%d, v%d", v_tr, s_m0, v_tr)
    a.e("s_waitcnt lgkmcnt(0)")
    srd(a, S_W, S_W, (4096 if proj else 1792) * 1024); srd(a, S_WS, S_WS, WS_BYTES)
    if proj: srd(a, S_X, S_X, 2 << 20)
    else:
        srd(a, S_O, S_O, 2 << 20); srd(a, S_B, S_B, 1024)
    a.e("s_mul_i32 s%d, s%d, %d", s_a0, s_rt, 2 * ACT_QB)
    a.e("s_mul_i32 s%d, s%d, %d", s_t0, s_w, NKS * 1024)
    a.e("s_add_u32 s%d, s%d, s%d", s_a0, s_a0, s_t0)
    a.e("s_add_u32 s%d, s%d, 0x%x", s_a0, s_a0, WS_ACT)
    a.e("s_add_u32 s%d, s%d, %d", s_a1, s_a0, ACT_QB)
    a.e("s_mul_i32 s%d, s%d, %d", s_wb, s_w, NKS * 16384)
    a.e("s_lshl_b32 s%d, s%d, 7", s_t0, s_ct)
    a.e("s_add_u32 s%d, s%d, s%d", s_wb, s_wb, s_t0)

    def loads(ks):
        sl = ks % DEPTH
        a.e("s_add_u32 s%d, s%d, %d", s_t0, s_wb, ks * 16384)
        a.e("s_add_u32 m0, s%d, %d", s_m0, sl * 2048)
        a.e("s_add_u32 s%d, s%d, 8192", s_t1, s_t0)
        a.e("buffer_load_dwordx4 v%d, s[%d:%d], s%d offen lds", v_wd, S_W, S_W + 3, s_t0)
        vm.issue(("w", ks))
        a.e("s_add_u32 m0, s%d, %d", s_m0, sl * 2048 + 1024)
        a.e("s_add_u32 s%d, s%d, %d", s_t2, s_a0, ks * 1024)
        a.e("buffer_load_dwordx4 v%d, s[%d:%d], s%d offen lds", v_wd, S_W, S_W + 3, s_t1)
        vm.issue(("w", ks))
        a.e("s_add_u32 s%d, s%d, %d", s_t1, s_a1, ks * 1024)
        r = AF + sl * 8
        a.e("buffer_load_dwordx4 v[%d:%d], v%d, s[%d:%d], s%d offen", r, r + 3, v_l16, S_WS, S_WS + 3, s_t2)
        vm.issue(("a", ks))
        a.e("buffer_load_dwordx4 v[%d:%d], v%d, s[%d:%d], s%d offen", r + 4, r + 7, v_l16, S_WS, S_WS + 3, s_t1)
        vm.issue(("a", ks))
    def wreads(ks):
        sl = ks % DEPTH
        for fb in range(2):
            r = WFR + (ks & 1) * 8 + fb * 4
            for t in range(2):
                a.e("ds_read_b64_tr_b16 v[%d:%d], v%d offset:%d", r + 2 * t, r + 2 * t + 1, v_tr, sl * 2048 + t * 1024 + fb * 256)
                lg.issue(("w", ks))

    for ks in range(min(DEPTH, NKS)): loads(ks)
    st.mark()
    vm.wait([("w", 0), ("a", 0)])
    wreads(0)
    for ks in range(NKS):
        if ks + 1 < NKS:
            vm.wait([("w", ks + 1), ("a", ks + 1)])
            wreads(ks + 1)
        lg.wait(("w", ks))
        sl = ks % DEPTH
        for fb in range(2):
            for qb in range(2):
                d = ACC + (fb * 2 + qb) * 16
                wf = WFR + (ks & 1) * 8 + fb * 4
                af = AF + sl * 8 + qb * 4
                c = "0" if ks == 0 else "v[%d:%d]" % (d, d + 15)
                a.e("v_mfma_f32_32x32x16_bf16 v[%d:%d], v[%d:%d], v[%d:%d], %s", d, d + 15, wf, wf + 3, af, af + 3, c)
        if ks + DEPTH < NKS:
            loads(ks + DEPTH)
    st.mark()
    a.e("s_barrier")
    a.e("s_lshl_b32 s%d, s%d, 14", s_t0, s_w)
    a.e("v_add_u32 v%d, s%d, v%d", v_t, s_t0, v_l16)
    a.e("s_nop 7")
    for tile in range(4):
        for i in range(4):
            r = ACC + tile * 16 + i * 4
            a.e("ds_write_b128 v%d, v[%d:%d] offset:%d", v_t, r, r + 3, (tile * 4 + i) * 1024)
    s_fb, s_qb, s_s, s_row, s_f16 = 36, 37, 38, 39, 40
    a.e("s_lshr_b32 s%d, s%d, 2", s_fb, s_w)
    a.e("s_bfe_u32 s%d, s%d, 0x10001", s_qb, s_w)
    a.e("s_and_b32 s%d, s%d, 1", s_s, s_w)
    a.e("s_lshl_b32 s%d, s%d, 1", s_row, s_rt)
    a.e("s_add_u32 s%d, s%d, s%d", s_row, s_row, s_qb)
    a.e("s_lshl_b32 s%d, s%d, 2", s_f16, s_ct)
    a.e("s_lshl_b32 s%d, s%d, 1", s_t0, s_fb)
    a.e("s_add_u32 s%d, s%d, s%d", s_f16, s_f16, s_t0)
    a.e("s_add_u32 s%d, s%d, s%d", s_f16, s_f16, s_s)
    R0 = 16
    v_q, v_hf = 8, 9
    a.e("v_and_b32 v%d, 31, v%d", v_q, v_lane)
    a.e("v_lshrrev_b32 v%d, 5, v%d", v_hf, v_lane)
    if proj:
        a.e("v_lshlrev_b32 v%d, 10, v%d", 10, v_q)
        a.e("v_lshl_add_u32 v%d, v%d, 3, v%d", 10, v_hf, 10)
        a.e("s_lshl_b32 s%d, s%d, 15", s_t0, s_row)
        a.e("s_lshl_b32 s%d, s%d, 5", s_t1, s_f16)
        a.e("s_add_u32 s%d, s%d, s%d", s_t0, s_t0, s_t1)
        a.e("buffer_load_dwordx2 v[%d:%d], v10, s[%d:%d], s%d offen", R0, R0 + 1, S_X, S_X + 3, s_t0)
        a.e("buffer_load_dwordx2 v[%d:%d], v10, s[%d:%d], s%d offen offset:16", R0 + 2, R0 + 3, S_X, S_X + 3, s_t0)
    else:
        a.e("s_lshl_b32 s%d, s%d, 5", s_t0, s_row)
        a.e("s_add_u32 s%d, s%d, s%d", s_t0, s_t0, s_f16)
        a.e("s_lshl_b32 s%d, s%d, 10", s_t0, s_t0)
        a.e("s_add_u32 s%d, s%d, 0x%x", s_t0, s_t0, WS_H)
        a.e("buffer_load_dwordx4 v[%d:%d], v%d, s[%d:%d], s%d offen", R0, R0 + 3, v_l16, S_WS, S_WS + 3, s_t0)
        a.e("v_lshlrev_b32 v10, 3, v%d", v_hf)
        a.e("s_lshl_b32 s%d, s%d, 5", s_t1, s_f16)
        a.e("buffer_load_dwordx2 v[%d:%d], v10, s[%d:%d], s%d offen", R0 + 4, R0 + 5, S_B, S_B + 3, s_t1)
        a.e("buffer_load_dwordx2 v[%d:%d], v10, s[%d:%d], s%d offen offset:16", R0 + 6, R0 + 7, S_B, S_B + 3, s_t1)
    a.e("s_waitcnt lgkmcnt(0)")
    a.e("s_barrier")
    a.e("s_lshr_b32 s%d, s%d, 1", s_t0, s_w)
    a.e("s_lshl_b32 s%d, s%d, 2", s_t0, s_t0)
    a.e("s_lshl_b32 s%d, s%d, 1", s_t1, s_s)
    a.e("s_add_u32 s%d, s%d, s%d", s_t0, s_t0, s_t1)
    a.e("s_lshl_b32 s%d, s%d, 10", s_t0, s_t0)
    a.e("v_add_u32 v%d, s%d, v%d", v_t, s_t0, v_l16)
    a.e("v_add_u32 v%d, 0x10000, v%d", v_t + 1, v_t)
    PR = 64
    for p in range(8):
        for u in range(2):
            r = PR + (p * 2 + u) * 4
            a.e("ds_read_b128 v[%d:%d], v%d offset:%d", r, r + 3, v_t if p < 4 else v_t + 1, (p & 3) * 16384 + u * 1024)
        if p == 3: a.e("s_waitcnt lgkmcnt(0)")
    a.e("s_waitcnt lgkmcnt(0)")
    for p in range(1, 8):
        for e in range(8):
            a.e("v_add_f32 v%d, v%d, v%d", PR + e, PR + e, PR + p * 8 + e)
    A = PR
    a.e("s_waitcnt vmcnt(0)")
    F = 32
    def unpack(src, n, dst):
        for i in range(n):
            a.e("v_lshlrev_b32 v%d, 16, v%d", dst + 2 * i, src + i)
            a.e("v_and_b32 v%d, 0xffff0000, v%d", dst + 2 * i + 1, src + i)
    if proj:
        unpack(R0, 4, F)
        for e in range(8): a.e("v_add_f32 v%d, v%d, v%d", A + e, A + e, F + e)
        for i in range(4): a.e("v_cvt_pk_bf16_f32 v%d, v%d, v%d", F + 8 + i, A + 2 * i, A + 2 * i + 1)
        a.e("s_lshl_b32 s%d, s%d, 5", s_t0, s_row)
        a.e("s_add_u32 s%d, s%d, s%d", s_t0, s_t0, s_f16)
        a.e("s_lshl_b32 s%d, s%d, 10", s_t1, s_t0)
        a.e("s_add_u32 s%d, s%d, 0x%x", s_t1, s_t1, WS_H)
        a.e("buffer_store_dwordx4 v[%d:%d], v%d, s[%d:%d], s%d offen", F + 8, F + 11, v_l16, S_WS, S_WS + 3, s_t1)
        unpack(F + 8, 4, F)
        a.e("v_add_f32 v%d, v%d, v%d", A, F, F + 1)
        for e in range(2, 8): a.e("v_add_f32 v%d, v%d, v%d", A, A, F + e)
        a.e("v_mov_b32 v%d, v%d", A + 1, A)
        a.e("s_nop 1")
        a.e("v_permlane32_swap_b32 v%d, v%d", A, A + 1)
        a.e("s_nop 1")
        a.e("v_add_f32 v%d, v%d, v%d", A, A, A + 1)
        a.e("v_mul_f32 v%d, 0x3d800000, v%d", A, A)
        for e in range(8): a.e("v_sub_f32 v%d, v%d, v%d", F + e, F + e, A)
        a.e("v_mul_f32 v%d, v%d, v%d", A + 1, F, F)
        for e in range(1, 8): a.e("v_fmac_f32 v%d, v%d, v%d", A + 1, F + e, F + e)
        a.e("v_mov_b32 v%d, v%d", A + 2, A + 1)
        a.e("s_nop 1")
        a.e("v_permlane32_swap_b32 v%d, v%d", A + 1, A + 2)
        a.e("s_nop 1")
        a.e("v_add_f32 v%d, v%d, v%d", A + 1, A + 1, A + 2)
        a.e("s_lshl_b32 s%d, s%d, 8", s_t1, s_t0)
        a.e("s_add_u32 s%d, s%d, 0x%x", s_t1, s_t1, WS_ST)
        a.e("v_lshlrev_b32 v10, 3, v%d", v_q)
        a.e("v_cmp_gt_u32 vcc, 32, v%d", v_lane)
        a.e("s_and_saveexec_b64 s[42:43], vcc")
        a.e("buffer_store_dwordx2 v[%d:%d], v10, s[%d:%d], s%d offen", A, A + 1, S_WS, S_WS + 3, s_t1)
        a.e("s_mov_b64 exec, s[42:43]")
    else:
        unpack(R0, 4, F)
        for e in range(8): a.e("v_add_f32 v%d, v%d, v%d", A + e, A + e, F + e)
        unpack(R0 + 4, 4, F)
        for e in range(8): a.e("v_add_f32 v%d, v%d, v%d", A + e, A + e, F + e)
        for i in range(4): a.e("v_cvt_pk_bf16_f32 v%d, v%d, v%d", F + i, A + 2 * i, A + 2 * i + 1)
        a.e("s_nop 1")
        a.e("v_permlane32_swap_b32 v%d, v%d", F, F + 2)
        a.e("v_permlane32_swap_b32 v%d, v%d", F + 1, F + 3)
        a.e("v_lshlrev_b32 v10, 10, v%d", v_q)
        a.e("v_lshl_add_u32 v10, v%d, 4, v10", v_hf)
        a.e("s_lshl_b32 s%d, s%d, 15", s_t0, s_row)
        a.e("s_lshl_b32 s%d, s%d, 5", s_t1, s_f16)
        a.e("s_add_u32 s%d, s%d, s%d", s_t0, s_t0, s_t1)
        a.e("buffer_store_dwordx4 v[%d:%d], v10, s[%d:%d], s%d offen", F, F + 3, S_O, S_O + 3, s_t0)
    if diag:
        a.e("s_waitcnt vmcnt(0)")
        st.mark()
        st.dump(S_WS, s_w, 10, s_t0)
    a.label(name + "_end")
    a.e("s_endpgm")
```

```python
from gen_common import *

def gen_k4(a, name="ffn1_kernel", kidx=3, diag=False, exp=""):
    kernel_begin(a, name)
    st = Stamps(a, diag, kidx, base=56, maxn=10)
    vm = Cnt(a, "vmcnt", 63); lg = Cnt(a, "lgkmcnt", 15)
    S_W, S_WS, S_B = 4, 8, 12
    s_w, s_rt, s_ct, s_t0, s_t1, s_t2, s_hb, s_wb, s_m0, s_qb = 16, 17, 18, 19, 20, 21, 22, 23, 24, 25
    v_lane, v_l16, v_wd, v_tr, v_t, v_hf, v_q = 0, 1, 2, 3, 4, 8, 9
    HF = 128
    ACC = 64
    WFR, NRW = 16, 6
    ST = 40
    ROW = 3584

    a.e("s_cmp_ge_u32 s2, 224")
    a.e("s_cbranch_scc1 %s_end", name)
    st.mark()
    a.e("s_load_dwordx4 s[4:7], s[0:1], %d", B_W1)
    a.e("s_load_dwordx2 s[8:9], s[0:1], %d", WS)
    a.e("v_lshrrev_b32 v%d, 6, v0", v_t)
    a.e("v_and_b32 v%d, 63, v0", v_lane)
    a.e("v_readfirstlane_b32 s%d, v%d", s_w, v_t)
    a.e("s_and_b32 s%d, s2, 15", s_rt)
    a.e("s_lshr_b32 s%d, s2, 4", s_ct)
    a.e("v_lshlrev_b32 v%d, 4, v%d", v_l16, v_lane)
    a.e("v_lshrrev_b32 v%d, 5, v%d", v_hf, v_lane)
    a.e("v_and_b32 v%d, 31, v%d", v_q, v_lane)
    a.e("v_bfe_u32 v%d, v%d, 2, 2", v_t, v_lane)
    a.e("s_movk_i32 s%d, %d", s_t0, ROW)
    a.e("v_mul_lo_u32 v%d, v%d, s%d", v_wd, v_t, s_t0)
    a.e("v_lshrrev_b32 v%d, 4, v%d", v_t, v_lane)
    a.e("v_lshl_add_u32 v%d, v%d, 6, v%d", v_wd, v_t, v_wd)
    a.e("v_and_b32 v%d, 3, v%d", v_t, v_lane)
    a.e("v_lshl_add_u32 v%d, v%d, 4, v%d", v_wd, v_t, v_wd)
    a.e("v_lshlrev_b32 v%d, 10, v%d", v_tr, v_hf)
    a.e("v_bfe_u32 v%d, v%d, 2, 2", v_t, v_lane)
    a.e("v_lshl_add_u32 v%d, v%d, 6, v%d", v_tr, v_t, v_tr)
    a.e("v_bfe_u32 v%d, v%d, 4, 1", v_t, v_lane)
    a.e("v_lshl_add_u32 v%d, v%d, 5, v%d", v_tr, v_t, v_tr)
    a.e("v_and_b32 v%d, 3, v%d", v_t, v_lane)
    a.e("v_lshl_add_u32 v%d, v%d, 3, v%d", v_tr, v_t, v_tr)
    a.e("v_add_u32 v%d, 0x10000, v%d", v_t + 1, v_tr)
    a.e("s_waitcnt lgkmcnt(0)")
    a.e("s_mov_b32 s12, s6"); a.e("s_mov_b32 s13, s7")
    srd(a, S_W, S_W, 512 * ROW); srd(a, S_WS, S_WS, WS_BYTES); srd(a, S_B, S_B, 1792 * 2)
    a.e("s_lshl_b32 s%d, s%d, 2", s_qb, s_rt)
    a.e("s_add_u32 s%d, s%d, s%d", s_qb, s_qb, s_w)
    a.e("s_lshl_b32 s%d, s%d, 15", s_hb, s_qb)
    a.e("s_add_u32 s%d, s%d, 0x%x", s_hb, s_hb, WS_H)
    a.e("s_mul_i32 s%d, s%d, %d", s_wb, s_w, 4 * ROW)
    a.e("s_lshl_b32 s%d, s%d, 8", s_t0, s_ct)
    a.e("s_add_u32 s%d, s%d, s%d", s_wb, s_wb, s_t0)
    a.e("s_lshl_b32 s%d, s%d, 10", s_m0, s_w)
    def wdma(i):
        a.e("s_add_u32 m0, s%d, %d", s_m0, i * 4096)
        a.e("s_add_u32 s%d, s%d, %d", s_t0, s_wb, i * 16 * ROW)
        a.e("buffer_load_dwordx4 v%d, s[%d:%d], s%d offen lds", v_wd, S_W, S_W + 3, s_t0)
        vm.issue(("w", i // 8))
    def hload(ks):
        r = HF + ks * 4
        a.e("s_add_u32 s%d, s%d, %d", s_t1, s_hb, (ks >> 2) * 4096)
        a.e("buffer_load_dwordx4 v[%d:%d], v%d, s[%d:%d], s%d offen offset:%d", r, r + 3, v_l16, S_WS, S_WS + 3, s_t1, (ks & 3) * 1024)
        vm.issue(("h", ks // 8))
    def phase_loads(p):
        for i in range(8):
            wdma(8 * p + i); hload(8 * p + i)
    phase_loads(0)
    a.e("v_lshlrev_b32 v%d, 3, v%d", v_t, v_q)
    a.e("v_lshl_add_u32 v%d, v%d, 12, v%d", v_t, v_hf, v_t)
    a.e("s_lshl_b32 s%d, s%d, 13", s_t0, s_qb)
    a.e("s_add_u32 s%d, s%d, 0x%x", s_t0, s_t0, WS_ST)
    SG = 64
    for g in range(16):
        a.e("buffer_load_dwordx2 v[%d:%d], v%d, s[%d:%d], s%d offen offset:%d", SG + 2 * g, SG + 2 * g + 1, v_t, S_WS, S_WS + 3, s_t0, g * 256)
        vm.issue("st")
    phase_loads(1)
    st.mark()
    vm.wait("st")
    MEAN, RSTD, TM = ST, ST + 1, ST + 2
    a.e("v_add_f32 v%d, v%d, v%d", MEAN, SG, SG + 2)
    for g in range(2, 16): a.e("v_add_f32 v%d, v%d, v%d", MEAN, MEAN, SG + 2 * g)
    a.e("v_mov_b32 v%d, v%d", TM, MEAN)
    a.e("s_nop 1")
    a.e("v_permlane32_swap_b32 v%d, v%d", MEAN, TM)
    a.e("s_nop 1")
    a.e("v_add_f32 v%d, v%d, v%d", MEAN, MEAN, TM)
    a.e("v_mul_f32 v%d, 0x3d000000, v%d", MEAN, MEAN)
    a.e("v_add_f32 v%d, v%d, v%d", RSTD, SG + 1, SG + 3)
    for g in range(2, 16): a.e("v_add_f32 v%d, v%d, v%d", RSTD, RSTD, SG + 2 * g + 1)
    for g in range(16): a.e("v_sub_f32 v%d, v%d, v%d", SG + 2 * g, SG + 2 * g, MEAN)
    a.e("v_mul_f32 v%d, v%d, v%d", TM, SG, SG)
    for g in range(1, 16): a.e("v_fmac_f32 v%d, v%d, v%d", TM, SG + 2 * g, SG + 2 * g)
    a.e("v_fmac_f32 v%d, 0x41800000, v%d", RSTD, TM)
    a.e("v_mov_b32 v%d, v%d", TM, RSTD)
    a.e("s_nop 1")
    a.e("v_permlane32_swap_b32 v%d, v%d", RSTD, TM)
    a.e("s_nop 1")
    a.e("v_add_f32 v%d, v%d, v%d", RSTD, RSTD, TM)
    a.e("v_mov_b32 v%d, 0x3727c5ac", TM)
    a.e("v_fmac_f32 v%d, 0x3b000000, v%d", TM, RSTD)
    a.e("v_rsq_f32 v%d, v%d", RSTD, TM)
    a.e("s_nop 0")
    NMR = ST + 2
    a.e("v_mul_f32 v%d, v%d, v%d", NMR, MEAN, RSTD)
    a.e("v_sub_f32 v%d, 0, v%d", NMR, NMR)
    phase_loads(2)
    frs = [(ks, cb) for ks in range(32) for cb in range(4)]
    def w_read(gi):
        ks, cb = frs[gi]
        r = WFR + (gi % NRW) * 4
        for t in range(2):
            off = (4 * ks + 2 * t) * 1024 + cb * 256
            base = v_tr if off < 65536 else v_t + 1
            a.e("ds_read_b64_tr_b16 v[%d:%d], v%d offset:%d", r + 2 * t, r + 2 * t + 1, base, off & 0xffff)
            lg.issue(("w", gi))
    PRE = NRW - 1
    for gi, (ks, cb) in enumerate(frs):
        if gi % 32 == 0:
            p = gi // 32
            lg.waitall()
            vm.wait([("w", p), ("h", p)])
            a.e("s_barrier")
            if p == 0:
                st.mark()
                phase_loads(3)
            for j in range(PRE): w_read(gi + j)
        if (gi + PRE) // 32 == gi // 32: w_read(gi + PRE)
        lg.wait(("w", gi))
        wf = WFR + (gi % NRW) * 4
        d = ACC + cb * 16
        c = "0" if ks == 0 else "v[%d:%d]" % (d, d + 15)
        a.e("v_mfma_f32_32x32x16_bf16 v[%d:%d], v[%d:%d], v[%d:%d], %s", d, d + 15, wf, wf + 3, HF + ks * 4, HF + ks * 4 + 3, c)
    st.mark()
    CS = 128
    B1 = 192
    a.e("v_lshlrev_b32 v%d, 4, v%d", v_t, v_hf)
    a.e("s_lshl_b32 s%d, s%d, 9", s_t0, s_ct)
    a.e("s_add_u32 s%d, s%d, 0x%x", s_t0, s_t0, WS_CS)
    a.e("s_nop 7")
    for cb in range(4):
        for i in range(4):
            r = CS + cb * 16 + i * 4
            a.e("buffer_load_dwordx4 v[%d:%d], v%d, s[%d:%d], s%d offen offset:%d", r, r + 3, v_t, S_WS, S_WS + 3, s_t0, cb * 128 + i * 32)
    a.e("v_lshlrev_b32 v%d, 3, v%d", v_t, v_hf)
    a.e("s_lshl_b32 s%d, s%d, 8", s_t0, s_ct)
    BR = 16
    BR = 96 + 32
    for cb in range(4):
        for i in range(4):
            r = B1 + cb * 16 + i * 4 + 2
            a.e("buffer_load_dwordx2 v[%d:%d], v%d, s[%d:%d], s%d offen offset:%d", r, r + 1, v_t, S_B, S_B + 3, s_t0, cb * 64 + i * 16)
    a.e("s_waitcnt vmcnt(0)")
    for cb in range(4):
        for i in range(4):
            r = B1 + cb * 16 + i * 4
            a.e("v_lshlrev_b32 v%d, 16, v%d", r, r + 2)
            a.e("v_and_b32 v%d, 0xffff0000, v%d", r + 1, r + 2)
            a.e("v_lshlrev_b32 v%d, 16, v%d", r + 2, r + 3)
            a.e("v_and_b32 v%d, 0xffff0000, v%d", r + 3, r + 3)
    a.e("s_mul_i32 s%d, s%d, %d", s_t0, s_qb, 112 * 1024)
    a.e("s_lshl_b32 s%d, s%d, 13", s_t1, s_ct)
    a.e("s_add_u32 s%d, s%d, s%d", s_t0, s_t0, s_t1)
    a.e("s_add_u32 s%d, s%d, 0x%x", s_t0, s_t0, WS_F)
    a.e("s_add_u32 s%d, s%d, 4096", s_t1, s_t0)
    for cb in range(4):
        for hz in range(2):
            base = ACC + cb * 16 + hz * 8
            for e in range(8):
                r = cb * 16 + hz * 8 + e
                a.e("v_fma_f32 v%d, v%d, v%d, v%d", B1 + r, CS + r, NMR, B1 + r)
                a.e("v_fma_f32 v%d, v%d, v%d, v%d", base + e, base + e, RSTD, B1 + r)
                a.e("v_max_f32 v%d, 0, v%d", base + e, base + e)
                a.e("v_mul_f32 v%d, v%d, v%d", base + e, base + e, base + e)
            for i in range(4):
                a.e("v_cvt_pk_bf16_f32 v%d, v%d, v%d", base + i, base + 2 * i, base + 2 * i + 1)
            ds = 2 * cb + hz
            a.e("buffer_store_dwordx4 v[%d:%d], v%d, s[%d:%d], s%d offen offset:%d", base, base + 3, v_l16, S_WS, S_WS + 3,
                s_t0 if ds < 4 else s_t1, (ds & 3) * 1024)
    if diag:
        a.e("s_waitcnt vmcnt(0)")
        st.mark()
        st.dump(S_WS, s_w, 10, s_t2)
    a.label(name + "_end")
    a.e("s_endpgm")
```

```python
import sys
from gen_common import *
from gen_k1 import gen_k1
from gen_k2 import gen_k2
from gen_k35 import gen_k35
from gen_k4 import gen_k4

def header(a, launches):
    hdr = open("sequential_preLN__compressed_kv_cla__dense_activation_squared_relu__prompt.s.ref").read().split("\n")
    for l in hdr:
        if l.startswith("; Override launch"): break
        a(l)
    for (k, g, b, lds) in launches:
        a("; @launch kernel=%s grid=(%d,1,1) block=(%d,1,1) lds=%d" % (k, g, b, lds))
    a('.amdgcn_target "amdgcn-amd-amdhsa--gfx950"')
    a(".text")

def main(out, which, diag=False, exp=''):
    a = Asm()
    L = []
    if "1" in which: L.append(("kv_kernel", 256, 512, 131072 + 8192 + 1024))
    if "2" in which: L.append(("attn_kernel", 256, 512, 147456))
    if "3" in which: L.append(("proj_kernel", 256, 512, 131072))
    if "4" in which: L.append(("ffn1_kernel", 224, 256, 131072))
    if "5" in which: L.append(("ffn2_kernel", 256, 512, 131072))
    header(a, L)
    descs = []
    if "1" in which:
        gen_k1(a, diag=diag, exp=exp); descs.append(("kv_kernel", 256, 102))
    if "2" in which:
        gen_k2(a, diag=diag, exp=exp, thr_log2=(2 if "thr" in exp else 40)); descs.append(("attn_kernel", 256, 102))
    if "3" in which:
        gen_k35(a, "proj", "proj_kernel", 2, diag=diag, exp=exp); descs.append(("proj_kernel", 256, 102))
    if "4" in which:
        gen_k4(a, "ffn1_kernel", 3, diag=diag, exp=exp); descs.append(("ffn1_kernel", 256, 102))
    if "5" in which:
        gen_k35(a, "ffn2", "ffn2_kernel", 4, diag=diag, exp=exp); descs.append(("ffn2_kernel", 256, 102))
    a('.section .rodata,"a"')
    for (n, v, s) in descs:
        a(kernel_desc(n, v, s))
    open(out, "w").write(a.text())

if __name__ == "__main__":
    main(sys.argv[1], sys.argv[2], len(sys.argv) > 3 and sys.argv[3] == 'diag', sys.argv[4] if len(sys.argv) > 4 else '')
```

```python
from asmlib import *

A_X, A_CKV, A_WQ, A_WUK, A_WUV, A_WO, B_X, B_W1, B_B1, B_W2, B_B2, OUT, DBG, WS = [8*i for i in range(14)]

WS_K    = 0
WS_V    = 16 << 20
WS_CTX  = 32 << 20
WS_XN   = 48 << 20
WS_H    = 50 << 20
WS_F    = 52 << 20
WS_HN   = 62 << 20
WS_P    = 64 << 20
WS_CS   = 60 << 20
WS_ST   = 61 << 20
WS_STAMP= 100 << 20
WS_BYTES = 268435456

def srd(a, s, ptr_s, nbytes):
    if ptr_s != s:
        a.e("s_mov_b32 s%d, s%d", s, ptr_s)
        a.e("s_mov_b32 s%d, s%d", s + 1, ptr_s + 1)
    a.e("s_mov_b32 s%d, 0x%x", s + 2, nbytes)
    a.e("s_mov_b32 s%d, 0x20000", s + 3)

def rowsum16(a, regs):
    steps = ["quad_perm:[1,0,3,2]", "quad_perm:[2,3,0,1]", "row_half_mirror", "row_mirror"]
    for st in steps:
        if len(regs) < 3:
            a.e("s_nop 1")
        for r in regs:
            a.e("v_add_f32_dpp v%d, v%d, v%d %s row_mask:0xf bank_mask:0xf", r, r, r, st)

def allsum64(a, r, t):
    rowsum16(a, [r])
    a.e("v_mov_b32 v%d, v%d", t, r)
    a.e("s_nop 1")
    a.e("v_permlane16_swap_b32 v%d, v%d", r, t)
    a.e("s_nop 1")
    a.e("v_add_f32 v%d, v%d, v%d", r, r, t)
    a.e("v_mov_b32 v%d, v%d", t, r)
    a.e("s_nop 1")
    a.e("v_permlane32_swap_b32 v%d, v%d", r, t)
    a.e("s_nop 1")
    a.e("v_add_f32 v%d, v%d, v%d", r, r, t)


class Stamps:
    def __init__(self, a, enabled, kidx, base=48, maxn=12):
        self.a, self.en, self.kidx, self.base, self.n, self.maxn = a, enabled, kidx, base, 0, maxn
    def mark(self):
        if not self.en: return
        assert self.n < self.maxn
        self.a.e("s_memrealtime s[%d:%d]", self.base + 4 * self.n, self.base + 4 * self.n + 1)
        self.a.e("s_memtime s[%d:%d]", self.base + 4 * self.n + 2, self.base + 4 * self.n + 3)
        self.n += 1
    def dump(self, s_ws, s_w, vtmp, stmp, wave=0):
        if not self.en: return
        a = self.a
        l = a.newlabel("Lst")
        a.e("s_cmp_lg_u32 s%d, %d", s_w, wave)
        a.e("s_cbranch_scc1 %s", l)
        a.e("s_waitcnt lgkmcnt(0)")
        a.e("s_lshl_b32 s%d, s2, 7", stmp)
        a.e("s_add_u32 s%d, s%d, 0x%x", stmp, stmp, WS_STAMP + self.kidx * 65536)
        a.e("v_mov_b32 v%d, 0", vtmp + 1)
        for i in range(self.n):
            a.e("v_mov_b32 v%d, s%d", vtmp, self.base + 4 * i)
            a.e("buffer_store_dword v%d, v%d, s[%d:%d], s%d offen offset:%d", vtmp, vtmp + 1, s_ws, s_ws + 3, stmp, 8 * i)
            a.e("s_nop 1")
            a.e("v_mov_b32 v%d, s%d", vtmp, self.base + 4 * i + 2)
            a.e("buffer_store_dword v%d, v%d, s[%d:%d], s%d offen offset:%d", vtmp, vtmp + 1, s_ws, s_ws + 3, stmp, 8 * i + 4)
            a.e("s_nop 1")
        a.label(l)

class Cnt:
    def __init__(self, a, name, maxn):
        self.a, self.name, self.maxn, self.ops = a, name, maxn, []
    def issue(self, tag):
        self.ops.append(tag)
        assert len(self.ops) <= self.maxn, "too many outstanding %s: %d" % (self.name, len(self.ops))
    def need(self, tags):
        if not isinstance(tags, (list, set)): tags = [tags]
        idx = -1
        for i, t in enumerate(self.ops):
            if t in tags: idx = i
        if idx < 0: return None
        return len(self.ops) - 1 - idx
    def wait(self, tags):
        n = self.need(tags)
        if n is None: return
        self.a.e("s_waitcnt %s(%d)", self.name, n)
        self.ops = self.ops[len(self.ops) - n:] if n > 0 else []
    def waitall(self):
        if self.ops:
            self.a.e("s_waitcnt %s(0)", self.name)
        self.ops = []

STORE_POLICY = {"v": ""}
_old_e = Asm.e
def _e(self, fmt, *a):
    line = (fmt % a if a else fmt)
    if STORE_POLICY["v"] and line.startswith("buffer_store_dwordx4") :
        line += " " + STORE_POLICY["v"]
    self.lines.append("  " + line)
Asm.e = _e

def l2_prefetch(a, karg, total, nwg_x, nwaves, s_idx, s_w, S_N, s_t0, s_t1, v_l16, vdst, base=0, s_extra=None):
    per = total // nwg_x
    n_i = per // nwaves // 1024
    assert per % (nwaves * 1024) == 0
    a.e("s_load_dwordx2 s[%d:%d], s[0:1], %d", S_N, S_N + 1, karg[0])
    a.e("s_mul_i32 s%d, s%d, %d", s_t0, s_idx, per)
    a.e("s_mul_i32 s%d, s%d, %d", s_t1, s_w, n_i * 1024)
    a.e("s_add_u32 s%d, s%d, s%d", s_t0, s_t0, s_t1)
    if s_extra is not None: a.e("s_add_u32 s%d, s%d, s%d", s_t0, s_t0, s_extra)
    a.e("s_waitcnt lgkmcnt(0)")
    srd(a, S_N, S_N, karg[1])
    L = []
    for i in range(n_i):
        if i and i % 4 == 0: L.append("s_add_u32 s%d, s%d, 4096" % (s_t0, s_t0))
        L.append("buffer_load_dwordx4 v[%d:%d], v%d, s[%d:%d], s%d offen offset:%d" % (vdst + 4 * (i % 4), vdst + 3 + 4 * (i % 4), v_l16, S_N, S_N + 3, s_t0, (i & 3) * 1024))
    return L
```

```python
from gen_common import *
import math, struct
QSCALE_BITS = struct.unpack('<I', struct.pack('<f', math.log2(math.e) / math.sqrt(128.0)))[0]
import gen_common

def gen_k1(a, name="kv_kernel", diag=False, exp=""):
    kernel_begin(a, name)
    st = Stamps(a, diag, 0)
    vm = Cnt(a, "vmcnt", 63); lg = Cnt(a, "lgkmcnt", 15)
    S_X, S_C, S_WUK, S_WUV, S_W1, S_WS = 4, 8, 12, 16, 20, 24
    s_h, s_j, s_w, s_t0, s_t1, s_t2, s_kk0, s_wof, s_kst, s_vst, s_oct = 28, 29, 30, 31, 32, 33, 34, 35, 36, 37, 38
    s_c0, s_wm0, s_cm0, s_t3 = 39, 40, 41, 42
    v_lane, v_wdma, v_cdE, v_cdO, v_trE, v_trO, v_cr0, v_cr1, v_kst, v_vst, v_t = 0, 1, 2, 3, 4, 5, 6, 7, 8, 9, 10
    WF, NRING = 12, 5
    ACCA, ACCB, CF = 32, 96, 128
    LDS_W, LDS_C, LDS_SCR = 0, 65536, 131072
    T = ACCB

    a.e("s_cmp_ge_u32 s2, 256")
    a.e("s_cbranch_scc1 %s_end", name)
    st.mark()
    a.e("s_load_dwordx4 s[4:7], s[0:1], %d", A_X)
    a.e("s_load_dwordx4 s[12:15], s[0:1], %d", A_WUK)
    a.e("s_load_dwordx2 s[24:25], s[0:1], %d", WS)
    a.e("s_load_dwordx2 s[20:21], s[0:1], %d", A_WQ)
    a.e("v_lshrrev_b32 v%d, 6, v0", v_t)
    a.e("v_mov_b32 v%d, v0", T + 31)
    a.e("v_readfirstlane_b32 s%d, v%d", s_w, v_t)
    a.e("v_and_b32 v%d, 63, v0", v_lane)
    v_x16, v_g = T + 29, T + 30
    a.e("v_and_b32 v%d, 15, v%d", v_x16, v_lane)
    a.e("v_lshrrev_b32 v%d, 4, v%d", v_g, v_lane)
    a.e("s_and_b32 s%d, s2, 31", s_h)
    a.e("s_lshr_b32 s%d, s2, 5", s_j)
    a.e("s_lshr_b32 s%d, s%d, 3", s_t0, s_h)
    a.e("s_lshl_b32 s%d, s%d, 1", s_t0, s_t0)
    a.e("s_add_u32 s%d, s%d, s%d", s_kk0, s_t0, s_j)
    a.e("s_and_b32 s%d, s%d, 7", s_kk0, s_kk0)
    if "norot" in exp: a.e("s_mov_b32 s%d, 0", s_kk0)
    a.e("v_bfe_u32 v%d, v%d, 2, 2", v_t, v_lane)
    a.e("v_bfe_u32 v%d, v%d, 4, 1", v_t + 1, v_lane)
    a.e("v_lshl_add_u32 v%d, v%d, 2, v%d", v_t, v_t + 1, v_t)
    a.e("v_lshlrev_b32 v%d, 13, v%d", v_t, v_t)
    a.e("s_and_b32 s%d, s%d, 1", s_t0, s_w)
    a.e("s_lshl_b32 s%d, s%d, 1", s_t0, s_t0)
    a.e("v_and_b32 v%d, 3, v%d", v_t + 1, v_lane)
    a.e("v_xor_b32 v%d, s%d, v%d", v_t + 1, s_t0, v_t + 1)
    a.e("v_lshrrev_b32 v%d, 5, v%d", v_wdma, v_lane)
    a.e("v_lshl_add_u32 v%d, v%d, 2, v%d", v_t + 1, v_wdma, v_t + 1)
    a.e("v_lshl_add_u32 v%d, v%d, 4, v%d", v_wdma, v_t + 1, v_t)
    a.e("v_lshrrev_b32 v%d, 3, v%d", v_t, v_lane)
    a.e("v_lshrrev_b32 v%d, 1, v%d", v_t + 1, v_t)
    a.e("v_and_b32 v%d, 7, v%d", v_cdE, v_lane)
    a.e("v_xor_b32 v%d, v%d, v%d", v_cdE, v_cdE, v_t + 1)
    a.e("v_lshlrev_b32 v%d, 4, v%d", v_cdE, v_cdE)
    a.e("v_lshl_add_u32 v%d, v%d, 10, v%d", v_cdE, v_t, v_cdE)
    a.e("v_xor_b32 v%d, 64, v%d", v_cdO, v_cdE)
    a.e("s_waitcnt lgkmcnt(0)")
    st.mark()
    a.e("s_mov_b32 s8, s6"); a.e("s_mov_b32 s9, s7")
    a.e("s_mov_b32 s16, s14"); a.e("s_mov_b32 s17, s15")
    srd(a, S_X, S_X, 2 << 20); srd(a, S_C, S_C, 2 << 20)
    srd(a, S_WUK, S_WUK, 4 << 20); srd(a, S_WUV, S_WUV, 4 << 20)
    srd(a, S_WS, S_WS, WS_BYTES); srd(a, S_W1, S_W1, 4 << 20)
    a.e("s_lshl_b32 s%d, s%d, 16", s_wof, s_w)
    a.e("s_lshl_b32 s%d, s%d, 8", s_t0, s_h)
    a.e("s_add_u32 s%d, s%d, s%d", s_wof, s_wof, s_t0)
    a.e("s_lshl_b32 s%d, s%d, 10", s_wm0, s_w)
    a.e("s_lshl_b32 s%d, s%d, 18", s_c0, s_j)
    a.e("s_lshl_b32 s%d, s%d, 15", s_t0, s_w)
    a.e("s_add_u32 s%d, s%d, s%d", s_c0, s_c0, s_t0)
    a.e("s_lshl_b32 s%d, s%d, 13", s_cm0, s_w)
    a.e("s_add_u32 s%d, s%d, %d", s_cm0, s_cm0, LDS_C)

    def kk_of(i, dst):
        a.e("s_add_u32 s%d, s%d, %d", dst, s_kk0, i)
        a.e("s_and_b32 s%d, s%d, 7", dst, dst)
    def w_dma(step):
        slot = step & 3
        L = []
        for hf in range(2):
            if step < 8:
                S, kki, col = S_WUK, step, hf * 128
            else:
                cv = (step - 8) >> 2
                S, kki, col = S_WUV, 2 * ((step - 8) & 3) + hf, cv * 128
            def em(S=S, kki=kki, col=col, hf=hf):
                kk_of(kki, s_t0)
                a.e("s_lshl_b32 s%d, s%d, 19", s_t0, s_t0)
                a.e("s_add_u32 m0, s%d, %d", s_wm0, LDS_W + slot * 16384 + hf * 8192)
                a.e("s_add_u32 s%d, s%d, s%d", s_t0, s_t0, s_wof)
                if col: a.e("s_add_u32 s%d, s%d, %d", s_t0, s_t0, col)
                a.e("buffer_load_dwordx4 v%d, s[%d:%d], s%d offen lds", v_wdma, S, S + 3, s_t0)
                vm.issue(("W", step))
            L.append(em)
        return L
    def c_dma(step):
        slot = step & 1
        L = []
        for q in range(4):
            def em(q=q):
                if q == 0:
                    kk_of(step, s_t1)
                    a.e("s_lshl_b32 s%d, s%d, 7", s_t1, s_t1)
                    a.e("s_add_u32 s%d, s%d, s%d", s_t1, s_t1, s_c0)
                else:
                    a.e("s_add_u32 s%d, s%d, 8192", s_t1, s_t1)
                a.e("s_add_u32 m0, s%d, %d", s_cm0, slot * 4096 + q * 1024)
                a.e("s_nop 0")
                a.e("buffer_load_dwordx4 v%d, s[%d:%d], s%d offen lds", v_cdE if (q & 1) == 0 else v_cdO, S_C, S_C + 3, s_t1)
                vm.issue(("c", step))
            L.append(em)
        return L

    for em in c_dma(0) + w_dma(0): em()
    a.e("s_lshl_b32 s%d, s2, 3", s_t0)
    a.e("s_add_u32 s%d, s%d, s%d", s_t0, s_t0, s_w)
    a.e("s_lshl_b32 s%d, s%d, 10", s_t0, s_t0)
    a.e("v_lshlrev_b32 v%d, 4, v%d", v_t, v_lane)
    a.e("buffer_load_dwordx4 v[%d:%d], v%d, s[%d:%d], s%d offen", T, T + 3, v_t, S_X, S_X + 3, s_t0)
    vm.issue("x")
    for em in c_dma(1) + w_dma(1): em()
    for em in w_dma(2): em()
    st.mark()

    a.e("v_bfe_u32 v%d, v%d, 2, 2", v_t, v_lane)
    a.e("v_lshlrev_b32 v%d, 6, v%d", v_t, v_t)
    a.e("v_and_b32 v%d, 3, v%d", v_t + 1, v_lane)
    a.e("v_lshl_add_u32 v%d, v%d, 3, v%d", v_t, v_t + 1, v_t)
    a.e("v_lshl_add_u32 v%d, v%d, 10, v%d", v_t, v_g, v_t)
    a.e("v_and_b32 v%d, 1, v%d", v_t + 1, v_g)
    a.e("v_lshl_add_u32 v%d, v%d, 5, v%d", v_trE, v_t + 1, v_t)
    a.e("v_xor_b32 v%d, 32, v%d", v_trO, v_trE)
    a.e("v_lshrrev_b32 v%d, 1, v%d", v_t, v_x16)
    a.e("v_xor_b32 v%d, v%d, v%d", v_t, v_t, v_g)
    a.e("v_lshlrev_b32 v%d, 4, v%d", v_t, v_t)
    a.e("v_lshl_add_u32 v%d, v%d, 7, v%d", v_t, v_x16, v_t)
    a.e("v_add_u32 v%d, s%d, v%d", v_cr0, s_cm0, v_t)
    a.e("v_xor_b32 v%d, 64, v%d", v_cr1, v_cr0)
    a.e("v_and_b32 v%d, 1, v%d", v_t, v_g)
    a.e("v_lshlrev_b32 v%d, 10, v%d", v_kst, v_t)
    a.e("v_lshrrev_b32 v%d, 1, v%d", v_t, v_g)
    a.e("v_lshl_add_u32 v%d, v%d, 9, v%d", v_kst, v_t, v_kst)
    a.e("v_lshrrev_b32 v%d, 3, v%d", v_t, v_x16)
    a.e("v_lshl_add_u32 v%d, v%d, 8, v%d", v_kst, v_t, v_kst)
    a.e("v_and_b32 v%d, 7, v%d", v_t, v_x16)
    a.e("v_lshl_add_u32 v%d, v%d, 4, v%d", v_kst, v_t, v_kst)
    a.e("v_lshrrev_b32 v%d, 1, v%d", v_t, v_g)
    a.e("v_lshlrev_b32 v%d, 12, v%d", v_vst, v_t)
    a.e("v_and_b32 v%d, 1, v%d", v_t, v_g)
    a.e("v_lshl_add_u32 v%d, v%d, 9, v%d", v_vst, v_t, v_vst)
    a.e("v_lshl_add_u32 v%d, v%d, 4, v%d", v_vst, v_x16, v_vst)
    a.e("s_lshl_b32 s%d, s%d, 19", s_kst, s_h)
    a.e("s_lshl_b32 s%d, s%d, 16", s_t0, s_j)
    a.e("s_add_u32 s%d, s%d, s%d", s_kst, s_kst, s_t0)
    a.e("s_lshl_b32 s%d, s%d, 13", s_t0, s_w)
    a.e("s_add_u32 s%d, s%d, s%d", s_kst, s_kst, s_t0)
    a.e("s_add_u32 s%d, s%d, 0x%x", s_vst, s_kst, WS_V)

    vm.wait("x")
    st.mark()
    F = T + 8
    for i in range(4):
        a.e("v_lshlrev_b32 v%d, 16, v%d", F + 2 * i, T + i)
        a.e("v_and_b32 v%d, 0xffff0000, v%d", F + 2 * i + 1, T + i)
    M, TT, V2, RS = T + 16, T + 17, T + 18, T + 19
    a.e("v_add_f32 v%d, v%d, v%d", M, F, F + 1)
    for i in range(2, 8):
        a.e("v_add_f32 v%d, v%d, v%d", M, M, F + i)
    allsum64(a, M, TT)
    a.e("v_mul_f32 v%d, 0x3b000000, v%d", M, M)
    for i in range(8):
        a.e("v_sub_f32 v%d, v%d, v%d", F + i, F + i, M)
    a.e("v_mul_f32 v%d, v%d, v%d", V2, F, F)
    for i in range(1, 8):
        a.e("v_fmac_f32 v%d, v%d, v%d", V2, F + i, F + i)
    allsum64(a, V2, TT)
    a.e("v_mov_b32 v%d, 0x3727c5ac", RS)
    a.e("v_fmac_f32 v%d, 0x3b000000, v%d", RS, V2)
    a.e("v_rsq_f32 v%d, v%d", RS, RS)
    a.e("s_nop 0")
    a.e("v_mul_f32 v%d, 0x%x, v%d", RS, QSCALE_BITS, RS)
    for i in range(8):
        a.e("v_mul_f32 v%d, v%d, v%d", F + i, F + i, RS)
    for i in range(4):
        a.e("v_cvt_pk_bf16_f32 v%d, v%d, v%d", T + i, F + 2 * i, F + 2 * i + 1)
    a.e("s_lshl_b32 s%d, s%d, 10", s_t0, s_w)
    a.e("s_add_u32 s%d, s%d, %d", s_t0, s_t0, LDS_SCR)
    a.e("v_lshl_add_u32 v%d, v%d, 4, s%d", v_t, v_lane, s_t0)
    a.e("ds_write_b128 v%d, v[%d:%d]", v_t, T, T + 3)
    st.mark()

    def c_reads(step):
        for u in range(2):
            for kb in range(2):
                r = CF + ((step * 2 + u) * 2 + kb) * 4
                a.e("ds_read_b128 v[%d:%d], v%d offset:%d", r, r + 3, v_cr0 if u == 0 else v_cr1, (step & 1) * 4096 + kb * 2048)
                lg.issue(("c", step))

    vm.wait([("c", 0), ("W", 0), ("W", 1), ("c", 1)])
    a.e("s_waitcnt lgkmcnt(0)")
    c_reads(0)
    st.mark()
    a.e("s_barrier")
    st.mark()
    a.e("v_and_b32 v%d, 7, v%d", v_t, v_lane)
    a.e("v_lshrrev_b32 v%d, 3, v%d", v_t + 1, v_lane)
    a.e("s_lshl_b32 s%d, s%d, 3", s_t0, s_w)
    a.e("v_add_u32 v%d, s%d, v%d", v_t + 1, s_t0, v_t + 1)
    a.e("v_lshlrev_b32 v%d, 10, v%d", F, v_t)
    a.e("v_lshl_add_u32 v%d, v%d, 4, v%d", F, v_t + 1, F)
    a.e("v_add_u32 v%d, %d, v%d", F, LDS_SCR, F)
    a.e("ds_read_b128 v[%d:%d], v%d", T, T + 3, F)
    a.e("v_lshrrev_b32 v%d, 2, v%d", F + 1, v_t + 1)
    a.e("v_lshlrev_b32 v%d, 10, v%d", F + 1, F + 1)
    a.e("v_and_b32 v%d, 3, v%d", v_t + 1, v_t + 1)
    a.e("v_lshl_add_u32 v%d, v%d, 8, v%d", F + 1, v_t + 1, F + 1)
    a.e("v_lshl_add_u32 v%d, v%d, 4, v%d", F + 1, v_t, F + 1)
    a.e("s_lshr_b32 s%d, s2, 1", s_t0)
    a.e("s_lshl_b32 s%d, s%d, 14", s_t0, s_t0)
    a.e("s_and_b32 s%d, s2, 1", s_t1)
    a.e("s_lshl_b32 s%d, s%d, 7", s_t1, s_t1)
    a.e("s_add_u32 s%d, s%d, s%d", s_t0, s_t0, s_t1)
    a.e("s_add_u32 s%d, s%d, 0x%x", s_t0, s_t0, WS_XN)
    a.e("s_waitcnt lgkmcnt(0)")
    lg.ops = []
    a.e("buffer_store_dwordx4 v[%d:%d], v%d, s[%d:%d], s%d offen", T, T + 3, F + 1, S_WS, S_WS + 3, s_t0)
    vm.issue("xn")
    def step_frags(step):
        L = []
        if step < 8:
            for u in range(2):
                for cb in range(8):
                    off = (cb >> 2) * 8192 + u * 4096 + ((cb >> 1) & 1) * 512
                    dg = cb >> 1
                    accs = [ACCA + ((dg * 2 + kb) * 2 + (cb & 1)) * 4 for kb in range(2)]
                    cfs = [CF + ((step * 2 + u) * 2 + kb) * 4 for kb in range(2)]
                    L.append((off, cb & 1, accs, cfs, step == 0 and u == 0))
        else:
            base = ACCB if step < 12 else ACCA
            i2 = (step - 8) & 3
            for hf in range(2):
                for u in range(2):
                    for cb in range(4):
                        off = hf * 8192 + u * 4096 + (cb >> 1) * 512
                        accs = [base + (cb * 2 + kb) * 4 for kb in range(2)]
                        ci = (2 * i2 + hf)
                        cfs = [CF + ((ci * 2 + u) * 2 + kb) * 4 for kb in range(2)]
                        L.append((off, cb & 1, accs, cfs, i2 == 0 and hf == 0 and u == 0))
        return L
    frags = [(s, f) for s in range(16) for f in step_frags(s)]
    def w_read(gi):
        s, (off, odd, accs, cfs, first) = frags[gi]
        r = WF + (gi % NRING) * 4
        for t in range(2):
            a.e("ds_read_b64_tr_b16 v[%d:%d], v%d offset:%d", r + 2 * t, r + 2 * t + 1, v_trO if odd else v_trE,
                LDS_W + (s & 3) * 16384 + off + t * 256)
            lg.issue(("W", gi))
    def epi(kind):
        L = []
        if kind == "K":
            for dg in range(4):
                for kb in range(2):
                    A = ACCA + (dg * 2 + kb) * 8
                    g = []
                    for i in range(4):
                        g.append("v_cvt_pk_bf16_f32 v%d, v%d, v%d" % (A + i, A + 2 * i, A + 2 * i + 1))
                    g.append("s_add_u32 s%d, s%d, %d" % (s_t2, s_kst, (dg >> 1) * 4096))
                    g.append(("st", "buffer_store_dwordx4 v[%d:%d], v%d, s[%d:%d], s%d offen offset:%d" % (A, A + 3, v_kst, S_WS, S_WS + 3, s_t2, kb * 128 + (dg & 1) * 2048)))
                    L += g
        else:
            cv = 0 if kind == "V0" else 1
            base = ACCB if cv == 0 else ACCA
            for cb in range(4):
                A = base + cb * 8
                for i in range(4):
                    L.append("v_cvt_pk_bf16_f32 v%d, v%d, v%d" % (A + i, A + 2 * i, A + 2 * i + 1))
                L.append("s_add_u32 s%d, s%d, %d" % (s_t2, s_vst, cv * 2048))
                L.append(("st", "buffer_store_dwordx4 v[%d:%d], v%d, s[%d:%d], s%d offen offset:%d" % (A, A + 3, v_vst, S_WS, S_WS + 3, s_t2, (cb >> 1) * 1024 + (cb & 1) * 256)))
        return L
    def emit_epi(x):
        if isinstance(x, tuple):
            a.e(x[1]); vm.issue("st")
        else:
            a.e(x)

    PRE = NRING - 1
    for gi in range(PRE): w_read(gi)
    pend_epi = []
    for gi, (s, (off, odd, accs, cfs, first)) in enumerate(frags):
        k = gi % 16
        dmas = []
        if k == 0:
            a("; ---- step %d" % s)
            if s in (4, 8, 12): st.mark()
            if s > 0:
                a.e("s_barrier")
            if s == 8: pend_epi = epi("K")
            if s == 12: pend_epi = epi("V0")
            step_dmas = []
            if s + 3 < 16: step_dmas += w_dma(s + 3)
            if s + 2 < 8: step_dmas += c_dma(s + 2)
        if gi + PRE < len(frags):
            w_read(gi + PRE)
        lg.wait([("W", gi), ("c", s)] if k == 0 else ("W", gi))
        wf = WF + (gi % NRING) * 4
        for kb in range(2):
            d, cf = accs[kb], cfs[kb]
            c = "0" if first else "v[%d:%d]" % (d, d + 3)
            if s < 8:
                a.e("v_mfma_f32_16x16x32_bf16 v[%d:%d], v[%d:%d], v[%d:%d], %s", d, d + 3, wf, wf + 3, cf, cf + 3, c)
            else:
                a.e("v_mfma_f32_16x16x32_bf16 v[%d:%d], v[%d:%d], v[%d:%d], %s", d, d + 3, cf, cf + 3, wf, wf + 3, c)
        if k >= 1 and step_dmas:
            step_dmas.pop(0)()
        if k == 11 and s + 1 < 16:
            tags = [("W", s + 2), ("c", s + 1)]
            vm.wait(tags)
            if s + 1 < 8: c_reads(s + 1)
        if "pf" in exp and s == 10 and k in (4, 8):
            a.e("v_lshrrev_b32 v%d, 4, v%d", v_t, v_lane)
            a.e("v_lshlrev_b32 v%d, 13, v%d", v_t, v_t)
            a.e("v_and_b32 v%d, 15, v%d", v_t + 1, v_lane)
            a.e("v_lshl_add_u32 v%d, v%d, 4, v%d", v_t, v_t + 1, v_t)
            a.e("s_lshl_b32 s%d, s%d, 3", s_t3, s_j)
            a.e("s_add_u32 s%d, s%d, s%d", s_t3, s_t3, s_w)
            a.e("s_lshl_b32 s%d, s%d, 16", s_t3, s_t3)
            a.e("s_lshl_b32 s%d, s%d, 8", s_t1, s_h)
            a.e("s_add_u32 s%d, s%d, s%d", s_t3, s_t3, s_t1)
            if k == 8: a.e("s_add_u32 s%d, s%d, 32768", s_t3, s_t3)
            a.e("s_mov_b32 m0, s%d", s_cm0)
            a.e("s_nop 0")
            a.e("buffer_load_dwordx4 v%d, s[%d:%d], s%d offen lds", v_t, S_W1, S_W1 + 3, s_t3)
            vm.issue("pf")
        if pend_epi and k >= 3:
            emit_epi(pend_epi.pop(0))
            if pend_epi and s >= 12: emit_epi(pend_epi.pop(0))
    assert not pend_epi
    st.mark()
    a.e("s_nop 7")
    for x in epi("V1"): emit_epi(x)
    if diag:
        a.e("s_waitcnt vmcnt(0)")
        st.mark()
        st.dump(S_WS, s_w, 10, s_t0)
    a.label(name + "_end")
    a.e("s_endpgm")
```

```python
from gen_common import *
import gen_common
import math, struct

def f32bits(x):
    return struct.unpack("<I", struct.pack("<f", x))[0]

def gen_k2(a, name="attn_kernel", diag=False, exp="", thr_log2=40):
    kernel_begin(a, name)
    st = Stamps(a, diag, 1, base=56, maxn=11)
    vm = Cnt(a, "vmcnt", 63); lg = Cnt(a, "lgkmcnt", 15)
    QSCALE = f32bits(math.log2(math.e) / math.sqrt(128.0))
    THR = f32bits(2.0 ** thr_log2)
    S_WQ, S_WS = 4, 8
    s_h, s_x, s_w, s_t0, s_t1, s_t2, s_kk0, s_wof, s_wm0 = 12, 13, 14, 15, 16, 17, 18, 19, 20
    s_xn, s_T, s_TB, s_t, s_cur, s_nxt, s_ld, s_kof, s_vof, s_wl = 21, 22, 23, 24, 25, 26, 27, 28, 29, 30
    s_qb, s_mfrom, s_kb, s_isA, s_lslot, s_lst, s_thr, s_oob = 31, 32, 33, 34, 35, 36, 37, 38
    s_ret = 40
    s_m = 42
    s_hb = 50
    s_n = 51
    s_cnt = 52
    v_lane, v_wdma, v_trE, v_trO, v_l16, v_rd, v_rdn, v_qrel, v_t = 0, 1, 2, 3, 4, 5, 6, 7, 8
    WF, NRW = 12, 5
    ACC = 32
    XN = 128
    Q = 96
    RING, NR, PD = 12, 16, 12
    TT = 80
    v_ps, v_l, v_D, v_ninf, v_mx, v_f = [84, 85], 86, 87, 88, 89, 90
    U = 76
    NEGM, P, S, O = 128, [144, 152], [160, 176], 192
    SLOT = 32768

    a.e("s_cmp_ge_u32 s2, 256")
    a.e("s_cbranch_scc1 %s_end", name)
    st.mark()
    a.e("s_load_dwordx2 s[4:5], s[0:1], %d", A_WQ)
    a.e("s_load_dwordx2 s[8:9], s[0:1], %d", WS)
    a.e("v_lshrrev_b32 v%d, 6, v0", v_t)
    a.e("v_and_b32 v%d, 63, v0", v_lane)
    a.e("v_readfirstlane_b32 s%d, v%d", s_w, v_t)
    a.e("s_and_b32 s%d, s2, 31", s_h)
    a.e("s_lshr_b32 s%d, s2, 5", s_x)
    a.e("s_lshr_b32 s%d, s%d, 3", s_t0, s_h)
    a.e("s_lshl_b32 s%d, s%d, 1", s_t0, s_t0)
    a.e("s_add_u32 s%d, s%d, s%d", s_kk0, s_t0, s_x)
    a.e("s_and_b32 s%d, s%d, 7", s_kk0, s_kk0)
    a.e("s_lshr_b32 s%d, s%d, 2", s_isA, s_w)
    a.e("s_sub_u32 s%d, 15, s%d", s_t0, s_x)
    a.e("s_lshl_b32 s%d, s%d, 1", s_TB, s_t0)
    a.e("s_add_u32 s%d, s%d, 2", s_TB, s_TB)
    a.e("s_sub_u32 s%d, 7, s%d", s_t1, s_w)
    a.e("s_cmp_eq_u32 s%d, 0", s_isA)
    a.e("s_cselect_b32 s%d, s%d, s%d", s_t0, s_t0, s_x)
    a.e("s_cselect_b32 s%d, s%d, s%d", s_t1, s_w, s_t1)
    a.e("s_lshl_b32 s%d, s%d, 1", s_T, s_t0)
    a.e("s_add_u32 s%d, s%d, 2", s_T, s_T)
    a.e("s_lshl_b32 s%d, s%d, 2", s_qb, s_t0)
    a.e("s_add_u32 s%d, s%d, s%d", s_qb, s_qb, s_t1)
    a.e("s_sub_u32 s%d, s%d, 3", s_mfrom, s_T)
    a.e("s_and_b32 s%d, s%d, 3", s_wl, s_w)
    a.e("v_bfe_u32 v%d, v%d, 2, 2", v_t, v_lane)
    a.e("v_bfe_u32 v%d, v%d, 4, 1", v_t + 1, v_lane)
    a.e("v_lshl_add_u32 v%d, v%d, 2, v%d", v_t, v_t + 1, v_t)
    a.e("v_lshlrev_b32 v%d, 13, v%d", v_t, v_t)
    a.e("s_and_b32 s%d, s%d, 1", s_t0, s_w)
    a.e("s_lshl_b32 s%d, s%d, 1", s_t0, s_t0)
    a.e("v_and_b32 v%d, 3, v%d", v_t + 1, v_lane)
    a.e("v_xor_b32 v%d, s%d, v%d", v_t + 1, s_t0, v_t + 1)
    a.e("v_lshrrev_b32 v%d, 5, v%d", v_wdma, v_lane)
    a.e("v_lshl_add_u32 v%d, v%d, 2, v%d", v_t + 1, v_wdma, v_t + 1)
    a.e("v_lshl_add_u32 v%d, v%d, 4, v%d", v_wdma, v_t + 1, v_t)
    a.e("v_lshlrev_b32 v%d, 4, v%d", v_l16, v_lane)
    a.e("s_waitcnt lgkmcnt(0)")
    srd(a, S_WQ, S_WQ, 4 << 20); srd(a, S_WS, S_WS, WS_BYTES)
    a.e("s_lshl_b32 s%d, s%d, 16", s_wof, s_w)
    a.e("s_lshl_b32 s%d, s%d, 8", s_t0, s_h)
    a.e("s_add_u32 s%d, s%d, s%d", s_wof, s_wof, s_t0)
    a.e("s_lshl_b32 s%d, s%d, 10", s_wm0, s_w)
    a.e("s_lshl_b32 s%d, s%d, 15", s_xn, s_qb)
    a.e("s_add_u32 s%d, s%d, 0x%x", s_xn, s_xn, WS_XN)
    a.e("s_lshl_b32 s%d, s%d, 19", s_hb, s_h)
    a.e("s_lshl_b32 s%d, s%d, 12", s_t0, s_wl)
    a.e("s_add_u32 s%d, s%d, s%d", s_hb, s_hb, s_t0)
    a.e("s_mov_b32 s%d, 0x7ff00000", s_oob)
    a.e("s_mov_b32 s%d, 0x%x", s_thr, THR)

    def kk_of(i, dst):
        a.e("s_add_u32 s%d, s%d, %d", dst, s_kk0, i)
        a.e("s_and_b32 s%d, s%d, 7", dst, dst)
    def wq_lds(step):
        return step * 16384
    def w_dma(step):
        for hf in range(2):
            kk_of(step, s_t0)
            a.e("s_lshl_b32 s%d, s%d, 19", s_t0, s_t0)
            a.e("s_add_u32 m0, s%d, %d", s_wm0, wq_lds(step) + hf * 8192)
            a.e("s_add_u32 s%d, s%d, s%d", s_t0, s_t0, s_wof)
            if hf: a.e("s_add_u32 s%d, s%d, 128", s_t0, s_t0)
            a.e("buffer_load_dwordx4 v%d, s[%d:%d], s%d offen lds", v_wdma, S_WQ, S_WQ + 3, s_t0)
            vm.issue(("W", step))
    def xn_load(step):
        kk_of(step, s_t1)
        a.e("s_lshl_b32 s%d, s%d, 11", s_t1, s_t1)
        a.e("s_add_u32 s%d, s%d, s%d", s_t1, s_t1, s_xn)
        a.e("s_add_u32 s%d, s%d, 16384", s_t2, s_t1)
        for u in range(2):
            for qb in range(2):
                r = XN + ((step * 2 + u) * 2 + qb) * 4
                a.e("buffer_load_dwordx4 v[%d:%d], v%d, s[%d:%d], s%d offen offset:%d", r, r + 3, v_l16, S_WS, S_WS + 3,
                    s_t1 if qb == 0 else s_t2, u * 1024)
                vm.issue(("x", step))
    def stage_addr_static(stage):
        a.e("s_add_u32 s%d, s%d, 0x%x", s_kof, s_hb, WS_K + (stage + 1) * 16384)
        a.e("s_add_u32 s%d, s%d, 0x%x", s_vof, s_hb, WS_V + max(stage, 0) * 16384)
        a.e("s_lshl_b32 s%d, s%d, 12", s_lslot, s_wl)
        a.e("s_add_u32 s%d, s%d, %d", s_lslot, s_lslot, (stage % 4) * SLOT if stage >= 0 else 4 * SLOT)
    def stage_loads(part, tag=None, track=True):
        L = []
        for i in range(4):
            def em(i=i):
                if i == 0:
                    a.e("s_add_u32 m0, s%d, %d", s_lslot, 0 if part == "K" else 16384)
                    a.e("s_nop 0")
                a.e("buffer_load_dwordx4 v%d, s[%d:%d], s%d offen offset:%d lds", v_l16, S_WS, S_WS + 3,
                    s_kof if part == "K" else s_vof, i * 1024)
                if track: vm.issue(tag)
            L.append(em)
        return L
    def only_A(fn):
        l = a.newlabel("LnA")
        a.e("s_cmp_eq_u32 s%d, 0", s_isA)
        a.e("s_cbranch_scc1 %s", l)
        fn()
        a.label(l)

    vmB = Cnt(a, "vmcnt", 63)
    class Both:
        def issue(self, tag, onlyA=False):
            pass
    def issue_both(tag):
        vmB.ops.append(tag)
    _issue = vm.issue
    state = {"A_only": False}
    def issue2(tag):
        _issue(tag)
        if not state["A_only"]: vmB.ops.append(tag)
    vm.issue = issue2
    def wait_common(tags):
        nA, nB = vm.need(tags), vmB.need(tags)
        if nA is None and nB is None: return
        if nA == nB or nB is None or nA is None:
            n = min(x for x in (nA, nB) if x is not None)
            a.e("s_waitcnt vmcnt(%d)", n)
        else:
            l1, l2 = a.newlabel("Lw"), a.newlabel("Lw")
            a.e("s_cmp_eq_u32 s%d, 0", s_isA)
            a.e("s_cbranch_scc1 %s", l1)
            a.e("s_waitcnt vmcnt(%d)", nA)
            a.e("s_branch %s", l2)
            a.label(l1)
            a.e("s_waitcnt vmcnt(%d)", nB)
            a.label(l2)
        for tr, n in ((vm, nA), (vmB, nB)):
            if n is not None: tr.ops = tr.ops[len(tr.ops) - n:] if n > 0 else []
    def a_loads(stage):
        def fn():
            state["A_only"] = True
            stage_addr_static(stage)
            for em in stage_loads("K", ("st", stage)): em()
            if stage >= 0:
                for em in stage_loads("V", ("st", stage)): em()
            state["A_only"] = False
        only_A(fn)

    for s in range(2):
        w_dma(s); xn_load(s)
    st.mark()
    a.e("v_bfe_u32 v%d, v%d, 2, 2", v_t, v_lane)
    a.e("v_lshlrev_b32 v%d, 6, v%d", v_t, v_t)
    a.e("v_and_b32 v%d, 3, v%d", v_t + 1, v_lane)
    a.e("v_lshl_add_u32 v%d, v%d, 3, v%d", v_t, v_t + 1, v_t)
    a.e("v_lshrrev_b32 v%d, 4, v%d", v_t + 1, v_lane)
    a.e("v_lshl_add_u32 v%d, v%d, 10, v%d", v_t, v_t + 1, v_t)
    a.e("v_and_b32 v%d, 1, v%d", v_t + 1, v_t + 1)
    a.e("v_lshl_add_u32 v%d, v%d, 5, v%d", v_trE, v_t + 1, v_t)
    a.e("v_xor_b32 v%d, 32, v%d", v_trO, v_trE)
    a.e("v_add_u32 v%d, 0x10000, v%d", v_rd, v_trE)
    a.e("v_add_u32 v%d, 0x10000, v%d", v_rdn, v_trO)
    a.e("v_and_b32 v%d, 31, v%d", v_qrel, v_lane)
    a.e("s_lshl_b32 s%d, s%d, 5", s_t0, s_qb)
    a.e("v_add_u32 v%d, s%d, v%d", v_qrel, s_t0, v_qrel)
    a.e("v_lshrrev_b32 v%d, 5, v%d", v_t, v_lane)
    a.e("v_lshlrev_b32 v%d, 2, v%d", v_t, v_t)
    a.e("v_sub_u32 v%d, v%d, v%d", v_qrel, v_qrel, v_t)

    qfr = []
    for s in range(8):
        for u in range(2):
            for cb in range(8):
                off = wq_lds(s) - (65536 if s >= 4 else 0) + (cb >> 2) * 8192 + u * 4096 + ((cb >> 1) & 1) * 512
                dg = cb >> 1
                accs = [ACC + ((dg * 2 + qb) * 2 + (cb & 1)) * 4 for qb in range(2)]
                xfs = [XN + ((s * 2 + u) * 2 + qb) * 4 for qb in range(2)]
                qfr.append((s, off, cb & 1, accs, xfs, s == 0 and u == 0))
    def w_read(gi):
        s, off, odd, accs, xfs, first = qfr[gi]
        r = WF + (gi % NRW) * 4
        base = (v_trO if odd else v_trE) if s < 4 else (v_rdn if odd else v_rd)
        for t in range(2):
            a.e("ds_read_b64_tr_b16 v[%d:%d], v%d offset:%d", r + 2 * t, r + 2 * t + 1, base, off + t * 256)
            lg.issue(("W", gi))
    wait_common([("W", 0), ("x", 0)])
    a.e("s_barrier")
    st.mark()
    PRE = NRW - 1
    nread = [0]
    for gi, (s, off, odd, accs, xfs, first) in enumerate(qfr):
        k = gi % 16
        if k == 0:
            if s > 0: a.e("s_barrier")
            if s == 0:
                w_dma(2); xn_load(2); w_dma(3); xn_load(3); a_loads(-1)
            elif s + 3 < 8:
                w_dma(s + 3); xn_load(s + 3)
            if s in (2, 4, 6): a_loads(s // 2 - 1)
        lim = 16 if s == 0 else len(qfr)
        while nread[0] < min(gi + PRE + 1, lim): w_read(nread[0]); nread[0] += 1
        lg.wait(("W", gi))
        wf = WF + (gi % NRW) * 4
        for qb in range(2):
            d, xf = accs[qb], xfs[qb]
            c = "0" if first else "v[%d:%d]" % (d, d + 3)
            a.e("v_mfma_f32_16x16x32_bf16 v[%d:%d], v[%d:%d], v[%d:%d], %s", d, d + 3, wf, wf + 3, xf, xf + 3, c)
        if k == (15 if s == 0 else 11) and s + 1 < 8:
            tags = [("x", s + 1), ("W", s + 1)] + ([("W", s + 2)] if s + 2 < 8 else [])
            wait_common(tags)
    st.mark()
    a.e("s_nop 7")
    for blk in range(8):
        for i in range(4):
            a.e("v_cvt_pk_bf16_f32 v%d, v%d, v%d", Q + blk * 4 + i, ACC + blk * 8 + 2 * i, ACC + blk * 8 + 2 * i + 1)
    a.e("s_nop 1")
    for dg in range(4):
        for i in range(4):
            a.e("v_permlane16_swap_b32 v%d, v%d", Q + (dg * 2) * 4 + i, Q + (dg * 2 + 1) * 4 + i)
    wait_common([("st", -1), ("st", 0)])
    a.e("s_barrier")
    a.e("v_mov_b32 v%d, 0", v_l)
    a.e("v_mov_b32 v%d, 0xff800000", v_ninf)
    a.e("s_mov_b32 s%d, 0", s_cur)
    a.e("v_mov_b32 v%d, v%d", v_rd, v_l16)
    a.e("s_mov_b32 s%d, 3", s_ld)
    a.e("s_mov_b32 s%d, %d", s_lst, 3 * SLOT)
    st.mark()

    def dyn_stage_setup():
        L = []
        L.append("s_lshl_b32 s%d, s%d, 14" % (s_t0, s_ld))
        L.append("s_add_u32 s%d, s%d, s%d" % (s_t0, s_t0, s_hb))
        L.append("s_add_u32 s%d, s%d, 0x%x" % (s_kof, s_t0, WS_K + 16384))
        L.append("s_add_u32 s%d, s%d, 0x%x" % (s_vof, s_t0, WS_V))
        L.append("s_cmp_lt_u32 s%d, s%d" % (s_ld, s_TB))
        L.append("s_cselect_b32 s%d, s%d, s%d" % (s_kof, s_kof, s_oob))
        L.append("s_cselect_b32 s%d, s%d, s%d" % (s_vof, s_vof, s_oob))
        L.append("s_lshl_b32 s%d, s%d, 12" % (s_lslot, s_wl))
        L.append("s_add_u32 s%d, s%d, s%d" % (s_lslot, s_lslot, s_lst))
        return L
    def dyn_stage_advance():
        return ["s_add_u32 s%d, s%d, 1" % (s_ld, s_ld),
                "s_add_u32 s%d, s%d, %d" % (s_lst, s_lst, SLOT),
                "s_and_b32 s%d, s%d, %d" % (s_lst, s_lst, 4 * SLOT - 1)]
    def kfrag_off(b, ks): return (b * 8 + ks) * 1024
    def vfrag_off(b, s_, db): return 16384 + (b * 8 + s_ * 4 + db) * 1024
    seq = []
    for ks in range(8): seq.append(("QK", 0, ks, kfrag_off(0, ks)))
    for s_ in range(2):
        for db in range(4): seq.append(("PV", 0, (s_, db), vfrag_off(0, s_, db)))
    for ks in range(8): seq.append(("QK", 1, ks, kfrag_off(1, ks)))
    for s_ in range(2):
        for db in range(4): seq.append(("PV", 1, (s_, db), vfrag_off(1, s_, db)))
    def mfma(item, reg, c0=None):
        kind, b, idx, off = item
        if kind == "QK":
            c = ("v[%d:%d]" % (NEGM, NEGM + 15) if c0 is None else c0) if idx == 0 else "v[%d:%d]" % (S[b], S[b] + 15)
            a.e("v_mfma_f32_32x32x16_bf16 v[%d:%d], v[%d:%d], v[%d:%d], %s", S[b], S[b] + 15, reg, reg + 3, Q + idx * 4, Q + idx * 4 + 3, c)
        else:
            s_, db = idx
            a.e("v_mfma_f32_32x32x16_bf16 v[%d:%d], v[%d:%d], v[%d:%d], v[%d:%d]", O + db * 16, O + db * 16 + 15, reg, reg + 3,
                P[b] + 4 * s_, P[b] + 4 * s_ + 3, O + db * 16, O + db * 16 + 15)
    def sm_stream(b):
        L = []
        for r in range(17):
            if r < 16: L.append((r, 0, "v_exp_f32 v%d, v%d" % (TT + r % 4, S[b] + r)))
            if r == 2: L.append((r, 1, "v_add_f32 v%d, v%d, v%d" % (v_ps[b], TT + 0, TT + 1)))
            elif r >= 3: L.append((r, 1, "v_add_f32 v%d, v%d, v%d" % (v_ps[b], v_ps[b], TT + (r - 1) % 4)))
            if r >= 2 and r % 2 == 0:
                i = r // 2 - 1
                L.append((r, 2, "v_cvt_pk_bf16_f32 v%d, v%d, v%d" % (P[b] + i, TT + (2 * i) % 4, TT + (2 * i + 1) % 4)))
        return L
    def sm_plain(b, lo=0, hi=16):
        for r in range(lo, hi + 1):
            for (rr, pos, ins) in sm_stream(b):
                if rr == r: a.e(ins)
            if r == 15 or r == hi: a.e("s_nop 0")
    START = [12, 28]
    stubs = []
    def cmp_ps(b): a.e("v_cmp_lt_f32 vcc, s%d, v%d", s_thr, v_ps[b])
    def br_slow(b, tag, replay):
        lab = "%s_chk%d_%s" % (name, b, tag)
        a.e("s_cbranch_vccnz %s", lab)
        a.label(lab + "_ret")
        stubs.append((lab, "%s_slow%d_%d" % (name, b, replay), lab + "_ret"))
    def ladd(b): a.e("v_add_f32 v%d, v%d, v%d", v_l, v_l, v_ps[b])

    def emit_mask(b, tile_expr_off):
        a.e("s_add_u32 s%d, s%d, %d", s_kb, s_t, tile_expr_off)
        a.e("s_lshl_b32 s%d, s%d, 6", s_kb, s_kb)
        a.e("s_add_u32 s%d, s%d, %d", s_kb, s_kb, 32 * b)
        a.e("v_subrev_u32 v%d, s%d, v%d", v_D, s_kb, v_qrel)
        for r0 in range(0, 16, 4):
            for j in range(4):
                r = r0 + j; i = r >> 2
                cst = 16 * (i & 1) + 8 * (i >> 1) + (r & 3)
                a.e("v_cmp_le_i32 s[%d:%d], %d, v%d", s_m + 2 * j, s_m + 2 * j + 1, cst, v_D)
            a.e("s_nop 1")
            for j in range(4):
                r = r0 + j
                a.e("v_cndmask_b32 v%d, v%d, v%d, s[%d:%d]", S[b] + r, v_ninf, S[b] + r, s_m + 2 * j, s_m + 2 * j + 1)

    def max16(dst, regs):
        a.e("v_max3_f32 v%d, v%d, v%d, v%d", dst, regs[0], regs[1], regs[2])
        i = 3
        while i < len(regs):
            if i + 1 < len(regs):
                a.e("v_max3_f32 v%d, v%d, v%d, v%d", dst, dst, regs[i], regs[i + 1]); i += 2
            else:
                a.e("v_max_f32 v%d, v%d, v%d", dst, dst, regs[i]); i += 1
    def crosshalf_max(r, t):
        a.e("v_mov_b32 v%d, v%d", t, r)
        a.e("s_nop 1")
        a.e("v_permlane32_swap_b32 v%d, v%d", r, t)
        a.e("s_nop 1")
        a.e("v_max_f32 v%d, v%d, v%d", r, r, t)

    def kv_read(i, base):
        item = seq[i % 32]
        r = RING + (i % NR) * 4
        a.e("ds_read_b128 v[%d:%d], v%d offset:%d", r, r + 3, base, item[3])

    def preloop(tag):
        def k0read(i):
            a.e("ds_read_b128 v[%d:%d], v%d offset:%d", RING + i * 4, RING + i * 4 + 3, v_rdn, kfrag_off(i >> 3, i & 7))
        for i in range(12): k0read(i)
        oz = 0
        for ks in range(8):
            if ks % 4 == 0: a.e("s_waitcnt lgkmcnt(8)")
            mfma(("QK", 0, ks, 0), RING + ks * 4, c0="0")
            if ks < 4: k0read(12 + ks)
            for _ in range(5):
                if oz < 64: a.e("v_mov_b32 v%d, 0", O + oz); oz += 1
        while oz < 64: a.e("v_mov_b32 v%d, 0", O + oz); oz += 1
        l = a.newlabel("Lpm")
        a.e("s_cmp_lg_u32 s%d, 2", s_T)
        a.e("s_cbranch_scc1 %s", l)
        a.e("s_mov_b32 s%d, -1", s_t)
        emit_mask(0, 1)
        a.label(l)
        max16(v_mx, [S[0] + i for i in range(16)])
        crosshalf_max(v_mx, v_f)
        for i in range(16):
            a.e("v_sub_f32 v%d, 0, v%d", NEGM + i, v_mx)
        for i in range(16):
            a.e("v_sub_f32 v%d, v%d, v%d", S[0] + i, S[0] + i, v_mx)
        a.e("s_waitcnt lgkmcnt(0)")
        items = [ins for (r, pos, ins) in sm_stream(0)]
        per = (len(items) + 7) // 8
        for ks in range(8):
            mfma(("QK", 1, ks, 0), RING + (8 + ks) * 4)
            for ins in items[ks * per:(ks + 1) * per]: a.e(ins)
        for i in range(PD): kv_read(i, v_rd)
        l = a.newlabel("Lpm")
        a.e("s_cmp_lg_u32 s%d, 2", s_T)
        a.e("s_cbranch_scc1 %s", l)
        emit_mask(1, 1)
        a.label(l)
        sm_plain(1, 0, 3)
        a.e("s_waitcnt lgkmcnt(0)")

    def iteration(tag, masked):
        tg = tag + ("m" if masked else "")
        top = "%s_loop%s" % (name, tg)
        streams = {}
        for b in range(2):
            for (r, pos, ins) in sm_stream(b):
                streams.setdefault(((START[b] + r) % 32, pos), []).append(ins)
        misc = {k: [] for k in range(32)}
        misc[1].append("s_waitcnt lgkmcnt(4)"); misc[9].append("s_waitcnt lgkmcnt(4)")
        misc[17].append("s_waitcnt lgkmcnt(4)"); misc[25].append("s_waitcnt lgkmcnt(4)")
        misc[3].append(lambda: ladd(0)); misc[21].append(lambda: ladd(1))
        misc[5].append("s_add_u32 s%d, s%d, %d" % (s_cur, s_cur, SLOT))
        misc[7].append("s_and_b32 s%d, s%d, %d" % (s_cur, s_cur, 4 * SLOT - 1))
        if tag == "A": misc[13].append("s_waitcnt vmcnt(8)")
        if "nobar" not in exp: misc[13].append("s_barrier")
        misc[15].append(lambda: br_slow(1, tg, 3))
        misc[19].append("v_add_u32 v%d, s%d, v%d" % (v_rd, s_cur, v_l16))
        misc[31].append(lambda: br_slow(0, tg, 3))
        if masked: misc[23].append("s_add_u32 s%d, s%d, 1" % (s_t, s_t))
        if tag == "A":
            setup = dyn_stage_setup()
            ld = stage_loads("K", track=False) + stage_loads("V", track=False)
            adv = dyn_stage_advance()
            for l_ in setup[:5]: misc[14].append(l_)
            for l_ in setup[5:]: misc[16].append(l_)
            for i, em in enumerate(ld): misc[[18, 20, 22, 23, 24, 26, 27, 28][i]].append(em)
            for l_ in adv: misc[29].append(l_)
        a(".p2align 3")
        a.label(top)
        for k in range(32):
            mfma(seq[k], RING + (k % NR) * 4)
            if "nords" not in exp: kv_read(k + PD, v_rd)
            if masked and k == START[0]: emit_mask(0, 1)
            if masked and k == START[1]: emit_mask(1, 0)
            for pos in range(3):
                if pos == 1 and k == 29: cmp_ps(0)
                if pos == 1 and k == 13: cmp_ps(1)
                for ins in streams.get((k, pos), []):
                    if "nosm" in exp: continue
                    a.e(ins)
            for m_ in misc[k]:
                if callable(m_): m_()
                else: a.e(m_)
        a.e("s_sub_u32 s%d, s%d, 1", s_cnt, s_cnt)
        a.e("s_cbranch_scc0 %s", top)

    def mainloop(tag):
        lsk = a.newlabel("Lsk")
        a.e("s_mov_b32 s%d, 0", s_t)
        a.e("s_mov_b32 s%d, 0", s_n)
        a.e("s_cmp_lt_u32 s%d, 4", s_T)
        a.e("s_cbranch_scc1 %s", lsk)
        a.e("s_sub_u32 s%d, s%d, 4", s_cnt, s_T)
        iteration(tag, False)
        a.e("s_sub_u32 s%d, s%d, 3", s_t, s_T)
        a.e("s_mov_b32 s%d, 1", s_n)
        a.label(lsk)
        a.e("s_mov_b32 s%d, s%d", s_cnt, s_n)
        iteration(tag, True)

    def final(tag):
        a.e("s_waitcnt lgkmcnt(0)")
        pv0 = [("PV", 0, (s_, db), vfrag_off(0, s_, db)) for s_ in range(2) for db in range(4)]
        pv1 = [("PV", 1, (s_, db), vfrag_off(1, s_, db)) for db in range(4) for s_ in range(2)]
        pv = pv0 + pv1
        for i in range(12):
            r = RING + i * 4
            a.e("ds_read_b128 v[%d:%d], v%d offset:%d", r, r + 3, v_rd, pv[i][3])
        ladd(0)
        rest = [ins for (r, pos, ins) in sm_stream(1) if r >= 4]
        per = (len(rest) + 7) // 8
        for i in range(8):
            if i % 4 == 0: a.e("s_waitcnt lgkmcnt(8)")
            mfma(pv[i], RING + i * 4)
            if i < 4:
                r = RING + (12 + i) * 4
                a.e("ds_read_b128 v[%d:%d], v%d offset:%d", r, r + 3, v_rd, pv[12 + i][3])
            for ins in rest[i * per:(i + 1) * per]: a.e(ins)
        cmp_ps(1)
        a.e("s_nop 1")
        br_slow(1, "fin" + tag, 9)
        ladd(1)
        a.e("v_mov_b32 v%d, v%d", v_f, v_l)
        a.e("s_lshl_b32 s%d, s%d, 5", s_t0, s_qb)
        a.e("s_add_u32 s%d, s%d, s%d", s_t0, s_t0, s_h)
        a.e("v_permlane32_swap_b32 v%d, v%d", v_l, v_f)
        a.e("s_lshl_b32 s%d, s%d, 13", s_t0, s_t0)
        a.e("s_add_u32 s%d, s%d, 0x%x", s_t0, s_t0, WS_CTX)
        a.e("v_add_f32 v%d, v%d, v%d", v_l, v_l, v_f)
        a.e("v_rcp_f32 v%d, v%d", v_l, v_l)
        a.e("s_add_u32 s%d, s%d, 4096", s_t1, s_t0)
        def epi(db):
            L = []
            for hfz in range(2):
                base = O + db * 16 + hfz * 8
                for i in range(8): L.append("v_mul_f32 v%d, v%d, v%d" % (base + i, base + i, v_l))
                for i in range(4): L.append("v_cvt_pk_bf16_f32 v%d, v%d, v%d" % (base + i, base + 2 * i, base + 2 * i + 1))
                ds = 2 * db + hfz
                L.append("buffer_store_dwordx4 v[%d:%d], v%d, s[%d:%d], s%d offen offset:%d" % (base, base + 3, v_l16, S_WS, S_WS + 3,
                         s_t0 if ds < 4 else s_t1, (ds & 3) * 1024))
            return L
        a.e("s_waitcnt lgkmcnt(0)")
        pend = []
        for i in range(8):
            mfma(pv[8 + i], RING + (8 + i) * 4)
            if i >= 4 and i % 2 == 0:
                pend += epi((i - 4) // 2)
            n = 0
            while pend and n < 13: a.e(pend.pop(0)); n += 1
            if not pend and i < 4: a.e("s_nop 3")
        a.e("s_nop 7")
        for ins in pend: a.e(ins)
        a.e("s_nop 3")
        for db in (2, 3):
            for ins in epi(db): a.e(ins)

    LA = name + "_roleA"
    a.e("v_add_u32 v%d, %d, v%d", v_rdn, 4 * SLOT, v_l16)
    a.e("s_cmp_lg_u32 s%d, 0", s_isA)
    a.e("s_cbranch_scc1 %s", LA)
    if "prioB" in exp: a.e("s_setprio 1")
    preloop("B")
    st.mark()
    mainloop("B")
    st.mark()
    final("B")
    if diag:
        a.e("s_waitcnt vmcnt(0)")
        st.mark()
        st.dump(S_WS, s_w, 8, s_t0)
    a.e("s_endpgm")
    a.label(LA)
    preloop("A")
    mainloop("A")
    final("A")
    NPF = 0
    if "pf" in exp:
        NPF = 8
        SP = 52 + 4
        for (karg, size, per, n_i) in ((A_WO, 4 << 20, 16384, 4), (B_W1, 1792 * 1024, 8192, 2), (B_W2, 1792 * 1024, 8192, 2)):
            a.e("s_load_dwordx2 s[%d:%d], s[0:1], %d", SP, SP + 1, karg)
            a.e("s_mul_i32 s%d, s2, %d", s_t0, per)
            a.e("s_mul_i32 s%d, s%d, %d", s_t1, s_wl, per // 4)
            a.e("s_add_u32 s%d, s%d, s%d", s_t0, s_t0, s_t1)
            a.e("s_waitcnt lgkmcnt(0)")
            srd(a, SP, SP, size)
            for i in range(n_i):
                a.e("buffer_load_dwordx4 v[%d:%d], v%d, s[%d:%d], s%d offen offset:%d", 144 + 4 * i, 147 + 4 * i, v_l16, SP, SP + 3, s_t0, i * 1024)
    a.e("s_mov_b32 s%d, 0", s_n)
    ll = name + "_ldloop"
    a.label(ll)
    a.e("s_cmp_lt_u32 s%d, 2", s_n)
    a.e("s_cbranch_scc1 %s_w16", ll)
    a.e("s_waitcnt vmcnt(8)")
    a.e("s_branch %s_go", ll)
    a.label(ll + "_w16")
    a.e("s_waitcnt vmcnt(%d)", 16 + NPF)
    a.label(ll + "_go")
    if "nobar" not in exp: a.e("s_barrier")
    for l in dyn_stage_setup(): a.e(l)
    for em in stage_loads("K", track=False) + stage_loads("V", track=False): em()
    for l in dyn_stage_advance(): a.e(l)
    a.e("s_add_u32 s%d, s%d, 1", s_n, s_n)
    a.e("s_add_u32 s%d, s%d, s%d", s_t0, s_n, s_T)
    a.e("s_cmp_lt_u32 s%d, s%d", s_t0, s_TB)
    a.e("s_cbranch_scc1 %s", ll)
    if "pf" in exp:
        SP = 56
        a.e("s_load_dwordx2 s[%d:%d], s[0:1], %d", SP, SP + 1, A_WO)
        a.e("s_bfe_u32 s%d, s2, 0x20001", s_t0)
        a.e("s_lshl_b32 s%d, s%d, 20", s_t0, s_t0)
        a.e("s_lshr_b32 s%d, s2, 3", s_t1)
        a.e("s_lshl_b32 s%d, s%d, 15", s_t1, s_t1)
        a.e("s_add_u32 s%d, s%d, s%d", s_t0, s_t0, s_t1)
        a.e("s_lshl_b32 s%d, s%d, 13", s_t1, s_wl)
        a.e("s_add_u32 s%d, s%d, s%d", s_t0, s_t0, s_t1)
        a.e("s_waitcnt lgkmcnt(0)")
        srd(a, SP, SP, 4 << 20)
        for i in range(8):
            if i == 4: a.e("s_add_u32 s%d, s%d, 4096", s_t0, s_t0)
            a.e("buffer_load_dwordx4 v[%d:%d], v%d, s[%d:%d], s%d offen offset:%d", 144 + 4 * (i & 3), 147 + 4 * (i & 3), v_l16, SP, SP + 3, s_t0, (i & 3) * 1024)
    a.label(name + "_end")
    a.e("s_endpgm")

    done = set()
    for (lab, target, ret) in stubs:
        a.label(lab)
        a.e("s_call_b64 s[%d:%d], %s", s_ret, s_ret + 1, target)
        a.e("s_branch %s", ret)
    for (lab, target, ret) in stubs:
        if target in done: continue
        done.add(target)
        b = int(target.split("_slow")[1][0]); replay = int(target.split("_slow")[1][2:])
        a.label(target)
        a.e("s_nop 15")
        max16(v_mx, [S[b] + i for i in range(16)])
        crosshalf_max(v_mx, v_f)
        a.e("v_ceil_f32 v%d, v%d", v_mx, v_mx)
        a.e("v_max_f32 v%d, 0, v%d", v_mx, v_mx)
        a.e("v_sub_f32 v%d, 0, v%d", v_f, v_mx)
        a.e("v_exp_f32 v%d, v%d", v_f, v_f)
        a.e("s_nop 0")
        for i in range(64): a.e("v_mul_f32 v%d, v%d, v%d", O + i, O + i, v_f)
        a.e("v_mul_f32 v%d, v%d, v%d", v_l, v_l, v_f)
        if False:
            o = 1 - b
            for i in range(8):
                a.e("v_lshlrev_b32 v%d, 16, v%d", U, P[o] + i)
                a.e("v_and_b32 v%d, 0xffff0000, v%d", U + 1, P[o] + i)
                a.e("v_mul_f32 v%d, v%d, v%d", U, U, v_f)
                a.e("v_mul_f32 v%d, v%d, v%d", U + 1, U + 1, v_f)
                a.e("v_cvt_pk_bf16_f32 v%d, v%d, v%d", P[o] + i, U, U + 1)
        for bb in range(2):
            for i in range(16): a.e("v_sub_f32 v%d, v%d, v%d", S[bb] + i, S[bb] + i, v_mx)
        for i in range(16): a.e("v_sub_f32 v%d, v%d, v%d", NEGM + i, NEGM + i, v_mx)
        sm_plain(b)
        if replay != 9: sm_plain(1 - b, 0, replay)
        a.e("s_nop 1")
        a.e("s_setpc_b64 s[%d:%d]", s_ret, s_ret + 1)
```

```python
from gen_common import *
import gen_common

def gen_k35(a, kind, name, kidx, diag=False, exp=""):
    kernel_begin(a, name)
    st = Stamps(a, diag, kidx, base=56, maxn=10)
    vm = Cnt(a, "vmcnt", 63); lg = Cnt(a, "lgkmcnt", 15)
    proj = kind == "proj"
    NKS = 32 if proj else 14
    ACT_QB = 256 * 1024 if proj else 112 * 1024
    WS_ACT = WS_CTX if proj else WS_F
    S_W, S_WS, S_X, S_O, S_B = 4, 8, 12, 16, 20
    s_w, s_rt, s_ct, s_t0, s_t1, s_t2, s_a0, s_a1, s_wb, s_m0, s_rot = 24, 25, 26, 27, 28, 29, 30, 31, 32, 33, 34
    v_lane, v_l16, v_wd, v_tr, v_t = 0, 1, 2, 3, 4
    ACC = 64
    DEPTH = 6 if proj else 7
    for d_ in (2, 3, 4, 5):
        if 'depth%d' % d_ in exp: DEPTH = d_
    AF = 128
    WFR = 16
    LDSW = DEPTH * 2048

    a.e("s_cmp_ge_u32 s2, 256")
    a.e("s_cbranch_scc1 %s_end", name)
    st.mark()
    if proj:
        a.e("s_load_dwordx2 s[4:5], s[0:1], %d", A_WO)
        a.e("s_load_dwordx2 s[12:13], s[0:1], %d", A_X)
    else:
        a.e("s_load_dwordx2 s[4:5], s[0:1], %d", B_W2)
        a.e("s_load_dwordx2 s[16:17], s[0:1], %d", OUT)
        a.e("s_load_dwordx2 s[20:21], s[0:1], %d", B_B2)
    a.e("s_load_dwordx2 s[8:9], s[0:1], %d", WS)
    a.e("v_lshrrev_b32 v%d, 6, v0", v_t)
    a.e("v_and_b32 v%d, 63, v0", v_lane)
    a.e("v_readfirstlane_b32 s%d, v%d", s_w, v_t)
    if "map84" in exp:
        a.e("s_and_b32 s%d, s2, 7", s_t0)
        a.e("s_lshr_b32 s%d, s2, 3", s_t1)
        a.e("s_and_b32 s%d, s%d, 1", s_ct, s_t0)
        a.e("s_lshl_b32 s%d, s%d, 2", s_ct, s_ct)
        a.e("s_and_b32 s%d, s%d, 3", s_t2, s_t1)
        a.e("s_add_u32 s%d, s%d, s%d", s_ct, s_ct, s_t2)
        a.e("s_lshr_b32 s%d, s%d, 1", s_rt, s_t0)
        a.e("s_lshl_b32 s%d, s%d, 3", s_rt, s_rt)
        a.e("s_lshr_b32 s%d, s%d, 2", s_t1, s_t1)
        a.e("s_add_u32 s%d, s%d, s%d", s_rt, s_rt, s_t1)
    else:
        a.e("s_and_b32 s%d, s2, 31", s_rt)
        a.e("s_lshr_b32 s%d, s2, 5", s_ct)
    a.e("v_lshlrev_b32 v%d, 4, v%d", v_l16, v_lane)
    a.e("v_lshrrev_b32 v%d, 5, v%d", v_t, v_lane)
    a.e("v_bfe_u32 v%d, v%d, 2, 2", v_t + 1, v_lane)
    a.e("v_lshl_add_u32 v%d, v%d, 2, v%d", v_t, v_t, v_t + 1)
    a.e("v_lshlrev_b32 v%d, 10, v%d", v_wd, v_t)
    a.e("v_bfe_u32 v%d, v%d, 4, 1", v_t, v_lane)
    a.e("v_lshl_add_u32 v%d, v%d, 6, v%d", v_wd, v_t, v_wd)
    a.e("v_and_b32 v%d, 3, v%d", v_t, v_lane)
    a.e("v_lshl_add_u32 v%d, v%d, 4, v%d", v_wd, v_t, v_wd)
    a.e("v_lshrrev_b32 v%d, 5, v%d", v_t, v_lane)
    a.e("v_lshlrev_b32 v%d, 9, v%d", v_tr, v_t)
    a.e("v_bfe_u32 v%d, v%d, 2, 2", v_t, v_lane)
    a.e("v_lshl_add_u32 v%d, v%d, 6, v%d", v_tr, v_t, v_tr)
    a.e("v_bfe_u32 v%d, v%d, 4, 1", v_t, v_lane)
    a.e("v_lshl_add_u32 v%d, v%d, 5, v%d", v_tr, v_t, v_tr)
    a.e("v_and_b32 v%d, 3, v%d", v_t, v_lane)
    a.e("v_lshl_add_u32 v%d, v%d, 3, v%d", v_tr, v_t, v_tr)
    a.e("s_mul_i32 s%d, s%d, %d", s_m0, s_w, LDSW)
    a.e("v_add_u32 v%d, s%d, v%d", v_tr, s_m0, v_tr)
    a.e("s_waitcnt lgkmcnt(0)")
    srd(a, S_W, S_W, (4096 if proj else 1792) * 1024); srd(a, S_WS, S_WS, WS_BYTES)
    if proj: srd(a, S_X, S_X, 2 << 20)
    else:
        srd(a, S_O, S_O, 2 << 20); srd(a, S_B, S_B, 1024)
    a.e("s_mul_i32 s%d, s%d, %d", s_a0, s_rt, 2 * ACT_QB)
    a.e("s_mul_i32 s%d, s%d, %d", s_t0, s_w, NKS * 1024)
    a.e("s_add_u32 s%d, s%d, s%d", s_a0, s_a0, s_t0)
    a.e("s_add_u32 s%d, s%d, 0x%x", s_a0, s_a0, WS_ACT)
    a.e("s_add_u32 s%d, s%d, %d", s_a1, s_a0, ACT_QB)
    a.e("s_mul_i32 s%d, s%d, %d", s_wb, s_w, NKS * 16384)
    a.e("s_lshl_b32 s%d, s%d, 7", s_t0, s_ct)
    a.e("s_add_u32 s%d, s%d, s%d", s_wb, s_wb, s_t0)

    a.e("s_lshl_b32 s%d, s%d, 2", s_rot, s_ct)
    a.e("s_lshr_b32 s%d, s%d, 3", s_t0, s_rt)
    a.e("s_lshl_b32 s%d, s%d, 3", s_t0, s_t0)
    a.e("s_add_u32 s%d, s%d, s%d", s_rot, s_rot, s_t0)
    if proj:
        a.e("s_and_b32 s%d, s%d, 31", s_rot, s_rot)
    else:
        a.e("s_and_b32 s%d, s%d, 31", s_rot, s_rot)
        a.e("s_mul_i32 s%d, s%d, 7", s_rot, s_rot)
        a.e("s_lshr_b32 s%d, s%d, 4", s_rot, s_rot)
    if "norot" in exp: a.e("s_mov_b32 s%d, 0", s_rot)
    def loads(ks):
        sl = ks % DEPTH
        a.e("s_lshl_b32 s%d, s%d, 14", s_t0, s_rot)
        a.e("s_add_u32 s%d, s%d, s%d", s_t0, s_t0, s_wb)
        a.e("s_add_u32 m0, s%d, %d", s_m0, sl * 2048)
        a.e("s_add_u32 s%d, s%d, 8192", s_t1, s_t0)
        if "now" in exp: a.e("s_mov_b32 s%d, 0", s_t0)
        a.e("buffer_load_dwordx4 v%d, s[%d:%d], s%d offen lds", v_wd, S_W, S_W + 3, s_t0)
        vm.issue(("w", ks))
        a.e("s_add_u32 m0, s%d, %d", s_m0, sl * 2048 + 1024)
        a.e("s_lshl_b32 s%d, s%d, 10", s_t0, s_rot)
        if "now" in exp: a.e("s_mov_b32 s%d, 0", s_t1)
        a.e("buffer_load_dwordx4 v%d, s[%d:%d], s%d offen lds", v_wd, S_W, S_W + 3, s_t1)
        vm.issue(("w", ks))
        a.e("s_add_u32 s%d, s%d, s%d", s_t2, s_a0, s_t0)
        a.e("s_add_u32 s%d, s%d, s%d", s_t1, s_a1, s_t0)
        a.e("s_add_u32 s%d, s%d, 1", s_rot, s_rot)
        a.e("s_cmp_eq_u32 s%d, %d", s_rot, NKS)
        a.e("s_cselect_b32 s%d, 0, s%d", s_rot, s_rot)
        r = AF + sl * 8
        if "noa" in exp:
            a.e("s_mov_b32 s%d, 0", s_t2); a.e("s_mov_b32 s%d, 0", s_t1)
        a.e("buffer_load_dwordx4 v[%d:%d], v%d, s[%d:%d], s%d offen", r, r + 3, v_l16, S_WS, S_WS + 3, s_t2)
        vm.issue(("a", ks))
        a.e("buffer_load_dwordx4 v[%d:%d], v%d, s[%d:%d], s%d offen", r + 4, r + 7, v_l16, S_WS, S_WS + 3, s_t1)
        vm.issue(("a", ks))
    def wreads(ks):
        sl = ks % DEPTH
        for fb in range(2):
            r = WFR + (ks & 1) * 8 + fb * 4
            for t in range(2):
                a.e("ds_read_b64_tr_b16 v[%d:%d], v%d offset:%d", r + 2 * t, r + 2 * t + 1, v_tr, sl * 2048 + t * 1024 + fb * 256)
                lg.issue(("w", ks))

    INIT = 2 if "ramp" in exp else DEPTH
    issued = [0]
    for ks in range(min(INIT, NKS)): loads(ks); issued[0] += 1
    s_fb, s_qb, s_s, s_row, s_f16 = 36, 37, 38, 39, 40
    a.e("s_lshr_b32 s%d, s%d, 2", s_fb, s_w)
    a.e("s_bfe_u32 s%d, s%d, 0x10001", s_qb, s_w)
    a.e("s_and_b32 s%d, s%d, 1", s_s, s_w)
    a.e("s_lshl_b32 s%d, s%d, 1", s_row, s_rt)
    a.e("s_add_u32 s%d, s%d, s%d", s_row, s_row, s_qb)
    a.e("s_lshl_b32 s%d, s%d, 2", s_f16, s_ct)
    a.e("s_lshl_b32 s%d, s%d, 1", s_t0, s_fb)
    a.e("s_add_u32 s%d, s%d, s%d", s_f16, s_f16, s_t0)
    a.e("s_add_u32 s%d, s%d, s%d", s_f16, s_f16, s_s)
    R0 = 40
    v_q, v_hf = 8, 9
    a.e("v_and_b32 v%d, 31, v%d", v_q, v_lane)
    a.e("v_lshrrev_b32 v%d, 5, v%d", v_hf, v_lane)
    if proj:
        a.e("v_lshlrev_b32 v%d, 10, v%d", 10, v_q)
        a.e("v_lshl_add_u32 v%d, v%d, 3, v%d", 10, v_hf, 10)
        a.e("s_lshl_b32 s%d, s%d, 15", s_t0, s_row)
        a.e("s_lshl_b32 s%d, s%d, 5", s_t1, s_f16)
        a.e("s_add_u32 s%d, s%d, s%d", s_t0, s_t0, s_t1)
        a.e("buffer_load_dwordx2 v[%d:%d], v10, s[%d:%d], s%d offen", R0, R0 + 1, S_X, S_X + 3, s_t0)
        a.e("buffer_load_dwordx2 v[%d:%d], v10, s[%d:%d], s%d offen offset:16", R0 + 2, R0 + 3, S_X, S_X + 3, s_t0)
        vm.issue("res"); vm.issue("res")
    else:
        a.e("s_lshl_b32 s%d, s%d, 5", s_t0, s_row)
        a.e("s_add_u32 s%d, s%d, s%d", s_t0, s_t0, s_f16)
        a.e("s_lshl_b32 s%d, s%d, 10", s_t0, s_t0)
        a.e("s_add_u32 s%d, s%d, 0x%x", s_t0, s_t0, WS_H)
        a.e("buffer_load_dwordx4 v[%d:%d], v%d, s[%d:%d], s%d offen", R0, R0 + 3, v_l16, S_WS, S_WS + 3, s_t0)
        a.e("v_lshlrev_b32 v10, 3, v%d", v_hf)
        a.e("s_lshl_b32 s%d, s%d, 5", s_t1, s_f16)
        a.e("buffer_load_dwordx2 v[%d:%d], v10, s[%d:%d], s%d offen", R0 + 4, R0 + 5, S_B, S_B + 3, s_t1)
        a.e("buffer_load_dwordx2 v[%d:%d], v10, s[%d:%d], s%d offen offset:16", R0 + 6, R0 + 7, S_B, S_B + 3, s_t1)
        vm.issue("res"); vm.issue("res"); vm.issue("res")
    st.mark()
    vm.wait([("w", 0), ("a", 0)])
    wreads(0)
    for ks in range(NKS):
        if ks + 1 < NKS:
            assert issued[0] > ks + 1
            vm.wait([("w", ks + 1), ("a", ks + 1)])
            wreads(ks + 1)
        lg.wait(("w", ks))
        sl = ks % DEPTH
        for fb in range(2):
            for qb in range(2):
                d = ACC + (fb * 2 + qb) * 16
                wf = WFR + (ks & 1) * 8 + fb * 4
                af = AF + sl * 8 + qb * 4
                c = "0" if ks == 0 else "v[%d:%d]" % (d, d + 15)
                a.e("v_mfma_f32_32x32x16_bf16 v[%d:%d], v[%d:%d], v[%d:%d], %s", d, d + 15, wf, wf + 3, af, af + 3, c)
        n = 0
        while issued[0] < min(ks + DEPTH + 1, NKS) and n < 2:
            loads(issued[0]); issued[0] += 1; n += 1
    st.mark()
    a.e("s_barrier")
    a.e("s_lshl_b32 s%d, s%d, 14", s_t0, s_w)
    a.e("v_add_u32 v%d, s%d, v%d", v_t, s_t0, v_l16)
    a.e("s_nop 7")
    for tile in range(4):
        for i in range(4):
            r = ACC + tile * 16 + i * 4
            a.e("ds_write_b128 v%d, v[%d:%d] offset:%d", v_t, r, r + 3, (tile * 4 + i) * 1024)
    a.e("s_waitcnt lgkmcnt(0)")
    st.mark()
    a.e("s_barrier")
    a.e("s_lshr_b32 s%d, s%d, 1", s_t0, s_w)
    a.e("s_lshl_b32 s%d, s%d, 2", s_t0, s_t0)
    a.e("s_lshl_b32 s%d, s%d, 1", s_t1, s_s)
    a.e("s_add_u32 s%d, s%d, s%d", s_t0, s_t0, s_t1)
    a.e("s_lshl_b32 s%d, s%d, 10", s_t0, s_t0)
    a.e("v_add_u32 v%d, s%d, v%d", v_t, s_t0, v_l16)
    a.e("v_add_u32 v%d, 0x10000, v%d", v_t + 1, v_t)
    PR = 64
    for p in range(8):
        for u in range(2):
            r = PR + (p * 2 + u) * 4
            a.e("ds_read_b128 v[%d:%d], v%d offset:%d", r, r + 3, v_t if p < 4 else v_t + 1, (p & 3) * 16384 + u * 1024)
        if p == 3: a.e("s_waitcnt lgkmcnt(0)")
    a.e("s_waitcnt lgkmcnt(0)")
    for p in range(1, 8):
        for e in range(8):
            a.e("v_add_f32 v%d, v%d, v%d", PR + e, PR + e, PR + p * 8 + e)
    A = PR
    vm.waitall()
    F = 48
    def unpack(src, n, dst):
        for i in range(n):
            a.e("v_lshlrev_b32 v%d, 16, v%d", dst + 2 * i, src + i)
            a.e("v_and_b32 v%d, 0xffff0000, v%d", dst + 2 * i + 1, src + i)
    if proj:
        unpack(R0, 4, F)
        for e in range(8): a.e("v_add_f32 v%d, v%d, v%d", A + e, A + e, F + e)
        for i in range(4): a.e("v_cvt_pk_bf16_f32 v%d, v%d, v%d", F + 8 + i, A + 2 * i, A + 2 * i + 1)
        a.e("s_lshl_b32 s%d, s%d, 5", s_t0, s_row)
        a.e("s_add_u32 s%d, s%d, s%d", s_t0, s_t0, s_f16)
        a.e("s_lshl_b32 s%d, s%d, 10", s_t1, s_t0)
        a.e("s_add_u32 s%d, s%d, 0x%x", s_t1, s_t1, WS_H)
        a.e("buffer_store_dwordx4 v[%d:%d], v%d, s[%d:%d], s%d offen", F + 8, F + 11, v_l16, S_WS, S_WS + 3, s_t1)
        unpack(F + 8, 4, F)
        a.e("v_add_f32 v%d, v%d, v%d", A, F, F + 1)
        for e in range(2, 8): a.e("v_add_f32 v%d, v%d, v%d", A, A, F + e)
        a.e("v_mov_b32 v%d, v%d", A + 1, A)
        a.e("s_nop 1")
        a.e("v_permlane32_swap_b32 v%d, v%d", A, A + 1)
        a.e("s_nop 1")
        a.e("v_add_f32 v%d, v%d, v%d", A, A, A + 1)
        a.e("v_mul_f32 v%d, 0x3d800000, v%d", A, A)
        for e in range(8): a.e("v_sub_f32 v%d, v%d, v%d", F + e, F + e, A)
        a.e("v_mul_f32 v%d, v%d, v%d", A + 1, F, F)
        for e in range(1, 8): a.e("v_fmac_f32 v%d, v%d, v%d", A + 1, F + e, F + e)
        a.e("v_mov_b32 v%d, v%d", A + 2, A + 1)
        a.e("s_nop 1")
        a.e("v_permlane32_swap_b32 v%d, v%d", A + 1, A + 2)
        a.e("s_nop 1")
        a.e("v_add_f32 v%d, v%d, v%d", A + 1, A + 1, A + 2)
        a.e("s_lshl_b32 s%d, s%d, 8", s_t1, s_t0)
        a.e("s_add_u32 s%d, s%d, 0x%x", s_t1, s_t1, WS_ST)
        a.e("v_lshlrev_b32 v10, 3, v%d", v_q)
        a.e("v_cmp_gt_u32 vcc, 32, v%d", v_lane)
        a.e("s_and_saveexec_b64 s[42:43], vcc")
        a.e("buffer_store_dwordx2 v[%d:%d], v10, s[%d:%d], s%d offen", A, A + 1, S_WS, S_WS + 3, s_t1)
        a.e("s_mov_b64 exec, s[42:43]")
    else:
        unpack(R0, 4, F)
        for e in range(8): a.e("v_add_f32 v%d, v%d, v%d", A + e, A + e, F + e)
        unpack(R0 + 4, 4, F)
        for e in range(8): a.e("v_add_f32 v%d, v%d, v%d", A + e, A + e, F + e)
        for i in range(4): a.e("v_cvt_pk_bf16_f32 v%d, v%d, v%d", F + i, A + 2 * i, A + 2 * i + 1)
        a.e("s_nop 1")
        a.e("v_permlane32_swap_b32 v%d, v%d", F, F + 2)
        a.e("v_permlane32_swap_b32 v%d, v%d", F + 1, F + 3)
        a.e("v_lshlrev_b32 v10, 10, v%d", v_q)
        a.e("v_lshl_add_u32 v10, v%d, 4, v10", v_hf)
        a.e("s_lshl_b32 s%d, s%d, 15", s_t0, s_row)
        a.e("s_lshl_b32 s%d, s%d, 5", s_t1, s_f16)
        a.e("s_add_u32 s%d, s%d, s%d", s_t0, s_t0, s_t1)
        a.e("buffer_store_dwordx4 v[%d:%d], v10, s[%d:%d], s%d offen", F, F + 3, S_O, S_O + 3, s_t0)
    if diag:
        a.e("s_waitcnt vmcnt(0)")
        st.mark()
        st.dump(S_WS, s_w, 10, s_t0)
    a.label(name + "_end")
    a.e("s_endpgm")
```

```python
from gen_common import *

def gen_rr(a, kind, name, kidx, diag=False, exp=""):
    kernel_begin(a, name)
    st = Stamps(a, diag, kidx, base=56, maxn=10)
    vm = Cnt(a, "vmcnt", 63); lg = Cnt(a, "lgkmcnt", 15)
    proj = kind == "proj"
    NPH = 8 if proj else 4
    NWG = 256 if proj else 224
    ROW = 1024 if proj else 3584
    S_W, S_WS, S_B = 4, 8, 12
    s_w, s_rt, s_ct, s_t0, s_t1, s_t2, s_ab, s_wb, s_m0, s_qb, s_rot, s_ksq, s_ph, s_isL = 16, 17, 18, 19, 20, 21, 22, 23, 24, 25, 26, 27, 28, 29
    v_lane, v_l16, v_wd, v_tr, v_tr2, v_t, v_hf = 0, 1, 2, 3, 4, 5, 8
    AF = 128
    ACC = 64
    WFR, NRW = 16, 7
    LDS_B = 131072

    a.e("s_cmp_ge_u32 s2, %d", NWG)
    a.e("s_cbranch_scc1 %s_end", name)
    st.mark()
    if proj: a.e("s_load_dwordx2 s[4:5], s[0:1], %d", A_WO)
    else: a.e("s_load_dwordx4 s[4:7], s[0:1], %d", B_W1)
    a.e("s_load_dwordx2 s[8:9], s[0:1], %d", WS)
    a.e("v_lshrrev_b32 v%d, 6, v0", v_t)
    a.e("v_and_b32 v%d, 63, v0", v_lane)
    a.e("v_readfirstlane_b32 s%d, v%d", s_w, v_t)
    a.e("s_nop 3")
    a.e("s_lshr_b32 s%d, s%d, 2", s_isL, s_w)
    a.e("s_and_b32 s%d, s%d, 3", s_w, s_w)
    if proj:
        a.e("s_bfe_u32 s%d, s2, 0x20001", s_ksq)
        a.e("s_and_b32 s%d, s2, 1", s_rt)
        a.e("s_lshl_b32 s%d, s%d, 3", s_rt, s_rt)
        a.e("s_lshr_b32 s%d, s2, 5", s_t0)
        a.e("s_add_u32 s%d, s%d, s%d", s_rt, s_rt, s_t0)
        a.e("s_bfe_u32 s%d, s2, 0x20003", s_ct)
        a.e("s_lshl_b32 s%d, s%d, 1", s_rot, s_ct)
        a.e("s_add_u32 s%d, s%d, s%d", s_rot, s_rot, s_t0)
        a.e("s_and_b32 s%d, s%d, 7", s_rot, s_rot)
    else:
        a.e("s_and_b32 s%d, s2, 15", s_rt)
        a.e("s_lshr_b32 s%d, s2, 4", s_ct)
        a.e("s_lshr_b32 s%d, s%d, 3", s_t0, s_rt)
        a.e("s_lshl_b32 s%d, s%d, 1", s_t0, s_t0)
        a.e("s_add_u32 s%d, s%d, s%d", s_rot, s_ct, s_t0)
        a.e("s_and_b32 s%d, s%d, 3", s_rot, s_rot)
    if "norot" in exp: a.e("s_mov_b32 s%d, 0", s_rot)
    a.e("v_lshlrev_b32 v%d, 4, v%d", v_l16, v_lane)
    a.e("v_lshrrev_b32 v%d, 5, v%d", v_hf, v_lane)
    a.e("v_bfe_u32 v%d, v%d, 2, 2", v_t, v_lane)
    a.e("s_movk_i32 s%d, %d", s_t0, ROW)
    a.e("v_mul_lo_u32 v%d, v%d, s%d", v_wd, v_t, s_t0)
    a.e("v_lshrrev_b32 v%d, 4, v%d", v_t, v_lane)
    a.e("v_lshl_add_u32 v%d, v%d, 6, v%d", v_wd, v_t, v_wd)
    a.e("v_and_b32 v%d, 3, v%d", v_t, v_lane)
    a.e("v_lshl_add_u32 v%d, v%d, 4, v%d", v_wd, v_t, v_wd)
    a.e("v_lshlrev_b32 v%d, 10, v%d", v_tr, v_hf)
    a.e("v_bfe_u32 v%d, v%d, 2, 2", v_t, v_lane)
    a.e("v_lshl_add_u32 v%d, v%d, 6, v%d", v_tr, v_t, v_tr)
    a.e("v_bfe_u32 v%d, v%d, 4, 1", v_t, v_lane)
    a.e("v_lshl_add_u32 v%d, v%d, 5, v%d", v_tr, v_t, v_tr)
    a.e("v_and_b32 v%d, 3, v%d", v_t, v_lane)
    a.e("v_lshl_add_u32 v%d, v%d, 3, v%d", v_tr, v_t, v_tr)
    a.e("v_add_u32 v%d, 0x10000, v%d", v_tr2, v_tr)
    a.e("s_waitcnt lgkmcnt(0)")
    if not proj:
        a.e("s_mov_b32 s12, s6"); a.e("s_mov_b32 s13, s7")
        srd(a, S_B, S_B, 1792 * 2)
    srd(a, S_W, S_W, (4096 if proj else 512) * ROW); srd(a, S_WS, S_WS, WS_BYTES)
    a.e("s_lshl_b32 s%d, s%d, 2", s_qb, s_rt)
    a.e("s_add_u32 s%d, s%d, s%d", s_qb, s_qb, s_w)
    if proj:
        a.e("s_lshl_b32 s%d, s%d, 18", s_ab, s_qb)
        a.e("s_lshl_b32 s%d, s%d, 16", s_t0, s_ksq)
        a.e("s_add_u32 s%d, s%d, s%d", s_ab, s_ab, s_t0)
        a.e("s_add_u32 s%d, s%d, 0x%x", s_ab, s_ab, WS_CTX)
        a.e("s_lshl_b32 s%d, s%d, 20", s_wb, s_ksq)
    else:
        a.e("s_lshl_b32 s%d, s%d, 15", s_ab, s_qb)
        a.e("s_add_u32 s%d, s%d, 0x%x", s_ab, s_ab, WS_HN)
        a.e("s_mov_b32 s%d, 0", s_wb)
    a.e("s_mul_i32 s%d, s%d, %d", s_t0, s_w, 4 * ROW)
    a.e("s_add_u32 s%d, s%d, s%d", s_wb, s_wb, s_t0)
    a.e("s_lshl_b32 s%d, s%d, 8", s_t0, s_ct)
    a.e("s_add_u32 s%d, s%d, s%d", s_wb, s_wb, s_t0)
    a.e("s_lshl_b32 s%d, s%d, 10", s_m0, s_w)

    def phase_head(p, dst_w, dst_a):
        a.e("s_add_u32 s%d, s%d, %d", s_ph, s_rot, p)
        a.e("s_and_b32 s%d, s%d, %d", s_ph, s_ph, NPH - 1)
        if dst_w is not None:
            a.e("s_mul_i32 s%d, s%d, %d", dst_w, s_ph, 128 * ROW)
            a.e("s_add_u32 s%d, s%d, s%d", dst_w, dst_w, s_wb)
        if dst_a is not None:
            a.e("s_lshl_b32 s%d, s%d, 13", dst_a, s_ph)
            a.e("s_add_u32 s%d, s%d, s%d", dst_a, dst_a, s_ab)
    def w_loads(p, cnt):
        phase_head(p, s_t1, None)
        for i in range(8):
            a.e("s_add_u32 m0, s%d, %d", s_m0, (p & 3) * 32768 + i * 4096)
            a.e("s_add_u32 s%d, s%d, %d", s_t0, s_t1, i * 16 * ROW)
            a.e("buffer_load_dwordx4 v%d, s[%d:%d], s%d offen lds", v_wd, S_W, S_W + 3, s_t0)
            cnt.issue(("w", p))
    def a_loads(p):
        L = []
        for i in range(8):
            def em(i=i):
                if i == 0: phase_head(p, None, s_t2)
                r = AF + ((p & 3) * 8 + i) * 4
                if i == 4: a.e("s_add_u32 s%d, s%d, 4096", s_t2, s_t2)
                a.e("buffer_load_dwordx4 v[%d:%d], v%d, s[%d:%d], s%d offen offset:%d", r, r + 3, v_l16, S_WS, S_WS + 3, s_t2, (i & 3) * 1024)
                vm.issue(("a", p))
            L.append(em)
        return L
    LC = name + "_compute"
    a.e("s_cmp_eq_u32 s%d, 0", s_isL)
    a.e("s_cbranch_scc1 %s", LC)
    vl = Cnt(a, "vmcnt", 63)
    w_loads(0, vl)
    if not proj:
        a.e("v_lshlrev_b32 v%d, 2, v%d", v_t, v_lane)
        a.e("s_lshl_b32 s%d, s%d, 8", s_t0, s_ct)
        a.e("s_mov_b32 m0, %d", LDS_B)
        a.e("s_nop 0")
        a.e("buffer_load_dword v%d, s[%d:%d], s%d offen lds", v_t, S_B, S_B + 3, s_t0)
        vl.issue("b")
    nxt = 1
    for p in range(NPH):
        vl.wait([("w", 0), "b"] if p == 0 else ([("w", 1)] if p == 1 else [("w", p), ("w", min(p + 1, NPH - 1))]))
        a.e("s_barrier")
        upto = 2 if p == 0 else min(p + 3, NPH - 1)
        while nxt <= min(upto, NPH - 1):
            w_loads(nxt, vl); nxt += 1
        if "pf" in exp and not proj and p == 1:
            a.e("s_lshr_b32 s34, s2, 3")
            for ins in l2_prefetch(a, (B_W2, 1792 * 1024), 1792 * 1024, 28, 4, 34, s_w, 36, 35, s_t1, v_l16, 64):
                a.e(ins)
                if ins.startswith("buffer"): vl.issue("pf")
    a.e("s_endpgm")
    a.label(LC)
    for em in a_loads(0): em()
    st.mark()
    frs = [(p, j, cb) for p in range(NPH) for j in range(8) for cb in range(4)]
    def w_read(gi):
        p, j, cb = frs[gi]
        r = WFR + (gi % NRW) * 4
        for t in range(2):
            off = (p & 3) * 32768 + (4 * j + 2 * t) * 1024 + cb * 256
            a.e("ds_read_b64_tr_b16 v[%d:%d], v%d offset:%d", r + 2 * t, r + 2 * t + 1, v_tr if off < 65536 else v_tr2, off & 0xffff)
            lg.issue(("w", gi))
    PRE = NRW - 1
    pend = []
    nread = 0
    for gi, (p, j, cb) in enumerate(frs):
        k = gi % 32
        if k == 0:
            a.e("s_barrier")
            if p == 0: st.mark()
            pend = (a_loads(1) if p == 0 else []) + (a_loads(p + 2) if p + 2 < NPH else [])
        lim = 32 * (p + 1) if p <= 1 else len(frs)
        while nread < min(gi + PRE + 1, lim, len(frs)):
            w_read(nread); nread += 1
        if cb == 0: vm.wait(("a", p)) if j == 0 else None
        if gi % 2 == 0: lg.wait([("w", gi), ("w", gi + 1)])
        wf = WFR + (gi % NRW) * 4
        d = ACC + cb * 16
        af = AF + ((p & 3) * 8 + j) * 4
        c = "0" if gi < 4 else "v[%d:%d]" % (d, d + 15)
        a.e("v_mfma_f32_32x32x16_bf16 v[%d:%d], v[%d:%d], v[%d:%d], %s", d, d + 15, wf, wf + 3, af, af + 3, c)
        if pend and (k % 3 == 2 or (p == 0 and k % 3 != 0) or (p == 0 and k < 12)): pend.pop(0)()
    st.mark()
    a.e("s_nop 7")
    if proj:
        a.e("s_lshl_b32 s%d, s%d, 6", s_t0, s_ksq)
        a.e("s_add_u32 s%d, s%d, s%d", s_t0, s_t0, s_qb)
        a.e("s_lshl_b32 s%d, s%d, 15", s_t0, s_t0)
        a.e("s_lshl_b32 s%d, s%d, 13", s_t1, s_ct)
        a.e("s_add_u32 s%d, s%d, s%d", s_t0, s_t0, s_t1)
        a.e("s_add_u32 s%d, s%d, 0x%x", s_t0, s_t0, WS_P)
    else:
        a.e("s_mul_i32 s%d, s%d, %d", s_t0, s_qb, 112 * 1024)
        a.e("s_lshl_b32 s%d, s%d, 13", s_t1, s_ct)
        a.e("s_add_u32 s%d, s%d, s%d", s_t0, s_t0, s_t1)
        a.e("s_add_u32 s%d, s%d, 0x%x", s_t0, s_t0, WS_F)
        a.e("v_lshlrev_b32 v%d, 3, v%d", v_t, v_hf)
        a.e("v_add_u32 v%d, %d, v%d", v_t, LDS_B, v_t)
        BR = 128
        for cb in range(4):
            for i in range(4):
                r = BR + (cb * 4 + i) * 2
                a.e("ds_read_b64 v[%d:%d], v%d offset:%d", r, r + 1, v_t, cb * 64 + i * 16)
            if cb == 1: a.e("s_waitcnt lgkmcnt(0)")
        a.e("s_waitcnt lgkmcnt(0)")
    a.e("s_add_u32 s%d, s%d, 4096", s_t1, s_t0)
    a.e("s_nop 3")
    for cb in range(4):
        for hz in range(2):
            base = ACC + cb * 16 + hz * 8
            if not proj:
                for ii in range(2):
                    r = 128 + (cb * 4 + hz * 2 + ii) * 2
                    T = 176
                    a.e("v_lshlrev_b32 v%d, 16, v%d", T, r)
                    a.e("v_and_b32 v%d, 0xffff0000, v%d", T + 1, r)
                    a.e("v_lshlrev_b32 v%d, 16, v%d", T + 2, r + 1)
                    a.e("v_and_b32 v%d, 0xffff0000, v%d", T + 3, r + 1)
                    for j in range(4):
                        a.e("v_add_f32 v%d, v%d, v%d", base + ii * 4 + j, base + ii * 4 + j, T + j)
                for e in range(8):
                    a.e("v_max_f32 v%d, 0, v%d", base + e, base + e)
                for e in range(8):
                    a.e("v_mul_f32 v%d, v%d, v%d", base + e, base + e, base + e)
            for i in range(4):
                a.e("v_cvt_pk_bf16_f32 v%d, v%d, v%d", base + i, base + 2 * i, base + 2 * i + 1)
            ds = 2 * cb + hz
            a.e("buffer_store_dwordx4 v[%d:%d], v%d, s[%d:%d], s%d offen offset:%d", base, base + 3, v_l16, S_WS, S_WS + 3,
                s_t0 if ds < 4 else s_t1, (ds & 3) * 1024)
    if diag:
        a.e("s_waitcnt vmcnt(0)")
        st.mark()
        st.dump(S_WS, s_w, 10, s_t2)
    a.label(name + "_end")
    a.e("s_endpgm")


def gen_red(a, name, kidx, diag=False, exp=""):
    kernel_begin(a, name)
    st = Stamps(a, diag, kidx, base=56, maxn=10)
    S_X, S_WS = 4, 8
    s_w, s_t0, s_t1, s_qb, s_r0 = 12, 13, 14, 15, 16
    v_lane, v_r, v_hf, v_g, v_u, v_t = 0, 1, 2, 3, 4, 5
    PR, XR, A, F = 16, 32, 40, 48
    a.e("s_cmp_ge_u32 s2, 256")
    a.e("s_cbranch_scc1 %s_end", name)
    st.mark()
    a.e("s_load_dwordx2 s[4:5], s[0:1], %d", A_X)
    a.e("s_load_dwordx2 s[8:9], s[0:1], %d", WS)
    a.e("v_lshrrev_b32 v%d, 6, v0", v_t)
    a.e("v_and_b32 v%d, 63, v0", v_lane)
    a.e("v_readfirstlane_b32 s%d, v%d", s_w, v_t)
    a.e("s_lshr_b32 s%d, s2, 2", s_qb)
    a.e("s_and_b32 s%d, s2, 3", s_r0)
    a.e("s_lshl_b32 s%d, s%d, 3", s_r0, s_r0)
    a.e("v_and_b32 v%d, 7, v%d", v_r, v_lane)
    a.e("v_bfe_u32 v%d, v%d, 3, 1", v_hf, v_lane)
    a.e("v_lshrrev_b32 v%d, 4, v%d", v_g, v_lane)
    a.e("s_lshl_b32 s%d, s%d, 2", s_t0, s_w)
    a.e("v_add_u32 v%d, s%d, v%d", v_g, s_t0, v_g)
    a.e("v_add_u32 v%d, s%d, v%d", v_t, s_r0, v_r)
    a.e("v_lshlrev_b32 v%d, 4, v%d", v_u, v_t)
    a.e("v_lshl_add_u32 v%d, v%d, 9, v%d", v_u, v_hf, v_u)
    a.e("v_lshl_add_u32 v%d, v%d, 10, v%d", v_u, v_g, v_u)
    a.e("v_lshlrev_b32 v%d, 10, v%d", v_t + 1, v_t)
    a.e("v_lshl_add_u32 v%d, v%d, 5, v%d", v_t + 1, v_g, v_t + 1)
    a.e("v_lshl_add_u32 v%d, v%d, 3, v%d", v_t + 1, v_hf, v_t + 1)
    a.e("s_waitcnt lgkmcnt(0)")
    srd(a, S_X, S_X, 2 << 20); srd(a, S_WS, S_WS, WS_BYTES)
    a.e("s_lshl_b32 s%d, s%d, 15", s_t0, s_qb)
    a.e("s_add_u32 s%d, s%d, 0x%x", s_t1, s_t0, WS_P)
    for p in range(4):
        a.e("buffer_load_dwordx4 v[%d:%d], v%d, s[%d:%d], s%d offen", PR + 4 * p, PR + 4 * p + 3, v_u, S_WS, S_WS + 3, s_t1)
        if p < 3: a.e("s_add_u32 s%d, s%d, 0x%x", s_t1, s_t1, 64 * 32768)
    a.e("buffer_load_dwordx2 v[%d:%d], v%d, s[%d:%d], s%d offen", XR, XR + 1, v_t + 1, S_X, S_X + 3, s_t0)
    a.e("buffer_load_dwordx2 v[%d:%d], v%d, s[%d:%d], s%d offen offset:16", XR + 2, XR + 3, v_t + 1, S_X, S_X + 3, s_t0)
    if "pf" in exp:
        a.e("v_lshlrev_b32 v12, 4, v%d", v_lane)
        a.e("s_lshr_b32 s20, s2, 3")
        for ins in l2_prefetch(a, (B_W1, 1792 * 1024), 1792 * 1024, 32, 8, 20, s_w, 24, 21, 22, 12, 64 - 16 + 16): a.e(ins)
    st.mark()
    def unpack(src, dst):
        for i in range(4):
            a.e("v_lshlrev_b32 v%d, 16, v%d", dst + 2 * i, src + i)
            a.e("v_and_b32 v%d, 0xffff0000, v%d", dst + 2 * i + 1, src + i)
    NPF = 7 if "pf" in exp else 0
    a.e("s_waitcnt vmcnt(%d)", 5 + NPF)
    unpack(PR, A)
    for p in range(1, 4):
        a.e("s_waitcnt vmcnt(%d)", 5 - p + NPF)
        unpack(PR + 4 * p, F)
        for e in range(8): a.e("v_add_f32 v%d, v%d, v%d", A + e, A + e, F + e)
    a.e("s_waitcnt vmcnt(%d)", NPF)
    unpack(XR, F)
    for e in range(8): a.e("v_add_f32 v%d, v%d, v%d", A + e, A + e, F + e)
    H = 56
    for i in range(4): a.e("v_cvt_pk_bf16_f32 v%d, v%d, v%d", H + i, A + 2 * i, A + 2 * i + 1)
    a.e("s_add_u32 s%d, s%d, 0x%x", s_t1, s_t0, WS_H)
    a.e("buffer_store_dwordx4 v[%d:%d], v%d, s[%d:%d], s%d offen", H, H + 3, v_u, S_WS, S_WS + 3, s_t1)
    unpack(H, A)
    def rowreduce(r, slot):
        a.e("s_nop 1")
        a.e("v_add_f32_dpp v%d, v%d, v%d row_ror:8 row_mask:0xf bank_mask:0xf", r, r, r)
        a.e("v_mov_b32 v%d, v%d", F, r)
        a.e("s_nop 1")
        a.e("v_permlane16_swap_b32 v%d, v%d", r, F)
        a.e("s_nop 1")
        a.e("v_add_f32 v%d, v%d, v%d", r, r, F)
        a.e("v_mov_b32 v%d, v%d", F, r)
        a.e("s_nop 1")
        a.e("v_permlane32_swap_b32 v%d, v%d", r, F)
        a.e("s_nop 1")
        a.e("v_add_f32 v%d, v%d, v%d", r, r, F)
        a.e("v_lshlrev_b32 v%d, 5, v%d", F, v_r)
        a.e("s_lshl_b32 s%d, s%d, 2", s_t1, s_w)
        a.e("v_add_u32 v%d, s%d, v%d", F + 1, s_t1, F)
        a.e("ds_write_b32 v%d, v%d offset:%d", F + 1, r, slot * 256)
        a.e("s_waitcnt lgkmcnt(0)")
        a.e("s_barrier")
        a.e("ds_read_b128 v[%d:%d], v%d offset:%d", F + 4, F + 7, F, slot * 256)
        a.e("ds_read_b128 v[%d:%d], v%d offset:%d", F + 8, F + 11, F, slot * 256 + 16)
        a.e("s_waitcnt lgkmcnt(0)")
        a.e("v_add_f32 v%d, v%d, v%d", r, F + 4, F + 5)
        for i in range(6, 12): a.e("v_add_f32 v%d, v%d, v%d", r, r, F + i)
    M, V2 = 60, 61
    a.e("v_add_f32 v%d, v%d, v%d", M, A, A + 1)
    for e in range(2, 8): a.e("v_add_f32 v%d, v%d, v%d", M, M, A + e)
    rowreduce(M, 0)
    a.e("v_mul_f32 v%d, 0x3b000000, v%d", M, M)
    for e in range(8): a.e("v_sub_f32 v%d, v%d, v%d", A + e, A + e, M)
    a.e("v_mul_f32 v%d, v%d, v%d", V2, A, A)
    for e in range(1, 8): a.e("v_fmac_f32 v%d, v%d, v%d", V2, A + e, A + e)
    rowreduce(V2, 1)
    a.e("v_mov_b32 v%d, 0x3727c5ac", M)
    a.e("v_fmac_f32 v%d, 0x3b000000, v%d", M, V2)
    a.e("v_rsq_f32 v%d, v%d", M, M)
    a.e("s_nop 0")
    for e in range(8): a.e("v_mul_f32 v%d, v%d, v%d", A + e, A + e, M)
    for i in range(4): a.e("v_cvt_pk_bf16_f32 v%d, v%d, v%d", H + i - 0, A + 2 * i, A + 2 * i + 1) if False else None
    HN = 32
    for i in range(4): a.e("v_cvt_pk_bf16_f32 v%d, v%d, v%d", HN + i, A + 2 * i, A + 2 * i + 1)
    a.e("s_add_u32 s%d, s%d, 0x%x", s_t1, s_t0, WS_HN)
    a.e("buffer_store_dwordx4 v[%d:%d], v%d, s[%d:%d], s%d offen", HN, HN + 3, v_u, S_WS, S_WS + 3, s_t1)
    if diag:
        a.e("s_waitcnt vmcnt(0)")
        st.mark()
        st.dump(S_WS, s_w, 10, s_t0)
    a.label(name + "_end")
    a.e("s_endpgm")
```

```python
import sys
from gen_common import *
from gen_k1 import gen_k1
from gen_k2 import gen_k2
from gen_k35 import gen_k35
from gen_rr import gen_rr, gen_red

def header(a, launches):
    hdr = open("sequential_preLN__compressed_kv_cla__dense_activation_squared_relu__prompt.s.ref").read().split("\n")
    for l in hdr:
        if l.startswith("; Override launch"): break
        a(l)
    for (k, g, b, lds) in launches:
        a("; @launch kernel=%s grid=(%d,1,1) block=(%d,1,1) lds=%d" % (k, g, b, lds))
    a('.amdgcn_target "amdgcn-amd-amdhsa--gfx950"')
    a(".text")

def main(out, which, diag=False, exp=''):
    a = Asm()
    L = []
    if "1" in which: L.append(("kv_kernel", 256, 512, 131072 + 8192 + 1024))
    if "2" in which: L.append(("attn_kernel", 256, 512, 147456))
    if "3" in which: L.append(("proj_kernel", 256, 512, 131072))
    if "r" in which: L.append(("red_kernel", 256, 512, 1024))
    if "4" in which: L.append(("ffn1_kernel", 224, 512, 131072 + 256))
    if "5" in which: L.append(("ffn2_kernel", 256, 512, 131072))
    header(a, L)
    descs = []
    def EX(k):
        out = []
        for f in exp.split(","):
            if ":" in f:
                kk, ff = f.split(":")
                if k in kk: out.append(ff)
            else: out.append(f)
        return ",".join(out)
    import gen_common
    pol = "sc1" if "sc1" in exp else ("nt" if "stnt" in exp else ("sc0 sc1" if "sc01" in exp else ""))
    if "sc01" in exp: pol = "sc0 sc1"
    def setpol(k):
        e = EX(k)
        gen_common.STORE_POLICY["v"] = "sc1" if "sc1" in e else ("nt" if "stnt" in e else "")
    if "1" in which:
        setpol('1'); gen_k1(a, diag=diag, exp=EX('1')); descs.append(("kv_kernel", 256, 102))
    if "2" in which:
        setpol('2'); gen_k2(a, diag=diag, exp=EX('2'), thr_log2=(2 if "thr" in exp else 40)); descs.append(("attn_kernel", 256, 102))
    if "3" in which:
        setpol("3"); gen_rr(a, "proj", "proj_kernel", 2, diag=diag, exp=EX("3")); descs.append(("proj_kernel", 256, 102))
    if "r" in which:
        setpol("r"); gen_red(a, "red_kernel", 5, diag=diag, exp=EX("r")); descs.append(("red_kernel", 96, 102))
    if "4" in which:
        setpol("4"); gen_rr(a, "ffn1", "ffn1_kernel", 3, diag=diag, exp=EX("4")); descs.append(("ffn1_kernel", 256, 102))
    if "5" in which:
        setpol("5"); gen_k35(a, "ffn2", "ffn2_kernel", 4, diag=diag, exp=EX("5")); descs.append(("ffn2_kernel", 256, 102))
    a('.section .rodata,"a"')
    for (n, v, s) in descs:
        a(kernel_desc(n, v, s))
    open(out, "w").write(a.text())

if __name__ == "__main__":
    main(sys.argv[1], sys.argv[2], len(sys.argv) > 3 and sys.argv[3] == 'diag', sys.argv[4] if len(sys.argv) > 4 else '')
```

```python
from gen_common import *
import math, struct
QSCALE_BITS = struct.unpack('<I', struct.pack('<f', math.log2(math.e) / math.sqrt(128.0)))[0]
import gen_common

def gen_k1(a, name="kv_kernel", diag=False, exp=""):
    kernel_begin(a, name)
    st = Stamps(a, diag, 0)
    vm = Cnt(a, "vmcnt", 63); lg = Cnt(a, "lgkmcnt", 15)
    S_X, S_C, S_WUK, S_WUV, S_W1, S_WS = 4, 8, 12, 16, 20, 24
    s_h, s_j, s_w, s_t0, s_t1, s_t2, s_kk0, s_wof, s_kst, s_vst, s_oct = 28, 29, 30, 31, 32, 33, 34, 35, 36, 37, 38
    s_c0, s_wm0, s_cm0, s_t3 = 39, 40, 41, 42
    v_lane, v_wdma, v_cdE, v_cdO, v_trE, v_trO, v_cr0, v_cr1, v_kst, v_vst, v_t = 0, 1, 2, 3, 4, 5, 6, 7, 8, 9, 10
    WF, NRING = 12, 5
    ACCA, ACCB, CF = 32, 96, 128
    LDS_W, LDS_C, LDS_SCR = 0, 65536, 131072
    T = ACCB

    a.e("s_cmp_ge_u32 s2, 256")
    a.e("s_cbranch_scc1 %s_end", name)
    st.mark()
    a.e("s_load_dwordx4 s[4:7], s[0:1], %d", A_X)
    a.e("s_load_dwordx4 s[12:15], s[0:1], %d", A_WUK)
    a.e("s_load_dwordx2 s[24:25], s[0:1], %d", WS)
    a.e("s_load_dwordx2 s[20:21], s[0:1], %d", A_WQ)
    a.e("v_lshrrev_b32 v%d, 6, v0", v_t)
    a.e("v_mov_b32 v%d, v0", T + 31)
    a.e("v_readfirstlane_b32 s%d, v%d", s_w, v_t)
    a.e("v_and_b32 v%d, 63, v0", v_lane)
    v_x16, v_g = T + 29, T + 30
    a.e("v_and_b32 v%d, 15, v%d", v_x16, v_lane)
    a.e("v_lshrrev_b32 v%d, 4, v%d", v_g, v_lane)
    a.e("s_and_b32 s%d, s2, 31", s_h)
    a.e("s_lshr_b32 s%d, s2, 5", s_j)
    a.e("s_lshr_b32 s%d, s%d, 3", s_t0, s_h)
    a.e("s_lshl_b32 s%d, s%d, 1", s_t0, s_t0)
    a.e("s_add_u32 s%d, s%d, s%d", s_kk0, s_t0, s_j)
    a.e("s_and_b32 s%d, s%d, 7", s_kk0, s_kk0)
    if "norot" in exp: a.e("s_mov_b32 s%d, 0", s_kk0)
    if "rot2" in exp or "rot4" in exp:
        a.e("s_lshr_b32 s%d, s%d, 3", s_t0, s_h)
        a.e("s_add_u32 s%d, s%d, s%d", s_kk0, s_t0, s_j)
        if "rot2" in exp:
            a.e("s_and_b32 s%d, s%d, 1", s_kk0, s_kk0); a.e("s_lshl_b32 s%d, s%d, 2", s_kk0, s_kk0)
        else:
            a.e("s_and_b32 s%d, s%d, 3", s_kk0, s_kk0); a.e("s_lshl_b32 s%d, s%d, 1", s_kk0, s_kk0)
    a.e("v_bfe_u32 v%d, v%d, 2, 2", v_t, v_lane)
    a.e("v_bfe_u32 v%d, v%d, 4, 1", v_t + 1, v_lane)
    a.e("v_lshl_add_u32 v%d, v%d, 2, v%d", v_t, v_t + 1, v_t)
    a.e("v_lshlrev_b32 v%d, 13, v%d", v_t, v_t)
    a.e("s_and_b32 s%d, s%d, 1", s_t0, s_w)
    a.e("s_lshl_b32 s%d, s%d, 1", s_t0, s_t0)
    a.e("v_and_b32 v%d, 3, v%d", v_t + 1, v_lane)
    a.e("v_xor_b32 v%d, s%d, v%d", v_t + 1, s_t0, v_t + 1)
    a.e("v_lshrrev_b32 v%d, 5, v%d", v_wdma, v_lane)
    a.e("v_lshl_add_u32 v%d, v%d, 2, v%d", v_t + 1, v_wdma, v_t + 1)
    a.e("v_lshl_add_u32 v%d, v%d, 4, v%d", v_wdma, v_t + 1, v_t)
    a.e("v_lshrrev_b32 v%d, 3, v%d", v_t, v_lane)
    a.e("v_lshrrev_b32 v%d, 1, v%d", v_t + 1, v_t)
    a.e("v_and_b32 v%d, 7, v%d", v_cdE, v_lane)
    a.e("v_xor_b32 v%d, v%d, v%d", v_cdE, v_cdE, v_t + 1)
    a.e("v_lshlrev_b32 v%d, 4, v%d", v_cdE, v_cdE)
    a.e("v_lshl_add_u32 v%d, v%d, 10, v%d", v_cdE, v_t, v_cdE)
    a.e("v_xor_b32 v%d, 64, v%d", v_cdO, v_cdE)
    a.e("s_waitcnt lgkmcnt(0)")
    st.mark()
    a.e("s_mov_b32 s8, s6"); a.e("s_mov_b32 s9, s7")
    a.e("s_mov_b32 s16, s14"); a.e("s_mov_b32 s17, s15")
    srd(a, S_X, S_X, 2 << 20); srd(a, S_C, S_C, 2 << 20)
    srd(a, S_WUK, S_WUK, 4 << 20); srd(a, S_WUV, S_WUV, 4 << 20)
    srd(a, S_WS, S_WS, WS_BYTES); srd(a, S_W1, S_W1, 4 << 20)
    a.e("s_lshl_b32 s%d, s%d, 16", s_wof, s_w)
    a.e("s_lshl_b32 s%d, s%d, 8", s_t0, s_h)
    a.e("s_add_u32 s%d, s%d, s%d", s_wof, s_wof, s_t0)
    a.e("s_lshl_b32 s%d, s%d, 10", s_wm0, s_w)
    a.e("s_lshl_b32 s%d, s%d, 18", s_c0, s_j)
    a.e("s_lshl_b32 s%d, s%d, 15", s_t0, s_w)
    a.e("s_add_u32 s%d, s%d, s%d", s_c0, s_c0, s_t0)
    a.e("s_lshl_b32 s%d, s%d, 13", s_cm0, s_w)
    a.e("s_add_u32 s%d, s%d, %d", s_cm0, s_cm0, LDS_C)

    def kk_of(i, dst):
        a.e("s_add_u32 s%d, s%d, %d", dst, s_kk0, i)
        a.e("s_and_b32 s%d, s%d, 7", dst, dst)
    def w_dma(step):
        slot = step & 3
        L = []
        for hf in range(2):
            if step < 8:
                S, kki, col = S_WUK, step, hf * 128
            else:
                cv = (step - 8) >> 2
                S, kki, col = S_WUV, 2 * ((step - 8) & 3) + hf, cv * 128
            def em(S=S, kki=kki, col=col, hf=hf):
                kk_of(kki, s_t0)
                a.e("s_lshl_b32 s%d, s%d, 19", s_t0, s_t0)
                a.e("s_add_u32 m0, s%d, %d", s_wm0, LDS_W + slot * 16384 + hf * 8192)
                a.e("s_add_u32 s%d, s%d, s%d", s_t0, s_t0, s_wof)
                if col: a.e("s_add_u32 s%d, s%d, %d", s_t0, s_t0, col)
                a.e("buffer_load_dwordx4 v%d, s[%d:%d], s%d offen lds", v_wdma, S, S + 3, s_t0)
                vm.issue(("W", step))
            L.append(em)
        return L
    def c_dma(step):
        slot = step & 1
        L = []
        for q in range(4):
            def em(q=q):
                if q == 0:
                    kk_of(step, s_t1)
                    a.e("s_lshl_b32 s%d, s%d, 7", s_t1, s_t1)
                    a.e("s_add_u32 s%d, s%d, s%d", s_t1, s_t1, s_c0)
                else:
                    a.e("s_add_u32 s%d, s%d, 8192", s_t1, s_t1)
                a.e("s_add_u32 m0, s%d, %d", s_cm0, slot * 4096 + q * 1024)
                a.e("s_nop 0")
                a.e("buffer_load_dwordx4 v%d, s[%d:%d], s%d offen lds", v_cdE if (q & 1) == 0 else v_cdO, S_C, S_C + 3, s_t1)
                vm.issue(("c", step))
            L.append(em)
        return L

    for em in c_dma(0) + w_dma(0): em()
    for em in c_dma(1) + w_dma(1): em()
    a.e("s_lshl_b32 s%d, s2, 3", s_t0)
    a.e("s_add_u32 s%d, s%d, s%d", s_t0, s_t0, s_w)
    a.e("s_lshl_b32 s%d, s%d, 10", s_t0, s_t0)
    a.e("v_lshlrev_b32 v%d, 4, v%d", v_t, v_lane)
    a.e("buffer_load_dwordx4 v[%d:%d], v%d, s[%d:%d], s%d offen", T, T + 3, v_t, S_X, S_X + 3, s_t0)
    vm.issue("x")
    st.mark()

    a.e("v_bfe_u32 v%d, v%d, 2, 2", v_t, v_lane)
    a.e("v_lshlrev_b32 v%d, 6, v%d", v_t, v_t)
    a.e("v_and_b32 v%d, 3, v%d", v_t + 1, v_lane)
    a.e("v_lshl_add_u32 v%d, v%d, 3, v%d", v_t, v_t + 1, v_t)
    a.e("v_lshl_add_u32 v%d, v%d, 10, v%d", v_t, v_g, v_t)
    a.e("v_and_b32 v%d, 1, v%d", v_t + 1, v_g)
    a.e("v_lshl_add_u32 v%d, v%d, 5, v%d", v_trE, v_t + 1, v_t)
    a.e("v_xor_b32 v%d, 32, v%d", v_trO, v_trE)
    a.e("v_lshrrev_b32 v%d, 1, v%d", v_t, v_x16)
    a.e("v_xor_b32 v%d, v%d, v%d", v_t, v_t, v_g)
    a.e("v_lshlrev_b32 v%d, 4, v%d", v_t, v_t)
    a.e("v_lshl_add_u32 v%d, v%d, 7, v%d", v_t, v_x16, v_t)
    a.e("v_add_u32 v%d, s%d, v%d", v_cr0, s_cm0, v_t)
    a.e("v_xor_b32 v%d, 64, v%d", v_cr1, v_cr0)
    a.e("v_and_b32 v%d, 1, v%d", v_t, v_g)
    a.e("v_lshlrev_b32 v%d, 10, v%d", v_kst, v_t)
    a.e("v_lshrrev_b32 v%d, 1, v%d", v_t, v_g)
    a.e("v_lshl_add_u32 v%d, v%d, 9, v%d", v_kst, v_t, v_kst)
    a.e("v_lshrrev_b32 v%d, 3, v%d", v_t, v_x16)
    a.e("v_lshl_add_u32 v%d, v%d, 8, v%d", v_kst, v_t, v_kst)
    a.e("v_and_b32 v%d, 7, v%d", v_t, v_x16)
    a.e("v_lshl_add_u32 v%d, v%d, 4, v%d", v_kst, v_t, v_kst)
    a.e("v_lshrrev_b32 v%d, 1, v%d", v_t, v_g)
    a.e("v_lshlrev_b32 v%d, 12, v%d", v_vst, v_t)
    a.e("v_and_b32 v%d, 1, v%d", v_t, v_g)
    a.e("v_lshl_add_u32 v%d, v%d, 9, v%d", v_vst, v_t, v_vst)
    a.e("v_lshl_add_u32 v%d, v%d, 4, v%d", v_vst, v_x16, v_vst)
    a.e("s_lshl_b32 s%d, s%d, 19", s_kst, s_h)
    a.e("s_lshl_b32 s%d, s%d, 16", s_t0, s_j)
    a.e("s_add_u32 s%d, s%d, s%d", s_kst, s_kst, s_t0)
    a.e("s_lshl_b32 s%d, s%d, 13", s_t0, s_w)
    a.e("s_add_u32 s%d, s%d, s%d", s_kst, s_kst, s_t0)
    a.e("s_add_u32 s%d, s%d, 0x%x", s_vst, s_kst, WS_V)

    class Rec:
        def __init__(self): self.L = []
        def e(self, fmt, *x): self.L.append(fmt % x if x else fmt)
    r_ = Rec()
    F = T + 8
    for i in range(4):
        r_.e("v_lshlrev_b32 v%d, 16, v%d", F + 2 * i, T + i)
        r_.e("v_and_b32 v%d, 0xffff0000, v%d", F + 2 * i + 1, T + i)
    M, TT, V2, RS = T + 16, T + 17, T + 18, T + 19
    r_.e("v_add_f32 v%d, v%d, v%d", M, F, F + 1)
    for i in range(2, 8):
        r_.e("v_add_f32 v%d, v%d, v%d", M, M, F + i)
    allsum64(r_, M, TT)
    r_.e("v_mul_f32 v%d, 0x3b000000, v%d", M, M)
    for i in range(8):
        r_.e("v_sub_f32 v%d, v%d, v%d", F + i, F + i, M)
    r_.e("v_mul_f32 v%d, v%d, v%d", V2, F, F)
    for i in range(1, 8):
        r_.e("v_fmac_f32 v%d, v%d, v%d", V2, F + i, F + i)
    allsum64(r_, V2, TT)
    r_.e("v_mov_b32 v%d, 0x3727c5ac", RS)
    r_.e("v_fmac_f32 v%d, 0x3b000000, v%d", RS, V2)
    r_.e("v_rsq_f32 v%d, v%d", RS, RS)
    r_.e("s_nop 0")
    r_.e("v_mul_f32 v%d, 0x%x, v%d", RS, QSCALE_BITS, RS)
    for i in range(8):
        r_.e("v_mul_f32 v%d, v%d, v%d", F + i, F + i, RS)
    for i in range(4):
        r_.e("v_cvt_pk_bf16_f32 v%d, v%d, v%d", T + i, F + 2 * i, F + 2 * i + 1)
    r_.e("s_lshl_b32 s%d, s%d, 10", s_t3, s_w)
    r_.e("s_add_u32 s%d, s%d, %d", s_t3, s_t3, LDS_SCR)
    r_.e("v_lshl_add_u32 v%d, v%d, 4, s%d", T + 20, v_lane, s_t3)
    LN1 = r_.L
    r2 = Rec()
    X0, X1, X2 = T + 20, T + 21, T + 22
    r2.e("v_and_b32 v%d, 7, v%d", X0, v_lane)
    r2.e("v_lshrrev_b32 v%d, 3, v%d", X1, v_lane)
    r2.e("s_lshl_b32 s%d, s%d, 3", s_t3, s_w)
    r2.e("v_add_u32 v%d, s%d, v%d", X1, s_t3, X1)
    r2.e("v_lshlrev_b32 v%d, 10, v%d", F, X0)
    r2.e("v_lshl_add_u32 v%d, v%d, 4, v%d", F, X1, F)
    r2.e("v_add_u32 v%d, %d, v%d", F, LDS_SCR, F)
    LN2a = r2.L
    r3 = Rec()
    r3.e("v_lshrrev_b32 v%d, 2, v%d", F + 1, X1)
    r3.e("v_lshlrev_b32 v%d, 10, v%d", F + 1, F + 1)
    r3.e("v_and_b32 v%d, 3, v%d", X1, X1)
    r3.e("v_lshl_add_u32 v%d, v%d, 8, v%d", F + 1, X1, F + 1)
    r3.e("v_lshl_add_u32 v%d, v%d, 4, v%d", F + 1, X0, F + 1)
    r3.e("s_lshr_b32 s%d, s2, 1", s_t3)
    r3.e("s_lshl_b32 s%d, s%d, 14", s_t3, s_t3)
    r3.e("s_and_b32 s%d, s2, 1", s_oct)
    r3.e("s_lshl_b32 s%d, s%d, 7", s_oct, s_oct)
    r3.e("s_add_u32 s%d, s%d, s%d", s_t3, s_t3, s_oct)
    r3.e("s_add_u32 s%d, s%d, 0x%x", s_t3, s_t3, WS_XN)
    LN2b = r3.L

    def c_reads(step):
        for u in range(2):
            for kb in range(2):
                r = CF + ((step * 2 + u) * 2 + kb) * 4
                a.e("ds_read_b128 v[%d:%d], v%d offset:%d", r, r + 3, v_cr0 if u == 0 else v_cr1, (step & 1) * 4096 + kb * 2048)
                lg.issue(("c", step))

    vm.wait([("c", 0), ("W", 0)])
    c_reads(0)
    st.mark()
    a.e("s_barrier")
    st.mark()

    def step_frags(step):
        L = []
        if step < 8:
            for u in range(2):
                for cb in range(8):
                    off = (cb >> 2) * 8192 + u * 4096 + ((cb >> 1) & 1) * 512
                    dg = cb >> 1
                    accs = [ACCA + ((dg * 2 + kb) * 2 + (cb & 1)) * 4 for kb in range(2)]
                    cfs = [CF + ((step * 2 + u) * 2 + kb) * 4 for kb in range(2)]
                    L.append((off, cb & 1, accs, cfs, step == 0 and u == 0))
        else:
            base = ACCB if step < 12 else ACCA
            i2 = (step - 8) & 3
            for hf in range(2):
                for u in range(2):
                    for cb in range(4):
                        off = hf * 8192 + u * 4096 + (cb >> 1) * 512
                        accs = [base + (cb * 2 + kb) * 4 for kb in range(2)]
                        ci = (2 * i2 + hf)
                        cfs = [CF + ((ci * 2 + u) * 2 + kb) * 4 for kb in range(2)]
                        L.append((off, cb & 1, accs, cfs, i2 == 0 and hf == 0 and u == 0))
        return L
    frags = [(s, f) for s in range(16) for f in step_frags(s)]
    def w_read(gi):
        s, (off, odd, accs, cfs, first) = frags[gi]
        r = WF + (gi % NRING) * 4
        for t in range(2):
            a.e("ds_read_b64_tr_b16 v[%d:%d], v%d offset:%d", r + 2 * t, r + 2 * t + 1, v_trO if odd else v_trE,
                LDS_W + (s & 3) * 16384 + off + t * 256)
            lg.issue(("W", gi))
    def epi(kind):
        L = []
        if kind == "K":
            for dg in range(4):
                for kb in range(2):
                    A = ACCA + (dg * 2 + kb) * 8
                    g = []
                    for i in range(4):
                        g.append("v_cvt_pk_bf16_f32 v%d, v%d, v%d" % (A + i, A + 2 * i, A + 2 * i + 1))
                    g.append("s_add_u32 s%d, s%d, %d" % (s_t2, s_kst, (dg >> 1) * 4096))
                    g.append(("st", "buffer_store_dwordx4 v[%d:%d], v%d, s[%d:%d], s%d offen offset:%d" % (A, A + 3, v_kst, S_WS, S_WS + 3, s_t2, kb * 128 + (dg & 1) * 2048)))
                    L += g
        else:
            cv = 0 if kind == "V0" else 1
            base = ACCB if cv == 0 else ACCA
            for cb in range(4):
                A = base + cb * 8
                for i in range(4):
                    L.append("v_cvt_pk_bf16_f32 v%d, v%d, v%d" % (A + i, A + 2 * i, A + 2 * i + 1))
                L.append("s_add_u32 s%d, s%d, %d" % (s_t2, s_vst, cv * 2048))
                L.append(("st", "buffer_store_dwordx4 v[%d:%d], v%d, s[%d:%d], s%d offen offset:%d" % (A, A + 3, v_vst, S_WS, S_WS + 3, s_t2, (cb >> 1) * 1024 + (cb & 1) * 256)))
        return L
    def emit_epi(x):
        if isinstance(x, tuple):
            if "nost" in exp: return
            a.e(x[1]); vm.issue("st")
        else:
            a.e(x)

    def emit_main(dk0, epk0, last):
        PRE = NRING - 1
        nread = 0
        pend_epi = []
        ln = list(LN1); ln2a = list(LN2a); ln2b = list(LN2b)
        for gi, (s, (off, odd, accs, cfs, first)) in enumerate(frags):
            k = gi % 16
            dmas = []
            if k == 0:
                a("; ---- step %d" % s)
                if s in (4, 8, 12): (st.mark() if last else None)
                if s > 0 and "nobar" not in exp and not ("bar2" in exp and s >= 9 and s % 2 == 1):
                    a.e("s_barrier")
                if s == 8:
                    ek = epi("K"); pend_epi = ek[:36]; ek_rest = ek[36:]
                if s == 12: pend_epi = ek_rest + epi("V0")
                step_dmas = []
                if s == 0: step_dmas += w_dma(2)
                if s + 3 < 16: step_dmas += w_dma(s + 3)
                if s + 2 < 8: step_dmas += c_dma(s + 2)
            lim = 16 if s == 0 else len(frags)
            while nread < min(gi + PRE + 1, lim):
                w_read(nread); nread += 1
            lg.wait([("W", gi), ("c", s)] if k == 0 else ("W", gi))
            wf = WF + (gi % NRING) * 4
            for kb in range(2):
                d, cf = accs[kb], cfs[kb]
                c = "0" if first else "v[%d:%d]" % (d, d + 3)
                if s < 8:
                    a.e("v_mfma_f32_16x16x32_bf16 v[%d:%d], v[%d:%d], v[%d:%d], %s", d, d + 3, wf, wf + 3, cf, cf + 3, c)
                else:
                    a.e("v_mfma_f32_16x16x32_bf16 v[%d:%d], v[%d:%d], v[%d:%d], %s", d, d + 3, cf, cf + 3, wf, wf + 3, c)
            if k >= dk0 and step_dmas:
                if "nodma" in exp and s >= 2: step_dmas.pop(0)
                else: step_dmas.pop(0)()
            if s == 1 and k == 0: vm.wait("x")
            if s in (1, 2) and ln:
                for _ in range(4):
                    if ln: a.e(ln.pop(0))
            if s == 2 and k == 15:
                assert not ln
                a.e("ds_write_b128 v%d, v[%d:%d]", T + 20, T, T + 3); lg.issue("lnw")
                lg.wait("lnw")
            if s == 3:
                if k < 4:
                    for _ in range(2):
                        if ln2a: a.e(ln2a.pop(0))
                if k == 4:
                    a.e("ds_read_b128 v[%d:%d], v%d", T, T + 3, F); lg.issue("lnr")
                if 5 <= k < 11:
                    for _ in range(2):
                        if ln2b: a.e(ln2b.pop(0))
                if k == 12:
                    assert not ln2a and not ln2b
                    lg.wait("lnr")
                    a.e("buffer_store_dwordx4 v[%d:%d], v%d, s[%d:%d], s%d offen", T, T + 3, F + 1, S_WS, S_WS + 3, s_t3)
                    vm.issue("xn")
            if k == (15 if s == 0 else 11) and s + 1 < 16:
                tags = [("W", s + 1), ("W", s + 2), ("c", s + 1)]
                vm.wait(tags)
                if s + 1 < 8: c_reads(s + 1)
            if "pf" in exp and s == 10 and k in (4, 8):
                a.e("v_lshrrev_b32 v%d, 4, v%d", v_t, v_lane)
                a.e("v_lshlrev_b32 v%d, 13, v%d", v_t, v_t)
                a.e("v_and_b32 v%d, 15, v%d", v_t + 1, v_lane)
                a.e("v_lshl_add_u32 v%d, v%d, 4, v%d", v_t, v_t + 1, v_t)
                a.e("s_lshl_b32 s%d, s%d, 3", s_t3, s_j)
                a.e("s_add_u32 s%d, s%d, s%d", s_t3, s_t3, s_w)
                a.e("s_lshl_b32 s%d, s%d, 16", s_t3, s_t3)
                a.e("s_lshl_b32 s%d, s%d, 8", s_t1, s_h)
                a.e("s_add_u32 s%d, s%d, s%d", s_t3, s_t3, s_t1)
                if k == 8: a.e("s_add_u32 s%d, s%d, 32768", s_t3, s_t3)
                a.e("s_mov_b32 m0, s%d", s_cm0)
                a.e("s_nop 0")
                a.e("buffer_load_dwordx4 v%d, s[%d:%d], s%d offen lds", v_t, S_W1, S_W1 + 3, s_t3)
                vm.issue("pf")
            if pend_epi and k >= 3:
                emit_epi(pend_epi.pop(0))
                if pend_epi and s >= 12: emit_epi(pend_epi.pop(0))
        assert not pend_epi
        (st.mark() if last else None)
        a.e("s_nop 7")
        for x in epi("V1"): emit_epi(x)
        if diag and last:
            a.e("s_waitcnt vmcnt(0)")
            (st.mark() if last else None)
            st.dump(S_WS, s_w, 10, s_t0)

    if "stag" in exp:
        l2 = name + "_late"
        vm0, lg0 = list(vm.ops), list(lg.ops)
        a.e("s_cmp_ge_u32 s%d, 4", s_w)
        a.e("s_cbranch_scc1 %s", l2)
        emit_main(1, 3, True)
        a.e("s_endpgm")
        a.label(l2)
        vm.ops, lg.ops = vm0, lg0
        emit_main(6 if "stag6" in exp else 8, 3, False)
    else:
        emit_main(1, 3, True)
    a.label(name + "_end")
    a.e("s_endpgm")
```

```python
from gen_common import *
import gen_common
import math, struct

def f32bits(x):
    return struct.unpack("<I", struct.pack("<f", x))[0]

def gen_k2(a, name="attn_kernel", diag=False, exp="", thr_log2=40):
    kernel_begin(a, name)
    st = Stamps(a, diag, 1, base=56, maxn=11)
    vm = Cnt(a, "vmcnt", 63); lg = Cnt(a, "lgkmcnt", 15)
    QSCALE = f32bits(math.log2(math.e) / math.sqrt(128.0))
    THR = f32bits(2.0 ** thr_log2)
    S_WQ, S_WS = 4, 8
    s_h, s_x, s_w, s_t0, s_t1, s_t2, s_kk0, s_wof, s_wm0 = 12, 13, 14, 15, 16, 17, 18, 19, 20
    s_xn, s_T, s_TB, s_t, s_cur, s_nxt, s_ld, s_kof, s_vof, s_wl = 21, 22, 23, 24, 25, 26, 27, 28, 29, 30
    s_qb, s_mfrom, s_kb, s_isA, s_lslot, s_lst, s_thr, s_oob = 31, 32, 33, 34, 35, 36, 37, 38
    s_ret = 40
    s_m = 42
    s_hb = 50
    s_n = 51
    s_cnt = 52
    s_x1, s_x2 = 53, 54
    v_lane, v_wdma, v_trE, v_trO, v_l16, v_rd, v_rdn, v_qrel, v_t = 0, 1, 2, 3, 4, 5, 6, 7, 8
    WF, NRW = 12, 5
    ACC = 32
    XN = 128
    Q = 96
    RING, NR, PD = 12, 16, 12
    TT = 80
    v_ps, v_l, v_D, v_ninf, v_mx, v_f = [84, 85], 86, 87, 88, 89, 90
    U = 76
    v_pk = [92, 94]
    NEGM, P, S, O = 128, [144, 152], [160, 176], 192
    SLOT = 32768

    a.e("s_cmp_ge_u32 s2, 256")
    a.e("s_cbranch_scc1 %s_end", name)
    st.mark()
    a.e("s_load_dwordx2 s[4:5], s[0:1], %d", A_WQ)
    a.e("s_load_dwordx2 s[8:9], s[0:1], %d", WS)
    a.e("v_lshrrev_b32 v%d, 6, v0", v_t)
    a.e("v_and_b32 v%d, 63, v0", v_lane)
    a.e("v_readfirstlane_b32 s%d, v%d", s_w, v_t)
    a.e("s_and_b32 s%d, s2, 31", s_h)
    a.e("s_lshr_b32 s%d, s2, 5", s_x)
    a.e("s_lshr_b32 s%d, s%d, 3", s_t0, s_h)
    a.e("s_lshl_b32 s%d, s%d, 1", s_t0, s_t0)
    a.e("s_add_u32 s%d, s%d, s%d", s_kk0, s_t0, s_x)
    a.e("s_and_b32 s%d, s%d, 7", s_kk0, s_kk0)
    a.e("s_lshr_b32 s%d, s%d, 2", s_isA, s_w)
    a.e("s_sub_u32 s%d, 15, s%d", s_t0, s_x)
    a.e("s_lshl_b32 s%d, s%d, 1", s_TB, s_t0)
    a.e("s_add_u32 s%d, s%d, 2", s_TB, s_TB)
    a.e("s_sub_u32 s%d, 7, s%d", s_t1, s_w)
    a.e("s_cmp_eq_u32 s%d, 0", s_isA)
    a.e("s_cselect_b32 s%d, s%d, s%d", s_t0, s_t0, s_x)
    a.e("s_cselect_b32 s%d, s%d, s%d", s_t1, s_w, s_t1)
    a.e("s_lshl_b32 s%d, s%d, 1", s_T, s_t0)
    a.e("s_lshr_b32 s%d, s%d, 1", s_t2, s_t1)
    a.e("s_add_u32 s%d, s%d, s%d", s_T, s_T, s_t2)
    a.e("s_add_u32 s%d, s%d, 1", s_T, s_T)
    a.e("s_lshl_b32 s%d, s%d, 2", s_qb, s_t0)
    a.e("s_add_u32 s%d, s%d, s%d", s_qb, s_qb, s_t1)
    a.e("s_sub_u32 s%d, s%d, 3", s_mfrom, s_T)
    a.e("s_and_b32 s%d, s%d, 3", s_wl, s_w)
    a.e("v_bfe_u32 v%d, v%d, 2, 2", v_t, v_lane)
    a.e("v_bfe_u32 v%d, v%d, 4, 1", v_t + 1, v_lane)
    a.e("v_lshl_add_u32 v%d, v%d, 2, v%d", v_t, v_t + 1, v_t)
    a.e("v_lshlrev_b32 v%d, 13, v%d", v_t, v_t)
    a.e("s_and_b32 s%d, s%d, 1", s_t0, s_w)
    a.e("s_lshl_b32 s%d, s%d, 1", s_t0, s_t0)
    a.e("v_and_b32 v%d, 3, v%d", v_t + 1, v_lane)
    a.e("v_xor_b32 v%d, s%d, v%d", v_t + 1, s_t0, v_t + 1)
    a.e("v_lshrrev_b32 v%d, 5, v%d", v_wdma, v_lane)
    a.e("v_lshl_add_u32 v%d, v%d, 2, v%d", v_t + 1, v_wdma, v_t + 1)
    a.e("v_lshl_add_u32 v%d, v%d, 4, v%d", v_wdma, v_t + 1, v_t)
    a.e("v_lshlrev_b32 v%d, 4, v%d", v_l16, v_lane)
    a.e("s_waitcnt lgkmcnt(0)")
    srd(a, S_WQ, S_WQ, 4 << 20); srd(a, S_WS, S_WS, WS_BYTES)
    a.e("s_lshl_b32 s%d, s%d, 16", s_wof, s_w)
    a.e("s_lshl_b32 s%d, s%d, 8", s_t0, s_h)
    a.e("s_add_u32 s%d, s%d, s%d", s_wof, s_wof, s_t0)
    a.e("s_lshl_b32 s%d, s%d, 10", s_wm0, s_w)
    a.e("s_lshl_b32 s%d, s%d, 15", s_xn, s_qb)
    a.e("s_add_u32 s%d, s%d, 0x%x", s_xn, s_xn, WS_XN)
    a.e("s_lshl_b32 s%d, s%d, 19", s_hb, s_h)
    a.e("s_lshl_b32 s%d, s%d, 12", s_t0, s_wl)
    a.e("s_add_u32 s%d, s%d, s%d", s_hb, s_hb, s_t0)
    a.e("s_mov_b32 s%d, 0x7ff00000", s_oob)
    a.e("s_mov_b32 s%d, 0x%x", s_thr, THR)

    def kk_of(i, dst):
        a.e("s_add_u32 s%d, s%d, %d", dst, s_kk0, i)
        a.e("s_and_b32 s%d, s%d, 7", dst, dst)
    def wq_lds(step):
        return step * 16384
    def w_dma(step):
        for em in w_dma_l(step): em()
    def w_dma_l(step):
        return [lambda hf=hf: w_dma1(step, hf) for hf in range(2)]
    def w_dma1(step, hf):
        if True:
            kk_of(step, s_t0)
            a.e("s_lshl_b32 s%d, s%d, 19", s_t0, s_t0)
            a.e("s_add_u32 m0, s%d, %d", s_wm0, wq_lds(step) + hf * 8192)
            a.e("s_add_u32 s%d, s%d, s%d", s_t0, s_t0, s_wof)
            if hf: a.e("s_add_u32 s%d, s%d, 128", s_t0, s_t0)
            a.e("buffer_load_dwordx4 v%d, s[%d:%d], s%d offen lds", v_wdma, S_WQ, S_WQ + 3, s_t0)
            vm.issue(("W", step))
    def xn_load(step):
        for em in xn_load_l(step): em()
    def xn_load_l(step):
        L = []
        for u in range(2):
            for qb in range(2):
                def em(u=u, qb=qb):
                    if u == 0 and qb == 0:
                        kk_of(step, s_x1)
                        a.e("s_lshl_b32 s%d, s%d, 11", s_x1, s_x1)
                        a.e("s_add_u32 s%d, s%d, s%d", s_x1, s_x1, s_xn)
                        a.e("s_add_u32 s%d, s%d, 16384", s_x2, s_x1)
                    r = XN + ((step * 2 + u) * 2 + qb) * 4
                    a.e("buffer_load_dwordx4 v[%d:%d], v%d, s[%d:%d], s%d offen offset:%d", r, r + 3, v_l16, S_WS, S_WS + 3,
                        s_x1 if qb == 0 else s_x2, u * 1024)
                    vm.issue(("x", step))
                L.append(em)
        return L
    def stage_addr_static(stage):
        a.e("s_add_u32 s%d, s%d, 0x%x", s_kof, s_hb, WS_K + (stage + 1) * 16384)
        a.e("s_add_u32 s%d, s%d, 0x%x", s_vof, s_hb, WS_V + max(stage, 0) * 16384)
        a.e("s_lshl_b32 s%d, s%d, 12", s_lslot, s_wl)
        a.e("s_add_u32 s%d, s%d, %d", s_lslot, s_lslot, (stage % 4) * SLOT if stage >= 0 else 4 * SLOT)
    def stage_loads(part, tag=None, track=True):
        L = []
        for i in range(4):
            def em(i=i):
                if i == 0:
                    a.e("s_add_u32 m0, s%d, %d", s_lslot, 0 if part == "K" else 16384)
                    a.e("s_nop 0")
                a.e("buffer_load_dwordx4 v%d, s[%d:%d], s%d offen offset:%d lds", v_l16, S_WS, S_WS + 3,
                    s_kof if part == "K" else s_vof, i * 1024)
                if track: vm.issue(tag)
            L.append(em)
        return L
    def only_A(fn):
        l = a.newlabel("LnA")
        a.e("s_cmp_eq_u32 s%d, 0", s_isA)
        a.e("s_cbranch_scc1 %s", l)
        fn()
        a.label(l)

    vmB = Cnt(a, "vmcnt", 63)
    class Both:
        def issue(self, tag, onlyA=False):
            pass
    def issue_both(tag):
        vmB.ops.append(tag)
    _issue = vm.issue
    state = {"A_only": False}
    def issue2(tag):
        _issue(tag)
        if not state["A_only"]: vmB.ops.append(tag)
    vm.issue = issue2
    def wait_common(tags):
        nA, nB = vm.need(tags), vmB.need(tags)
        if nA is None and nB is None: return
        if nA == nB or nB is None or nA is None:
            n = min(x for x in (nA, nB) if x is not None)
            a.e("s_waitcnt vmcnt(%d)", n)
        else:
            l1, l2 = a.newlabel("Lw"), a.newlabel("Lw")
            a.e("s_cmp_eq_u32 s%d, 0", s_isA)
            a.e("s_cbranch_scc1 %s", l1)
            a.e("s_waitcnt vmcnt(%d)", nA)
            a.e("s_branch %s", l2)
            a.label(l1)
            a.e("s_waitcnt vmcnt(%d)", nB)
            a.label(l2)
        for tr, n in ((vm, nA), (vmB, nB)):
            if n is not None: tr.ops = tr.ops[len(tr.ops) - n:] if n > 0 else []
    def a_loads(stage):
        def fn():
            state["A_only"] = True
            stage_addr_static(stage)
            for em in stage_loads("K", ("st", stage)): em()
            if stage >= 0:
                for em in stage_loads("V", ("st", stage)): em()
            state["A_only"] = False
        only_A(fn)

    for s in range(2):
        w_dma(s); xn_load(s)
    st.mark()
    a.e("v_bfe_u32 v%d, v%d, 2, 2", v_t, v_lane)
    a.e("v_lshlrev_b32 v%d, 6, v%d", v_t, v_t)
    a.e("v_and_b32 v%d, 3, v%d", v_t + 1, v_lane)
    a.e("v_lshl_add_u32 v%d, v%d, 3, v%d", v_t, v_t + 1, v_t)
    a.e("v_lshrrev_b32 v%d, 4, v%d", v_t + 1, v_lane)
    a.e("v_lshl_add_u32 v%d, v%d, 10, v%d", v_t, v_t + 1, v_t)
    a.e("v_and_b32 v%d, 1, v%d", v_t + 1, v_t + 1)
    a.e("v_lshl_add_u32 v%d, v%d, 5, v%d", v_trE, v_t + 1, v_t)
    a.e("v_xor_b32 v%d, 32, v%d", v_trO, v_trE)
    a.e("v_add_u32 v%d, 0x10000, v%d", v_rd, v_trE)
    a.e("v_add_u32 v%d, 0x10000, v%d", v_rdn, v_trO)
    a.e("v_and_b32 v%d, 31, v%d", v_qrel, v_lane)
    a.e("s_lshl_b32 s%d, s%d, 5", s_t0, s_qb)
    a.e("v_add_u32 v%d, s%d, v%d", v_qrel, s_t0, v_qrel)
    a.e("v_lshrrev_b32 v%d, 5, v%d", v_t, v_lane)
    a.e("v_lshlrev_b32 v%d, 2, v%d", v_t, v_t)
    a.e("v_sub_u32 v%d, v%d, v%d", v_qrel, v_qrel, v_t)

    qfr = []
    for s in range(8):
        for u in range(2):
            for cb in range(8):
                off = wq_lds(s) - (65536 if s >= 4 else 0) + (cb >> 2) * 8192 + u * 4096 + ((cb >> 1) & 1) * 512
                dg = cb >> 1
                accs = [ACC + ((dg * 2 + qb) * 2 + (cb & 1)) * 4 for qb in range(2)]
                xfs = [XN + ((s * 2 + u) * 2 + qb) * 4 for qb in range(2)]
                qfr.append((s, off, cb & 1, accs, xfs, s == 0 and u == 0))
    def w_read(gi):
        s, off, odd, accs, xfs, first = qfr[gi]
        r = WF + (gi % NRW) * 4
        base = (v_trO if odd else v_trE) if s < 4 else (v_rdn if odd else v_rd)
        for t in range(2):
            a.e("ds_read_b64_tr_b16 v[%d:%d], v%d offset:%d", r + 2 * t, r + 2 * t + 1, base, off + t * 256)
            lg.issue(("W", gi))
    wait_common([("W", 0), ("x", 0)])
    a.e("s_barrier")
    st.mark()
    PRE = NRW - 1
    nread = [0]
    for gi, (s, off, odd, accs, xfs, first) in enumerate(qfr):
        k = gi % 16
        if k == 0:
            if s > 0: a.e("s_barrier")
            pend = []
            if s == 0:
                pend = w_dma_l(2) + xn_load_l(2) + w_dma_l(3) + xn_load_l(3) + [lambda: a_loads(-1)]
            elif s + 3 < 8:
                pend = w_dma_l(s + 3) + xn_load_l(s + 3)
            if s in (2, 4, 6): pend.append(lambda s=s: a_loads(s // 2 - 1))
        lim = 16 if s == 0 else len(qfr)
        while nread[0] < min(gi + PRE + 1, lim): w_read(nread[0]); nread[0] += 1
        lg.wait(("W", gi))
        wf = WF + (gi % NRW) * 4
        for qb in range(2):
            d, xf = accs[qb], xfs[qb]
            c = "0" if first else "v[%d:%d]" % (d, d + 3)
            a.e("v_mfma_f32_16x16x32_bf16 v[%d:%d], v[%d:%d], v[%d:%d], %s", d, d + 3, wf, wf + 3, xf, xf + 3, c)
        if pend and k >= 1: pend.pop(0)()
        if k == (15 if s == 0 else 11) and s + 1 < 8:
            assert not pend
            tags = [("x", s + 1), ("W", s + 1)] + ([("W", s + 2)] if s + 2 < 8 else [])
            wait_common(tags)
    st.mark()
    a.e("s_nop 7")
    for blk in range(8):
        for i in range(4):
            a.e("v_cvt_pk_bf16_f32 v%d, v%d, v%d", Q + blk * 4 + i, ACC + blk * 8 + 2 * i, ACC + blk * 8 + 2 * i + 1)
    a.e("s_nop 1")
    for dg in range(4):
        for i in range(4):
            a.e("v_permlane16_swap_b32 v%d, v%d", Q + (dg * 2) * 4 + i, Q + (dg * 2 + 1) * 4 + i)
    wait_common([("st", -1), ("st", 0)])
    a.e("s_barrier")
    a.e("v_mov_b32 v%d, 0", v_l)
    a.e("v_mov_b32 v%d, 0xff800000", v_ninf)
    a.e("s_mov_b32 s%d, 0", s_cur)
    a.e("v_mov_b32 v%d, v%d", v_rd, v_l16)
    a.e("s_mov_b32 s%d, 3", s_ld)
    a.e("s_mov_b32 s%d, %d", s_lst, 3 * SLOT)
    st.mark()

    def dyn_stage_setup():
        L = []
        L.append("s_lshl_b32 s%d, s%d, 14" % (s_t0, s_ld))
        L.append("s_add_u32 s%d, s%d, s%d" % (s_t0, s_t0, s_hb))
        L.append("s_add_u32 s%d, s%d, 0x%x" % (s_kof, s_t0, WS_K + 16384))
        L.append("s_add_u32 s%d, s%d, 0x%x" % (s_vof, s_t0, WS_V))
        L.append("s_cmp_lt_u32 s%d, s%d" % (s_ld, s_TB))
        L.append("s_cselect_b32 s%d, s%d, s%d" % (s_kof, s_kof, s_oob))
        L.append("s_cselect_b32 s%d, s%d, s%d" % (s_vof, s_vof, s_oob))
        L.append("s_lshl_b32 s%d, s%d, 12" % (s_lslot, s_wl))
        L.append("s_add_u32 s%d, s%d, s%d" % (s_lslot, s_lslot, s_lst))
        return L
    def dyn_stage_advance():
        return ["s_add_u32 s%d, s%d, 1" % (s_ld, s_ld),
                "s_add_u32 s%d, s%d, %d" % (s_lst, s_lst, SLOT),
                "s_and_b32 s%d, s%d, %d" % (s_lst, s_lst, 4 * SLOT - 1)]
    def kfrag_off(b, ks): return (b * 8 + ks) * 1024
    def vfrag_off(b, s_, db): return 16384 + (b * 8 + s_ * 4 + db) * 1024
    seq = []
    for ks in range(8): seq.append(("QK", 0, ks, kfrag_off(0, ks)))
    for s_ in range(2):
        for db in range(4): seq.append(("PV", 0, (s_, db), vfrag_off(0, s_, db)))
    for ks in range(8): seq.append(("QK", 1, ks, kfrag_off(1, ks)))
    for s_ in range(2):
        for db in range(4): seq.append(("PV", 1, (s_, db), vfrag_off(1, s_, db)))
    def mfma(item, reg, c0=None):
        kind, b, idx, off = item
        if "m16" in exp:
            if kind == "QK":
                for z in range(2):
                    d = S[b] + 4 * ((2 * idx + z) % 4)
                    q = Q + ((idx + z) % 8) * 4
                    c = ("v[%d:%d]" % (NEGM, NEGM + 3)) if idx < 2 else "v[%d:%d]" % (d, d + 3)
                    a.e("v_mfma_f32_16x16x32_bf16 v[%d:%d], v[%d:%d], v[%d:%d], %s", d, d + 3, reg, reg + 3, q, q + 3, c)
            else:
                s_, db = idx
                for z in range(2):
                    d = O + db * 16 + s_ * 8 + z * 4
                    a.e("v_mfma_f32_16x16x32_bf16 v[%d:%d], v[%d:%d], v[%d:%d], v[%d:%d]", d, d + 3, reg, reg + 3, P[b] + 4 * z, P[b] + 4 * z + 3, d, d + 3)
            return
        if kind == "QK":
            c = ("v[%d:%d]" % (NEGM, NEGM + 15) if c0 is None else c0) if idx == 0 else "v[%d:%d]" % (S[b], S[b] + 15)
            a.e("v_mfma_f32_32x32x16_bf16 v[%d:%d], v[%d:%d], v[%d:%d], %s", S[b], S[b] + 15, reg, reg + 3, Q + idx * 4, Q + idx * 4 + 3, c)
        else:
            s_, db = idx
            a.e("v_mfma_f32_32x32x16_bf16 v[%d:%d], v[%d:%d], v[%d:%d], v[%d:%d]", O + db * 16, O + db * 16 + 15, reg, reg + 3,
                P[b] + 4 * s_, P[b] + 4 * s_ + 3, O + db * 16, O + db * 16 + 15)
    def sm_stream(b):
        L = []
        for r in range(17):
            if r < 16: L.append((r, 0, "v_exp_f32 v%d, v%d" % (TT + r % 4, S[b] + r)))
            if "pk" in exp:
                pp = v_pk[b]
                if r == 2: L.append((r, 1, "v_mov_b32 v%d, v%d" % (pp, TT + 0)))
                elif r == 3: L.append((r, 1, "v_mov_b32 v%d, v%d" % (pp + 1, TT + 1)))
                elif r >= 4 and r % 2 == 0:
                    t0 = TT + (r - 2) % 4
                    L.append((r, 1, "v_pk_add_f32 v[%d:%d], v[%d:%d], v[%d:%d]" % (pp, pp + 1, pp, pp + 1, t0, t0 + 1)))
                    if r == 16: L.append((r, 1, "v_add_f32 v%d, v%d, v%d" % (v_ps[b], pp, pp + 1)))
            elif r == 2: L.append((r, 1, "v_add_f32 v%d, v%d, v%d" % (v_ps[b], TT + 0, TT + 1)))
            elif r >= 3: L.append((r, 1, "v_add_f32 v%d, v%d, v%d" % (v_ps[b], v_ps[b], TT + (r - 1) % 4)))
            if r >= 2 and r % 2 == 0:
                i = r // 2 - 1
                L.append((r, 2, "v_cvt_pk_bf16_f32 v%d, v%d, v%d" % (P[b] + i, TT + (2 * i) % 4, TT + (2 * i + 1) % 4)))
        return L
    def sm_plain(b, lo=0, hi=16):
        for r in range(lo, hi + 1):
            for (rr, pos, ins) in sm_stream(b):
                if rr == r: a.e(ins)
            if r == 15 or r == hi: a.e("s_nop 0")
    START = [12, 28]
    stubs = []
    def cmp_ps(b): a.e("v_cmp_lt_f32 vcc, s%d, v%d", s_thr, v_ps[b])
    def br_slow(b, tag, replay):
        lab = "%s_chk%d_%s" % (name, b, tag)
        a.e("s_cbranch_vccnz %s", lab)
        a.label(lab + "_ret")
        stubs.append((lab, "%s_slow%d_%d" % (name, b, replay), lab + "_ret"))
    def ladd(b): a.e("v_add_f32 v%d, v%d, v%d", v_l, v_l, v_ps[b])

    def emit_mask(b, tile_expr_off):
        a.e("s_add_u32 s%d, s%d, %d", s_kb, s_t, tile_expr_off)
        a.e("s_lshl_b32 s%d, s%d, 6", s_kb, s_kb)
        a.e("s_add_u32 s%d, s%d, %d", s_kb, s_kb, 32 * b)
        a.e("v_subrev_u32 v%d, s%d, v%d", v_D, s_kb, v_qrel)
        for r0 in range(0, 16, 4):
            for j in range(4):
                r = r0 + j; i = r >> 2
                cst = 16 * (i & 1) + 8 * (i >> 1) + (r & 3)
                a.e("v_cmp_le_i32 s[%d:%d], %d, v%d", s_m + 2 * j, s_m + 2 * j + 1, cst, v_D)
            a.e("s_nop 1")
            for j in range(4):
                r = r0 + j
                a.e("v_cndmask_b32 v%d, v%d, v%d, s[%d:%d]", S[b] + r, v_ninf, S[b] + r, s_m + 2 * j, s_m + 2 * j + 1)

    def max16(dst, regs):
        a.e("v_max3_f32 v%d, v%d, v%d, v%d", dst, regs[0], regs[1], regs[2])
        i = 3
        while i < len(regs):
            if i + 1 < len(regs):
                a.e("v_max3_f32 v%d, v%d, v%d, v%d", dst, dst, regs[i], regs[i + 1]); i += 2
            else:
                a.e("v_max_f32 v%d, v%d, v%d", dst, dst, regs[i]); i += 1
    def crosshalf_max(r, t):
        a.e("v_mov_b32 v%d, v%d", t, r)
        a.e("s_nop 1")
        a.e("v_permlane32_swap_b32 v%d, v%d", r, t)
        a.e("s_nop 1")
        a.e("v_max_f32 v%d, v%d, v%d", r, r, t)

    def kv_read(i, base):
        item = seq[i % 32]
        r = RING + (i % NR) * 4
        a.e("ds_read_b128 v[%d:%d], v%d offset:%d", r, r + 3, base, item[3])

    def preloop(tag):
        def k0read(i):
            a.e("ds_read_b128 v[%d:%d], v%d offset:%d", RING + i * 4, RING + i * 4 + 3, v_rdn, kfrag_off(i >> 3, i & 7))
        for i in range(12): k0read(i)
        oz = 0
        for ks in range(8):
            if ks % 4 == 0: a.e("s_waitcnt lgkmcnt(8)")
            mfma(("QK", 0, ks, 0), RING + ks * 4, c0="0")
            if ks < 4: k0read(12 + ks)
            for _ in range(5):
                if oz < 64: a.e("v_mov_b32 v%d, 0", O + oz); oz += 1
        while oz < 64: a.e("v_mov_b32 v%d, 0", O + oz); oz += 1
        l = a.newlabel("Lpm")
        a.e("s_cmp_lg_u32 s%d, 1", s_T)
        a.e("s_cbranch_scc1 %s", l)
        a.e("s_mov_b32 s%d, -1", s_t)
        emit_mask(0, 1)
        a.label(l)
        max16(v_mx, [S[0] + i for i in range(16)])
        crosshalf_max(v_mx, v_f)
        for i in range(16):
            a.e("v_sub_f32 v%d, 0, v%d", NEGM + i, v_mx)
        for i in range(16):
            a.e("v_sub_f32 v%d, v%d, v%d", S[0] + i, S[0] + i, v_mx)
        a.e("s_waitcnt lgkmcnt(0)")
        items = [ins for (r, pos, ins) in sm_stream(0)]
        per = (len(items) + 7) // 8
        for ks in range(8):
            mfma(("QK", 1, ks, 0), RING + (8 + ks) * 4)
            for ins in items[ks * per:(ks + 1) * per]: a.e(ins)
        for i in range(PD): kv_read(i, v_rd)
        l = a.newlabel("Lpm")
        a.e("s_cmp_lg_u32 s%d, 1", s_T)
        a.e("s_cbranch_scc1 %s", l)
        emit_mask(1, 1)
        a.label(l)
        sm_plain(1, 0, 3)
        a.e("s_waitcnt lgkmcnt(0)")

    def iteration(tag, masked):
        tg = tag + ("m" if masked else "")
        top = "%s_loop%s" % (name, tg)
        streams = {}
        for b in range(2):
            for (r, pos, ins) in sm_stream(b):
                streams.setdefault(((START[b] + r) % 32, pos), []).append(ins)
        misc = {k: [] for k in range(32)}
        misc[1].append("s_waitcnt lgkmcnt(4)"); misc[9].append("s_waitcnt lgkmcnt(4)")
        misc[17].append("s_waitcnt lgkmcnt(4)"); misc[25].append("s_waitcnt lgkmcnt(4)")
        misc[3].append(lambda: ladd(0)); misc[21].append(lambda: ladd(1))
        misc[5].append("s_add_u32 s%d, s%d, %d" % (s_cur, s_cur, SLOT))
        misc[7].append("s_and_b32 s%d, s%d, %d" % (s_cur, s_cur, 4 * SLOT - 1))
        if tag == "A": misc[13].append("s_waitcnt vmcnt(8)")
        if "nobar" not in exp: misc[13].append("s_barrier")
        misc[15].append(lambda: br_slow(1, tg, 3))
        misc[19].append("v_add_u32 v%d, s%d, v%d" % (v_rd, s_cur, v_l16))
        misc[31].append(lambda: br_slow(0, tg, 3))
        if masked: misc[23].append("s_add_u32 s%d, s%d, 1" % (s_t, s_t))
        if tag == "A":
            setup = dyn_stage_setup()
            ld = stage_loads("K", track=False) + stage_loads("V", track=False)
            adv = dyn_stage_advance()
            for l_ in setup[:5]: misc[14].append(l_)
            for l_ in setup[5:]: misc[16].append(l_)
            for i, em in enumerate(ld): misc[[18, 20, 22, 23, 24, 26, 27, 28][i]].append(em)
            for l_ in adv: misc[29].append(l_)
        a(".p2align 3")
        a.label(top)
        for k in range(32):
            mfma(seq[k], RING + (k % NR) * 4)
            if "nords" not in exp: kv_read(k + PD, v_rd)
            if masked and k == START[0]: emit_mask(0, 1)
            if masked and k == START[1]: emit_mask(1, 0)
            for pos in range(3):
                if pos == 1 and k == 29: cmp_ps(0)
                if pos == 1 and k == 13: cmp_ps(1)
                for ins in streams.get((k, pos), []):
                    if "nosm" in exp: continue
                    a.e(ins)
            for m_ in misc[k]:
                if callable(m_): m_()
                else: a.e(m_)
        a.e("s_sub_u32 s%d, s%d, 1", s_cnt, s_cnt)
        a.e("s_cbranch_scc0 %s", top)

    def mainloop(tag):
        lsk, lend = a.newlabel("Lsk"), a.newlabel("Lend")
        a.e("s_cmp_lt_u32 s%d, 2", s_T)
        a.e("s_cbranch_scc1 %s", lend)
        a.e("s_cmp_lt_u32 s%d, 3", s_T)
        a.e("s_cbranch_scc1 %s", lsk)
        a.e("s_sub_u32 s%d, s%d, 3", s_cnt, s_T)
        iteration(tag, False)
        a.label(lsk)
        a.e("s_sub_u32 s%d, s%d, 2", s_t, s_T)
        a.e("s_mov_b32 s%d, 0", s_cnt)
        iteration(tag, True)
        a.label(lend)

    def final(tag):
        a.e("s_waitcnt lgkmcnt(0)")
        if tag == "B" and "nobar" not in exp:
            lb = a.newlabel("Lnb")
            a.e("s_cmp_eq_u32 s%d, s%d", s_T, s_TB)
            a.e("s_cbranch_scc1 %s", lb)
            a.e("s_barrier")
            a.label(lb)
        pv0 = [("PV", 0, (s_, db), vfrag_off(0, s_, db)) for s_ in range(2) for db in range(4)]
        pv1 = [("PV", 1, (s_, db), vfrag_off(1, s_, db)) for db in range(4) for s_ in range(2)]
        pv = pv0 + pv1
        for i in range(12):
            r = RING + i * 4
            a.e("ds_read_b128 v[%d:%d], v%d offset:%d", r, r + 3, v_rd, pv[i][3])
        ladd(0)
        rest = [ins for (r, pos, ins) in sm_stream(1) if r >= 4]
        per = (len(rest) + 7) // 8
        for i in range(8):
            if i % 4 == 0: a.e("s_waitcnt lgkmcnt(8)")
            mfma(pv[i], RING + i * 4)
            if i < 4:
                r = RING + (12 + i) * 4
                a.e("ds_read_b128 v[%d:%d], v%d offset:%d", r, r + 3, v_rd, pv[12 + i][3])
            for ins in rest[i * per:(i + 1) * per]: a.e(ins)
        cmp_ps(1)
        a.e("s_nop 1")
        br_slow(1, "fin" + tag, 9)
        ladd(1)
        a.e("v_mov_b32 v%d, v%d", v_f, v_l)
        a.e("s_lshl_b32 s%d, s%d, 5", s_t0, s_qb)
        a.e("s_add_u32 s%d, s%d, s%d", s_t0, s_t0, s_h)
        a.e("v_permlane32_swap_b32 v%d, v%d", v_l, v_f)
        a.e("s_lshl_b32 s%d, s%d, 13", s_t0, s_t0)
        a.e("s_add_u32 s%d, s%d, 0x%x", s_t0, s_t0, WS_CTX)
        a.e("v_add_f32 v%d, v%d, v%d", v_l, v_l, v_f)
        a.e("v_rcp_f32 v%d, v%d", v_l, v_l)
        a.e("s_add_u32 s%d, s%d, 4096", s_t1, s_t0)
        def epi(db):
            L = []
            for hfz in range(2):
                base = O + db * 16 + hfz * 8
                for i in range(8): L.append("v_mul_f32 v%d, v%d, v%d" % (base + i, base + i, v_l))
                for i in range(4): L.append("v_cvt_pk_bf16_f32 v%d, v%d, v%d" % (base + i, base + 2 * i, base + 2 * i + 1))
                ds = 2 * db + hfz
                L.append("buffer_store_dwordx4 v[%d:%d], v%d, s[%d:%d], s%d offen offset:%d" % (base, base + 3, v_l16, S_WS, S_WS + 3,
                         s_t0 if ds < 4 else s_t1, (ds & 3) * 1024))
            return L
        a.e("s_waitcnt lgkmcnt(0)")
        pend = []
        for i in range(8):
            mfma(pv[8 + i], RING + (8 + i) * 4)
            if i >= 4 and i % 2 == 0:
                pend += epi((i - 4) // 2)
            n = 0
            while pend and n < 13: a.e(pend.pop(0)); n += 1
            if not pend and i < 4: a.e("s_nop 3")
        a.e("s_nop 7")
        for ins in pend: a.e(ins)
        a.e("s_nop 3")
        for db in (2, 3):
            for ins in epi(db): a.e(ins)

    LA = name + "_roleA"
    a.e("v_add_u32 v%d, %d, v%d", v_rdn, 4 * SLOT, v_l16)
    a.e("s_cmp_lg_u32 s%d, 0", s_isA)
    a.e("s_cbranch_scc1 %s", LA)
    if "prioB" in exp: a.e("s_setprio 1")
    preloop("B")
    st.mark()
    mainloop("B")
    st.mark()
    final("B")
    if diag:
        a.e("s_waitcnt vmcnt(0)")
        st.mark()
        st.dump(S_WS, s_w, 8, s_t0)
    a.e("s_endpgm")
    a.label(LA)
    preloop("A")
    mainloop("A")
    final("A")
    NPF = 0
    if "pf" in exp:
        NPF = 8
        SP = 52 + 4
        for (karg, size, per, n_i) in ((A_WO, 4 << 20, 16384, 4), (B_W1, 1792 * 1024, 8192, 2), (B_W2, 1792 * 1024, 8192, 2)):
            a.e("s_load_dwordx2 s[%d:%d], s[0:1], %d", SP, SP + 1, karg)
            a.e("s_mul_i32 s%d, s2, %d", s_t0, per)
            a.e("s_mul_i32 s%d, s%d, %d", s_t1, s_wl, per // 4)
            a.e("s_add_u32 s%d, s%d, s%d", s_t0, s_t0, s_t1)
            a.e("s_waitcnt lgkmcnt(0)")
            srd(a, SP, SP, size)
            for i in range(n_i):
                a.e("buffer_load_dwordx4 v[%d:%d], v%d, s[%d:%d], s%d offen offset:%d", 144 + 4 * i, 147 + 4 * i, v_l16, SP, SP + 3, s_t0, i * 1024)
    a.e("s_mov_b32 s%d, 0", s_n)
    ll = name + "_ldloop"
    a.label(ll)
    a.e("s_cmp_lt_u32 s%d, 2", s_n)
    a.e("s_cbranch_scc1 %s_w16", ll)
    a.e("s_waitcnt vmcnt(8)")
    a.e("s_branch %s_go", ll)
    a.label(ll + "_w16")
    a.e("s_waitcnt vmcnt(%d)", 16 + NPF)
    a.label(ll + "_go")
    if "nobar" not in exp: a.e("s_barrier")
    for l in dyn_stage_setup(): a.e(l)
    for em in stage_loads("K", track=False) + stage_loads("V", track=False): em()
    for l in dyn_stage_advance(): a.e(l)
    a.e("s_add_u32 s%d, s%d, 1", s_n, s_n)
    a.e("s_add_u32 s%d, s%d, s%d", s_t0, s_n, s_T)
    a.e("s_cmp_lt_u32 s%d, s%d", s_t0, s_TB)
    a.e("s_cbranch_scc1 %s", ll)
    if "pf" in exp:
        SP = 56
        a.e("s_load_dwordx2 s[%d:%d], s[0:1], %d", SP, SP + 1, A_WO)
        a.e("s_bfe_u32 s%d, s2, 0x20001", s_t0)
        a.e("s_lshl_b32 s%d, s%d, 20", s_t0, s_t0)
        a.e("s_lshr_b32 s%d, s2, 3", s_t1)
        a.e("s_lshl_b32 s%d, s%d, 15", s_t1, s_t1)
        a.e("s_add_u32 s%d, s%d, s%d", s_t0, s_t0, s_t1)
        a.e("s_lshl_b32 s%d, s%d, 13", s_t1, s_wl)
        a.e("s_add_u32 s%d, s%d, s%d", s_t0, s_t0, s_t1)
        a.e("s_waitcnt lgkmcnt(0)")
        srd(a, SP, SP, 4 << 20)
        for i in range(8):
            if i == 4: a.e("s_add_u32 s%d, s%d, 4096", s_t0, s_t0)
            a.e("buffer_load_dwordx4 v[%d:%d], v%d, s[%d:%d], s%d offen offset:%d", 144 + 4 * (i & 3), 147 + 4 * (i & 3), v_l16, SP, SP + 3, s_t0, (i & 3) * 1024)
    a.label(name + "_end")
    a.e("s_endpgm")

    done = set()
    for (lab, target, ret) in stubs:
        a.label(lab)
        a.e("s_call_b64 s[%d:%d], %s", s_ret, s_ret + 1, target)
        a.e("s_branch %s", ret)
    for (lab, target, ret) in stubs:
        if target in done: continue
        done.add(target)
        b = int(target.split("_slow")[1][0]); replay = int(target.split("_slow")[1][2:])
        a.label(target)
        a.e("s_nop 15")
        max16(v_mx, [S[b] + i for i in range(16)])
        crosshalf_max(v_mx, v_f)
        a.e("v_ceil_f32 v%d, v%d", v_mx, v_mx)
        a.e("v_max_f32 v%d, 0, v%d", v_mx, v_mx)
        a.e("v_sub_f32 v%d, 0, v%d", v_f, v_mx)
        a.e("v_exp_f32 v%d, v%d", v_f, v_f)
        a.e("s_nop 0")
        for i in range(64): a.e("v_mul_f32 v%d, v%d, v%d", O + i, O + i, v_f)
        a.e("v_mul_f32 v%d, v%d, v%d", v_l, v_l, v_f)
        if False:
            o = 1 - b
            for i in range(8):
                a.e("v_lshlrev_b32 v%d, 16, v%d", U, P[o] + i)
                a.e("v_and_b32 v%d, 0xffff0000, v%d", U + 1, P[o] + i)
                a.e("v_mul_f32 v%d, v%d, v%d", U, U, v_f)
                a.e("v_mul_f32 v%d, v%d, v%d", U + 1, U + 1, v_f)
                a.e("v_cvt_pk_bf16_f32 v%d, v%d, v%d", P[o] + i, U, U + 1)
        for bb in range(2):
            for i in range(16): a.e("v_sub_f32 v%d, v%d, v%d", S[bb] + i, S[bb] + i, v_mx)
        for i in range(16): a.e("v_sub_f32 v%d, v%d, v%d", NEGM + i, NEGM + i, v_mx)
        sm_plain(b)
        if replay != 9: sm_plain(1 - b, 0, replay)
        a.e("s_nop 1")
        a.e("s_setpc_b64 s[%d:%d]", s_ret, s_ret + 1)
```

```python
from gen_common import *

def gen_rr(a, kind, name, kidx, diag=False, exp=""):
    kernel_begin(a, name)
    st = Stamps(a, diag, kidx, base=56, maxn=10)
    vm = Cnt(a, "vmcnt", 63); lg = Cnt(a, "lgkmcnt", 15)
    proj = kind == "proj"
    NPH = 8 if proj else 4
    NWG = 256 if proj else 224
    ROW = 1024 if proj else 3584
    S_W, S_WS, S_B = 4, 8, 12
    s_w, s_rt, s_ct, s_t0, s_t1, s_t2, s_ab, s_wb, s_m0, s_qb, s_rot, s_ksq, s_ph, s_isL = 16, 17, 18, 19, 20, 21, 22, 23, 24, 25, 26, 27, 28, 29
    v_lane, v_l16, v_wd, v_tr, v_tr2, v_t, v_hf = 0, 1, 2, 3, 4, 5, 8
    AF = 128
    ACC = 64
    WFR, NRW = 16, 7
    LDS_B = 131072

    a.e("s_cmp_ge_u32 s2, %d", NWG)
    a.e("s_cbranch_scc1 %s_end", name)
    st.mark()
    if proj: a.e("s_load_dwordx2 s[4:5], s[0:1], %d", A_WO)
    else: a.e("s_load_dwordx4 s[4:7], s[0:1], %d", B_W1)
    a.e("s_load_dwordx2 s[8:9], s[0:1], %d", WS)
    a.e("v_lshrrev_b32 v%d, 6, v0", v_t)
    a.e("v_and_b32 v%d, 63, v0", v_lane)
    a.e("v_readfirstlane_b32 s%d, v%d", s_w, v_t)
    a.e("s_nop 3")
    a.e("s_lshr_b32 s%d, s%d, 2", s_isL, s_w)
    a.e("s_and_b32 s%d, s%d, 3", s_w, s_w)
    if proj:
        a.e("s_bfe_u32 s%d, s2, 0x20001", s_ksq)
        a.e("s_and_b32 s%d, s2, 1", s_rt)
        a.e("s_lshl_b32 s%d, s%d, 3", s_rt, s_rt)
        a.e("s_lshr_b32 s%d, s2, 5", s_t0)
        a.e("s_add_u32 s%d, s%d, s%d", s_rt, s_rt, s_t0)
        a.e("s_bfe_u32 s%d, s2, 0x20003", s_ct)
        a.e("s_lshl_b32 s%d, s%d, 1", s_rot, s_ct)
        a.e("s_add_u32 s%d, s%d, s%d", s_rot, s_rot, s_t0)
        a.e("s_and_b32 s%d, s%d, 7", s_rot, s_rot)
    else:
        a.e("s_and_b32 s%d, s2, 15", s_rt)
        a.e("s_lshr_b32 s%d, s2, 4", s_ct)
        a.e("s_lshr_b32 s%d, s%d, 3", s_t0, s_rt)
        a.e("s_lshl_b32 s%d, s%d, 1", s_t0, s_t0)
        a.e("s_add_u32 s%d, s%d, s%d", s_rot, s_ct, s_t0)
        a.e("s_and_b32 s%d, s%d, 3", s_rot, s_rot)
    if "norot" in exp: a.e("s_mov_b32 s%d, 0", s_rot)
    a.e("v_lshlrev_b32 v%d, 4, v%d", v_l16, v_lane)
    a.e("v_lshrrev_b32 v%d, 5, v%d", v_hf, v_lane)
    a.e("v_bfe_u32 v%d, v%d, 2, 2", v_t, v_lane)
    a.e("s_movk_i32 s%d, %d", s_t0, ROW)
    a.e("v_mul_lo_u32 v%d, v%d, s%d", v_wd, v_t, s_t0)
    a.e("v_lshrrev_b32 v%d, 4, v%d", v_t, v_lane)
    a.e("v_lshl_add_u32 v%d, v%d, 6, v%d", v_wd, v_t, v_wd)
    a.e("v_and_b32 v%d, 3, v%d", v_t, v_lane)
    a.e("v_lshl_add_u32 v%d, v%d, 4, v%d", v_wd, v_t, v_wd)
    a.e("v_lshlrev_b32 v%d, 10, v%d", v_tr, v_hf)
    a.e("v_bfe_u32 v%d, v%d, 2, 2", v_t, v_lane)
    a.e("v_lshl_add_u32 v%d, v%d, 6, v%d", v_tr, v_t, v_tr)
    a.e("v_bfe_u32 v%d, v%d, 4, 1", v_t, v_lane)
    a.e("v_lshl_add_u32 v%d, v%d, 5, v%d", v_tr, v_t, v_tr)
    a.e("v_and_b32 v%d, 3, v%d", v_t, v_lane)
    a.e("v_lshl_add_u32 v%d, v%d, 3, v%d", v_tr, v_t, v_tr)
    a.e("v_add_u32 v%d, 0x10000, v%d", v_tr2, v_tr)
    a.e("s_waitcnt lgkmcnt(0)")
    if not proj:
        a.e("s_mov_b32 s12, s6"); a.e("s_mov_b32 s13, s7")
        srd(a, S_B, S_B, 1792 * 2)
    srd(a, S_W, S_W, (4096 if proj else 512) * ROW); srd(a, S_WS, S_WS, WS_BYTES)
    a.e("s_lshl_b32 s%d, s%d, 2", s_qb, s_rt)
    a.e("s_add_u32 s%d, s%d, s%d", s_qb, s_qb, s_w)
    if proj:
        a.e("s_lshl_b32 s%d, s%d, 18", s_ab, s_qb)
        a.e("s_lshl_b32 s%d, s%d, 16", s_t0, s_ksq)
        a.e("s_add_u32 s%d, s%d, s%d", s_ab, s_ab, s_t0)
        a.e("s_add_u32 s%d, s%d, 0x%x", s_ab, s_ab, WS_CTX)
        a.e("s_lshl_b32 s%d, s%d, 20", s_wb, s_ksq)
    else:
        a.e("s_lshl_b32 s%d, s%d, 15", s_ab, s_qb)
        a.e("s_add_u32 s%d, s%d, 0x%x", s_ab, s_ab, WS_HN)
        a.e("s_mov_b32 s%d, 0", s_wb)
    a.e("s_mul_i32 s%d, s%d, %d", s_t0, s_w, 4 * ROW)
    a.e("s_add_u32 s%d, s%d, s%d", s_wb, s_wb, s_t0)
    a.e("s_lshl_b32 s%d, s%d, 8", s_t0, s_ct)
    a.e("s_add_u32 s%d, s%d, s%d", s_wb, s_wb, s_t0)
    a.e("s_lshl_b32 s%d, s%d, 10", s_m0, s_w)

    def phase_head(p, dst_w, dst_a):
        a.e("s_add_u32 s%d, s%d, %d", s_ph, s_rot, p)
        a.e("s_and_b32 s%d, s%d, %d", s_ph, s_ph, NPH - 1)
        if dst_w is not None:
            a.e("s_mul_i32 s%d, s%d, %d", dst_w, s_ph, 128 * ROW)
            a.e("s_add_u32 s%d, s%d, s%d", dst_w, dst_w, s_wb)
        if dst_a is not None:
            a.e("s_lshl_b32 s%d, s%d, 13", dst_a, s_ph)
            a.e("s_add_u32 s%d, s%d, s%d", dst_a, dst_a, s_ab)
    def w_loads(p, cnt):
        phase_head(p, s_t1, None)
        if "whit" in exp: a.e("s_mov_b32 s%d, 0", s_t1)
        for i in range(8):
            a.e("s_add_u32 m0, s%d, %d", s_m0, (p & 3) * 32768 + i * 4096)
            a.e("s_add_u32 s%d, s%d, %d", s_t0, s_t1, i * 16 * ROW)
            a.e("buffer_load_dwordx4 v%d, s[%d:%d], s%d offen lds", v_wd, S_W, S_W + 3, s_t0)
            cnt.issue(("w", p))
    def a_loads(p):
        L = []
        for i in range(8):
            def em(i=i):
                if i == 0:
                    phase_head(p, None, s_t2)
                    if "ahit" in exp: a.e("s_mov_b32 s%d, 0x%x", s_t2, WS_CTX)
                r = AF + ((p & 3) * 8 + i) * 4
                if i == 4: a.e("s_add_u32 s%d, s%d, 4096", s_t2, s_t2)
                a.e("buffer_load_dwordx4 v[%d:%d], v%d, s[%d:%d], s%d offen offset:%d", r, r + 3, v_l16, S_WS, S_WS + 3, s_t2, (i & 3) * 1024)
                vm.issue(("a", p))
            L.append(em)
        return L
    LC = name + "_compute"
    a.e("s_cmp_eq_u32 s%d, 0", s_isL)
    a.e("s_cbranch_scc1 %s", LC)
    vl = Cnt(a, "vmcnt", 63)
    w_loads(0, vl)
    if not proj:
        a.e("v_lshlrev_b32 v%d, 2, v%d", v_t, v_lane)
        a.e("s_lshl_b32 s%d, s%d, 8", s_t0, s_ct)
        a.e("s_mov_b32 m0, %d", LDS_B)
        a.e("s_nop 0")
        a.e("buffer_load_dword v%d, s[%d:%d], s%d offen lds", v_t, S_B, S_B + 3, s_t0)
        vl.issue("b")
    nxt = 1
    for p in range(NPH):
        vl.wait([("w", 0), "b"] if p == 0 else ([("w", 1)] if p == 1 else [("w", p), ("w", min(p + 1, NPH - 1))]))
        a.e("s_barrier")
        upto = 2 if p == 0 else min(p + 3, NPH - 1)
        while nxt <= min(upto, NPH - 1):
            w_loads(nxt, vl); nxt += 1
        if "pf" in exp and proj and p == NPH - 4:
            a.e("s_lshr_b32 s34, s2, 3")
            for ins in l2_prefetch(a, (B_W1, 1792 * 1024), 1792 * 1024, 32, 4, 34, s_w, 36, 35, s_t1, v_l16, 64):
                a.e(ins)
                if ins.startswith("buffer"): vl.issue("pf")
        if "pf" in exp and not proj and p == 1:
            a.e("s_lshr_b32 s34, s2, 3")
            for ins in l2_prefetch(a, (B_W2, 1792 * 1024), 1792 * 1024, 28, 4, 34, s_w, 36, 35, s_t1, v_l16, 64):
                a.e(ins)
                if ins.startswith("buffer"): vl.issue("pf")
    a.e("s_endpgm")
    a.label(LC)
    for em in a_loads(0): em()
    st.mark()
    frs = [(p, j, cb) for p in range(NPH) for j in range(8) for cb in range(4)]
    def w_read(gi):
        p, j, cb = frs[gi]
        r = WFR + (gi % NRW) * 4
        for t in range(2):
            off = (p & 3) * 32768 + (4 * j + 2 * t) * 1024 + cb * 256
            a.e("ds_read_b64_tr_b16 v[%d:%d], v%d offset:%d", r + 2 * t, r + 2 * t + 1, v_tr if off < 65536 else v_tr2, off & 0xffff)
            lg.issue(("w", gi))
    PRE = NRW - 1
    pend = []
    nread = 0
    for gi, (p, j, cb) in enumerate(frs):
        k = gi % 32
        if k == 0:
            a.e("s_barrier")
            if p == 0: st.mark()
            pend = (a_loads(1) if p == 0 else []) + (a_loads(p + 2) if p + 2 < NPH else [])
        lim = 32 * (p + 1) if p <= 1 else len(frs)
        while nread < min(gi + PRE + 1, lim, len(frs)):
            w_read(nread); nread += 1
        if cb == 0: vm.wait(("a", p)) if j == 0 else None
        if gi % 2 == 0: lg.wait([("w", gi), ("w", gi + 1)])
        wf = WFR + (gi % NRW) * 4
        d = ACC + cb * 16
        af = AF + ((p & 3) * 8 + j) * 4
        c = "0" if gi < 4 else "v[%d:%d]" % (d, d + 15)
        a.e("v_mfma_f32_32x32x16_bf16 v[%d:%d], v[%d:%d], v[%d:%d], %s", d, d + 15, wf, wf + 3, af, af + 3, c)
        if pend and (k % 3 == 2 or (p == 0 and k % 3 != 0) or (p == 0 and k < 12)): pend.pop(0)()
    st.mark()
    a.e("s_nop 7")
    if proj:
        a.e("s_lshl_b32 s%d, s%d, 6", s_t0, s_ksq)
        a.e("s_add_u32 s%d, s%d, s%d", s_t0, s_t0, s_qb)
        a.e("s_lshl_b32 s%d, s%d, 15", s_t0, s_t0)
        a.e("s_lshl_b32 s%d, s%d, 13", s_t1, s_ct)
        a.e("s_add_u32 s%d, s%d, s%d", s_t0, s_t0, s_t1)
        a.e("s_add_u32 s%d, s%d, 0x%x", s_t0, s_t0, WS_P)
    else:
        a.e("s_mul_i32 s%d, s%d, %d", s_t0, s_qb, 112 * 1024)
        a.e("s_lshl_b32 s%d, s%d, 13", s_t1, s_ct)
        a.e("s_add_u32 s%d, s%d, s%d", s_t0, s_t0, s_t1)
        a.e("s_add_u32 s%d, s%d, 0x%x", s_t0, s_t0, WS_F)
        a.e("v_lshlrev_b32 v%d, 3, v%d", v_t, v_hf)
        a.e("v_add_u32 v%d, %d, v%d", v_t, LDS_B, v_t)
        BR = 128
        for cb in range(4):
            for i in range(4):
                r = BR + (cb * 4 + i) * 2
                a.e("ds_read_b64 v[%d:%d], v%d offset:%d", r, r + 1, v_t, cb * 64 + i * 16)
            if cb == 1: a.e("s_waitcnt lgkmcnt(0)")
        a.e("s_waitcnt lgkmcnt(0)")
    a.e("s_add_u32 s%d, s%d, 4096", s_t1, s_t0)
    a.e("s_nop 3")
    for cb in range(4):
        for hz in range(2):
            base = ACC + cb * 16 + hz * 8
            if not proj:
                for ii in range(2):
                    r = 128 + (cb * 4 + hz * 2 + ii) * 2
                    T = 176
                    a.e("v_lshlrev_b32 v%d, 16, v%d", T, r)
                    a.e("v_and_b32 v%d, 0xffff0000, v%d", T + 1, r)
                    a.e("v_lshlrev_b32 v%d, 16, v%d", T + 2, r + 1)
                    a.e("v_and_b32 v%d, 0xffff0000, v%d", T + 3, r + 1)
                    for j in range(4):
                        a.e("v_add_f32 v%d, v%d, v%d", base + ii * 4 + j, base + ii * 4 + j, T + j)
                for e in range(8):
                    a.e("v_max_f32 v%d, 0, v%d", base + e, base + e)
                for e in range(8):
                    a.e("v_mul_f32 v%d, v%d, v%d", base + e, base + e, base + e)
            for i in range(4):
                a.e("v_cvt_pk_bf16_f32 v%d, v%d, v%d", base + i, base + 2 * i, base + 2 * i + 1)
            ds = 2 * cb + hz
            a.e("buffer_store_dwordx4 v[%d:%d], v%d, s[%d:%d], s%d offen offset:%d", base, base + 3, v_l16, S_WS, S_WS + 3,
                s_t0 if ds < 4 else s_t1, (ds & 3) * 1024)
    if diag:
        a.e("s_waitcnt vmcnt(0)")
        st.mark()
        st.dump(S_WS, s_w, 10, s_t2)
    a.label(name + "_end")
    a.e("s_endpgm")


def gen_red(a, name, kidx, diag=False, exp=""):
    kernel_begin(a, name)
    st = Stamps(a, diag, kidx, base=56, maxn=10)
    S_X, S_WS = 4, 8
    s_w, s_t0, s_t1, s_qb, s_r0 = 12, 13, 14, 15, 16
    v_lane, v_r, v_hf, v_g, v_u, v_t = 0, 1, 2, 3, 4, 5
    PR, XR, A, F = 16, 32, 40, 48
    a.e("s_cmp_ge_u32 s2, 256")
    a.e("s_cbranch_scc1 %s_end", name)
    st.mark()
    a.e("s_load_dwordx2 s[4:5], s[0:1], %d", A_X)
    a.e("s_load_dwordx2 s[8:9], s[0:1], %d", WS)
    a.e("v_lshrrev_b32 v%d, 6, v0", v_t)
    a.e("v_and_b32 v%d, 63, v0", v_lane)
    a.e("v_readfirstlane_b32 s%d, v%d", s_w, v_t)
    a.e("s_lshr_b32 s%d, s2, 2", s_qb)
    a.e("s_and_b32 s%d, s2, 3", s_r0)
    a.e("s_lshl_b32 s%d, s%d, 3", s_r0, s_r0)
    a.e("v_and_b32 v%d, 7, v%d", v_r, v_lane)
    a.e("v_bfe_u32 v%d, v%d, 3, 1", v_hf, v_lane)
    a.e("v_lshrrev_b32 v%d, 4, v%d", v_g, v_lane)
    a.e("s_lshl_b32 s%d, s%d, 2", s_t0, s_w)
    a.e("v_add_u32 v%d, s%d, v%d", v_g, s_t0, v_g)
    a.e("v_add_u32 v%d, s%d, v%d", v_t, s_r0, v_r)
    a.e("v_lshlrev_b32 v%d, 4, v%d", v_u, v_t)
    a.e("v_lshl_add_u32 v%d, v%d, 9, v%d", v_u, v_hf, v_u)
    a.e("v_lshl_add_u32 v%d, v%d, 10, v%d", v_u, v_g, v_u)
    a.e("v_lshlrev_b32 v%d, 10, v%d", v_t + 1, v_t)
    a.e("v_lshl_add_u32 v%d, v%d, 5, v%d", v_t + 1, v_g, v_t + 1)
    a.e("v_lshl_add_u32 v%d, v%d, 3, v%d", v_t + 1, v_hf, v_t + 1)
    a.e("s_waitcnt lgkmcnt(0)")
    srd(a, S_X, S_X, 2 << 20); srd(a, S_WS, S_WS, WS_BYTES)
    a.e("s_lshl_b32 s%d, s%d, 15", s_t0, s_qb)
    a.e("s_add_u32 s%d, s%d, 0x%x", s_t1, s_t0, WS_P)
    for p in range(4):
        a.e("buffer_load_dwordx4 v[%d:%d], v%d, s[%d:%d], s%d offen", PR + 4 * p, PR + 4 * p + 3, v_u, S_WS, S_WS + 3, s_t1)
        if p < 3: a.e("s_add_u32 s%d, s%d, 0x%x", s_t1, s_t1, 64 * 32768)
    a.e("buffer_load_dwordx2 v[%d:%d], v%d, s[%d:%d], s%d offen", XR, XR + 1, v_t + 1, S_X, S_X + 3, s_t0)
    a.e("buffer_load_dwordx2 v[%d:%d], v%d, s[%d:%d], s%d offen offset:16", XR + 2, XR + 3, v_t + 1, S_X, S_X + 3, s_t0)
    if "pf" in exp:
        a.e("v_lshlrev_b32 v12, 4, v%d", v_lane)
        a.e("s_lshr_b32 s20, s2, 3")
        for ins in l2_prefetch(a, (B_W1, 1792 * 1024), 1792 * 1024, 32, 8, 20, s_w, 24, 21, 22, 12, 64 - 16 + 16): a.e(ins)
    st.mark()
    def unpack(src, dst):
        for i in range(4):
            a.e("v_lshlrev_b32 v%d, 16, v%d", dst + 2 * i, src + i)
            a.e("v_and_b32 v%d, 0xffff0000, v%d", dst + 2 * i + 1, src + i)
    NPF = 7 if "pf" in exp else 0
    a.e("s_waitcnt vmcnt(%d)", 5 + NPF)
    unpack(PR, A)
    for p in range(1, 4):
        a.e("s_waitcnt vmcnt(%d)", 5 - p + NPF)
        unpack(PR + 4 * p, F)
        for e in range(8): a.e("v_add_f32 v%d, v%d, v%d", A + e, A + e, F + e)
    a.e("s_waitcnt vmcnt(%d)", NPF)
    unpack(XR, F)
    for e in range(8): a.e("v_add_f32 v%d, v%d, v%d", A + e, A + e, F + e)
    H = 56
    for i in range(4): a.e("v_cvt_pk_bf16_f32 v%d, v%d, v%d", H + i, A + 2 * i, A + 2 * i + 1)
    a.e("s_add_u32 s%d, s%d, 0x%x", s_t1, s_t0, WS_H)
    a.e("buffer_store_dwordx4 v[%d:%d], v%d, s[%d:%d], s%d offen", H, H + 3, v_u, S_WS, S_WS + 3, s_t1)
    unpack(H, A)
    def rowreduce(r, slot):
        a.e("s_nop 1")
        a.e("v_add_f32_dpp v%d, v%d, v%d row_ror:8 row_mask:0xf bank_mask:0xf", r, r, r)
        a.e("v_mov_b32 v%d, v%d", F, r)
        a.e("s_nop 1")
        a.e("v_permlane16_swap_b32 v%d, v%d", r, F)
        a.e("s_nop 1")
        a.e("v_add_f32 v%d, v%d, v%d", r, r, F)
        a.e("v_mov_b32 v%d, v%d", F, r)
        a.e("s_nop 1")
        a.e("v_permlane32_swap_b32 v%d, v%d", r, F)
        a.e("s_nop 1")
        a.e("v_add_f32 v%d, v%d, v%d", r, r, F)
        a.e("v_lshlrev_b32 v%d, 5, v%d", F, v_r)
        a.e("s_lshl_b32 s%d, s%d, 2", s_t1, s_w)
        a.e("v_add_u32 v%d, s%d, v%d", F + 1, s_t1, F)
        a.e("ds_write_b32 v%d, v%d offset:%d", F + 1, r, slot * 256)
        a.e("s_waitcnt lgkmcnt(0)")
        a.e("s_barrier")
        a.e("ds_read_b128 v[%d:%d], v%d offset:%d", F + 4, F + 7, F, slot * 256)
        a.e("ds_read_b128 v[%d:%d], v%d offset:%d", F + 8, F + 11, F, slot * 256 + 16)
        a.e("s_waitcnt lgkmcnt(0)")
        a.e("v_add_f32 v%d, v%d, v%d", r, F + 4, F + 5)
        for i in range(6, 12): a.e("v_add_f32 v%d, v%d, v%d", r, r, F + i)
    M, V2 = 60, 61
    a.e("v_add_f32 v%d, v%d, v%d", M, A, A + 1)
    for e in range(2, 8): a.e("v_add_f32 v%d, v%d, v%d", M, M, A + e)
    rowreduce(M, 0)
    a.e("v_mul_f32 v%d, 0x3b000000, v%d", M, M)
    for e in range(8): a.e("v_sub_f32 v%d, v%d, v%d", A + e, A + e, M)
    a.e("v_mul_f32 v%d, v%d, v%d", V2, A, A)
    for e in range(1, 8): a.e("v_fmac_f32 v%d, v%d, v%d", V2, A + e, A + e)
    rowreduce(V2, 1)
    a.e("v_mov_b32 v%d, 0x3727c5ac", M)
    a.e("v_fmac_f32 v%d, 0x3b000000, v%d", M, V2)
    a.e("v_rsq_f32 v%d, v%d", M, M)
    a.e("s_nop 0")
    for e in range(8): a.e("v_mul_f32 v%d, v%d, v%d", A + e, A + e, M)
    for i in range(4): a.e("v_cvt_pk_bf16_f32 v%d, v%d, v%d", H + i - 0, A + 2 * i, A + 2 * i + 1) if False else None
    HN = 32
    for i in range(4): a.e("v_cvt_pk_bf16_f32 v%d, v%d, v%d", HN + i, A + 2 * i, A + 2 * i + 1)
    a.e("s_add_u32 s%d, s%d, 0x%x", s_t1, s_t0, WS_HN)
    a.e("buffer_store_dwordx4 v[%d:%d], v%d, s[%d:%d], s%d offen", HN, HN + 3, v_u, S_WS, S_WS + 3, s_t1)
    if diag:
        a.e("s_waitcnt vmcnt(0)")
        st.mark()
        st.dump(S_WS, s_w, 10, s_t0)
    a.label(name + "_end")
    a.e("s_endpgm")
```

```python
from asmlib import *

A_X, A_CKV, A_WQ, A_WUK, A_WUV, A_WO, B_X, B_W1, B_B1, B_W2, B_B2, OUT, DBG, WS = [8*i for i in range(14)]

WS_K    = 0
import os
HEAD_STRIDE = int(os.environ.get('HSTRIDE', str(512 << 10)), 0)
WS_V    = 18 << 20
WS_CTX  = 36 << 20
WS_XN   = 54 << 20
WS_H    = 56 << 20
WS_F    = 58 << 20
WS_HN   = 68 << 20
WS_P    = 70 << 20
WS_CS   = 80 << 20
WS_ST   = 81 << 20
WS_FLAG = 82 << 20
WS_FLAG2 = (82 << 20) + 65536
WS_STAMP= 100 << 20
WS_BYTES = 268435456

def srd(a, s, ptr_s, nbytes):
    if ptr_s != s:
        a.e("s_mov_b32 s%d, s%d", s, ptr_s)
        a.e("s_mov_b32 s%d, s%d", s + 1, ptr_s + 1)
    a.e("s_mov_b32 s%d, 0x%x", s + 2, nbytes)
    a.e("s_mov_b32 s%d, 0x20000", s + 3)

def rowsum16(a, regs):
    steps = ["quad_perm:[1,0,3,2]", "quad_perm:[2,3,0,1]", "row_half_mirror", "row_mirror"]
    for st in steps:
        if len(regs) < 3:
            a.e("s_nop 1")
        for r in regs:
            a.e("v_add_f32_dpp v%d, v%d, v%d %s row_mask:0xf bank_mask:0xf", r, r, r, st)

def allsum64(a, r, t):
    rowsum16(a, [r])
    a.e("v_mov_b32 v%d, v%d", t, r)
    a.e("s_nop 1")
    a.e("v_permlane16_swap_b32 v%d, v%d", r, t)
    a.e("s_nop 1")
    a.e("v_add_f32 v%d, v%d, v%d", r, r, t)
    a.e("v_mov_b32 v%d, v%d", t, r)
    a.e("s_nop 1")
    a.e("v_permlane32_swap_b32 v%d, v%d", r, t)
    a.e("s_nop 1")
    a.e("v_add_f32 v%d, v%d, v%d", r, r, t)


class Stamps:
    def __init__(self, a, enabled, kidx, base=48, maxn=12):
        self.a, self.en, self.kidx, self.base, self.n, self.maxn = a, enabled, kidx, base, 0, maxn
    def mark(self):
        if not self.en: return
        assert self.n < self.maxn
        self.a.e("s_memrealtime s[%d:%d]", self.base + 4 * self.n, self.base + 4 * self.n + 1)
        self.a.e("s_memtime s[%d:%d]", self.base + 4 * self.n + 2, self.base + 4 * self.n + 3)
        self.n += 1
    def dump(self, s_ws, s_w, vtmp, stmp, wave=0):
        if not self.en: return
        a = self.a
        l = a.newlabel("Lst")
        a.e("s_cmp_lg_u32 s%d, %d", s_w, wave)
        a.e("s_cbranch_scc1 %s", l)
        a.e("s_waitcnt lgkmcnt(0)")
        a.e("s_lshl_b32 s%d, s2, 7", stmp)
        a.e("s_add_u32 s%d, s%d, 0x%x", stmp, stmp, WS_STAMP + self.kidx * 65536)
        a.e("v_mov_b32 v%d, 0", vtmp + 1)
        for i in range(self.n):
            a.e("v_mov_b32 v%d, s%d", vtmp, self.base + 4 * i)
            a.e("buffer_store_dword v%d, v%d, s[%d:%d], s%d offen offset:%d", vtmp, vtmp + 1, s_ws, s_ws + 3, stmp, 8 * i)
            a.e("s_nop 1")
            a.e("v_mov_b32 v%d, s%d", vtmp, self.base + 4 * i + 2)
            a.e("buffer_store_dword v%d, v%d, s[%d:%d], s%d offen offset:%d", vtmp, vtmp + 1, s_ws, s_ws + 3, stmp, 8 * i + 4)
            a.e("s_nop 1")
        a.label(l)

class Cnt:
    def __init__(self, a, name, maxn):
        self.a, self.name, self.maxn, self.ops = a, name, maxn, []
        self.total = 0
    def issue(self, tag):
        self.ops.append(tag)
        self.total += 1
        assert len(self.ops) <= self.maxn, "too many outstanding %s: %d" % (self.name, len(self.ops))
    def need(self, tags):
        if not isinstance(tags, (list, set)): tags = [tags]
        idx = -1
        for i, t in enumerate(self.ops):
            if t in tags: idx = i
        if idx < 0: return None
        return len(self.ops) - 1 - idx
    def wait(self, tags):
        n = self.need(tags)
        if n is None: return
        self.a.e("s_waitcnt %s(%d)", self.name, n)
        self.ops = self.ops[len(self.ops) - n:] if n > 0 else []
    def waitall(self):
        if self.ops:
            self.a.e("s_waitcnt %s(0)", self.name)
        self.ops = []

STORE_POLICY = {"v": ""}
_old_e = Asm.e
def _e(self, fmt, *a):
    line = (fmt % a if a else fmt)
    if STORE_POLICY["v"] and line.startswith("buffer_store_dwordx4") :
        line += " " + STORE_POLICY["v"]
    self.lines.append("  " + line)
Asm.e = _e

def l2_prefetch(a, karg, total, nwg_x, nwaves, s_idx, s_w, S_N, s_t0, s_t1, v_l16, vdst, base=0, s_extra=None):
    per = total // nwg_x
    n_i = per // nwaves // 1024
    assert per % (nwaves * 1024) == 0
    a.e("s_load_dwordx2 s[%d:%d], s[0:1], %d", S_N, S_N + 1, karg[0])
    a.e("s_mul_i32 s%d, s%d, %d", s_t0, s_idx, per)
    a.e("s_mul_i32 s%d, s%d, %d", s_t1, s_w, n_i * 1024)
    a.e("s_add_u32 s%d, s%d, s%d", s_t0, s_t0, s_t1)
    if s_extra is not None: a.e("s_add_u32 s%d, s%d, s%d", s_t0, s_t0, s_extra)
    a.e("s_waitcnt lgkmcnt(0)")
    srd(a, S_N, S_N, karg[1])
    L = []
    for i in range(n_i):
        if i and i % 4 == 0: L.append("s_add_u32 s%d, s%d, 4096" % (s_t0, s_t0))
        L.append("buffer_load_dwordx4 v[%d:%d], v%d, s[%d:%d], s%d offen offset:%d" % (vdst + 4 * (i % 4), vdst + 3 + 4 * (i % 4), v_l16, S_N, S_N + 3, s_t0, (i & 3) * 1024))
    return L
```

```python
from gen_common import *
import math, struct
QSCALE_BITS = struct.unpack('<I', struct.pack('<f', math.log2(math.e) / math.sqrt(128.0)))[0]
import gen_common

def gen_k1(a, name="kv_kernel", diag=False, exp="", fused=None):
    kernel_begin(a, name)
    st = Stamps(a, diag, 0) if fused is None else Stamps(a, diag, 0, base=76, maxn=6)
    vm = Cnt(a, "vmcnt", 63); lg = Cnt(a, "lgkmcnt", 15)
    k2, H = None, None
    if fused is not None:
        k2 = fused(vm, lg, st)
        H = next(k2)
    mark = st.mark if fused is None else (lambda: None)
    S_X, S_C, S_WUK, S_WUV, S_W1, S_WS = 4, 8, 12, 16, 20, 24
    s_h, s_j, s_w, s_t0, s_t1, s_t2, s_kk0, s_wof, s_kst, s_vst, s_oct = 28, 29, 30, 31, 32, 33, 34, 35, 36, 37, 38
    s_c0, s_wm0, s_cm0, s_t3 = 39, 40, 41, 42
    v_lane, v_wdma, v_cdE, v_cdO, v_trE, v_trO, v_cr0, v_cr1, v_kst, v_vst, v_t = 0, 1, 2, 3, 4, 5, 6, 7, 8, 9, 10
    WF, NRING = 12, 5
    ACCA, ACCB, CF = 32, 96, 128
    LDS_W, LDS_C, LDS_SCR = 0, 65536, 131072
    T = ACCB

    a.e("s_cmp_ge_u32 s2, 256")
    a.e("s_cbranch_scc1 %s_end", name)
    st.mark()
    a.e("s_load_dwordx4 s[4:7], s[0:1], %d", A_X)
    a.e("s_load_dwordx4 s[12:15], s[0:1], %d", A_WUK)
    a.e("s_load_dwordx2 s[24:25], s[0:1], %d", WS)
    a.e("s_load_dwordx2 s[20:21], s[0:1], %d", A_WQ)
    if fused is not None: a.e("s_load_dwordx2 s[%d:%d], s[0:1], %d", H["S_DBG"], H["S_DBG"] + 1, DBG)
    a.e("v_lshrrev_b32 v%d, 6, v0", v_t)
    a.e("v_mov_b32 v%d, v0", T + 31)
    a.e("v_readfirstlane_b32 s%d, v%d", s_w, v_t)
    a.e("v_and_b32 v%d, 63, v0", v_lane)
    v_x16, v_g = T + 29, T + 30
    a.e("v_and_b32 v%d, 15, v%d", v_x16, v_lane)
    a.e("v_lshrrev_b32 v%d, 4, v%d", v_g, v_lane)
    a.e("s_and_b32 s%d, s2, 31", s_h)
    if "hrot" in exp:
        a.e("s_add_u32 s%d, s%d, 3", s_h, s_h); a.e("s_and_b32 s%d, s%d, 31", s_h, s_h)
    a.e("s_lshr_b32 s%d, s2, 5", s_j)
    a.e("s_lshr_b32 s%d, s%d, 3", s_t0, s_h)
    a.e("s_lshl_b32 s%d, s%d, 1", s_t0, s_t0)
    a.e("s_add_u32 s%d, s%d, s%d", s_kk0, s_t0, s_j)
    a.e("s_and_b32 s%d, s%d, 7", s_kk0, s_kk0)
    if "norot" in exp: a.e("s_mov_b32 s%d, 0", s_kk0)
    if "rot2" in exp or "rot4" in exp:
        a.e("s_lshr_b32 s%d, s%d, 3", s_t0, s_h)
        a.e("s_add_u32 s%d, s%d, s%d", s_kk0, s_t0, s_j)
        if "rot2" in exp:
            a.e("s_and_b32 s%d, s%d, 1", s_kk0, s_kk0); a.e("s_lshl_b32 s%d, s%d, 2", s_kk0, s_kk0)
        else:
            a.e("s_and_b32 s%d, s%d, 3", s_kk0, s_kk0); a.e("s_lshl_b32 s%d, s%d, 1", s_kk0, s_kk0)
    a.e("v_bfe_u32 v%d, v%d, 2, 2", v_t, v_lane)
    a.e("v_bfe_u32 v%d, v%d, 4, 1", v_t + 1, v_lane)
    a.e("v_lshl_add_u32 v%d, v%d, 2, v%d", v_t, v_t + 1, v_t)
    a.e("v_lshlrev_b32 v%d, 13, v%d", v_t, v_t)
    a.e("s_and_b32 s%d, s%d, 1", s_t0, s_w)
    a.e("s_lshl_b32 s%d, s%d, 1", s_t0, s_t0)
    a.e("v_and_b32 v%d, 3, v%d", v_t + 1, v_lane)
    a.e("v_xor_b32 v%d, s%d, v%d", v_t + 1, s_t0, v_t + 1)
    a.e("v_lshrrev_b32 v%d, 5, v%d", v_wdma, v_lane)
    a.e("v_lshl_add_u32 v%d, v%d, 2, v%d", v_t + 1, v_wdma, v_t + 1)
    a.e("v_lshl_add_u32 v%d, v%d, 4, v%d", v_wdma, v_t + 1, v_t)
    a.e("v_lshrrev_b32 v%d, 3, v%d", v_t, v_lane)
    a.e("v_lshrrev_b32 v%d, 1, v%d", v_t + 1, v_t)
    a.e("v_and_b32 v%d, 7, v%d", v_cdE, v_lane)
    a.e("v_xor_b32 v%d, v%d, v%d", v_cdE, v_cdE, v_t + 1)
    a.e("v_lshlrev_b32 v%d, 4, v%d", v_cdE, v_cdE)
    a.e("v_lshl_add_u32 v%d, v%d, 10, v%d", v_cdE, v_t, v_cdE)
    a.e("v_xor_b32 v%d, 64, v%d", v_cdO, v_cdE)
    a.e("s_waitcnt lgkmcnt(0)")
    mark()
    a.e("s_mov_b32 s8, s6"); a.e("s_mov_b32 s9, s7")
    a.e("s_mov_b32 s16, s14"); a.e("s_mov_b32 s17, s15")
    srd(a, S_X, S_X, 2 << 20); srd(a, S_C, S_C, 2 << 20)
    srd(a, S_WUK, S_WUK, 4 << 20); srd(a, S_WUV, S_WUV, 4 << 20)
    srd(a, S_WS, S_WS, WS_BYTES); srd(a, S_W1, S_W1, 4 << 20)
    if fused is not None: srd(a, H["S_DBG"], H["S_DBG"], 256)
    a.e("s_lshl_b32 s%d, s%d, 16", s_wof, s_w)
    a.e("s_lshl_b32 s%d, s%d, 8", s_t0, s_h)
    a.e("s_add_u32 s%d, s%d, s%d", s_wof, s_wof, s_t0)
    a.e("s_lshl_b32 s%d, s%d, 10", s_wm0, s_w)
    a.e("s_lshl_b32 s%d, s%d, 18", s_c0, s_j)
    a.e("s_lshl_b32 s%d, s%d, 15", s_t0, s_w)
    a.e("s_add_u32 s%d, s%d, s%d", s_c0, s_c0, s_t0)
    a.e("s_lshl_b32 s%d, s%d, 13", s_cm0, s_w)
    a.e("s_add_u32 s%d, s%d, %d", s_cm0, s_cm0, LDS_C)

    def kk_of(i, dst):
        a.e("s_add_u32 s%d, s%d, %d", dst, s_kk0, i)
        a.e("s_and_b32 s%d, s%d, 7", dst, dst)
    def w_dma(step):
        slot = step & 3
        L = []
        for hf in range(2):
            if step < 8:
                S, kki, col = S_WUK, step, hf * 128
            else:
                cv = (step - 8) >> 2
                S, kki, col = S_WUV, 2 * ((step - 8) & 3) + hf, cv * 128
            def em(S=S, kki=kki, col=col, hf=hf):
                kk_of(kki, s_t0)
                a.e("s_lshl_b32 s%d, s%d, 19", s_t0, s_t0)
                a.e("s_add_u32 m0, s%d, %d", s_wm0, LDS_W + slot * 16384 + hf * 8192)
                a.e("s_add_u32 s%d, s%d, s%d", s_t0, s_t0, s_wof)
                if col: a.e("s_add_u32 s%d, s%d, %d", s_t0, s_t0, col)
                a.e("buffer_load_dwordx4 v%d, s[%d:%d], s%d offen lds", v_wdma, S, S + 3, s_t0)
                vm.issue(("W", step))
            L.append(em)
        return L
    def c_dma(step):
        slot = step & 1
        L = []
        for q in range(4):
            def em(q=q):
                if q == 0:
                    kk_of(step, s_t1)
                    a.e("s_lshl_b32 s%d, s%d, 7", s_t1, s_t1)
                    a.e("s_add_u32 s%d, s%d, s%d", s_t1, s_t1, s_c0)
                else:
                    a.e("s_add_u32 s%d, s%d, 8192", s_t1, s_t1)
                a.e("s_add_u32 m0, s%d, %d", s_cm0, slot * 4096 + q * 1024)
                a.e("s_nop 0")
                a.e("buffer_load_dwordx4 v%d, s[%d:%d], s%d offen lds", v_cdE if (q & 1) == 0 else v_cdO, S_C, S_C + 3, s_t1)
                vm.issue(("c", step))
            L.append(em)
        return L

    for em in c_dma(0) + w_dma(0): em()
    for em in c_dma(1) + w_dma(1): em()
    a.e("s_lshl_b32 s%d, s2, 3", s_t0)
    a.e("s_add_u32 s%d, s%d, s%d", s_t0, s_t0, s_w)
    a.e("s_lshl_b32 s%d, s%d, 10", s_t0, s_t0)
    a.e("v_lshlrev_b32 v%d, 4, v%d", v_t, v_lane)
    a.e("buffer_load_dwordx4 v[%d:%d], v%d, s[%d:%d], s%d offen", T, T + 3, v_t, S_X, S_X + 3, s_t0)
    vm.issue("x")
    mark()

    if "wpf" in exp:
        a.e("v_lshlrev_b32 v%d, 4, v%d", v_t + 1, v_lane)
        a.e("s_lshl_b32 s%d, s2, 14", s_t0)
        a.e("s_lshl_b32 s%d, s%d, 11", s_t1, s_w)
        a.e("s_add_u32 s%d, s%d, s%d", s_t0, s_t0, s_t1)
        a.e("s_mov_b32 m0, %d", LDS_SCR + 8192)
        a.e("s_nop 0")
        for S_ in ([S_WUV] if "wpfv" in exp else ([S_WUV, S_W1] if "wpfq" in exp else [S_WUK, S_WUV])):
            for i in range(2):
                a.e("s_add_u32 s%d, s%d, %d", s_t1, s_t0, i * 1024)
                a.e("buffer_load_dwordx4 v%d, s[%d:%d], s%d offen lds", v_t + 1, S_, S_ + 3, s_t1)
                vm.issue("wpf")
    if fused is not None:
        H["role_setup"]()
        H["flag_store"](0, "clr")
    a.e("v_bfe_u32 v%d, v%d, 2, 2", v_t, v_lane)
    a.e("v_lshlrev_b32 v%d, 6, v%d", v_t, v_t)
    a.e("v_and_b32 v%d, 3, v%d", v_t + 1, v_lane)
    a.e("v_lshl_add_u32 v%d, v%d, 3, v%d", v_t, v_t + 1, v_t)
    a.e("v_lshl_add_u32 v%d, v%d, 10, v%d", v_t, v_g, v_t)
    a.e("v_and_b32 v%d, 1, v%d", v_t + 1, v_g)
    a.e("v_lshl_add_u32 v%d, v%d, 5, v%d", v_trE, v_t + 1, v_t)
    a.e("v_xor_b32 v%d, 32, v%d", v_trO, v_trE)
    a.e("v_lshrrev_b32 v%d, 1, v%d", v_t, v_x16)
    a.e("v_xor_b32 v%d, v%d, v%d", v_t, v_t, v_g)
    a.e("v_lshlrev_b32 v%d, 4, v%d", v_t, v_t)
    a.e("v_lshl_add_u32 v%d, v%d, 7, v%d", v_t, v_x16, v_t)
    a.e("v_add_u32 v%d, s%d, v%d", v_cr0, s_cm0, v_t)
    a.e("v_xor_b32 v%d, 64, v%d", v_cr1, v_cr0)
    a.e("v_and_b32 v%d, 1, v%d", v_t, v_g)
    a.e("v_lshlrev_b32 v%d, 10, v%d", v_kst, v_t)
    a.e("v_lshrrev_b32 v%d, 1, v%d", v_t, v_g)
    a.e("v_lshl_add_u32 v%d, v%d, 9, v%d", v_kst, v_t, v_kst)
    a.e("v_lshrrev_b32 v%d, 3, v%d", v_t, v_x16)
    a.e("v_lshl_add_u32 v%d, v%d, 8, v%d", v_kst, v_t, v_kst)
    a.e("v_and_b32 v%d, 7, v%d", v_t, v_x16)
    a.e("v_lshl_add_u32 v%d, v%d, 4, v%d", v_kst, v_t, v_kst)
    a.e("v_lshrrev_b32 v%d, 1, v%d", v_t, v_g)
    a.e("v_lshlrev_b32 v%d, 12, v%d", v_vst, v_t)
    a.e("v_and_b32 v%d, 1, v%d", v_t, v_g)
    a.e("v_lshl_add_u32 v%d, v%d, 9, v%d", v_vst, v_t, v_vst)
    a.e("v_lshl_add_u32 v%d, v%d, 4, v%d", v_vst, v_x16, v_vst)
    a.e("s_mul_i32 s%d, s%d, %d", s_kst, s_h, HEAD_STRIDE)
    a.e("s_lshl_b32 s%d, s%d, 16", s_t0, s_j)
    a.e("s_add_u32 s%d, s%d, s%d", s_kst, s_kst, s_t0)
    a.e("s_lshl_b32 s%d, s%d, 13", s_t0, s_w)
    a.e("s_add_u32 s%d, s%d, s%d", s_kst, s_kst, s_t0)
    a.e("s_add_u32 s%d, s%d, 0x%x", s_vst, s_kst, WS_V)

    class Rec:
        def __init__(self): self.L = []
        def e(self, fmt, *x): self.L.append(fmt % x if x else fmt)
    r_ = Rec()
    F = T + 8
    for i in range(4):
        r_.e("v_lshlrev_b32 v%d, 16, v%d", F + 2 * i, T + i)
        r_.e("v_and_b32 v%d, 0xffff0000, v%d", F + 2 * i + 1, T + i)
    M, TT, V2, RS = T + 16, T + 17, T + 18, T + 19
    r_.e("v_add_f32 v%d, v%d, v%d", M, F, F + 1)
    for i in range(2, 8):
        r_.e("v_add_f32 v%d, v%d, v%d", M, M, F + i)
    allsum64(r_, M, TT)
    r_.e("v_mul_f32 v%d, 0x3b000000, v%d", M, M)
    for i in range(8):
        r_.e("v_sub_f32 v%d, v%d, v%d", F + i, F + i, M)
    r_.e("v_mul_f32 v%d, v%d, v%d", V2, F, F)
    for i in range(1, 8):
        r_.e("v_fmac_f32 v%d, v%d, v%d", V2, F + i, F + i)
    allsum64(r_, V2, TT)
    r_.e("v_mov_b32 v%d, 0x3727c5ac", RS)
    r_.e("v_fmac_f32 v%d, 0x3b000000, v%d", RS, V2)
    r_.e("v_rsq_f32 v%d, v%d", RS, RS)
    r_.e("s_nop 0")
    r_.e("v_mul_f32 v%d, 0x%x, v%d", RS, QSCALE_BITS, RS)
    for i in range(8):
        r_.e("v_mul_f32 v%d, v%d, v%d", F + i, F + i, RS)
    for i in range(4):
        r_.e("v_cvt_pk_bf16_f32 v%d, v%d, v%d", T + i, F + 2 * i, F + 2 * i + 1)
    r_.e("s_lshl_b32 s%d, s%d, 10", s_t3, s_w)
    r_.e("s_add_u32 s%d, s%d, %d", s_t3, s_t3, LDS_SCR)
    r_.e("v_lshl_add_u32 v%d, v%d, 4, s%d", T + 20, v_lane, s_t3)
    LN1 = r_.L
    r2 = Rec()
    X0, X1, X2 = T + 20, T + 21, T + 22
    r2.e("v_and_b32 v%d, 7, v%d", X0, v_lane)
    r2.e("v_lshrrev_b32 v%d, 3, v%d", X1, v_lane)
    r2.e("s_lshl_b32 s%d, s%d, 3", s_t3, s_w)
    r2.e("v_add_u32 v%d, s%d, v%d", X1, s_t3, X1)
    r2.e("v_lshlrev_b32 v%d, 10, v%d", F, X0)
    r2.e("v_lshl_add_u32 v%d, v%d, 4, v%d", F, X1, F)
    r2.e("v_add_u32 v%d, %d, v%d", F, LDS_SCR, F)
    LN2a = r2.L
    r3 = Rec()
    r3.e("v_lshrrev_b32 v%d, 2, v%d", F + 1, X1)
    r3.e("v_lshlrev_b32 v%d, 10, v%d", F + 1, F + 1)
    r3.e("v_and_b32 v%d, 3, v%d", X1, X1)
    r3.e("v_lshl_add_u32 v%d, v%d, 8, v%d", F + 1, X1, F + 1)
    r3.e("v_lshl_add_u32 v%d, v%d, 4, v%d", F + 1, X0, F + 1)
    r3.e("s_lshr_b32 s%d, s2, 1", s_t3)
    r3.e("s_lshl_b32 s%d, s%d, 14", s_t3, s_t3)
    r3.e("s_and_b32 s%d, s2, 1", s_oct)
    r3.e("s_lshl_b32 s%d, s%d, 7", s_oct, s_oct)
    r3.e("s_add_u32 s%d, s%d, s%d", s_t3, s_t3, s_oct)
    r3.e("s_add_u32 s%d, s%d, 0x%x", s_t3, s_t3, WS_XN)
    LN2b = r3.L

    def c_reads(step):
        for u in range(2):
            for kb in range(2):
                r = CF + ((step * 2 + u) * 2 + kb) * 4
                a.e("ds_read_b128 v[%d:%d], v%d offset:%d", r, r + 3, v_cr0 if u == 0 else v_cr1, (step & 1) * 4096 + kb * 2048)
                lg.issue(("c", step))

    vm.wait([("c", 0), ("W", 0)])
    c_reads(0)
    mark()
    a.e("s_barrier")
    mark()

    def step_frags(step):
        L = []
        if step < 8:
            for u in range(2):
                for cb in range(8):
                    off = (cb >> 2) * 8192 + u * 4096 + ((cb >> 1) & 1) * 512
                    dg = cb >> 1
                    accs = [ACCA + ((dg * 2 + kb) * 2 + (cb & 1)) * 4 for kb in range(2)]
                    cfs = [CF + ((step * 2 + u) * 2 + kb) * 4 for kb in range(2)]
                    L.append((off, cb & 1, accs, cfs, step == 0 and u == 0))
        else:
            base = ACCB if step < 12 else ACCA
            i2 = (step - 8) & 3
            for hf in range(2):
                for u in range(2):
                    for cb in range(4):
                        off = hf * 8192 + u * 4096 + (cb >> 1) * 512
                        accs = [base + (cb * 2 + kb) * 4 for kb in range(2)]
                        ci = (2 * i2 + hf)
                        cfs = [CF + ((ci * 2 + u) * 2 + kb) * 4 for kb in range(2)]
                        L.append((off, cb & 1, accs, cfs, i2 == 0 and hf == 0 and u == 0))
        return L
    frags = [(s, f) for s in range(16) for f in step_frags(s)]
    def w_read(gi):
        s, (off, odd, accs, cfs, first) = frags[gi]
        r = WF + (gi % NRING) * 4
        for t in range(2):
            a.e("ds_read_b64_tr_b16 v[%d:%d], v%d offset:%d", r + 2 * t, r + 2 * t + 1, v_trO if odd else v_trE,
                LDS_W + (s & 3) * 16384 + off + t * 256)
            lg.issue(("W", gi))
    def epi(kind):
        L = []
        if kind == "K":
            for dg in range(4):
                for kb in range(2):
                    A = ACCA + (dg * 2 + kb) * 8
                    g = []
                    for i in range(4):
                        g.append("v_cvt_pk_bf16_f32 v%d, v%d, v%d" % (A + i, A + 2 * i, A + 2 * i + 1))
                    g.append("s_add_u32 s%d, s%d, %d" % (s_t2, s_kst, (dg >> 1) * 4096))
                    g.append(("st", "buffer_store_dwordx4 v[%d:%d], v%d, s[%d:%d], s%d offen offset:%d" % (A, A + 3, v_kst, S_WS, S_WS + 3, s_t2, kb * 128 + (dg & 1) * 2048)))
                    L += g
        else:
            cv = 0 if kind == "V0" else 1
            base = ACCB if cv == 0 else ACCA
            for cb in range(4):
                A = base + cb * 8
                for i in range(4):
                    L.append("v_cvt_pk_bf16_f32 v%d, v%d, v%d" % (A + i, A + 2 * i, A + 2 * i + 1))
                L.append("s_add_u32 s%d, s%d, %d" % (s_t2, s_vst, cv * 2048))
                L.append(("st", "buffer_store_dwordx4 v[%d:%d], v%d, s[%d:%d], s%d offen offset:%d" % (A, A + 3, v_vst, S_WS, S_WS + 3, s_t2, (cb >> 1) * 1024 + (cb & 1) * 256)))
        return L
    def emit_epi(x):
        if isinstance(x, tuple):
            if "nost" in exp: return
            a.e(x[1]); vm.issue("st")
        else:
            a.e(x)

    def emit_main(dk0, epk0, last):
        PRE = NRING - 1
        nread = 0
        npoll = [0]
        pend_epi = []
        ln = list(LN1); ln2a = list(LN2a); ln2b = list(LN2b)
        for gi, (s, (off, odd, accs, cfs, first)) in enumerate(frags):
            k = gi % 16
            dmas = []
            if k == 0:
                a("; ---- step %d" % s)
                if s in (4, 8, 12): (mark() if last else None)
                if s > 0 and "nobar" not in exp and not ("bar2" in exp and s >= 9 and s % 2 == 1):
                    a.e("s_barrier")
                if s == 8:
                    ek = epi("K"); pend_epi = ek[:36]; ek_rest = ek[36:]
                if s == 12: pend_epi = ek_rest + epi("V0")
                step_dmas = []
                if s == 0: step_dmas += w_dma(2)
                if s + 3 < 16: step_dmas += w_dma(s + 3)
                if s + 2 < 8: step_dmas += c_dma(s + 2)
            lim = 16 if s == 0 else len(frags)
            while nread < min(gi + PRE + 1, lim):
                w_read(nread); nread += 1
            lg.wait([("W", gi), ("c", s)] if k == 0 else ("W", gi))
            wf = WF + (gi % NRING) * 4
            for kb in range(2):
                d, cf = accs[kb], cfs[kb]
                c = "0" if first else "v[%d:%d]" % (d, d + 3)
                if s < 8:
                    a.e("v_mfma_f32_16x16x32_bf16 v[%d:%d], v[%d:%d], v[%d:%d], %s", d, d + 3, wf, wf + 3, cf, cf + 3, c)
                else:
                    a.e("v_mfma_f32_16x16x32_bf16 v[%d:%d], v[%d:%d], v[%d:%d], %s", d, d + 3, cf, cf + 3, wf, wf + 3, c)
            if k >= dk0 and step_dmas:
                if "nodma" in exp and s >= 2: step_dmas.pop(0)
                else: step_dmas.pop(0)()
            if s == 1 and k == 0: vm.wait("x")
            if s in (1, 2) and ln:
                for _ in range(4):
                    if ln: a.e(ln.pop(0))
            if s == 2 and k == 15:
                assert not ln
                a.e("ds_write_b128 v%d, v[%d:%d]", T + 20, T, T + 3); lg.issue("lnw")
                lg.wait("lnw")
            if s == 3:
                if k < 4:
                    for _ in range(2):
                        if ln2a: a.e(ln2a.pop(0))
                if k == 4:
                    a.e("ds_read_b128 v[%d:%d], v%d", T, T + 3, F); lg.issue("lnr")
                if 5 <= k < 11:
                    for _ in range(2):
                        if ln2b: a.e(ln2b.pop(0))
                if k == 12:
                    assert not ln2a and not ln2b
                    lg.wait("lnr")
                    a.e("buffer_store_dwordx4 v[%d:%d], v%d, s[%d:%d], s%d offen", T, T + 3, F + 1, S_WS, S_WS + 3, s_t3)
                    vm.issue("xn")
            if k == (15 if s == 0 else 11) and s + 1 < 16:
                tags = [("W", s + 1), ("W", s + 2), ("c", s + 1)]
                if fused is not None and s == 5: tags += ["xn", "clr"]
                vm.wait(tags)
                if s + 1 < 8: c_reads(s + 1)
            if fused is not None:
                if s == 6 and k == 12: H["signal"]("0", True)
                if s == 8 and k == 1: H["vec_setup"]()
                if "early" in exp:
                    if 9 <= s <= 12 and k in (5, 9): H["w_dma_l"](s - 9)[0 if k == 5 else 1]()
                else:
                    if s in (12, 13) and k in (5, 9): H["w_dma_l"](s - 12)[0 if k == 5 else 1]()
                if s == 10 and k == 2:
                    H["poll"](0, "0"); npoll[0] = vm.total
                if s == 12 and k == 13: H["poll_check"](0, "0", 256, min(vm.total - npoll[0], len(vm.ops)))
                if "early" in exp:
                    if s >= 13 and k in (1, 3, 5, 7, 9, 10, 12, 14):
                        i_ = (1, 3, 5, 7, 9, 10, 12, 14).index(k)
                        if i_ == 0: xl = H["xn_load_l"](2 * (s - 13)) + H["xn_load_l"](2 * (s - 13) + 1)
                        xl[i_]()
                elif s >= 14 and k in (2, 5, 8, 12):
                    i_ = (2, 5, 8, 12).index(k)
                    if i_ == 0: xl = H["xn_load_l"](s - 14)
                    xl[i_]()
            if "pf" in exp and fused is None and s == 10 and k in (4, 8):
                a.e("v_lshrrev_b32 v%d, 4, v%d", v_t, v_lane)
                a.e("v_lshlrev_b32 v%d, 13, v%d", v_t, v_t)
                a.e("v_and_b32 v%d, 15, v%d", v_t + 1, v_lane)
                a.e("v_lshl_add_u32 v%d, v%d, 4, v%d", v_t, v_t + 1, v_t)
                a.e("s_lshl_b32 s%d, s%d, 3", s_t3, s_j)
                a.e("s_add_u32 s%d, s%d, s%d", s_t3, s_t3, s_w)
                a.e("s_lshl_b32 s%d, s%d, 16", s_t3, s_t3)
                a.e("s_lshl_b32 s%d, s%d, 8", s_t1, s_h)
                a.e("s_add_u32 s%d, s%d, s%d", s_t3, s_t3, s_t1)
                if k == 8: a.e("s_add_u32 s%d, s%d, 32768", s_t3, s_t3)
                a.e("s_mov_b32 m0, s%d", s_cm0)
                a.e("s_nop 0")
                a.e("buffer_load_dwordx4 v%d, s[%d:%d], s%d offen lds", v_t, S_W1, S_W1 + 3, s_t3)
                vm.issue("pf")
            if pend_epi and k >= 3:
                emit_epi(pend_epi.pop(0))
                if pend_epi and s >= 12: emit_epi(pend_epi.pop(0))
        assert not pend_epi
        (st.mark() if last else None)
        a.e("s_nop 7")
        if fused is not None and "early" not in exp:
            late = []
            for cb in range(4):
                A, D = ACCA + cb * 8, ACCB + cb * 4
                for i in range(4):
                    a.e("v_cvt_pk_bf16_f32 v%d, v%d, v%d", D + i, A + 2 * i, A + 2 * i + 1)
                def st_(cb=cb, D=D):
                    a.e("s_add_u32 s%d, s%d, 2048", s_t2, s_vst)
                    a.e("buffer_store_dwordx4 v[%d:%d], v%d, s[%d:%d], s%d offen offset:%d", D, D + 3, v_vst, S_WS, S_WS + 3, s_t2, (cb >> 1) * 1024 + (cb & 1) * 256)
                    vm.issue("st")
                late.append(st_)
            H["late_stores"].extend(late)
        else:
            for x in epi("V1"): emit_epi(x)
        if fused is not None:
            for _ in k2: pass
            return
        if diag and last:
            a.e("s_waitcnt vmcnt(0)")
            (mark() if last else None)
            st.dump(S_WS, s_w, 10, s_t0)

    if "stag" in exp:
        l2 = name + "_late"
        vm0, lg0 = list(vm.ops), list(lg.ops)
        a.e("s_cmp_ge_u32 s%d, 4", s_w)
        a.e("s_cbranch_scc1 %s", l2)
        emit_main(1, 3, True)
        a.e("s_endpgm")
        a.label(l2)
        vm.ops, lg.ops = vm0, lg0
        emit_main(6 if "stag6" in exp else 8, 3, False)
    else:
        emit_main(1, 3, True)
    if fused is None:
        a.label(name + "_end")
        a.e("s_endpgm")
```

```python
from gen_common import *
import gen_common
import math, struct

def f32bits(x):
    return struct.unpack("<I", struct.pack("<f", x))[0]

def gen_k2(a, name="attn_kernel", diag=False, exp="", thr_log2=40):
    for _ in gen_k2_iter(a, name, diag, exp, thr_log2, None): pass

def gen_k2_iter(a, name, diag, exp, thr_log2, fuse):
    if fuse is None:
        kernel_begin(a, name)
        st = Stamps(a, diag, 1, base=56, maxn=11)
        vm = Cnt(a, "vmcnt", 63); lg = Cnt(a, "lgkmcnt", 15)
    else:
        vm, lg, st = fuse["vm"], fuse["lg"], fuse["st"]
    SC1 = " sc1" if fuse is not None else ""
    QSCALE = f32bits(math.log2(math.e) / math.sqrt(128.0))
    THR = f32bits(2.0 ** thr_log2)
    S_WQ, S_WS = 4, 8
    s_h, s_x, s_w, s_t0, s_t1, s_t2, s_kk0, s_wof, s_wm0 = 12, 13, 14, 15, 16, 17, 18, 19, 20
    s_xn, s_T, s_TB, s_t, s_cur, s_nxt, s_ld, s_kof, s_vof, s_wl = 21, 22, 23, 24, 25, 26, 27, 28, 29, 30
    s_qb, s_mfrom, s_kb, s_isA, s_lslot, s_lst, s_thr, s_oob = 31, 32, 33, 34, 35, 36, 37, 38
    s_ret = 40
    s_m = 42
    s_hb = 50
    s_n = 51
    s_cnt = 52
    s_x1, s_x2 = 53, 54
    SPF = 56
    if fuse is not None:
        S_WQ, S_WS = 20, 24
        s_h, s_x, s_w, s_t0, s_t1, s_t2, s_kk0, s_wof, s_wm0 = 28, 29, 30, 31, 32, 33, 34, 35, 40
        s_xn, s_T, s_TB, s_t, s_cur, s_nxt, s_ld, s_kof, s_vof, s_wl = 44, 45, 46, 47, 48, 49, 50, 51, 52, 53
        s_qb, s_mfrom, s_kb, s_isA, s_lslot, s_lst, s_thr, s_oob = 54, 55, 56, 57, 58, 59, 60, 61
        s_m = 8
        s_hb, s_n, s_cnt, s_x1, s_x2, s_poll = 64, 65, 66, 67, 68, 69
        s_ret = 70
        S_DBG = 72
        SPF = 4
    v_lane, v_wdma, v_trE, v_trO, v_l16, v_rd, v_rdn, v_qrel, v_t = 0, 1, 2, 3, 4, 5, 6, 7, 8
    v_hiE, v_hiO = v_rd, v_rdn
    if fuse is not None:
        v_lane, v_wdma, v_l16, v_qrel, v_trE, v_trO, v_hiE, v_hiO, v_rd, v_rdn, v_t = 0, 1, 2, 3, 4, 5, 6, 7, 8, 9, 10
    WF, NRW = 12, 5
    ACC = 32
    XN = 128
    Q = 96
    RING, NR, PD = 12, 16, 12
    TT = 80
    v_ps, v_l, v_D, v_ninf, v_mx, v_f = [84, 85], 86, 87, 88, 89, 90
    U = 76
    v_pk = [92, 94]
    NEGM, P, S, O = 128, [144, 152], [160, 176], 192
    SLOT = 32768

    def role_setup():
        a.e("s_lshr_b32 s%d, s%d, 2", s_isA, s_w)
        a.e("s_sub_u32 s%d, 15, s%d", s_t0, s_x)
        a.e("s_lshl_b32 s%d, s%d, 1", s_TB, s_t0)
        a.e("s_add_u32 s%d, s%d, 2", s_TB, s_TB)
        a.e("s_sub_u32 s%d, 7, s%d", s_t1, s_w)
        a.e("s_cmp_eq_u32 s%d, 0", s_isA)
        a.e("s_cselect_b32 s%d, s%d, s%d", s_t0, s_t0, s_x)
        a.e("s_cselect_b32 s%d, s%d, s%d", s_t1, s_w, s_t1)
        a.e("s_lshl_b32 s%d, s%d, 1", s_T, s_t0)
        a.e("s_lshr_b32 s%d, s%d, 1", s_t2, s_t1)
        a.e("s_add_u32 s%d, s%d, s%d", s_T, s_T, s_t2)
        a.e("s_add_u32 s%d, s%d, 1", s_T, s_T)
        a.e("s_lshl_b32 s%d, s%d, 2", s_qb, s_t0)
        a.e("s_add_u32 s%d, s%d, s%d", s_qb, s_qb, s_t1)
        a.e("s_sub_u32 s%d, s%d, 3", s_mfrom, s_T)
        a.e("s_and_b32 s%d, s%d, 3", s_wl, s_w)
        a.e("s_lshl_b32 s%d, s%d, 15", s_xn, s_qb)
        a.e("s_add_u32 s%d, s%d, 0x%x", s_xn, s_xn, WS_XN)
        a.e("s_mul_i32 s%d, s%d, %d", s_hb, s_h, HEAD_STRIDE)
        a.e("s_lshl_b32 s%d, s%d, 12", s_t0, s_wl)
        a.e("s_add_u32 s%d, s%d, s%d", s_hb, s_hb, s_t0)
        a.e("s_mov_b32 s%d, 0x7ff00000", s_oob)
        a.e("s_mov_b32 s%d, 0x%x", s_thr, THR)

    if fuse is None:
        a.e("s_cmp_ge_u32 s2, 256")
        a.e("s_cbranch_scc1 %s_end", name)
        st.mark()
        a.e("s_load_dwordx2 s[4:5], s[0:1], %d", A_WQ)
        a.e("s_load_dwordx2 s[8:9], s[0:1], %d", WS)
        a.e("v_lshrrev_b32 v%d, 6, v0", v_t)
        a.e("v_and_b32 v%d, 63, v0", v_lane)
        a.e("v_readfirstlane_b32 s%d, v%d", s_w, v_t)
        a.e("s_and_b32 s%d, s2, 31", s_h)
        a.e("s_lshr_b32 s%d, s2, 5", s_x)
        a.e("s_lshr_b32 s%d, s%d, 3", s_t0, s_h)
        a.e("s_lshl_b32 s%d, s%d, 1", s_t0, s_t0)
        a.e("s_add_u32 s%d, s%d, s%d", s_kk0, s_t0, s_x)
        a.e("s_and_b32 s%d, s%d, 7", s_kk0, s_kk0)
        a.e("v_bfe_u32 v%d, v%d, 2, 2", v_t, v_lane)
        a.e("v_bfe_u32 v%d, v%d, 4, 1", v_t + 1, v_lane)
        a.e("v_lshl_add_u32 v%d, v%d, 2, v%d", v_t, v_t + 1, v_t)
        a.e("v_lshlrev_b32 v%d, 13, v%d", v_t, v_t)
        a.e("s_and_b32 s%d, s%d, 1", s_t0, s_w)
        a.e("s_lshl_b32 s%d, s%d, 1", s_t0, s_t0)
        a.e("v_and_b32 v%d, 3, v%d", v_t + 1, v_lane)
        a.e("v_xor_b32 v%d, s%d, v%d", v_t + 1, s_t0, v_t + 1)
        a.e("v_lshrrev_b32 v%d, 5, v%d", v_wdma, v_lane)
        a.e("v_lshl_add_u32 v%d, v%d, 2, v%d", v_t + 1, v_wdma, v_t + 1)
        a.e("v_lshl_add_u32 v%d, v%d, 4, v%d", v_wdma, v_t + 1, v_t)
        a.e("v_lshlrev_b32 v%d, 4, v%d", v_l16, v_lane)
        a.e("s_waitcnt lgkmcnt(0)")
        srd(a, S_WQ, S_WQ, 4 << 20); srd(a, S_WS, S_WS, WS_BYTES)
        a.e("s_lshl_b32 s%d, s%d, 16", s_wof, s_w)
        a.e("s_lshl_b32 s%d, s%d, 8", s_t0, s_h)
        a.e("s_add_u32 s%d, s%d, s%d", s_wof, s_wof, s_t0)
        a.e("s_lshl_b32 s%d, s%d, 10", s_wm0, s_w)
        role_setup()

    def kk_of(i, dst):
        a.e("s_add_u32 s%d, s%d, %d", dst, s_kk0, i)
        a.e("s_and_b32 s%d, s%d, 7", dst, dst)
    def wq_lds(step):
        return (step * 16384) if fuse is None else (((step + 4) & 7) * 16384)
    def stage_slot(stage):
        return ((stage if fuse is None else stage + 2) % 4) * SLOT
    def w_dma(step):
        for em in w_dma_l(step): em()
    def w_dma_l(step):
        return [lambda hf=hf: w_dma1(step, hf) for hf in range(2)]
    def w_dma1(step, hf):
        if True:
            kk_of(step, s_t0)
            a.e("s_lshl_b32 s%d, s%d, 19", s_t0, s_t0)
            a.e("s_add_u32 m0, s%d, %d", s_wm0, wq_lds(step) + hf * 8192)
            a.e("s_add_u32 s%d, s%d, s%d", s_t0, s_t0, s_wof)
            if hf: a.e("s_add_u32 s%d, s%d, 128", s_t0, s_t0)
            a.e("buffer_load_dwordx4 v%d, s[%d:%d], s%d offen lds", v_wdma, S_WQ, S_WQ + 3, s_t0)
            vm.issue(("W", step))
    def xn_load(step):
        for em in xn_load_l(step): em()
    def xn_load_l(step):
        L = []
        for u in range(2):
            for qb in range(2):
                def em(u=u, qb=qb):
                    if u == 0 and qb == 0:
                        kk_of(step, s_x1)
                        a.e("s_lshl_b32 s%d, s%d, 11", s_x1, s_x1)
                        a.e("s_add_u32 s%d, s%d, s%d", s_x1, s_x1, s_xn)
                        a.e("s_add_u32 s%d, s%d, 16384", s_x2, s_x1)
                    r = XN + ((step * 2 + u) * 2 + qb) * 4
                    a.e("buffer_load_dwordx4 v[%d:%d], v%d, s[%d:%d], s%d offen offset:%d%s", r, r + 3, v_l16, S_WS, S_WS + 3,
                        s_x1 if qb == 0 else s_x2, u * 1024, SC1)
                    vm.issue(("x", step))
                L.append(em)
        return L
    def stage_addr_static(stage):
        a.e("s_add_u32 s%d, s%d, 0x%x", s_kof, s_hb, WS_K + (stage + 1) * 16384)
        a.e("s_add_u32 s%d, s%d, 0x%x", s_vof, s_hb, WS_V + max(stage, 0) * 16384)
        a.e("s_lshl_b32 s%d, s%d, 12", s_lslot, s_wl)
        a.e("s_add_u32 s%d, s%d, %d", s_lslot, s_lslot, stage_slot(stage) if stage >= 0 else 4 * SLOT)
    def stage_loads(part, tag=None, track=True):
        L = []
        for i in range(4):
            def em(i=i):
                if i == 0:
                    a.e("s_add_u32 m0, s%d, %d", s_lslot, 0 if part == "K" else 16384)
                    a.e("s_nop 0")
                a.e("buffer_load_dwordx4 v%d, s[%d:%d], s%d offen offset:%d%s lds", v_l16, S_WS, S_WS + 3,
                    s_kof if part == "K" else s_vof, i * 1024, SC1)
                if track: vm.issue(tag)
            L.append(em)
        return L
    def only_A(fn):
        l = a.newlabel("LnA")
        a.e("s_cmp_eq_u32 s%d, 0", s_isA)
        a.e("s_cbranch_scc1 %s", l)
        fn()
        a.label(l)

    def vec_setup():
        if fuse is not None: a.e("v_lshlrev_b32 v%d, 4, v%d", v_l16, v_lane)
        a.e("v_add_u32 v%d, 0x10000, v%d", v_hiE, v_trE)
        a.e("v_add_u32 v%d, 0x10000, v%d", v_hiO, v_trO)
        a.e("v_and_b32 v%d, 31, v%d", v_qrel, v_lane)
        a.e("s_lshl_b32 s%d, s%d, 5", s_t0, s_qb)
        a.e("v_add_u32 v%d, s%d, v%d", v_qrel, s_t0, v_qrel)
        a.e("v_lshrrev_b32 v%d, 5, v%d", v_t, v_lane)
        a.e("v_lshlrev_b32 v%d, 2, v%d", v_t, v_t)
        a.e("v_sub_u32 v%d, v%d, v%d", v_qrel, v_qrel, v_t)
    def only_wave(w, fn):
        l = a.newlabel("Lw1")
        a.e("s_cmp_lg_u32 s%d, %d", s_w, w)
        a.e("s_cbranch_scc1 %s", l)
        fn()
        a.label(l)
    def poll(wave, s_off):
        only_wave(wave, lambda: a.e("buffer_load_dword v%d, off, s[%d:%d], %s sc1", v_t, S_DBG, S_DBG + 3, s_off))
    def poll_check(wave, s_off, target, younger):
        only_wave(wave, lambda: poll_check1(s_off, target, younger))
    def poll_check1(s_off, target, younger):
        ok, sp = a.newlabel("Lpok"), a.newlabel("Lpsp")
        a.e("s_waitcnt vmcnt(%d)", younger)
        a.e("v_readfirstlane_b32 s%d, v%d", s_poll, v_t)
        a.e("s_nop 3")
        a.e("s_cmp_ge_u32 s%d, %d", s_poll, target)
        a.e("s_cbranch_scc1 %s", ok)
        a.e("s_mov_b32 s%d, 0x20000", s_n)
        a.label(sp)
        a.e("s_sleep 16")
        a.e("buffer_load_dword v%d, off, s[%d:%d], %s sc1", v_t, S_DBG, S_DBG + 3, s_off)
        a.e("s_waitcnt vmcnt(0)")
        a.e("v_readfirstlane_b32 s%d, v%d", s_poll, v_t)
        a.e("s_nop 3")
        a.e("s_cmp_ge_u32 s%d, %d", s_poll, target)
        a.e("s_cbranch_scc1 %s", ok)
        a.e("s_sub_u32 s%d, s%d, 1", s_n, s_n)
        a.e("s_cbranch_scc0 %s", sp)
        a.label(ok)
    def signal(s_off, track=False):
        l, l2 = a.newlabel("Lsig"), a.newlabel("Lsig")
        a.e("s_cmp_lg_u32 s%d, 0", s_w)
        a.e("s_cbranch_scc1 %s", l)
        a.e("v_mov_b32 v%d, 1", v_t + 1)
        a.e("s_mov_b64 exec, 1")
        a.e("buffer_atomic_add v%d, off, s[%d:%d], %s sc1", v_t + 1, S_DBG, S_DBG + 3, s_off)
        a.e("s_mov_b64 exec, -1")
        if track: a.e("s_branch %s", l2)
        a.label(l)
        if track:
            a.e("buffer_load_dword v%d, off, s[%d:%d], s%d", v_t + 1, S_DBG, S_DBG + 3, s_oob)
            a.label(l2)
            vm.issue("sig")
    def flag_store(val, tag=None):
        a.e("s_lshl_b32 s%d, s2, 7", s_poll)
        a.e("s_add_u32 s%d, s%d, 0x%x", s_poll, s_poll, WS_FLAG)
        a.e("v_mov_b32 v%d, %d", v_t + 1, val)
        a.e("s_mov_b64 exec, 1")
        a.e("buffer_store_dword v%d, off, s[%d:%d], s%d sc1", v_t + 1, S_WS, S_WS + 3, s_poll)
        a.e("s_mov_b64 exec, -1")
        if tag: vm.issue(tag)
    def flags_load():
        a.e("v_and_b32 v%d, 7, v%d", v_t + 1, v_lane)
        a.e("v_lshlrev_b32 v%d, 12, v%d", v_t + 1, v_t + 1)
        a.e("s_lshl_b32 s%d, s%d, 7", s_poll, s_h)
        a.e("s_add_u32 s%d, s%d, 0x%x", s_poll, s_poll, WS_FLAG)
        a.e("buffer_load_dword v%d, v%d, s[%d:%d], s%d offen sc1", v_t, v_t + 1, S_WS, S_WS + 3, s_poll)
    def flags_check():
        ok, sp = a.newlabel("Lfok"), a.newlabel("Lfsp")
        a.e("s_waitcnt vmcnt(0)")
        a.e("v_cmp_eq_u32 vcc, 1, v%d", v_t)
        a.e("s_nop 3")
        a.e("s_cmp_eq_u64 vcc, -1")
        a.e("s_cbranch_scc1 %s", ok)
        a.e("s_mov_b32 s%d, 0x20000", s_n)
        a.label(sp)
        a.e("s_sleep 8")
        a.e("buffer_load_dword v%d, v%d, s[%d:%d], s%d offen sc1", v_t, v_t + 1, S_WS, S_WS + 3, s_poll)
        a.e("s_waitcnt vmcnt(0)")
        a.e("v_cmp_eq_u32 vcc, 1, v%d", v_t)
        a.e("s_nop 3")
        a.e("s_cmp_eq_u64 vcc, -1")
        a.e("s_cbranch_scc1 %s", ok)
        a.e("s_sub_u32 s%d, s%d, 1", s_n, s_n)
        a.e("s_cbranch_scc0 %s", sp)
        a.label(ok)
    if fuse is not None:
        late_stores = []
        yield dict(late_stores=late_stores, flag_store=flag_store, role_setup=role_setup, vec_setup=vec_setup, w_dma_l=w_dma_l, xn_load_l=xn_load_l, poll=poll, poll_check=poll_check,
                   signal=signal, S_DBG=S_DBG, s_h=s_h, s_poll=s_poll)
    vmB = Cnt(a, "vmcnt", 63)
    vmB.ops = list(vm.ops)
    class Both:
        def issue(self, tag, onlyA=False):
            pass
    def issue_both(tag):
        vmB.ops.append(tag)
    _issue = vm.issue
    state = {"A_only": False}
    def issue2(tag):
        _issue(tag)
        if not state["A_only"]: vmB.ops.append(tag)
    vm.issue = issue2
    def wait_common(tags):
        nA, nB = vm.need(tags), vmB.need(tags)
        if nA is None and nB is None: return
        if nA == nB or nB is None or nA is None:
            n = min(x for x in (nA, nB) if x is not None)
            a.e("s_waitcnt vmcnt(%d)", n)
        else:
            l1, l2 = a.newlabel("Lw"), a.newlabel("Lw")
            a.e("s_cmp_eq_u32 s%d, 0", s_isA)
            a.e("s_cbranch_scc1 %s", l1)
            a.e("s_waitcnt vmcnt(%d)", nA)
            a.e("s_branch %s", l2)
            a.label(l1)
            a.e("s_waitcnt vmcnt(%d)", nB)
            a.label(l2)
        for tr, n in ((vm, nA), (vmB, nB)):
            if n is not None: tr.ops = tr.ops[len(tr.ops) - n:] if n > 0 else []
    def a_loads(stage, part=None):
        def fn():
            state["A_only"] = True
            stage_addr_static(stage)
            if part in (None, "K"):
                for em in stage_loads("K", ("st", stage)): em()
            if stage >= 0 and part in (None, "V"):
                for em in stage_loads("V", ("st", stage)): em()
            state["A_only"] = False
        only_A(fn)
    if fuse is not None:
        s_hoff = s_mfrom
        a.e("s_lshl_b32 s%d, s%d, 2", s_hoff, s_h)
        a.e("s_add_u32 s%d, s%d, 128", s_hoff, s_hoff)
    def mark_poll(): pass

    if fuse is None:
        for s in range(2):
            w_dma(s); xn_load(s)
        st.mark()
        a.e("v_bfe_u32 v%d, v%d, 2, 2", v_t, v_lane)
        a.e("v_lshlrev_b32 v%d, 6, v%d", v_t, v_t)
        a.e("v_and_b32 v%d, 3, v%d", v_t + 1, v_lane)
        a.e("v_lshl_add_u32 v%d, v%d, 3, v%d", v_t, v_t + 1, v_t)
        a.e("v_lshrrev_b32 v%d, 4, v%d", v_t + 1, v_lane)
        a.e("v_lshl_add_u32 v%d, v%d, 10, v%d", v_t, v_t + 1, v_t)
        a.e("v_and_b32 v%d, 1, v%d", v_t + 1, v_t + 1)
        a.e("v_lshl_add_u32 v%d, v%d, 5, v%d", v_trE, v_t + 1, v_t)
        a.e("v_xor_b32 v%d, 32, v%d", v_trO, v_trE)
        vec_setup()

    qfr = []
    for s in range(8):
        for u in range(2):
            for cb in range(8):
                off = (wq_lds(s) & 0xffff) + (cb >> 2) * 8192 + u * 4096 + ((cb >> 1) & 1) * 512
                dg = cb >> 1
                accs = [ACC + ((dg * 2 + qb) * 2 + (cb & 1)) * 4 for qb in range(2)]
                xfs = [XN + ((s * 2 + u) * 2 + qb) * 4 for qb in range(2)]
                qfr.append((s, off, cb & 1, accs, xfs, s == 0 and u == 0))
    def w_read(gi):
        s, off, odd, accs, xfs, first = qfr[gi]
        r = WF + (gi % NRW) * 4
        base = (v_trO if odd else v_trE) if wq_lds(s) < 65536 else (v_hiO if odd else v_hiE)
        for t in range(2):
            a.e("ds_read_b64_tr_b16 v[%d:%d], v%d offset:%d", r + 2 * t, r + 2 * t + 1, base, off + t * 256)
            lg.issue(("W", gi))
    wait_common([("W", 0), ("x", 0)] + ([("W", 1)] if fuse is not None else []))
    a.e("s_barrier")
    if fuse is None: st.mark()
    PRE = NRW - 1
    nread = [0]
    SIGSTEP = 2 if 'early' in exp else 3
    POLLSTEP = 5 if 'poll5' in exp else 4
    for gi, (s, off, odd, accs, xfs, first) in enumerate(qfr):
        k = gi % 16
        if k == 0:
            if s > 0: a.e("s_barrier")
            if "fq" in exp and s in (1, 2, 4, 5): st.mark()
            pend = []
            if fuse is None:
                if s == 0:
                    pend = w_dma_l(2) + xn_load_l(2) + w_dma_l(3) + xn_load_l(3) + [lambda: a_loads(-1)]
                elif s + 3 < 8:
                    pend = w_dma_l(s + 3) + xn_load_l(s + 3)
                if s in (2, 4, 6): pend.append(lambda s=s: a_loads(s // 2 - 1))
            else:
                if "early" in exp:
                    if s < 4: pend = w_dma_l(s + 4)
                    if s == 0: pend += xn_load_l(6) + xn_load_l(7)
                else:
                    if s == 0: pend = w_dma_l(2) + xn_load_l(2) + w_dma_l(3) + xn_load_l(3)[:2] + late_stores[:2] + xn_load_l3b + late_stores[2:] if False else \
                        w_dma_l(2) + xn_load_l(2) + w_dma_l(3) + late_stores
                    elif s == 1: pend = xn_load_l(3) + w_dma_l(4) + xn_load_l(4)
                    elif s + 3 < 8: pend = w_dma_l(s + 3) + xn_load_l(s + 3)
                if s == SIGSTEP: pend = pend + [lambda: only_wave(0, lambda: flag_store(1))]
                if s == POLLSTEP:
                    pend = pend + [lambda: only_wave(4, flags_load)]
                if s == POLLSTEP + 1: pend = pend + [lambda: a_loads(-1, "K"), lambda: None, lambda: a_loads(0, "K"), lambda: None, lambda: a_loads(0, "V"),
                                   lambda: None, lambda: a_loads(1, "K"), lambda: None, lambda: a_loads(1, "V")]
                if s == max(6, POLLSTEP + 2) - (0): pend = pend + [lambda: a_loads(2, "K"), lambda: a_loads(2, "V")]
        lim = 16 if (s == 0 and fuse is None) else len(qfr)
        while nread[0] < min(gi + PRE + 1, lim): w_read(nread[0]); nread[0] += 1
        lg.wait(("W", gi))
        wf = WF + (gi % NRW) * 4
        for qb in range(2):
            d, xf = accs[qb], xfs[qb]
            c = "0" if first else "v[%d:%d]" % (d, d + 3)
            a.e("v_mfma_f32_16x16x32_bf16 v[%d:%d], v[%d:%d], v[%d:%d], %s", d, d + 3, wf, wf + 3, xf, xf + 3, c)
        if pend and k >= 1: pend.pop(0)()
        if k == (15 if (s == 0 and (fuse is None or "early" not in exp)) else 11) and s + 1 < 8:
            assert not pend
            tags = [("x", s + 1), ("W", s + 1)] + ([("W", s + 2)] if s + 2 < 8 else [])
            if fuse is not None and s == SIGSTEP - 1: tags.append("st")
            wait_common(tags)
        if fuse is not None and s == POLLSTEP and k == 15:
            only_wave(4, flags_check)
    if "fq" not in exp: st.mark()
    a.e("s_nop 7")
    for blk in range(8):
        for i in range(4):
            a.e("v_cvt_pk_bf16_f32 v%d, v%d, v%d", Q + blk * 4 + i, ACC + blk * 8 + 2 * i, ACC + blk * 8 + 2 * i + 1)
    a.e("s_nop 1")
    for dg in range(4):
        for i in range(4):
            a.e("v_permlane16_swap_b32 v%d, v%d", Q + (dg * 2) * 4 + i, Q + (dg * 2 + 1) * 4 + i)
    wait_common([("st", -1), ("st", 0)])
    a.e("s_barrier")
    a.e("v_mov_b32 v%d, 0", v_l)
    a.e("v_mov_b32 v%d, 0xff800000", v_ninf)
    a.e("s_mov_b32 s%d, %d", s_cur, stage_slot(0))
    a.e("v_add_u32 v%d, %d, v%d", v_rd, stage_slot(0), v_l16)
    a.e("s_mov_b32 s%d, 3", s_ld)
    a.e("s_mov_b32 s%d, %d", s_lst, stage_slot(3))
    if fuse is None: st.mark()

    def dyn_stage_setup():
        L = []
        L.append("s_lshl_b32 s%d, s%d, 14" % (s_t0, s_ld))
        L.append("s_add_u32 s%d, s%d, s%d" % (s_t0, s_t0, s_hb))
        L.append("s_add_u32 s%d, s%d, 0x%x" % (s_kof, s_t0, WS_K + 16384))
        L.append("s_add_u32 s%d, s%d, 0x%x" % (s_vof, s_t0, WS_V))
        L.append("s_cmp_lt_u32 s%d, s%d" % (s_ld, s_TB))
        L.append("s_cselect_b32 s%d, s%d, s%d" % (s_kof, s_kof, s_oob))
        L.append("s_cselect_b32 s%d, s%d, s%d" % (s_vof, s_vof, s_oob))
        L.append("s_lshl_b32 s%d, s%d, 12" % (s_lslot, s_wl))
        L.append("s_add_u32 s%d, s%d, s%d" % (s_lslot, s_lslot, s_lst))
        return L
    def dyn_stage_advance():
        return ["s_add_u32 s%d, s%d, 1" % (s_ld, s_ld),
                "s_add_u32 s%d, s%d, %d" % (s_lst, s_lst, SLOT),
                "s_and_b32 s%d, s%d, %d" % (s_lst, s_lst, 4 * SLOT - 1)]
    def kfrag_off(b, ks): return (b * 8 + ks) * 1024
    def vfrag_off(b, s_, db): return 16384 + (b * 8 + s_ * 4 + db) * 1024
    seq = []
    for ks in range(8): seq.append(("QK", 0, ks, kfrag_off(0, ks)))
    for s_ in range(2):
        for db in range(4): seq.append(("PV", 0, (s_, db), vfrag_off(0, s_, db)))
    for ks in range(8): seq.append(("QK", 1, ks, kfrag_off(1, ks)))
    for s_ in range(2):
        for db in range(4): seq.append(("PV", 1, (s_, db), vfrag_off(1, s_, db)))
    def mfma(item, reg, c0=None):
        kind, b, idx, off = item
        if "m16" in exp:
            if kind == "QK":
                for z in range(2):
                    d = S[b] + 4 * ((2 * idx + z) % 4)
                    q = Q + ((idx + z) % 8) * 4
                    c = ("v[%d:%d]" % (NEGM, NEGM + 3)) if idx < 2 else "v[%d:%d]" % (d, d + 3)
                    a.e("v_mfma_f32_16x16x32_bf16 v[%d:%d], v[%d:%d], v[%d:%d], %s", d, d + 3, reg, reg + 3, q, q + 3, c)
            else:
                s_, db = idx
                for z in range(2):
                    d = O + db * 16 + s_ * 8 + z * 4
                    a.e("v_mfma_f32_16x16x32_bf16 v[%d:%d], v[%d:%d], v[%d:%d], v[%d:%d]", d, d + 3, reg, reg + 3, P[b] + 4 * z, P[b] + 4 * z + 3, d, d + 3)
            return
        if kind == "QK":
            c = ("v[%d:%d]" % (NEGM, NEGM + 15) if c0 is None else c0) if idx == 0 else "v[%d:%d]" % (S[b], S[b] + 15)
            a.e("v_mfma_f32_32x32x16_bf16 v[%d:%d], v[%d:%d], v[%d:%d], %s", S[b], S[b] + 15, reg, reg + 3, Q + idx * 4, Q + idx * 4 + 3, c)
        else:
            s_, db = idx
            a.e("v_mfma_f32_32x32x16_bf16 v[%d:%d], v[%d:%d], v[%d:%d], v[%d:%d]", O + db * 16, O + db * 16 + 15, reg, reg + 3,
                P[b] + 4 * s_, P[b] + 4 * s_ + 3, O + db * 16, O + db * 16 + 15)
    def sm_stream(b):
        L = []
        for r in range(17):
            if r < 16: L.append((r, 0, "v_exp_f32 v%d, v%d" % (TT + r % 4, S[b] + r)))
            if "pk" in exp:
                pp = v_pk[b]
                if r == 2: L.append((r, 1, "v_mov_b32 v%d, v%d" % (pp, TT + 0)))
                elif r == 3: L.append((r, 1, "v_mov_b32 v%d, v%d" % (pp + 1, TT + 1)))
                elif r >= 4 and r % 2 == 0:
                    t0 = TT + (r - 2) % 4
                    L.append((r, 1, "v_pk_add_f32 v[%d:%d], v[%d:%d], v[%d:%d]" % (pp, pp + 1, pp, pp + 1, t0, t0 + 1)))
                    if r == 16: L.append((r, 1, "v_add_f32 v%d, v%d, v%d" % (v_ps[b], pp, pp + 1)))
            elif r == 2: L.append((r, 1, "v_add_f32 v%d, v%d, v%d" % (v_ps[b], TT + 0, TT + 1)))
            elif r >= 3: L.append((r, 1, "v_add_f32 v%d, v%d, v%d" % (v_ps[b], v_ps[b], TT + (r - 1) % 4)))
            if r >= 2 and r % 2 == 0:
                i = r // 2 - 1
                L.append((r, 2, "v_cvt_pk_bf16_f32 v%d, v%d, v%d" % (P[b] + i, TT + (2 * i) % 4, TT + (2 * i + 1) % 4)))
        return L
    def sm_plain(b, lo=0, hi=16):
        for r in range(lo, hi + 1):
            for (rr, pos, ins) in sm_stream(b):
                if rr == r: a.e(ins)
            if r == 15 or r == hi: a.e("s_nop 0")
    START = [12, 28]
    stubs = []
    def cmp_ps(b): a.e("v_cmp_lt_f32 vcc, s%d, v%d", s_thr, v_ps[b])
    def br_slow(b, tag, replay):
        lab = "%s_chk%d_%s" % (name, b, tag)
        a.e("s_cbranch_vccnz %s", lab)
        a.label(lab + "_ret")
        stubs.append((lab, "%s_slow%d_%d" % (name, b, replay), lab + "_ret"))
    def ladd(b): a.e("v_add_f32 v%d, v%d, v%d", v_l, v_l, v_ps[b])

    def emit_mask(b, tile_expr_off):
        a.e("s_add_u32 s%d, s%d, %d", s_kb, s_t, tile_expr_off)
        a.e("s_lshl_b32 s%d, s%d, 6", s_kb, s_kb)
        a.e("s_add_u32 s%d, s%d, %d", s_kb, s_kb, 32 * b)
        a.e("v_subrev_u32 v%d, s%d, v%d", v_D, s_kb, v_qrel)
        for r0 in range(0, 16, 4):
            for j in range(4):
                r = r0 + j; i = r >> 2
                cst = 16 * (i & 1) + 8 * (i >> 1) + (r & 3)
                a.e("v_cmp_le_i32 s[%d:%d], %d, v%d", s_m + 2 * j, s_m + 2 * j + 1, cst, v_D)
            a.e("s_nop 1")
            for j in range(4):
                r = r0 + j
                a.e("v_cndmask_b32 v%d, v%d, v%d, s[%d:%d]", S[b] + r, v_ninf, S[b] + r, s_m + 2 * j, s_m + 2 * j + 1)

    def max16(dst, regs):
        a.e("v_max3_f32 v%d, v%d, v%d, v%d", dst, regs[0], regs[1], regs[2])
        i = 3
        while i < len(regs):
            if i + 1 < len(regs):
                a.e("v_max3_f32 v%d, v%d, v%d, v%d", dst, dst, regs[i], regs[i + 1]); i += 2
            else:
                a.e("v_max_f32 v%d, v%d, v%d", dst, dst, regs[i]); i += 1
    def crosshalf_max(r, t):
        a.e("v_mov_b32 v%d, v%d", t, r)
        a.e("s_nop 1")
        a.e("v_permlane32_swap_b32 v%d, v%d", r, t)
        a.e("s_nop 1")
        a.e("v_max_f32 v%d, v%d, v%d", r, r, t)

    def kv_read(i, base):
        item = seq[i % 32]
        r = RING + (i % NR) * 4
        a.e("ds_read_b128 v[%d:%d], v%d offset:%d", r, r + 3, base, item[3])

    def preloop(tag):
        def k0read(i):
            a.e("ds_read_b128 v[%d:%d], v%d offset:%d", RING + i * 4, RING + i * 4 + 3, v_rdn, kfrag_off(i >> 3, i & 7))
        for i in range(12): k0read(i)
        oz = 0
        for ks in range(8):
            if ks % 4 == 0: a.e("s_waitcnt lgkmcnt(8)")
            mfma(("QK", 0, ks, 0), RING + ks * 4, c0="0")
            if ks < 4: k0read(12 + ks)
            for _ in range(5):
                if oz < 64: a.e("v_mov_b32 v%d, 0", O + oz); oz += 1
        while oz < 64: a.e("v_mov_b32 v%d, 0", O + oz); oz += 1
        l = a.newlabel("Lpm")
        a.e("s_cmp_lg_u32 s%d, 1", s_T)
        a.e("s_cbranch_scc1 %s", l)
        a.e("s_mov_b32 s%d, -1", s_t)
        emit_mask(0, 1)
        a.label(l)
        max16(v_mx, [S[0] + i for i in range(16)])
        crosshalf_max(v_mx, v_f)
        for i in range(16):
            a.e("v_sub_f32 v%d, 0, v%d", NEGM + i, v_mx)
        for i in range(16):
            a.e("v_sub_f32 v%d, v%d, v%d", S[0] + i, S[0] + i, v_mx)
        a.e("s_waitcnt lgkmcnt(0)")
        items = [ins for (r, pos, ins) in sm_stream(0)]
        per = (len(items) + 7) // 8
        for ks in range(8):
            mfma(("QK", 1, ks, 0), RING + (8 + ks) * 4)
            for ins in items[ks * per:(ks + 1) * per]: a.e(ins)
        for i in range(PD): kv_read(i, v_rd)
        l = a.newlabel("Lpm")
        a.e("s_cmp_lg_u32 s%d, 1", s_T)
        a.e("s_cbranch_scc1 %s", l)
        emit_mask(1, 1)
        a.label(l)
        sm_plain(1, 0, 3)
        a.e("s_waitcnt lgkmcnt(0)")

    def iteration(tag, masked):
        tg = tag + ("m" if masked else "")
        top = "%s_loop%s" % (name, tg)
        streams = {}
        for b in range(2):
            for (r, pos, ins) in sm_stream(b):
                streams.setdefault(((START[b] + r) % 32, pos), []).append(ins)
        misc = {k: [] for k in range(32)}
        misc[1].append("s_waitcnt lgkmcnt(4)"); misc[9].append("s_waitcnt lgkmcnt(4)")
        misc[17].append("s_waitcnt lgkmcnt(4)"); misc[25].append("s_waitcnt lgkmcnt(4)")
        misc[3].append(lambda: ladd(0)); misc[21].append(lambda: ladd(1))
        misc[5].append("s_add_u32 s%d, s%d, %d" % (s_cur, s_cur, SLOT))
        misc[7].append("s_and_b32 s%d, s%d, %d" % (s_cur, s_cur, 4 * SLOT - 1))
        if tag == "A": misc[13].append("s_waitcnt vmcnt(8)")
        if "nobar" not in exp: misc[13].append("s_barrier")
        misc[15].append(lambda: br_slow(1, tg, 3))
        misc[19].append("v_add_u32 v%d, s%d, v%d" % (v_rd, s_cur, v_l16))
        misc[31].append(lambda: br_slow(0, tg, 3))
        if masked: misc[23].append("s_add_u32 s%d, s%d, 1" % (s_t, s_t))
        if tag == "A":
            setup = dyn_stage_setup()
            ld = stage_loads("K", track=False) + stage_loads("V", track=False)
            adv = dyn_stage_advance()
            for l_ in setup[:5]: misc[14].append(l_)
            for l_ in setup[5:]: misc[16].append(l_)
            for i, em in enumerate(ld): misc[[18, 20, 22, 23, 24, 26, 27, 28][i]].append(em)
            for l_ in adv: misc[29].append(l_)
        a(".p2align 3")
        a.label(top)
        for k in range(32):
            mfma(seq[k], RING + (k % NR) * 4)
            if "nords" not in exp: kv_read(k + PD, v_rd)
            if masked and k == START[0]: emit_mask(0, 1)
            if masked and k == START[1]: emit_mask(1, 0)
            for pos in range(3):
                if pos == 1 and k == 29: cmp_ps(0)
                if pos == 1 and k == 13: cmp_ps(1)
                for ins in streams.get((k, pos), []):
                    if "nosm" in exp: continue
                    a.e(ins)
            for m_ in misc[k]:
                if callable(m_): m_()
                else: a.e(m_)
        a.e("s_sub_u32 s%d, s%d, 1", s_cnt, s_cnt)
        a.e("s_cbranch_scc0 %s", top)

    def mainloop(tag):
        lsk, lend = a.newlabel("Lsk"), a.newlabel("Lend")
        a.e("s_cmp_lt_u32 s%d, 2", s_T)
        a.e("s_cbranch_scc1 %s", lend)
        a.e("s_cmp_lt_u32 s%d, 3", s_T)
        a.e("s_cbranch_scc1 %s", lsk)
        a.e("s_sub_u32 s%d, s%d, 3", s_cnt, s_T)
        iteration(tag, False)
        a.label(lsk)
        a.e("s_sub_u32 s%d, s%d, 2", s_t, s_T)
        a.e("s_mov_b32 s%d, 0", s_cnt)
        iteration(tag, True)
        a.label(lend)

    def final(tag):
        a.e("s_waitcnt lgkmcnt(0)")
        if tag == "B" and "nobar" not in exp:
            lb = a.newlabel("Lnb")
            a.e("s_cmp_eq_u32 s%d, s%d", s_T, s_TB)
            a.e("s_cbranch_scc1 %s", lb)
            a.e("s_barrier")
            a.label(lb)
        pv0 = [("PV", 0, (s_, db), vfrag_off(0, s_, db)) for s_ in range(2) for db in range(4)]
        pv1 = [("PV", 1, (s_, db), vfrag_off(1, s_, db)) for db in range(4) for s_ in range(2)]
        pv = pv0 + pv1
        for i in range(12):
            r = RING + i * 4
            a.e("ds_read_b128 v[%d:%d], v%d offset:%d", r, r + 3, v_rd, pv[i][3])
        ladd(0)
        rest = [ins for (r, pos, ins) in sm_stream(1) if r >= 4]
        per = (len(rest) + 7) // 8
        for i in range(8):
            if i % 4 == 0: a.e("s_waitcnt lgkmcnt(8)")
            mfma(pv[i], RING + i * 4)
            if i < 4:
                r = RING + (12 + i) * 4
                a.e("ds_read_b128 v[%d:%d], v%d offset:%d", r, r + 3, v_rd, pv[12 + i][3])
            for ins in rest[i * per:(i + 1) * per]: a.e(ins)
        cmp_ps(1)
        a.e("s_nop 1")
        br_slow(1, "fin" + tag, 9)
        ladd(1)
        a.e("v_mov_b32 v%d, v%d", v_f, v_l)
        a.e("s_lshl_b32 s%d, s%d, 5", s_t0, s_qb)
        a.e("s_add_u32 s%d, s%d, s%d", s_t0, s_t0, s_h)
        a.e("v_permlane32_swap_b32 v%d, v%d", v_l, v_f)
        a.e("s_lshl_b32 s%d, s%d, 13", s_t0, s_t0)
        a.e("s_add_u32 s%d, s%d, 0x%x", s_t0, s_t0, WS_CTX)
        a.e("v_add_f32 v%d, v%d, v%d", v_l, v_l, v_f)
        a.e("v_rcp_f32 v%d, v%d", v_l, v_l)
        a.e("s_add_u32 s%d, s%d, 4096", s_t1, s_t0)
        def epi(db):
            L = []
            for hfz in range(2):
                base = O + db * 16 + hfz * 8
                for i in range(8): L.append("v_mul_f32 v%d, v%d, v%d" % (base + i, base + i, v_l))
                for i in range(4): L.append("v_cvt_pk_bf16_f32 v%d, v%d, v%d" % (base + i, base + 2 * i, base + 2 * i + 1))
                ds = 2 * db + hfz
                L.append("buffer_store_dwordx4 v[%d:%d], v%d, s[%d:%d], s%d offen offset:%d" % (base, base + 3, v_l16, S_WS, S_WS + 3,
                         s_t0 if ds < 4 else s_t1, (ds & 3) * 1024))
            return L
        a.e("s_waitcnt lgkmcnt(0)")
        pend = []
        for i in range(8):
            mfma(pv[8 + i], RING + (8 + i) * 4)
            if i >= 4 and i % 2 == 0:
                pend += epi((i - 4) // 2)
            n = 0
            while pend and n < 13: a.e(pend.pop(0)); n += 1
            if not pend and i < 4: a.e("s_nop 3")
        a.e("s_nop 7")
        for ins in pend: a.e(ins)
        a.e("s_nop 3")
        for db in (2, 3):
            for ins in epi(db): a.e(ins)

    LA = name + "_roleA"
    a.e("v_add_u32 v%d, %d, v%d", v_rdn, 4 * SLOT, v_l16)
    a.e("s_cmp_lg_u32 s%d, 0", s_isA)
    a.e("s_cbranch_scc1 %s", LA)
    if "prioB" in exp: a.e("s_setprio 1")
    preloop("B")
    if "fq" not in exp: st.mark()
    mainloop("B")
    if "fq" not in exp: st.mark()
    final("B")
    if diag:
        a.e("s_waitcnt vmcnt(0)")
        if "fq" not in exp: st.mark()
        st.dump(S_WS, s_w, v_t, s_t0)
    a.e("s_endpgm")
    a.label(LA)
    preloop("A")
    mainloop("A")
    final("A")
    NPF = 0
    if "pf" in exp:
        NPF = 8
        SP = SPF
        for (karg, size, per, n_i) in ((A_WO, 4 << 20, 16384, 4), (B_W1, 1792 * 1024, 8192, 2), (B_W2, 1792 * 1024, 8192, 2)):
            a.e("s_load_dwordx2 s[%d:%d], s[0:1], %d", SP, SP + 1, karg)
            a.e("s_mul_i32 s%d, s2, %d", s_t0, per)
            a.e("s_mul_i32 s%d, s%d, %d", s_t1, s_wl, per // 4)
            a.e("s_add_u32 s%d, s%d, s%d", s_t0, s_t0, s_t1)
            a.e("s_waitcnt lgkmcnt(0)")
            srd(a, SP, SP, size)
            for i in range(n_i):
                a.e("buffer_load_dwordx4 v[%d:%d], v%d, s[%d:%d], s%d offen offset:%d", 144 + 4 * i, 147 + 4 * i, v_l16, SP, SP + 3, s_t0, i * 1024)
    a.e("s_mov_b32 s%d, 0", s_n)
    ll = name + "_ldloop"
    a.label(ll)
    a.e("s_cmp_lt_u32 s%d, 2", s_n)
    a.e("s_cbranch_scc1 %s_w16", ll)
    a.e("s_waitcnt vmcnt(8)")
    a.e("s_branch %s_go", ll)
    a.label(ll + "_w16")
    a.e("s_waitcnt vmcnt(%d)", 16 + NPF)
    a.label(ll + "_go")
    if "nobar" not in exp: a.e("s_barrier")
    for l in dyn_stage_setup(): a.e(l)
    for em in stage_loads("K", track=False) + stage_loads("V", track=False): em()
    for l in dyn_stage_advance(): a.e(l)
    a.e("s_add_u32 s%d, s%d, 1", s_n, s_n)
    a.e("s_add_u32 s%d, s%d, s%d", s_t0, s_n, s_T)
    a.e("s_cmp_lt_u32 s%d, s%d", s_t0, s_TB)
    a.e("s_cbranch_scc1 %s", ll)
    if "pf" in exp:
        SP = SPF
        a.e("s_load_dwordx2 s[%d:%d], s[0:1], %d", SP, SP + 1, A_WO)
        a.e("s_bfe_u32 s%d, s2, 0x20001", s_t0)
        a.e("s_lshl_b32 s%d, s%d, 20", s_t0, s_t0)
        a.e("s_lshr_b32 s%d, s2, 3", s_t1)
        a.e("s_lshl_b32 s%d, s%d, 15", s_t1, s_t1)
        a.e("s_add_u32 s%d, s%d, s%d", s_t0, s_t0, s_t1)
        a.e("s_lshl_b32 s%d, s%d, 13", s_t1, s_wl)
        a.e("s_add_u32 s%d, s%d, s%d", s_t0, s_t0, s_t1)
        a.e("s_waitcnt lgkmcnt(0)")
        srd(a, SP, SP, 4 << 20)
        for i in range(8):
            if i == 4: a.e("s_add_u32 s%d, s%d, 4096", s_t0, s_t0)
            a.e("buffer_load_dwordx4 v[%d:%d], v%d, s[%d:%d], s%d offen offset:%d", 144 + 4 * (i & 3), 147 + 4 * (i & 3), v_l16, SP, SP + 3, s_t0, (i & 3) * 1024)
    a.label(name + "_end")
    a.e("s_endpgm")

    done = set()
    for (lab, target, ret) in stubs:
        a.label(lab)
        a.e("s_call_b64 s[%d:%d], %s", s_ret, s_ret + 1, target)
        a.e("s_branch %s", ret)
    for (lab, target, ret) in stubs:
        if target in done: continue
        done.add(target)
        b = int(target.split("_slow")[1][0]); replay = int(target.split("_slow")[1][2:])
        a.label(target)
        a.e("s_nop 15")
        max16(v_mx, [S[b] + i for i in range(16)])
        crosshalf_max(v_mx, v_f)
        a.e("v_ceil_f32 v%d, v%d", v_mx, v_mx)
        a.e("v_max_f32 v%d, 0, v%d", v_mx, v_mx)
        a.e("v_sub_f32 v%d, 0, v%d", v_f, v_mx)
        a.e("v_exp_f32 v%d, v%d", v_f, v_f)
        a.e("s_nop 0")
        for i in range(64): a.e("v_mul_f32 v%d, v%d, v%d", O + i, O + i, v_f)
        a.e("v_mul_f32 v%d, v%d, v%d", v_l, v_l, v_f)
        if False:
            o = 1 - b
            for i in range(8):
                a.e("v_lshlrev_b32 v%d, 16, v%d", U, P[o] + i)
                a.e("v_and_b32 v%d, 0xffff0000, v%d", U + 1, P[o] + i)
                a.e("v_mul_f32 v%d, v%d, v%d", U, U, v_f)
                a.e("v_mul_f32 v%d, v%d, v%d", U + 1, U + 1, v_f)
                a.e("v_cvt_pk_bf16_f32 v%d, v%d, v%d", P[o] + i, U, U + 1)
        for bb in range(2):
            for i in range(16): a.e("v_sub_f32 v%d, v%d, v%d", S[bb] + i, S[bb] + i, v_mx)
        for i in range(16): a.e("v_sub_f32 v%d, v%d, v%d", NEGM + i, NEGM + i, v_mx)
        sm_plain(b)
        if replay != 9: sm_plain(1 - b, 0, replay)
        a.e("s_nop 1")
        a.e("s_setpc_b64 s[%d:%d]", s_ret, s_ret + 1)
```

```python
import sys
from gen_common import *
from gen_k1 import gen_k1
from gen_k2 import gen_k2, gen_k2_iter
from gen_k35 import gen_k35
from gen_rr import gen_rr, gen_red

def header(a, launches):
    hdr = open("sequential_preLN__compressed_kv_cla__dense_activation_squared_relu__prompt.s.ref").read().split("\n")
    for l in hdr:
        if l.startswith("; Override launch"): break
        a(l)
    a("; Pipeline: kvattn_kernel (LN1, K/V up-projection, Q projection, causal flash attention; hand-offs through d_debug counter + flags in d_ws)")
    for (k, g, b, lds) in launches:
        a("; @launch kernel=%s grid=(%d,1,1) block=(%d,1,1) lds=%d" % (k, g, b, lds))
    a('.amdgcn_target "amdgcn-amd-amdhsa--gfx950"')
    a(".text")

def main(out, which, diag=False, exp=''):
    a = Asm()
    L = []
    if "1" in which: L.append(("kv_kernel", 256, 512, 131072 + 8192 + 1024))
    if "2" in which: L.append(("attn_kernel", 256, 512, 147456))
    if "f" in which: L.insert(0, ("kvattn_kernel", 256, 512, 147456))
    if "3" in which: L.append(("proj_kernel", 256, 512, 131072))
    if "r" in which: L.append(("red_kernel", 256, 512, 1024))
    if "4" in which: L.append(("ffn1_kernel", 224, 512, 131072 + 256))
    if "R" in which: L.append(("redffn1_kernel", 256, 512, 131072 + 512))
    if "5" in which: L.append(("ffn2_kernel", 256, 512, 131072))
    header(a, L)
    descs = []
    def EX(k):
        out = []
        for f in exp.split(","):
            if ":" in f:
                kk, ff = f.split(":")
                if k in kk: out.append(ff)
            else: out.append(f)
        return ",".join(out)
    import gen_common
    pol = "sc1" if "sc1" in exp else ("nt" if "stnt" in exp else ("sc0 sc1" if "sc01" in exp else ""))
    if "sc01" in exp: pol = "sc0 sc1"
    def setpol(k):
        e = EX(k)
        gen_common.STORE_POLICY["v"] = "sc1" if "sc1" in e else ("nt" if "stnt" in e else "")
    if "1" in which:
        setpol('1'); gen_k1(a, diag=diag, exp=EX('1')); descs.append(("kv_kernel", 256, 102))
    if "2" in which:
        setpol('2'); gen_k2(a, diag=diag, exp=EX('2'), thr_log2=(2 if "thr" in exp else 40)); descs.append(("attn_kernel", 256, 102))
    if "f" in which:
        setpol("2")
        e2 = EX("2")
        gen_k1(a, "kvattn_kernel", diag=diag, exp=EX("1"),
               fused=lambda vm, lg, st: gen_k2_iter(a, "kvattn_kernel", diag, e2, 2 if "thr" in exp else 40, dict(vm=vm, lg=lg, st=st)))
        descs.append(("kvattn_kernel", 256, 102))
    if "3" in which:
        setpol("3"); gen_rr(a, "proj", "proj_kernel", 2, diag=diag, exp=EX("3")); descs.append(("proj_kernel", 256, 102))
    if "r" in which:
        setpol("r"); gen_red(a, "red_kernel", 5, diag=diag, exp=EX("r")); descs.append(("red_kernel", 96, 102))
    if "4" in which:
        setpol("4"); gen_rr(a, "ffn1", "ffn1_kernel", 3, diag=diag, exp=EX("4")); descs.append(("ffn1_kernel", 256, 102))
    if "R" in which:
        setpol("4"); gen_rr(a, "redffn1", "redffn1_kernel", 3, diag=diag, exp=EX("4")); descs.append(("redffn1_kernel", 256, 102))
    if "5" in which:
        setpol("5"); gen_k35(a, "ffn2", "ffn2_kernel", 4, diag=diag, exp=EX("5")); descs.append(("ffn2_kernel", 256, 102))
    a('.section .rodata,"a"')
    for (n, v, s) in descs:
        a(kernel_desc(n, v, s))
    open(out, "w").write(a.text())

if __name__ == "__main__":
    main(sys.argv[1], sys.argv[2], len(sys.argv) > 3 and sys.argv[3] == 'diag', sys.argv[4] if len(sys.argv) > 4 else '')
```

```python
from gen_common import *

def gen_rr(a, kind, name, kidx, diag=False, exp=""):
    kernel_begin(a, name)
    st = Stamps(a, diag, kidx, base=56, maxn=10)
    vm = Cnt(a, "vmcnt", 63); lg = Cnt(a, "lgkmcnt", 15)
    proj = kind == "proj"
    fr = kind == "redffn1"
    NPH = 8 if proj else 4
    NWG = 256 if (proj or fr) else 224
    ROW = 1024 if proj else 3584
    S_W, S_WS, S_B = 4, 8, 12
    s_w, s_rt, s_ct, s_t0, s_t1, s_t2, s_ab, s_wb, s_m0, s_qb, s_rot, s_ksq, s_ph, s_isL = 16, 17, 18, 19, 20, 21, 22, 23, 24, 25, 26, 27, 28, 29
    v_lane, v_l16, v_wd, v_tr, v_tr2, v_t, v_hf = 0, 1, 2, 3, 4, 5, 8
    AF = 128
    ACC = 64
    WFR, NRW = 16, 7
    LDS_B = 131072

    a.e("s_cmp_ge_u32 s2, %d", NWG)
    a.e("s_cbranch_scc1 %s_end", name)
    st.mark()
    if proj: a.e("s_load_dwordx2 s[4:5], s[0:1], %d", A_WO)
    else: a.e("s_load_dwordx4 s[4:7], s[0:1], %d", B_W1)
    a.e("s_load_dwordx2 s[8:9], s[0:1], %d", WS)
    S_X = 40
    if fr: a.e("s_load_dwordx2 s[%d:%d], s[0:1], %d", S_X, S_X + 1, A_X)
    a.e("v_lshrrev_b32 v%d, 6, v0", v_t)
    a.e("v_and_b32 v%d, 63, v0", v_lane)
    a.e("v_readfirstlane_b32 s%d, v%d", s_w, v_t)
    a.e("s_nop 3")
    a.e("s_lshr_b32 s%d, s%d, 2", s_isL, s_w)
    a.e("s_and_b32 s%d, s%d, 3", s_w, s_w)
    if proj:
        a.e("s_bfe_u32 s%d, s2, 0x20001", s_ksq)
        a.e("s_and_b32 s%d, s2, 1", s_rt)
        a.e("s_lshl_b32 s%d, s%d, 3", s_rt, s_rt)
        a.e("s_lshr_b32 s%d, s2, 5", s_t0)
        a.e("s_add_u32 s%d, s%d, s%d", s_rt, s_rt, s_t0)
        a.e("s_bfe_u32 s%d, s2, 0x20003", s_ct)
        a.e("s_lshl_b32 s%d, s%d, 1", s_rot, s_ct)
        a.e("s_add_u32 s%d, s%d, s%d", s_rot, s_rot, s_t0)
        a.e("s_and_b32 s%d, s%d, 7", s_rot, s_rot)
    elif "map47" in exp:
        a.e("s_bfe_u32 s%d, s2, 0x20001", s_rt)
        a.e("s_lshl_b32 s%d, s%d, 2", s_rt, s_rt)
        a.e("s_bfe_u32 s%d, s2, 0x20003", s_t0)
        a.e("s_add_u32 s%d, s%d, s%d", s_rt, s_rt, s_t0)
        a.e("s_and_b32 s%d, s2, 1", s_ct)
        a.e("s_mul_i32 s%d, s%d, 7", s_ct, s_ct)
        a.e("s_lshr_b32 s%d, s2, 5", s_t0)
        a.e("s_add_u32 s%d, s%d, s%d", s_ct, s_ct, s_t0)
        a.e("s_mov_b32 s%d, 0", s_rot)
    else:
        a.e("s_and_b32 s%d, s2, 15", s_rt)
        a.e("s_lshr_b32 s%d, s2, 4", s_ct)
        a.e("s_lshr_b32 s%d, s%d, 3", s_t0, s_rt)
        a.e("s_lshl_b32 s%d, s%d, 1", s_t0, s_t0)
        a.e("s_add_u32 s%d, s%d, s%d", s_rot, s_ct, s_t0)
        a.e("s_and_b32 s%d, s%d, 3", s_rot, s_rot)
    if "norot" in exp: a.e("s_mov_b32 s%d, 0", s_rot)
    a.e("v_lshlrev_b32 v%d, 4, v%d", v_l16, v_lane)
    a.e("v_lshrrev_b32 v%d, 5, v%d", v_hf, v_lane)
    a.e("v_bfe_u32 v%d, v%d, 2, 2", v_t, v_lane)
    a.e("s_movk_i32 s%d, %d", s_t0, ROW)
    a.e("v_mul_lo_u32 v%d, v%d, s%d", v_wd, v_t, s_t0)
    a.e("v_lshrrev_b32 v%d, 4, v%d", v_t, v_lane)
    a.e("v_lshl_add_u32 v%d, v%d, 6, v%d", v_wd, v_t, v_wd)
    a.e("v_and_b32 v%d, 3, v%d", v_t, v_lane)
    a.e("v_lshl_add_u32 v%d, v%d, 4, v%d", v_wd, v_t, v_wd)
    a.e("v_lshlrev_b32 v%d, 10, v%d", v_tr, v_hf)
    a.e("v_bfe_u32 v%d, v%d, 2, 2", v_t, v_lane)
    a.e("v_lshl_add_u32 v%d, v%d, 6, v%d", v_tr, v_t, v_tr)
    a.e("v_bfe_u32 v%d, v%d, 4, 1", v_t, v_lane)
    a.e("v_lshl_add_u32 v%d, v%d, 5, v%d", v_tr, v_t, v_tr)
    a.e("v_and_b32 v%d, 3, v%d", v_t, v_lane)
    a.e("v_lshl_add_u32 v%d, v%d, 3, v%d", v_tr, v_t, v_tr)
    a.e("v_add_u32 v%d, 0x10000, v%d", v_tr2, v_tr)
    a.e("s_waitcnt lgkmcnt(0)")
    if not proj:
        a.e("s_mov_b32 s12, s6"); a.e("s_mov_b32 s13, s7")
        srd(a, S_B, S_B, 1792 * 2)
    srd(a, S_W, S_W, (4096 if proj else 512) * ROW); srd(a, S_WS, S_WS, WS_BYTES)
    if fr: srd(a, S_X, S_X, 2 << 20)
    SC1 = " sc1" if fr else ""
    def flag_store(base, val, v1):
        a.e("s_lshl_b32 s%d, s2, 7", s_t2)
        a.e("s_add_u32 s%d, s%d, 0x%x", s_t2, s_t2, base)
        a.e("v_mov_b32 v%d, %d", v1, val)
        a.e("s_mov_b64 exec, 1")
        a.e("buffer_store_dword v%d, off, s[%d:%d], s%d sc1", v1, S_WS, S_WS + 3, s_t2)
        a.e("s_mov_b64 exec, -1")
    if proj and "clr2" in exp:
        l_ = a.newlabel("Lclr")
        a.e("s_cmp_lg_u32 s%d, 0", s_w); a.e("s_cbranch_scc1 %s", l_)
        a.e("s_cmp_lg_u32 s%d, 1", s_isL); a.e("s_cbranch_scc1 %s", l_)
        flag_store(WS_FLAG2, 0, v_t)
        a.label(l_)
    a.e("s_lshl_b32 s%d, s%d, 2", s_qb, s_rt)
    a.e("s_add_u32 s%d, s%d, s%d", s_qb, s_qb, s_w)
    if proj:
        a.e("s_lshl_b32 s%d, s%d, 18", s_ab, s_qb)
        a.e("s_lshl_b32 s%d, s%d, 16", s_t0, s_ksq)
        a.e("s_add_u32 s%d, s%d, s%d", s_ab, s_ab, s_t0)
        a.e("s_add_u32 s%d, s%d, 0x%x", s_ab, s_ab, WS_CTX)
        a.e("s_lshl_b32 s%d, s%d, 20", s_wb, s_ksq)
    else:
        a.e("s_lshl_b32 s%d, s%d, 15", s_ab, s_qb)
        a.e("s_add_u32 s%d, s%d, 0x%x", s_ab, s_ab, WS_HN)
        a.e("s_mov_b32 s%d, 0", s_wb)
    a.e("s_mul_i32 s%d, s%d, %d", s_t0, s_w, 4 * ROW)
    a.e("s_add_u32 s%d, s%d, s%d", s_wb, s_wb, s_t0)
    a.e("s_lshl_b32 s%d, s%d, 8", s_t0, s_ct)
    a.e("s_add_u32 s%d, s%d, s%d", s_wb, s_wb, s_t0)
    a.e("s_lshl_b32 s%d, s%d, 10", s_m0, s_w)

    def phase_head(p, dst_w, dst_a):
        a.e("s_add_u32 s%d, s%d, %d", s_ph, s_rot, p)
        a.e("s_and_b32 s%d, s%d, %d", s_ph, s_ph, NPH - 1)
        if dst_w is not None:
            a.e("s_mul_i32 s%d, s%d, %d", dst_w, s_ph, 128 * ROW)
            a.e("s_add_u32 s%d, s%d, s%d", dst_w, dst_w, s_wb)
        if dst_a is not None:
            a.e("s_lshl_b32 s%d, s%d, 13", dst_a, s_ph)
            a.e("s_add_u32 s%d, s%d, s%d", dst_a, dst_a, s_ab)
    def w_loads(p, cnt):
        phase_head(p, s_t1, None)
        if "whit" in exp: a.e("s_mov_b32 s%d, 0", s_t1)
        for i in range(8):
            a.e("s_add_u32 m0, s%d, %d", s_m0, (p & 3) * 32768 + i * 4096)
            a.e("s_add_u32 s%d, s%d, %d", s_t0, s_t1, i * 16 * ROW)
            a.e("buffer_load_dwordx4 v%d, s[%d:%d], s%d offen lds", v_wd, S_W, S_W + 3, s_t0)
            cnt.issue(("w", p))
    def a_loads(p):
        L = []
        for i in range(8):
            def em(i=i):
                if i == 0:
                    phase_head(p, None, s_t2)
                    if "ahit" in exp: a.e("s_mov_b32 s%d, 0x%x", s_t2, WS_CTX)
                r = AF + ((p & 3) * 8 + i) * 4
                if i == 4: a.e("s_add_u32 s%d, s%d, 4096", s_t2, s_t2)
                a.e("buffer_load_dwordx4 v[%d:%d], v%d, s[%d:%d], s%d offen offset:%d%s", r, r + 3, v_l16, S_WS, S_WS + 3, s_t2, (i & 3) * 1024, SC1)
                vm.issue(("a", p))
            L.append(em)
        return L
    def red_part():
        PR, XR, A, F, H = 64, 96, 104, 120, 128
        v_r, v_h2, v_g, v_u, v_x = 9, 10, 11, 12, 13
        SCR = LDS_B + 256
        s_rb, s_r0 = 44, 45
        a.e("s_lshr_b32 s%d, s2, 2", s_rb)
        a.e("s_and_b32 s%d, s2, 3", s_r0)
        a.e("s_lshl_b32 s%d, s%d, 3", s_r0, s_r0)
        a.e("v_and_b32 v%d, 7, v%d", v_r, v_lane)
        a.e("v_bfe_u32 v%d, v%d, 3, 1", v_h2, v_lane)
        a.e("v_lshrrev_b32 v%d, 4, v%d", v_g, v_lane)
        a.e("s_lshl_b32 s%d, s%d, 3", s_t0, s_w)
        a.e("v_add_u32 v%d, s%d, v%d", v_g, s_t0, v_g)
        a.e("v_add_u32 v%d, s%d, v%d", v_t, s_r0, v_r)
        a.e("v_lshlrev_b32 v%d, 4, v%d", v_u, v_t)
        a.e("v_lshl_add_u32 v%d, v%d, 9, v%d", v_u, v_h2, v_u)
        a.e("v_lshl_add_u32 v%d, v%d, 10, v%d", v_u, v_g, v_u)
        a.e("v_lshlrev_b32 v%d, 10, v%d", v_x, v_t)
        a.e("v_lshl_add_u32 v%d, v%d, 5, v%d", v_x, v_g, v_x)
        a.e("v_lshl_add_u32 v%d, v%d, 3, v%d", v_x, v_h2, v_x)
        a.e("s_lshl_b32 s%d, s%d, 15", s_rb, s_rb)
        a.e("s_add_u32 s%d, s%d, 0x%x", s_t1, s_rb, WS_P)
        for p in range(4):
            for u in range(2):
                r = PR + (p * 2 + u) * 4
                a.e("s_add_u32 s%d, s%d, %d", s_t0, s_t1, u * 4096)
                a.e("buffer_load_dwordx4 v[%d:%d], v%d, s[%d:%d], s%d offen", r, r + 3, v_u, S_WS, S_WS + 3, s_t0)
            if p < 3: a.e("s_add_u32 s%d, s%d, 0x%x", s_t1, s_t1, 64 * 32768)
        for u in range(2):
            a.e("buffer_load_dwordx2 v[%d:%d], v%d, s[%d:%d], s%d offen offset:%d", XR + 4 * u, XR + 4 * u + 1, v_x, S_X, S_X + 3, s_rb, u * 128)
            a.e("buffer_load_dwordx2 v[%d:%d], v%d, s[%d:%d], s%d offen offset:%d", XR + 4 * u + 2, XR + 4 * u + 3, v_x, S_X, S_X + 3, s_rb, u * 128 + 16)
        a.e("s_barrier")
        st.mark()
        def unpack(src, dst):
            for i in range(4):
                a.e("v_lshlrev_b32 v%d, 16, v%d", dst + 2 * i, src + i)
                a.e("v_and_b32 v%d, 0xffff0000, v%d", dst + 2 * i + 1, src + i)
        a.e("s_waitcnt vmcnt(10)")
        unpack(PR, A); unpack(PR + 4, A + 8)
        for p in range(1, 4):
            a.e("s_waitcnt vmcnt(%d)", 10 - 2 * p)
            for u in range(2):
                unpack(PR + (p * 2 + u) * 4, F)
                for e in range(8): a.e("v_add_f32 v%d, v%d, v%d", A + u * 8 + e, A + u * 8 + e, F + e)
        a.e("s_waitcnt vmcnt(0)")
        for u in range(2):
            unpack(XR + 4 * u, F)
            for e in range(8): a.e("v_add_f32 v%d, v%d, v%d", A + u * 8 + e, A + u * 8 + e, F + e)
        for i in range(8): a.e("v_cvt_pk_bf16_f32 v%d, v%d, v%d", H + i, A + 2 * i, A + 2 * i + 1)
        a.e("s_add_u32 s%d, s%d, 0x%x", s_t1, s_rb, WS_H)
        a.e("s_add_u32 s%d, s%d, 4096", s_t0, s_t1)
        a.e("buffer_store_dwordx4 v[%d:%d], v%d, s[%d:%d], s%d offen", H, H + 3, v_u, S_WS, S_WS + 3, s_t1)
        a.e("buffer_store_dwordx4 v[%d:%d], v%d, s[%d:%d], s%d offen", H + 4, H + 7, v_u, S_WS, S_WS + 3, s_t0)
        unpack(H, A); unpack(H + 4, A + 8)
        def rowreduce(r, slot):
            a.e("s_nop 1")
            a.e("v_add_f32_dpp v%d, v%d, v%d row_ror:8 row_mask:0xf bank_mask:0xf", r, r, r)
            a.e("v_mov_b32 v%d, v%d", F, r)
            a.e("s_nop 1")
            a.e("v_permlane16_swap_b32 v%d, v%d", r, F)
            a.e("s_nop 1")
            a.e("v_add_f32 v%d, v%d, v%d", r, r, F)
            a.e("v_mov_b32 v%d, v%d", F, r)
            a.e("s_nop 1")
            a.e("v_permlane32_swap_b32 v%d, v%d", r, F)
            a.e("s_nop 1")
            a.e("v_add_f32 v%d, v%d, v%d", r, r, F)
            a.e("v_lshlrev_b32 v%d, 4, v%d", F, v_r)
            a.e("v_add_u32 v%d, %d, v%d", F, SCR + slot * 128, F)
            a.e("s_lshl_b32 s%d, s%d, 2", s_t1, s_w)
            a.e("v_add_u32 v%d, s%d, v%d", F + 1, s_t1, F)
            a.e("ds_write_b32 v%d, v%d", F + 1, r)
            a.e("s_waitcnt lgkmcnt(0)")
            a.e("s_barrier")
            a.e("ds_read_b128 v[%d:%d], v%d", F + 4, F + 7, F)
            a.e("s_waitcnt lgkmcnt(0)")
            a.e("v_add_f32 v%d, v%d, v%d", r, F + 4, F + 5)
            a.e("v_add_f32 v%d, v%d, v%d", r, r, F + 6)
            a.e("v_add_f32 v%d, v%d, v%d", r, r, F + 7)
        M, V2 = 136, 137
        a.e("v_add_f32 v%d, v%d, v%d", M, A, A + 1)
        for e in range(2, 16): a.e("v_add_f32 v%d, v%d, v%d", M, M, A + e)
        rowreduce(M, 0)
        a.e("v_mul_f32 v%d, 0x3b000000, v%d", M, M)
        for e in range(16): a.e("v_sub_f32 v%d, v%d, v%d", A + e, A + e, M)
        a.e("v_mul_f32 v%d, v%d, v%d", V2, A, A)
        for e in range(1, 16): a.e("v_fmac_f32 v%d, v%d, v%d", V2, A + e, A + e)
        rowreduce(V2, 1)
        a.e("v_mov_b32 v%d, 0x3727c5ac", M)
        a.e("v_fmac_f32 v%d, 0x3b000000, v%d", M, V2)
        a.e("v_rsq_f32 v%d, v%d", M, M)
        a.e("s_nop 0")
        for e in range(16): a.e("v_mul_f32 v%d, v%d, v%d", A + e, A + e, M)
        HN = 140
        for i in range(8): a.e("v_cvt_pk_bf16_f32 v%d, v%d, v%d", HN + i, A + 2 * i, A + 2 * i + 1)
        a.e("s_add_u32 s%d, s%d, 0x%x", s_t1, s_rb, WS_HN)
        a.e("s_add_u32 s%d, s%d, 4096", s_t0, s_t1)
        a.e("buffer_store_dwordx4 v[%d:%d], v%d, s[%d:%d], s%d offen", HN, HN + 3, v_u, S_WS, S_WS + 3, s_t1)
        a.e("buffer_store_dwordx4 v[%d:%d], v%d, s[%d:%d], s%d offen", HN + 4, HN + 7, v_u, S_WS, S_WS + 3, s_t0)
        a.e("s_waitcnt vmcnt(0)")
        a.e("s_barrier")
        l_ = a.newlabel("Lfl")
        a.e("s_cmp_lg_u32 s%d, 0", s_w); a.e("s_cbranch_scc1 %s", l_)
        flag_store(WS_FLAG2, 1, F)
        a.label(l_)
        a.e("s_cmp_ge_u32 s2, 224")
        a.e("s_cbranch_scc1 %s_end", name)
        st.mark()
        ok, sp = a.newlabel("Lfok"), a.newlabel("Lfsp")
        a.e("v_and_b32 v%d, 15, v%d", F, v_lane)
        a.e("v_lshlrev_b32 v%d, 7, v%d", F, F)
        a.e("s_lshl_b32 s%d, s%d, 11", s_t2, s_rt)
        a.e("s_add_u32 s%d, s%d, 0x%x", s_t2, s_t2, WS_FLAG2)
        a.e("s_mov_b32 s%d, 0x40000", s_r0)
        a.label(sp)
        a.e("buffer_load_dword v%d, v%d, s[%d:%d], s%d offen sc1", F + 1, F, S_WS, S_WS + 3, s_t2)
        a.e("s_waitcnt vmcnt(0)")
        a.e("v_cmp_eq_u32 vcc, 1, v%d", F + 1)
        a.e("s_nop 3")
        a.e("s_cmp_eq_u64 vcc, -1")
        a.e("s_cbranch_scc1 %s", ok)
        a.e("s_sleep 2")
        a.e("s_sub_u32 s%d, s%d, 1", s_r0, s_r0)
        a.e("s_cbranch_scc0 %s", sp)
        a.label(ok)
        if "fine" in exp: st.mark()
    LC = name + "_compute"
    a.e("s_cmp_eq_u32 s%d, 0", s_isL)
    a.e("s_cbranch_scc1 %s", LC)
    vl = Cnt(a, "vmcnt", 63)
    if fr:
        lt = a.newlabel("Ltile")
        a.e("s_cmp_lt_u32 s2, 224"); a.e("s_cbranch_scc1 %s", lt)
        for _ in range(4): a.e("s_barrier")
        a.e("s_endpgm")
        a.label(lt)
        a.e("s_barrier")
    w_loads(0, vl)
    if not proj:
        a.e("v_lshlrev_b32 v%d, 2, v%d", v_t, v_lane)
        a.e("s_lshl_b32 s%d, s%d, 8", s_t0, s_ct)
        a.e("s_mov_b32 m0, %d", LDS_B)
        a.e("s_nop 0")
        a.e("buffer_load_dword v%d, s[%d:%d], s%d offen lds", v_t, S_B, S_B + 3, s_t0)
        vl.issue("b")
    if fr:
        w_loads(1, vl)
        a.e("s_barrier"); a.e("s_barrier")
        if "wmid" in exp:
            w_loads(2, vl)
            a.e("s_barrier")
            w_loads(3, vl)
        elif "wlate" in exp:
            a.e("s_barrier")
            w_loads(2, vl); w_loads(3, vl)
        else:
            w_loads(2, vl); w_loads(3, vl)
            a.e("s_barrier")
    nxt = NPH if fr else 1
    for p in range(NPH):
        if fr and "strict" in exp: vl.wait([("w", 0), "b"] if p == 0 else [("w", p)])
        else: vl.wait([("w", 0), "b"] if p == 0 else ([("w", 1)] if p == 1 else [("w", p), ("w", min(p + 1, NPH - 1))]))
        a.e("s_barrier")
        upto = 2 if p == 0 else min(p + 3, NPH - 1)
        while nxt <= min(upto, NPH - 1):
            w_loads(nxt, vl); nxt += 1
        if "pf" in exp and proj and p == NPH - 4:
            a.e("s_lshr_b32 s34, s2, 3")
            for ins in l2_prefetch(a, (B_W1, 1792 * 1024), 1792 * 1024, 32, 4, 34, s_w, 36, 35, s_t1, v_l16, 64):
                a.e(ins)
                if ins.startswith("buffer"): vl.issue("pf")
        if "pf" in exp and not proj and p == 1:
            a.e("s_lshr_b32 s34, s2, 3")
            for ins in l2_prefetch(a, (B_W2, 1792 * 1024), 1792 * 1024, 28, 4, 34, s_w, 36, 35, s_t1, v_l16, 64):
                a.e(ins)
                if ins.startswith("buffer"): vl.issue("pf")
    a.e("s_endpgm")
    a.label(LC)
    if fr: red_part()
    for em in a_loads(0): em()
    if not fr: st.mark()
    frs = [(p, j, cb) for p in range(NPH) for j in range(8) for cb in range(4)]
    def w_read(gi):
        p, j, cb = frs[gi]
        r = WFR + (gi % NRW) * 4
        for t in range(2):
            off = (p & 3) * 32768 + (4 * j + 2 * t) * 1024 + cb * 256
            a.e("ds_read_b64_tr_b16 v[%d:%d], v%d offset:%d", r + 2 * t, r + 2 * t + 1, v_tr if off < 65536 else v_tr2, off & 0xffff)
            lg.issue(("w", gi))
    PRE = NRW - 1
    pend = []
    nread = 0
    for gi, (p, j, cb) in enumerate(frs):
        k = gi % 32
        if k == 0:
            a.e("s_barrier")
            if (p == 0 and not fr) or (fr and "fine" in exp and p in (0, 1, 2)): st.mark()
            pend = (a_loads(1) if p == 0 else []) + (a_loads(p + 2) if p + 2 < NPH else [])
        lim = 32 * (p + 1) if (p <= 1 or (fr and "strict" in exp)) else len(frs)
        while nread < min(gi + PRE + 1, lim, len(frs)):
            w_read(nread); nread += 1
        if cb == 0: vm.wait(("a", p)) if j == 0 else None
        if fr and "fine" in exp and gi == 0: st.mark()
        if gi % 2 == 0: lg.wait([("w", gi), ("w", gi + 1)])
        wf = WFR + (gi % NRW) * 4
        d = ACC + cb * 16
        af = AF + ((p & 3) * 8 + j) * 4
        c = "0" if gi < 4 else "v[%d:%d]" % (d, d + 15)
        a.e("v_mfma_f32_32x32x16_bf16 v[%d:%d], v[%d:%d], v[%d:%d], %s", d, d + 15, wf, wf + 3, af, af + 3, c)
        if pend and (k % 3 == 2 or (p == 0 and k % 3 != 0) or (p == 0 and k < 12)): pend.pop(0)()
    st.mark()
    a.e("s_nop 7")
    if proj:
        a.e("s_lshl_b32 s%d, s%d, 6", s_t0, s_ksq)
        a.e("s_add_u32 s%d, s%d, s%d", s_t0, s_t0, s_qb)
        a.e("s_lshl_b32 s%d, s%d, 15", s_t0, s_t0)
        a.e("s_lshl_b32 s%d, s%d, 13", s_t1, s_ct)
        a.e("s_add_u32 s%d, s%d, s%d", s_t0, s_t0, s_t1)
        a.e("s_add_u32 s%d, s%d, 0x%x", s_t0, s_t0, WS_P)
    else:
        a.e("s_mul_i32 s%d, s%d, %d", s_t0, s_qb, 112 * 1024)
        a.e("s_lshl_b32 s%d, s%d, 13", s_t1, s_ct)
        a.e("s_add_u32 s%d, s%d, s%d", s_t0, s_t0, s_t1)
        a.e("s_add_u32 s%d, s%d, 0x%x", s_t0, s_t0, WS_F)
        a.e("v_lshlrev_b32 v%d, 3, v%d", v_t, v_hf)
        a.e("v_add_u32 v%d, %d, v%d", v_t, LDS_B, v_t)
        BR = 128
        for cb in range(4):
            for i in range(4):
                r = BR + (cb * 4 + i) * 2
                a.e("ds_read_b64 v[%d:%d], v%d offset:%d", r, r + 1, v_t, cb * 64 + i * 16)
            if cb == 1: a.e("s_waitcnt lgkmcnt(0)")
        a.e("s_waitcnt lgkmcnt(0)")
    a.e("s_add_u32 s%d, s%d, 4096", s_t1, s_t0)
    a.e("s_nop 3")
    for cb in range(4):
        for hz in range(2):
            base = ACC + cb * 16 + hz * 8
            if not proj:
                for ii in range(2):
                    r = 128 + (cb * 4 + hz * 2 + ii) * 2
                    T = 176
                    a.e("v_lshlrev_b32 v%d, 16, v%d", T, r)
                    a.e("v_and_b32 v%d, 0xffff0000, v%d", T + 1, r)
                    a.e("v_lshlrev_b32 v%d, 16, v%d", T + 2, r + 1)
                    a.e("v_and_b32 v%d, 0xffff0000, v%d", T + 3, r + 1)
                    for j in range(4):
                        a.e("v_add_f32 v%d, v%d, v%d", base + ii * 4 + j, base + ii * 4 + j, T + j)
                for e in range(8):
                    a.e("v_max_f32 v%d, 0, v%d", base + e, base + e)
                for e in range(8):
                    a.e("v_mul_f32 v%d, v%d, v%d", base + e, base + e, base + e)
            for i in range(4):
                a.e("v_cvt_pk_bf16_f32 v%d, v%d, v%d", base + i, base + 2 * i, base + 2 * i + 1)
            ds = 2 * cb + hz
            a.e("buffer_store_dwordx4 v[%d:%d], v%d, s[%d:%d], s%d offen offset:%d", base, base + 3, v_l16, S_WS, S_WS + 3,
                s_t0 if ds < 4 else s_t1, (ds & 3) * 1024)
    if diag:
        a.e("s_waitcnt vmcnt(0)")
        st.mark()
        st.dump(S_WS, s_w, 10, s_t2)
    a.label(name + "_end")
    a.e("s_endpgm")


def gen_red(a, name, kidx, diag=False, exp=""):
    kernel_begin(a, name)
    st = Stamps(a, diag, kidx, base=56, maxn=10)
    S_X, S_WS = 4, 8
    s_w, s_t0, s_t1, s_qb, s_r0 = 12, 13, 14, 15, 16
    v_lane, v_r, v_hf, v_g, v_u, v_t = 0, 1, 2, 3, 4, 5
    PR, XR, A, F = 16, 32, 40, 48
    a.e("s_cmp_ge_u32 s2, 256")
    a.e("s_cbranch_scc1 %s_end", name)
    st.mark()
    a.e("s_load_dwordx2 s[4:5], s[0:1], %d", A_X)
    a.e("s_load_dwordx2 s[8:9], s[0:1], %d", WS)
    a.e("v_lshrrev_b32 v%d, 6, v0", v_t)
    a.e("v_and_b32 v%d, 63, v0", v_lane)
    a.e("v_readfirstlane_b32 s%d, v%d", s_w, v_t)
    a.e("s_lshr_b32 s%d, s2, 2", s_qb)
    a.e("s_and_b32 s%d, s2, 3", s_r0)
    a.e("s_lshl_b32 s%d, s%d, 3", s_r0, s_r0)
    a.e("v_and_b32 v%d, 7, v%d", v_r, v_lane)
    a.e("v_bfe_u32 v%d, v%d, 3, 1", v_hf, v_lane)
    a.e("v_lshrrev_b32 v%d, 4, v%d", v_g, v_lane)
    a.e("s_lshl_b32 s%d, s%d, 2", s_t0, s_w)
    a.e("v_add_u32 v%d, s%d, v%d", v_g, s_t0, v_g)
    a.e("v_add_u32 v%d, s%d, v%d", v_t, s_r0, v_r)
    a.e("v_lshlrev_b32 v%d, 4, v%d", v_u, v_t)
    a.e("v_lshl_add_u32 v%d, v%d, 9, v%d", v_u, v_hf, v_u)
    a.e("v_lshl_add_u32 v%d, v%d, 10, v%d", v_u, v_g, v_u)
    a.e("v_lshlrev_b32 v%d, 10, v%d", v_t + 1, v_t)
    a.e("v_lshl_add_u32 v%d, v%d, 5, v%d", v_t + 1, v_g, v_t + 1)
    a.e("v_lshl_add_u32 v%d, v%d, 3, v%d", v_t + 1, v_hf, v_t + 1)
    a.e("s_waitcnt lgkmcnt(0)")
    srd(a, S_X, S_X, 2 << 20); srd(a, S_WS, S_WS, WS_BYTES)
    a.e("s_lshl_b32 s%d, s%d, 15", s_t0, s_qb)
    a.e("s_add_u32 s%d, s%d, 0x%x", s_t1, s_t0, WS_P)
    for p in range(4):
        a.e("buffer_load_dwordx4 v[%d:%d], v%d, s[%d:%d], s%d offen", PR + 4 * p, PR + 4 * p + 3, v_u, S_WS, S_WS + 3, s_t1)
        if p < 3: a.e("s_add_u32 s%d, s%d, 0x%x", s_t1, s_t1, 64 * 32768)
    a.e("buffer_load_dwordx2 v[%d:%d], v%d, s[%d:%d], s%d offen", XR, XR + 1, v_t + 1, S_X, S_X + 3, s_t0)
    a.e("buffer_load_dwordx2 v[%d:%d], v%d, s[%d:%d], s%d offen offset:16", XR + 2, XR + 3, v_t + 1, S_X, S_X + 3, s_t0)
    if "pf" in exp:
        a.e("v_lshlrev_b32 v12, 4, v%d", v_lane)
        a.e("s_lshr_b32 s20, s2, 3")
        for ins in l2_prefetch(a, (B_W1, 1792 * 1024), 1792 * 1024, 32, 8, 20, s_w, 24, 21, 22, 12, 64 - 16 + 16): a.e(ins)
    st.mark()
    def unpack(src, dst):
        for i in range(4):
            a.e("v_lshlrev_b32 v%d, 16, v%d", dst + 2 * i, src + i)
            a.e("v_and_b32 v%d, 0xffff0000, v%d", dst + 2 * i + 1, src + i)
    NPF = 7 if "pf" in exp else 0
    a.e("s_waitcnt vmcnt(%d)", 5 + NPF)
    unpack(PR, A)
    for p in range(1, 4):
        a.e("s_waitcnt vmcnt(%d)", 5 - p + NPF)
        unpack(PR + 4 * p, F)
        for e in range(8): a.e("v_add_f32 v%d, v%d, v%d", A + e, A + e, F + e)
    a.e("s_waitcnt vmcnt(%d)", NPF)
    unpack(XR, F)
    for e in range(8): a.e("v_add_f32 v%d, v%d, v%d", A + e, A + e, F + e)
    H = 56
    for i in range(4): a.e("v_cvt_pk_bf16_f32 v%d, v%d, v%d", H + i, A + 2 * i, A + 2 * i + 1)
    a.e("s_add_u32 s%d, s%d, 0x%x", s_t1, s_t0, WS_H)
    a.e("buffer_store_dwordx4 v[%d:%d], v%d, s[%d:%d], s%d offen", H, H + 3, v_u, S_WS, S_WS + 3, s_t1)
    unpack(H, A)
    def rowreduce(r, slot):
        a.e("s_nop 1")
        a.e("v_add_f32_dpp v%d, v%d, v%d row_ror:8 row_mask:0xf bank_mask:0xf", r, r, r)
        a.e("v_mov_b32 v%d, v%d", F, r)
        a.e("s_nop 1")
        a.e("v_permlane16_swap_b32 v%d, v%d", r, F)
        a.e("s_nop 1")
        a.e("v_add_f32 v%d, v%d, v%d", r, r, F)
        a.e("v_mov_b32 v%d, v%d", F, r)
        a.e("s_nop 1")
        a.e("v_permlane32_swap_b32 v%d, v%d", r, F)
        a.e("s_nop 1")
        a.e("v_add_f32 v%d, v%d, v%d", r, r, F)
        a.e("v_lshlrev_b32 v%d, 5, v%d", F, v_r)
        a.e("s_lshl_b32 s%d, s%d, 2", s_t1, s_w)
        a.e("v_add_u32 v%d, s%d, v%d", F + 1, s_t1, F)
        a.e("ds_write_b32 v%d, v%d offset:%d", F + 1, r, slot * 256)
        a.e("s_waitcnt lgkmcnt(0)")
        a.e("s_barrier")
        a.e("ds_read_b128 v[%d:%d], v%d offset:%d", F + 4, F + 7, F, slot * 256)
        a.e("ds_read_b128 v[%d:%d], v%d offset:%d", F + 8, F + 11, F, slot * 256 + 16)
        a.e("s_waitcnt lgkmcnt(0)")
        a.e("v_add_f32 v%d, v%d, v%d", r, F + 4, F + 5)
        for i in range(6, 12): a.e("v_add_f32 v%d, v%d, v%d", r, r, F + i)
    M, V2 = 60, 61
    a.e("v_add_f32 v%d, v%d, v%d", M, A, A + 1)
    for e in range(2, 8): a.e("v_add_f32 v%d, v%d, v%d", M, M, A + e)
    rowreduce(M, 0)
    a.e("v_mul_f32 v%d, 0x3b000000, v%d", M, M)
    for e in range(8): a.e("v_sub_f32 v%d, v%d, v%d", A + e, A + e, M)
    a.e("v_mul_f32 v%d, v%d, v%d", V2, A, A)
    for e in range(1, 8): a.e("v_fmac_f32 v%d, v%d, v%d", V2, A + e, A + e)
    rowreduce(V2, 1)
    a.e("v_mov_b32 v%d, 0x3727c5ac", M)
    a.e("v_fmac_f32 v%d, 0x3b000000, v%d", M, V2)
    a.e("v_rsq_f32 v%d, v%d", M, M)
    a.e("s_nop 0")
    for e in range(8): a.e("v_mul_f32 v%d, v%d, v%d", A + e, A + e, M)
    for i in range(4): a.e("v_cvt_pk_bf16_f32 v%d, v%d, v%d", H + i - 0, A + 2 * i, A + 2 * i + 1) if False else None
    HN = 32
    for i in range(4): a.e("v_cvt_pk_bf16_f32 v%d, v%d, v%d", HN + i, A + 2 * i, A + 2 * i + 1)
    a.e("s_add_u32 s%d, s%d, 0x%x", s_t1, s_t0, WS_HN)
    a.e("buffer_store_dwordx4 v[%d:%d], v%d, s[%d:%d], s%d offen", HN, HN + 3, v_u, S_WS, S_WS + 3, s_t1)
    if diag:
        a.e("s_waitcnt vmcnt(0)")
        st.mark()
        st.dump(S_WS, s_w, 10, s_t0)
    a.label(name + "_end")
    a.e("s_endpgm")
```

```python
from asmlib import *

A_X, A_CKV, A_WQ, A_WUK, A_WUV, A_WO, B_X, B_W1, B_B1, B_W2, B_B2, OUT, DBG, WS = [8*i for i in range(14)]

WS_K    = 0
import os
HEAD_STRIDE = int(os.environ.get('HSTRIDE', str(512 << 10)), 0)
WS_V    = 18 << 20
WS_CTX  = 36 << 20
WS_XN   = 54 << 20
WS_H    = 56 << 20
WS_F    = 58 << 20
WS_HN   = 68 << 20
WS_P    = 70 << 20
WS_CS   = 80 << 20
WS_ST   = 81 << 20
WS_FLAG = 82 << 20
WS_FLAG2 = (82 << 20) + 65536
WS_FLAG3 = (82 << 20) + 131072
WS_FLAG1 = (82 << 20) + 196608
WS_FLAGC = (82 << 20) + 262144
WS_STAMP= 100 << 20
WS_BYTES = 268435456

def srd(a, s, ptr_s, nbytes):
    if ptr_s != s:
        a.e("s_mov_b32 s%d, s%d", s, ptr_s)
        a.e("s_mov_b32 s%d, s%d", s + 1, ptr_s + 1)
    a.e("s_mov_b32 s%d, 0x%x", s + 2, nbytes)
    a.e("s_mov_b32 s%d, 0x20000", s + 3)

def rowsum16(a, regs):
    steps = ["quad_perm:[1,0,3,2]", "quad_perm:[2,3,0,1]", "row_half_mirror", "row_mirror"]
    for st in steps:
        if len(regs) < 3:
            a.e("s_nop 1")
        for r in regs:
            a.e("v_add_f32_dpp v%d, v%d, v%d %s row_mask:0xf bank_mask:0xf", r, r, r, st)

def allsum64(a, r, t):
    rowsum16(a, [r])
    a.e("v_mov_b32 v%d, v%d", t, r)
    a.e("s_nop 1")
    a.e("v_permlane16_swap_b32 v%d, v%d", r, t)
    a.e("s_nop 1")
    a.e("v_add_f32 v%d, v%d, v%d", r, r, t)
    a.e("v_mov_b32 v%d, v%d", t, r)
    a.e("s_nop 1")
    a.e("v_permlane32_swap_b32 v%d, v%d", r, t)
    a.e("s_nop 1")
    a.e("v_add_f32 v%d, v%d, v%d", r, r, t)


class Stamps:
    def __init__(self, a, enabled, kidx, base=48, maxn=12):
        self.a, self.en, self.kidx, self.base, self.n, self.maxn = a, enabled, kidx, base, 0, maxn
    def mark(self):
        if not self.en: return
        assert self.n < self.maxn
        self.a.e("s_memrealtime s[%d:%d]", self.base + 4 * self.n, self.base + 4 * self.n + 1)
        self.a.e("s_memtime s[%d:%d]", self.base + 4 * self.n + 2, self.base + 4 * self.n + 3)
        self.n += 1
    def dump(self, s_ws, s_w, vtmp, stmp, wave=0):
        if not self.en: return
        a = self.a
        l = a.newlabel("Lst")
        a.e("s_cmp_lg_u32 s%d, %d", s_w, wave)
        a.e("s_cbranch_scc1 %s", l)
        a.e("s_waitcnt lgkmcnt(0)")
        a.e("s_lshl_b32 s%d, s2, 7", stmp)
        a.e("s_add_u32 s%d, s%d, 0x%x", stmp, stmp, WS_STAMP + self.kidx * 65536)
        a.e("v_mov_b32 v%d, 0", vtmp + 1)
        for i in range(self.n):
            a.e("v_mov_b32 v%d, s%d", vtmp, self.base + 4 * i)
            a.e("buffer_store_dword v%d, v%d, s[%d:%d], s%d offen offset:%d", vtmp, vtmp + 1, s_ws, s_ws + 3, stmp, 8 * i)
            a.e("s_nop 1")
            a.e("v_mov_b32 v%d, s%d", vtmp, self.base + 4 * i + 2)
            a.e("buffer_store_dword v%d, v%d, s[%d:%d], s%d offen offset:%d", vtmp, vtmp + 1, s_ws, s_ws + 3, stmp, 8 * i + 4)
            a.e("s_nop 1")
        a.label(l)

class Cnt:
    def __init__(self, a, name, maxn):
        self.a, self.name, self.maxn, self.ops = a, name, maxn, []
        self.total = 0
    def issue(self, tag):
        self.ops.append(tag)
        self.total += 1
        assert len(self.ops) <= self.maxn, "too many outstanding %s: %d" % (self.name, len(self.ops))
    def need(self, tags):
        if not isinstance(tags, (list, set)): tags = [tags]
        idx = -1
        for i, t in enumerate(self.ops):
            if t in tags: idx = i
        if idx < 0: return None
        return len(self.ops) - 1 - idx
    def wait(self, tags):
        n = self.need(tags)
        if n is None: return
        self.a.e("s_waitcnt %s(%d)", self.name, n)
        self.ops = self.ops[len(self.ops) - n:] if n > 0 else []
    def waitall(self):
        if self.ops:
            self.a.e("s_waitcnt %s(0)", self.name)
        self.ops = []

STORE_POLICY = {"v": ""}
_old_e = Asm.e
def _e(self, fmt, *a):
    line = (fmt % a if a else fmt)
    if STORE_POLICY["v"] and line.startswith("buffer_store_dwordx4") :
        line += " " + STORE_POLICY["v"]
    self.lines.append("  " + line)
Asm.e = _e

def l2_prefetch(a, karg, total, nwg_x, nwaves, s_idx, s_w, S_N, s_t0, s_t1, v_l16, vdst, base=0, s_extra=None):
    per = total // nwg_x
    n_i = per // nwaves // 1024
    assert per % (nwaves * 1024) == 0
    a.e("s_load_dwordx2 s[%d:%d], s[0:1], %d", S_N, S_N + 1, karg[0])
    a.e("s_mul_i32 s%d, s%d, %d", s_t0, s_idx, per)
    a.e("s_mul_i32 s%d, s%d, %d", s_t1, s_w, n_i * 1024)
    a.e("s_add_u32 s%d, s%d, s%d", s_t0, s_t0, s_t1)
    if s_extra is not None: a.e("s_add_u32 s%d, s%d, s%d", s_t0, s_t0, s_extra)
    a.e("s_waitcnt lgkmcnt(0)")
    srd(a, S_N, S_N, karg[1])
    L = []
    for i in range(n_i):
        if i and i % 4 == 0: L.append("s_add_u32 s%d, s%d, 4096" % (s_t0, s_t0))
        L.append("buffer_load_dwordx4 v[%d:%d], v%d, s[%d:%d], s%d offen offset:%d" % (vdst + 4 * (i % 4), vdst + 3 + 4 * (i % 4), v_l16, S_N, S_N + 3, s_t0, (i & 3) * 1024))
    return L

def code_prefetch(a, cur_label_base, start, end, s_pair, s_t0, v_lane, v_tmp, v_dst):
    lpc = a.newlabel("Lpc")
    a.e("s_getpc_b64 s[%d:%d]", s_pair, s_pair + 1)
    a.label(lpc)
    a.e("s_add_u32 s%d, s%d, %s - %s", s_pair, s_pair, start, lpc)
    a.e("s_addc_u32 s%d, s%d, 0", s_pair + 1, s_pair + 1)
    a.e("s_lshr_b32 s%d, s2, 3", s_t0)
    a.e("s_lshl_b32 s%d, s%d, 9", s_t0, s_t0)
    a.e("v_lshl_add_u32 v%d, v%d, 3, s%d", v_tmp, v_lane, s_t0)
    a.e("s_mov_b32 s%d, %s - %s - 8", s_t0, end, start)
    a.e("v_min_u32 v%d, s%d, v%d", v_tmp, s_t0, v_tmp)
    a.e("global_load_dwordx2 v[%d:%d], v%d, s[%d:%d]", v_dst, v_dst + 1, v_tmp, s_pair, s_pair + 1)
```

```python
from gen_common import *
import math, struct
QSCALE_BITS = struct.unpack('<I', struct.pack('<f', math.log2(math.e) / math.sqrt(128.0)))[0]
import gen_common

def gen_k1(a, name="kv_kernel", diag=False, exp="", fused=None):
    kernel_begin(a, name)
    st = Stamps(a, diag, 0) if fused is None else Stamps(a, diag, 0, base=76, maxn=6)
    vm = Cnt(a, "vmcnt", 63); lg = Cnt(a, "lgkmcnt", 15)
    k2, H = None, None
    if fused is not None:
        k2 = fused(vm, lg, st)
        H = next(k2)
    mark = st.mark if fused is None else (lambda: None)
    S_X, S_C, S_WUK, S_WUV, S_W1, S_WS = 4, 8, 12, 16, 20, 24
    s_h, s_j, s_w, s_t0, s_t1, s_t2, s_kk0, s_wof, s_kst, s_vst, s_oct = 28, 29, 30, 31, 32, 33, 34, 35, 36, 37, 38
    s_c0, s_wm0, s_cm0, s_t3 = 39, 40, 41, 42
    s_cp = 62
    v_lane, v_wdma, v_cdE, v_cdO, v_trE, v_trO, v_cr0, v_cr1, v_kst, v_vst, v_t = 0, 1, 2, 3, 4, 5, 6, 7, 8, 9, 10
    WF, NRING = 12, 5
    ACCA, ACCB, CF = 32, 96, 128
    LDS_W, LDS_C, LDS_SCR = 0, 65536, 131072
    T = ACCB

    a.e("s_cmp_ge_u32 s2, 256")
    a.e("s_cbranch_scc1 %s_end", name)
    st.mark()
    a.e("s_load_dwordx4 s[4:7], s[0:1], %d", A_X)
    a.e("s_load_dwordx4 s[12:15], s[0:1], %d", A_WUK)
    a.e("s_load_dwordx2 s[24:25], s[0:1], %d", WS)
    a.e("s_load_dwordx2 s[20:21], s[0:1], %d", A_WQ)
    if fused is not None: a.e("s_load_dwordx2 s[%d:%d], s[0:1], %d", H["S_DBG"], H["S_DBG"] + 1, DBG)
    a.e("v_lshrrev_b32 v%d, 6, v0", v_t)
    a.e("v_mov_b32 v%d, v0", T + 31)
    a.e("v_readfirstlane_b32 s%d, v%d", s_w, v_t)
    a.e("v_and_b32 v%d, 63, v0", v_lane)
    v_x16, v_g = T + 29, T + 30
    a.e("v_and_b32 v%d, 15, v%d", v_x16, v_lane)
    a.e("v_lshrrev_b32 v%d, 4, v%d", v_g, v_lane)
    a.e("s_and_b32 s%d, s2, 31", s_h)
    if "hrot" in exp:
        a.e("s_add_u32 s%d, s%d, 3", s_h, s_h); a.e("s_and_b32 s%d, s%d, 31", s_h, s_h)
    a.e("s_lshr_b32 s%d, s2, 5", s_j)
    a.e("s_lshr_b32 s%d, s%d, 3", s_t0, s_h)
    a.e("s_lshl_b32 s%d, s%d, 1", s_t0, s_t0)
    a.e("s_add_u32 s%d, s%d, s%d", s_kk0, s_t0, s_j)
    a.e("s_and_b32 s%d, s%d, 7", s_kk0, s_kk0)
    if "norot" in exp: a.e("s_mov_b32 s%d, 0", s_kk0)
    if "rot2" in exp or "rot4" in exp:
        a.e("s_lshr_b32 s%d, s%d, 3", s_t0, s_h)
        a.e("s_add_u32 s%d, s%d, s%d", s_kk0, s_t0, s_j)
        if "rot2" in exp:
            a.e("s_and_b32 s%d, s%d, 1", s_kk0, s_kk0); a.e("s_lshl_b32 s%d, s%d, 2", s_kk0, s_kk0)
        else:
            a.e("s_and_b32 s%d, s%d, 3", s_kk0, s_kk0); a.e("s_lshl_b32 s%d, s%d, 1", s_kk0, s_kk0)
    a.e("v_bfe_u32 v%d, v%d, 2, 2", v_t, v_lane)
    a.e("v_bfe_u32 v%d, v%d, 4, 1", v_t + 1, v_lane)
    a.e("v_lshl_add_u32 v%d, v%d, 2, v%d", v_t, v_t + 1, v_t)
    a.e("v_lshlrev_b32 v%d, 13, v%d", v_t, v_t)
    a.e("s_and_b32 s%d, s%d, 1", s_t0, s_w)
    a.e("s_lshl_b32 s%d, s%d, 1", s_t0, s_t0)
    a.e("v_and_b32 v%d, 3, v%d", v_t + 1, v_lane)
    a.e("v_xor_b32 v%d, s%d, v%d", v_t + 1, s_t0, v_t + 1)
    a.e("v_lshrrev_b32 v%d, 5, v%d", v_wdma, v_lane)
    a.e("v_lshl_add_u32 v%d, v%d, 2, v%d", v_t + 1, v_wdma, v_t + 1)
    a.e("v_lshl_add_u32 v%d, v%d, 4, v%d", v_wdma, v_t + 1, v_t)
    a.e("v_lshrrev_b32 v%d, 3, v%d", v_t, v_lane)
    a.e("v_lshrrev_b32 v%d, 1, v%d", v_t + 1, v_t)
    a.e("v_and_b32 v%d, 7, v%d", v_cdE, v_lane)
    a.e("v_xor_b32 v%d, v%d, v%d", v_cdE, v_cdE, v_t + 1)
    a.e("v_lshlrev_b32 v%d, 4, v%d", v_cdE, v_cdE)
    a.e("v_lshl_add_u32 v%d, v%d, 10, v%d", v_cdE, v_t, v_cdE)
    a.e("v_xor_b32 v%d, 64, v%d", v_cdO, v_cdE)
    a.e("s_waitcnt lgkmcnt(0)")
    mark()
    a.e("s_mov_b32 s8, s6"); a.e("s_mov_b32 s9, s7")
    a.e("s_mov_b32 s16, s14"); a.e("s_mov_b32 s17, s15")
    srd(a, S_X, S_X, 2 << 20); srd(a, S_C, S_C, 2 << 20)
    srd(a, S_WUK, S_WUK, 4 << 20); srd(a, S_WUV, S_WUV, 4 << 20)
    srd(a, S_WS, S_WS, WS_BYTES); srd(a, S_W1, S_W1, 4 << 20)
    if fused is not None: srd(a, H["S_DBG"], H["S_DBG"], 256)
    a.e("s_lshl_b32 s%d, s%d, 16", s_wof, s_w)
    a.e("s_lshl_b32 s%d, s%d, 8", s_t0, s_h)
    a.e("s_add_u32 s%d, s%d, s%d", s_wof, s_wof, s_t0)
    a.e("s_lshl_b32 s%d, s%d, 10", s_wm0, s_w)
    a.e("s_lshl_b32 s%d, s%d, 18", s_c0, s_j)
    a.e("s_lshl_b32 s%d, s%d, 15", s_t0, s_w)
    a.e("s_add_u32 s%d, s%d, s%d", s_c0, s_c0, s_t0)
    a.e("s_lshl_b32 s%d, s%d, 13", s_cm0, s_w)
    a.e("s_add_u32 s%d, s%d, %d", s_cm0, s_cm0, LDS_C)

    def kk_of(i, dst):
        a.e("s_add_u32 s%d, s%d, %d", dst, s_kk0, i)
        a.e("s_and_b32 s%d, s%d, 7", dst, dst)
    def w_dma(step):
        slot = step & 3
        L = []
        for hf in range(2):
            if step < 8:
                S, kki, col = S_WUK, step, hf * 128
            else:
                cv = (step - 8) >> 2
                S, kki, col = S_WUV, 2 * ((step - 8) & 3) + hf, cv * 128
            def em(S=S, kki=kki, col=col, hf=hf):
                kk_of(kki, s_t0)
                a.e("s_lshl_b32 s%d, s%d, 19", s_t0, s_t0)
                a.e("s_add_u32 m0, s%d, %d", s_wm0, LDS_W + slot * 16384 + hf * 8192)
                a.e("s_add_u32 s%d, s%d, s%d", s_t0, s_t0, s_wof)
                if col: a.e("s_add_u32 s%d, s%d, %d", s_t0, s_t0, col)
                a.e("buffer_load_dwordx4 v%d, s[%d:%d], s%d offen lds", v_wdma, S, S + 3, s_t0)
                vm.issue(("W", step))
            L.append(em)
        return L
    def c_dma(step):
        slot = step & 1
        L = []
        for q in range(4):
            def em(q=q):
                if q == 0:
                    kk_of(step, s_t1)
                    a.e("s_lshl_b32 s%d, s%d, 7", s_t1, s_t1)
                    a.e("s_add_u32 s%d, s%d, s%d", s_t1, s_t1, s_c0)
                else:
                    a.e("s_add_u32 s%d, s%d, 8192", s_t1, s_t1)
                a.e("s_add_u32 m0, s%d, %d", s_cm0, slot * 4096 + q * 1024)
                a.e("s_nop 0")
                a.e("buffer_load_dwordx4 v%d, s[%d:%d], s%d offen lds", v_cdE if (q & 1) == 0 else v_cdO, S_C, S_C + 3, s_t1)
                vm.issue(("c", step))
            L.append(em)
        return L

    for em in c_dma(0) + w_dma(0): em()
    for em in c_dma(1) + w_dma(1): em()
    a.e("s_lshl_b32 s%d, s2, 3", s_t0)
    a.e("s_add_u32 s%d, s%d, s%d", s_t0, s_t0, s_w)
    a.e("s_lshl_b32 s%d, s%d, 10", s_t0, s_t0)
    a.e("v_lshlrev_b32 v%d, 4, v%d", v_t, v_lane)
    a.e("buffer_load_dwordx4 v[%d:%d], v%d, s[%d:%d], s%d offen", T, T + 3, v_t, S_X, S_X + 3, s_t0)
    vm.issue("x")
    mark()

    if "wpf" in exp:
        a.e("v_lshlrev_b32 v%d, 4, v%d", v_t + 1, v_lane)
        a.e("s_lshl_b32 s%d, s2, 14", s_t0)
        a.e("s_lshl_b32 s%d, s%d, 11", s_t1, s_w)
        a.e("s_add_u32 s%d, s%d, s%d", s_t0, s_t0, s_t1)
        a.e("s_mov_b32 m0, %d", LDS_SCR + 8192)
        a.e("s_nop 0")
        for S_ in ([S_WUV] if "wpfv" in exp else ([S_WUV, S_W1] if "wpfq" in exp else [S_WUK, S_WUV])):
            for i in range(2):
                a.e("s_add_u32 s%d, s%d, %d", s_t1, s_t0, i * 1024)
                a.e("buffer_load_dwordx4 v%d, s[%d:%d], s%d offen lds", v_t + 1, S_, S_ + 3, s_t1)
                vm.issue("wpf")
    if "cp0" in exp:
        lpc = name + "_pc"
        a.e("s_getpc_b64 s[%d:%d]", s_cp, s_cp + 1)
        a.label(lpc)
        a.e("s_sub_u32 s%d, s%d, %s - %s", s_cp, s_cp, lpc, name)
        a.e("s_subb_u32 s%d, s%d, 0", s_cp + 1, s_cp + 1)
        a.e("s_lshr_b32 s%d, s2, 3", s_t0)
        a.e("s_lshl_b32 s%d, s%d, 3", s_t0, s_t0)
        a.e("s_add_u32 s%d, s%d, s%d", s_t0, s_t0, s_w)
        a.e("s_lshl_b32 s%d, s%d, 8", s_t0, s_t0)
        a.e("v_lshl_add_u32 v%d, v%d, 2, s%d", v_t + 1, v_lane, s_t0)
        a.e("s_mov_b32 s%d, all_code_end - %s - 4", s_t0, name)
        a.e("v_min_u32 v%d, s%d, v%d", v_t + 1, s_t0, v_t + 1)
        a.e("global_load_dword v%d, v%d, s[%d:%d]", T + 28, v_t + 1, s_cp, s_cp + 1)
        vm.issue("cpf")
    if fused is not None:
        H["role_setup"]()
        H["flag_store"](0, "clr")
        if "clrtail" in exp:
            for base in (WS_FLAG1, WS_FLAG2, WS_FLAG3): H["flag_store"](0, "clr", base)
    a.e("v_bfe_u32 v%d, v%d, 2, 2", v_t, v_lane)
    a.e("v_lshlrev_b32 v%d, 6, v%d", v_t, v_t)
    a.e("v_and_b32 v%d, 3, v%d", v_t + 1, v_lane)
    a.e("v_lshl_add_u32 v%d, v%d, 3, v%d", v_t, v_t + 1, v_t)
    a.e("v_lshl_add_u32 v%d, v%d, 10, v%d", v_t, v_g, v_t)
    a.e("v_and_b32 v%d, 1, v%d", v_t + 1, v_g)
    a.e("v_lshl_add_u32 v%d, v%d, 5, v%d", v_trE, v_t + 1, v_t)
    a.e("v_xor_b32 v%d, 32, v%d", v_trO, v_trE)
    a.e("v_lshrrev_b32 v%d, 1, v%d", v_t, v_x16)
    a.e("v_xor_b32 v%d, v%d, v%d", v_t, v_t, v_g)
    a.e("v_lshlrev_b32 v%d, 4, v%d", v_t, v_t)
    a.e("v_lshl_add_u32 v%d, v%d, 7, v%d", v_t, v_x16, v_t)
    a.e("v_add_u32 v%d, s%d, v%d", v_cr0, s_cm0, v_t)
    a.e("v_xor_b32 v%d, 64, v%d", v_cr1, v_cr0)
    a.e("v_and_b32 v%d, 1, v%d", v_t, v_g)
    a.e("v_lshlrev_b32 v%d, 10, v%d", v_kst, v_t)
    a.e("v_lshrrev_b32 v%d, 1, v%d", v_t, v_g)
    a.e("v_lshl_add_u32 v%d, v%d, 9, v%d", v_kst, v_t, v_kst)
    a.e("v_lshrrev_b32 v%d, 3, v%d", v_t, v_x16)
    a.e("v_lshl_add_u32 v%d, v%d, 8, v%d", v_kst, v_t, v_kst)
    a.e("v_and_b32 v%d, 7, v%d", v_t, v_x16)
    a.e("v_lshl_add_u32 v%d, v%d, 4, v%d", v_kst, v_t, v_kst)
    a.e("v_lshrrev_b32 v%d, 1, v%d", v_t, v_g)
    a.e("v_lshlrev_b32 v%d, 12, v%d", v_vst, v_t)
    a.e("v_and_b32 v%d, 1, v%d", v_t, v_g)
    a.e("v_lshl_add_u32 v%d, v%d, 9, v%d", v_vst, v_t, v_vst)
    a.e("v_lshl_add_u32 v%d, v%d, 4, v%d", v_vst, v_x16, v_vst)
    a.e("s_mul_i32 s%d, s%d, %d", s_kst, s_h, HEAD_STRIDE)
    a.e("s_lshl_b32 s%d, s%d, 16", s_t0, s_j)
    a.e("s_add_u32 s%d, s%d, s%d", s_kst, s_kst, s_t0)
    a.e("s_lshl_b32 s%d, s%d, 13", s_t0, s_w)
    a.e("s_add_u32 s%d, s%d, s%d", s_kst, s_kst, s_t0)
    a.e("s_add_u32 s%d, s%d, 0x%x", s_vst, s_kst, WS_V)

    class Rec:
        def __init__(self): self.L = []
        def e(self, fmt, *x): self.L.append(fmt % x if x else fmt)
    r_ = Rec()
    F = T + 8
    for i in range(4):
        r_.e("v_lshlrev_b32 v%d, 16, v%d", F + 2 * i, T + i)
        r_.e("v_and_b32 v%d, 0xffff0000, v%d", F + 2 * i + 1, T + i)
    M, TT, V2, RS = T + 16, T + 17, T + 18, T + 19
    r_.e("v_add_f32 v%d, v%d, v%d", M, F, F + 1)
    for i in range(2, 8):
        r_.e("v_add_f32 v%d, v%d, v%d", M, M, F + i)
    allsum64(r_, M, TT)
    r_.e("v_mul_f32 v%d, 0x3b000000, v%d", M, M)
    for i in range(8):
        r_.e("v_sub_f32 v%d, v%d, v%d", F + i, F + i, M)
    r_.e("v_mul_f32 v%d, v%d, v%d", V2, F, F)
    for i in range(1, 8):
        r_.e("v_fmac_f32 v%d, v%d, v%d", V2, F + i, F + i)
    allsum64(r_, V2, TT)
    r_.e("v_mov_b32 v%d, 0x3727c5ac", RS)
    r_.e("v_fmac_f32 v%d, 0x3b000000, v%d", RS, V2)
    r_.e("v_rsq_f32 v%d, v%d", RS, RS)
    r_.e("s_nop 0")
    r_.e("v_mul_f32 v%d, 0x%x, v%d", RS, QSCALE_BITS, RS)
    for i in range(8):
        r_.e("v_mul_f32 v%d, v%d, v%d", F + i, F + i, RS)
    for i in range(4):
        r_.e("v_cvt_pk_bf16_f32 v%d, v%d, v%d", T + i, F + 2 * i, F + 2 * i + 1)
    r_.e("s_lshl_b32 s%d, s%d, 10", s_t3, s_w)
    r_.e("s_add_u32 s%d, s%d, %d", s_t3, s_t3, LDS_SCR)
    r_.e("v_lshl_add_u32 v%d, v%d, 4, s%d", T + 20, v_lane, s_t3)
    LN1 = r_.L
    r2 = Rec()
    X0, X1, X2 = T + 20, T + 21, T + 22
    r2.e("v_and_b32 v%d, 7, v%d", X0, v_lane)
    r2.e("v_lshrrev_b32 v%d, 3, v%d", X1, v_lane)
    r2.e("s_lshl_b32 s%d, s%d, 3", s_t3, s_w)
    r2.e("v_add_u32 v%d, s%d, v%d", X1, s_t3, X1)
    r2.e("v_lshlrev_b32 v%d, 10, v%d", F, X0)
    r2.e("v_lshl_add_u32 v%d, v%d, 4, v%d", F, X1, F)
    r2.e("v_add_u32 v%d, %d, v%d", F, LDS_SCR, F)
    LN2a = r2.L
    r3 = Rec()
    r3.e("v_lshrrev_b32 v%d, 2, v%d", F + 1, X1)
    r3.e("v_lshlrev_b32 v%d, 10, v%d", F + 1, F + 1)
    r3.e("v_and_b32 v%d, 3, v%d", X1, X1)
    r3.e("v_lshl_add_u32 v%d, v%d, 8, v%d", F + 1, X1, F + 1)
    r3.e("v_lshl_add_u32 v%d, v%d, 4, v%d", F + 1, X0, F + 1)
    r3.e("s_lshr_b32 s%d, s2, 1", s_t3)
    r3.e("s_lshl_b32 s%d, s%d, 14", s_t3, s_t3)
    r3.e("s_and_b32 s%d, s2, 1", s_oct)
    r3.e("s_lshl_b32 s%d, s%d, 7", s_oct, s_oct)
    r3.e("s_add_u32 s%d, s%d, s%d", s_t3, s_t3, s_oct)
    r3.e("s_add_u32 s%d, s%d, 0x%x", s_t3, s_t3, WS_XN)
    LN2b = r3.L

    v_lin = v_trO
    if 'b128test' in exp: a.e('v_lshlrev_b32 v%d, 4, v%d', v_lin, v_lane)
    def c_reads(step):
        for u in range(2):
            for kb in range(2):
                r = CF + ((step * 2 + u) * 2 + kb) * 4
                a.e("ds_read_b128 v[%d:%d], v%d offset:%d", r, r + 3, v_cr0 if u == 0 else v_cr1, (step & 1) * 4096 + kb * 2048)
                lg.issue(("c", step))

    vm.wait([("c", 0), ("W", 0)])
    c_reads(0)
    mark()
    a.e("s_barrier")
    mark()

    def step_frags(step):
        L = []
        if step < 8:
            for u in range(2):
                for cb in range(8):
                    off = (cb >> 2) * 8192 + u * 4096 + ((cb >> 1) & 1) * 512
                    dg = cb >> 1
                    accs = [ACCA + ((dg * 2 + kb) * 2 + (cb & 1)) * 4 for kb in range(2)]
                    cfs = [CF + ((step * 2 + u) * 2 + kb) * 4 for kb in range(2)]
                    L.append((off, cb & 1, accs, cfs, step == 0 and u == 0))
        else:
            base = ACCB if step < 12 else ACCA
            i2 = (step - 8) & 3
            for hf in range(2):
                for u in range(2):
                    for cb in range(4):
                        off = hf * 8192 + u * 4096 + (cb >> 1) * 512
                        accs = [base + (cb * 2 + kb) * 4 for kb in range(2)]
                        ci = (2 * i2 + hf)
                        cfs = [CF + ((ci * 2 + u) * 2 + kb) * 4 for kb in range(2)]
                        L.append((off, cb & 1, accs, cfs, i2 == 0 and hf == 0 and u == 0))
        return L
    frags = [(s, f) for s in range(16) for f in step_frags(s)]
    def w_read(gi):
        s, (off, odd, accs, cfs, first) = frags[gi]
        r = WF + (gi % NRING) * 4
        if "b128test" in exp:
            a.e("ds_read_b128 v[%d:%d], v%d offset:%d", r, r + 3, v_cr0 if False else v_lin, LDS_W + (s & 3) * 16384 + (gi % 16) * 1024)
            lg.issue(("W", gi))
            return
        for t in range(2):
            a.e("ds_read_b64_tr_b16 v[%d:%d], v%d offset:%d", r + 2 * t, r + 2 * t + 1, v_trO if odd else v_trE,
                LDS_W + (s & 3) * 16384 + off + t * 256)
            lg.issue(("W", gi))
    def epi(kind):
        L = []
        if kind == "K":
            for dg in range(4):
                for kb in range(2):
                    A = ACCA + (dg * 2 + kb) * 8
                    g = []
                    for i in range(4):
                        g.append("v_cvt_pk_bf16_f32 v%d, v%d, v%d" % (A + i, A + 2 * i, A + 2 * i + 1))
                    g.append("s_add_u32 s%d, s%d, %d" % (s_t2, s_kst, (dg >> 1) * 4096))
                    g.append(("st", "buffer_store_dwordx4 v[%d:%d], v%d, s[%d:%d], s%d offen offset:%d" % (A, A + 3, v_kst, S_WS, S_WS + 3, s_t2, kb * 128 + (dg & 1) * 2048)))
                    L += g
        else:
            cv = 0 if kind == "V0" else 1
            base = ACCB if cv == 0 else ACCA
            for cb in range(4):
                A = base + cb * 8
                for i in range(4):
                    L.append("v_cvt_pk_bf16_f32 v%d, v%d, v%d" % (A + i, A + 2 * i, A + 2 * i + 1))
                L.append("s_add_u32 s%d, s%d, %d" % (s_t2, s_vst, cv * 2048))
                L.append(("st", "buffer_store_dwordx4 v[%d:%d], v%d, s[%d:%d], s%d offen offset:%d" % (A, A + 3, v_vst, S_WS, S_WS + 3, s_t2, (cb >> 1) * 1024 + (cb & 1) * 256)))
        return L
    def emit_epi(x):
        if isinstance(x, tuple):
            if "nost" in exp: return
            a.e(x[1]); vm.issue("st")
        else:
            a.e(x)

    def emit_main(dk0, epk0, last):
        PRE = NRING - 1
        nread = 0
        npoll = [0]
        pend_epi = []
        ln = list(LN1); ln2a = list(LN2a); ln2b = list(LN2b)
        for gi, (s, (off, odd, accs, cfs, first)) in enumerate(frags):
            k = gi % 16
            dmas = []
            if k == 0:
                a("; ---- step %d" % s)
                if s in (4, 8, 12): (mark() if last else None)
                if s > 0 and "nobar" not in exp and not ("bar2" in exp and s >= 9 and s % 2 == 1):
                    a.e("s_barrier")
                if s == 8:
                    ek = epi("K"); pend_epi = ek[:36]; ek_rest = ek[36:]
                if s == 12:
                    if fused is not None and "latev0" in exp:
                        ev = epi("V0")
                        pend_epi = ek_rest + [x for x in ev if not isinstance(x, tuple) and not x.startswith("s_add")]
                        for cb in range(4):
                            def st0(cb=cb):
                                A = ACCB + cb * 8
                                a.e("s_add_u32 s%d, s%d, 0", s_t2, s_vst)
                                a.e("buffer_store_dwordx4 v[%d:%d], v%d, s[%d:%d], s%d offen offset:%d", A, A + 3, v_vst, S_WS, S_WS + 3, s_t2, (cb >> 1) * 1024 + (cb & 1) * 256)
                                vm.issue("st")
                            H["late_stores"].append(st0)
                    else:
                        pend_epi = ek_rest + epi("V0")
                step_dmas = []
                if s == 0: step_dmas += w_dma(2)
                if s + 3 < 16: step_dmas += w_dma(s + 3)
                if s + 2 < 8: step_dmas += c_dma(s + 2)
            lim = 16 if s == 0 else len(frags)
            while nread < min(gi + PRE + 1, lim):
                w_read(nread); nread += 1
            lg.wait([("W", gi), ("c", s)] if k == 0 else ("W", gi))
            wf = WF + (gi % NRING) * 4
            for kb in range(2):
                d, cf = accs[kb], cfs[kb]
                c = "0" if first else "v[%d:%d]" % (d, d + 3)
                if s < 8:
                    a.e("v_mfma_f32_16x16x32_bf16 v[%d:%d], v[%d:%d], v[%d:%d], %s", d, d + 3, wf, wf + 3, cf, cf + 3, c)
                else:
                    a.e("v_mfma_f32_16x16x32_bf16 v[%d:%d], v[%d:%d], v[%d:%d], %s", d, d + 3, cf, cf + 3, wf, wf + 3, c)
            if k >= dk0 and step_dmas:
                if "nodma" in exp and s >= 2: step_dmas.pop(0)
                else: step_dmas.pop(0)()
            if s == 1 and k == 0: vm.wait("x")
            if s in (1, 2) and ln:
                for _ in range(4):
                    if ln: a.e(ln.pop(0))
            if s == 2 and k == 15:
                assert not ln
                a.e("ds_write_b128 v%d, v[%d:%d]", T + 20, T, T + 3); lg.issue("lnw")
                lg.wait("lnw")
            if s == 3:
                if k < 4:
                    for _ in range(2):
                        if ln2a: a.e(ln2a.pop(0))
                if k == 4:
                    a.e("ds_read_b128 v[%d:%d], v%d", T, T + 3, F); lg.issue("lnr")
                if 5 <= k < 11:
                    for _ in range(2):
                        if ln2b: a.e(ln2b.pop(0))
                if k == 12:
                    assert not ln2a and not ln2b
                    lg.wait("lnr")
                    a.e("buffer_store_dwordx4 v[%d:%d], v%d, s[%d:%d], s%d offen", T, T + 3, F + 1, S_WS, S_WS + 3, s_t3)
                    vm.issue("xn")
            if k == (15 if s == 0 else 11) and s + 1 < 16:
                tags = [("W", s + 1), ("W", s + 2), ("c", s + 1)]
                if fused is not None and s == 5: tags += ["xn", "clr"]
                vm.wait(tags)
                if s + 1 < 8: c_reads(s + 1)
            if fused is not None:
                if s == 6 and k == 12: H["signal"]("0", True)
                if s == 8 and k == 1: H["vec_setup"]()
                if "early" in exp:
                    if 9 <= s <= 12 and k in (5, 9): H["w_dma_l"](s - 9)[0 if k == 5 else 1]()
                else:
                    if s in (12, 13) and k in (5, 9): H["w_dma_l"](s - 12)[0 if k == 5 else 1]()
                if s == 10 and k == 2:
                    H["poll"](0, "0"); npoll[0] = vm.total
                if s == 12 and k == 13: H["poll_check"](0, "0", 256, min(vm.total - npoll[0], len(vm.ops)))
                if "early" in exp:
                    if s >= 13 and k in (1, 3, 5, 7, 9, 10, 12, 14):
                        i_ = (1, 3, 5, 7, 9, 10, 12, 14).index(k)
                        if i_ == 0: xl = H["xn_load_l"](2 * (s - 13)) + H["xn_load_l"](2 * (s - 13) + 1)
                        xl[i_]()
                elif s >= 14 and k in (2, 5, 8, 12):
                    i_ = (2, 5, 8, 12).index(k)
                    if i_ == 0: xl = H["xn_load_l"](s - 14)
                    xl[i_]()
            if "pf" in exp and fused is None and s == 10 and k in (4, 8):
                a.e("v_lshrrev_b32 v%d, 4, v%d", v_t, v_lane)
                a.e("v_lshlrev_b32 v%d, 13, v%d", v_t, v_t)
                a.e("v_and_b32 v%d, 15, v%d", v_t + 1, v_lane)
                a.e("v_lshl_add_u32 v%d, v%d, 4, v%d", v_t, v_t + 1, v_t)
                a.e("s_lshl_b32 s%d, s%d, 3", s_t3, s_j)
                a.e("s_add_u32 s%d, s%d, s%d", s_t3, s_t3, s_w)
                a.e("s_lshl_b32 s%d, s%d, 16", s_t3, s_t3)
                a.e("s_lshl_b32 s%d, s%d, 8", s_t1, s_h)
                a.e("s_add_u32 s%d, s%d, s%d", s_t3, s_t3, s_t1)
                if k == 8: a.e("s_add_u32 s%d, s%d, 32768", s_t3, s_t3)
                a.e("s_mov_b32 m0, s%d", s_cm0)
                a.e("s_nop 0")
                a.e("buffer_load_dwordx4 v%d, s[%d:%d], s%d offen lds", v_t, S_W1, S_W1 + 3, s_t3)
                vm.issue("pf")
            if pend_epi and k >= 3:
                emit_epi(pend_epi.pop(0))
                if pend_epi and s >= 12: emit_epi(pend_epi.pop(0))
        assert not pend_epi
        (st.mark() if last else None)
        a.e("s_nop 7")
        if fused is not None and "early" not in exp:
            late = []
            for cb in range(4):
                A, D = ACCA + cb * 8, ACCB + cb * 8 + 4
                for i in range(4):
                    a.e("v_cvt_pk_bf16_f32 v%d, v%d, v%d", D + i, A + 2 * i, A + 2 * i + 1)
                def st_(cb=cb, D=D):
                    a.e("s_add_u32 s%d, s%d, 2048", s_t2, s_vst)
                    a.e("buffer_store_dwordx4 v[%d:%d], v%d, s[%d:%d], s%d offen offset:%d", D, D + 3, v_vst, S_WS, S_WS + 3, s_t2, (cb >> 1) * 1024 + (cb & 1) * 256)
                    vm.issue("st")
                late.append(st_)
            H["late_stores"].extend(late)
        else:
            for x in epi("V1"): emit_epi(x)
        if fused is not None:
            for _ in k2: pass
            return
        if diag and last:
            a.e("s_waitcnt vmcnt(0)")
            (mark() if last else None)
            st.dump(S_WS, s_w, 10, s_t0)

    if "stag" in exp:
        l2 = name + "_late"
        vm0, lg0 = list(vm.ops), list(lg.ops)
        a.e("s_cmp_ge_u32 s%d, 4", s_w)
        a.e("s_cbranch_scc1 %s", l2)
        emit_main(1, 3, True)
        a.e("s_endpgm")
        a.label(l2)
        vm.ops, lg.ops = vm0, lg0
        emit_main(6 if "stag6" in exp else 8, 3, False)
    else:
        emit_main(1, 3, True)
    if fused is None:
        a.label(name + "_end")
        a.e("s_endpgm")
```

```python
from gen_common import *
import gen_common
import math, struct

def f32bits(x):
    return struct.unpack("<I", struct.pack("<f", x))[0]

def gen_k2(a, name="attn_kernel", diag=False, exp="", thr_log2=40):
    for _ in gen_k2_iter(a, name, diag, exp, thr_log2, None): pass

def gen_k2_iter(a, name, diag, exp, thr_log2, fuse):
    if fuse is None:
        kernel_begin(a, name)
        st = Stamps(a, diag, 1, base=56, maxn=11)
        vm = Cnt(a, "vmcnt", 63); lg = Cnt(a, "lgkmcnt", 15)
    else:
        vm, lg, st = fuse["vm"], fuse["lg"], fuse["st"]
    SC1 = " sc1" if fuse is not None else ""
    NEXTK = "tail_kernel" if "nexttail" in exp else "proj_kernel"
    QSCALE = f32bits(math.log2(math.e) / math.sqrt(128.0))
    THR = f32bits(2.0 ** thr_log2)
    S_WQ, S_WS = 4, 8
    s_h, s_x, s_w, s_t0, s_t1, s_t2, s_kk0, s_wof, s_wm0 = 12, 13, 14, 15, 16, 17, 18, 19, 20
    s_xn, s_T, s_TB, s_t, s_cur, s_nxt, s_ld, s_kof, s_vof, s_wl = 21, 22, 23, 24, 25, 26, 27, 28, 29, 30
    s_qb, s_mfrom, s_kb, s_isA, s_lslot, s_lst, s_thr, s_oob = 31, 32, 33, 34, 35, 36, 37, 38
    s_ret = 40
    s_m = 42
    s_hb = 50
    s_n = 51
    s_cnt = 52
    s_x1, s_x2 = 53, 54
    SPF = 56
    if fuse is not None:
        S_WQ, S_WS = 20, 24
        s_h, s_x, s_w, s_t0, s_t1, s_t2, s_kk0, s_wof, s_wm0 = 28, 29, 30, 31, 32, 33, 34, 35, 40
        s_xn, s_T, s_TB, s_t, s_cur, s_nxt, s_ld, s_kof, s_vof, s_wl = 44, 45, 46, 47, 48, 49, 50, 51, 52, 53
        s_qb, s_mfrom, s_kb, s_isA, s_lslot, s_lst, s_thr, s_oob = 54, 55, 56, 57, 58, 59, 60, 61
        s_m = 8
        s_hb, s_n, s_cnt, s_x1, s_x2, s_poll = 64, 65, 66, 67, 68, 69
        s_ret = 70
        S_DBG = 72
        SPF = 4
    v_lane, v_wdma, v_trE, v_trO, v_l16, v_rd, v_rdn, v_qrel, v_t = 0, 1, 2, 3, 4, 5, 6, 7, 8
    v_hiE, v_hiO = v_rd, v_rdn
    if fuse is not None:
        v_lane, v_wdma, v_l16, v_qrel, v_trE, v_trO, v_hiE, v_hiO, v_rd, v_rdn, v_t = 0, 1, 2, 3, 4, 5, 6, 7, 8, 9, 10
    WF, NRW = 12, 5
    ACC = 32
    XN = 128
    Q = 96
    RING, NR, PD = 12, 16, 12
    TT = 80
    v_ps, v_l, v_D, v_ninf, v_mx, v_f = [84, 85], 86, 87, 88, 89, 90
    U = 76
    v_pk = [92, 94]
    NEGM, P, S, O = 128, [144, 152], [160, 176], 192
    SLOT = 32768

    def role_setup():
        a.e("s_lshr_b32 s%d, s%d, 2", s_isA, s_w)
        a.e("s_sub_u32 s%d, 15, s%d", s_t0, s_x)
        a.e("s_lshl_b32 s%d, s%d, 1", s_TB, s_t0)
        a.e("s_add_u32 s%d, s%d, 2", s_TB, s_TB)
        a.e("s_sub_u32 s%d, 7, s%d", s_t1, s_w)
        a.e("s_cmp_eq_u32 s%d, 0", s_isA)
        a.e("s_cselect_b32 s%d, s%d, s%d", s_t0, s_t0, s_x)
        a.e("s_cselect_b32 s%d, s%d, s%d", s_t1, s_w, s_t1)
        a.e("s_lshl_b32 s%d, s%d, 1", s_T, s_t0)
        a.e("s_lshr_b32 s%d, s%d, 1", s_t2, s_t1)
        a.e("s_add_u32 s%d, s%d, s%d", s_T, s_T, s_t2)
        a.e("s_add_u32 s%d, s%d, 1", s_T, s_T)
        a.e("s_lshl_b32 s%d, s%d, 2", s_qb, s_t0)
        a.e("s_add_u32 s%d, s%d, s%d", s_qb, s_qb, s_t1)
        a.e("s_sub_u32 s%d, s%d, 3", s_mfrom, s_T)
        a.e("s_and_b32 s%d, s%d, 3", s_wl, s_w)
        a.e("s_lshl_b32 s%d, s%d, 15", s_xn, s_qb)
        a.e("s_add_u32 s%d, s%d, 0x%x", s_xn, s_xn, WS_XN)
        a.e("s_mul_i32 s%d, s%d, %d", s_hb, s_h, HEAD_STRIDE)
        a.e("s_lshl_b32 s%d, s%d, 12", s_t0, s_wl)
        a.e("s_add_u32 s%d, s%d, s%d", s_hb, s_hb, s_t0)
        a.e("s_mov_b32 s%d, 0x7ff00000", s_oob)
        a.e("s_mov_b32 s%d, 0x%x", s_thr, THR)

    if fuse is None:
        a.e("s_cmp_ge_u32 s2, 256")
        a.e("s_cbranch_scc1 %s_end", name)
        st.mark()
        a.e("s_load_dwordx2 s[4:5], s[0:1], %d", A_WQ)
        a.e("s_load_dwordx2 s[8:9], s[0:1], %d", WS)
        a.e("v_lshrrev_b32 v%d, 6, v0", v_t)
        a.e("v_and_b32 v%d, 63, v0", v_lane)
        a.e("v_readfirstlane_b32 s%d, v%d", s_w, v_t)
        a.e("s_and_b32 s%d, s2, 31", s_h)
        a.e("s_lshr_b32 s%d, s2, 5", s_x)
        a.e("s_lshr_b32 s%d, s%d, 3", s_t0, s_h)
        a.e("s_lshl_b32 s%d, s%d, 1", s_t0, s_t0)
        a.e("s_add_u32 s%d, s%d, s%d", s_kk0, s_t0, s_x)
        a.e("s_and_b32 s%d, s%d, 7", s_kk0, s_kk0)
        a.e("v_bfe_u32 v%d, v%d, 2, 2", v_t, v_lane)
        a.e("v_bfe_u32 v%d, v%d, 4, 1", v_t + 1, v_lane)
        a.e("v_lshl_add_u32 v%d, v%d, 2, v%d", v_t, v_t + 1, v_t)
        a.e("v_lshlrev_b32 v%d, 13, v%d", v_t, v_t)
        a.e("s_and_b32 s%d, s%d, 1", s_t0, s_w)
        a.e("s_lshl_b32 s%d, s%d, 1", s_t0, s_t0)
        a.e("v_and_b32 v%d, 3, v%d", v_t + 1, v_lane)
        a.e("v_xor_b32 v%d, s%d, v%d", v_t + 1, s_t0, v_t + 1)
        a.e("v_lshrrev_b32 v%d, 5, v%d", v_wdma, v_lane)
        a.e("v_lshl_add_u32 v%d, v%d, 2, v%d", v_t + 1, v_wdma, v_t + 1)
        a.e("v_lshl_add_u32 v%d, v%d, 4, v%d", v_wdma, v_t + 1, v_t)
        a.e("v_lshlrev_b32 v%d, 4, v%d", v_l16, v_lane)
        a.e("s_waitcnt lgkmcnt(0)")
        srd(a, S_WQ, S_WQ, 4 << 20); srd(a, S_WS, S_WS, WS_BYTES)
        a.e("s_lshl_b32 s%d, s%d, 16", s_wof, s_w)
        a.e("s_lshl_b32 s%d, s%d, 8", s_t0, s_h)
        a.e("s_add_u32 s%d, s%d, s%d", s_wof, s_wof, s_t0)
        a.e("s_lshl_b32 s%d, s%d, 10", s_wm0, s_w)
        role_setup()

    def kk_of(i, dst):
        a.e("s_add_u32 s%d, s%d, %d", dst, s_kk0, i)
        a.e("s_and_b32 s%d, s%d, 7", dst, dst)
    def wq_lds(step):
        return (step * 16384) if fuse is None else (((step + 4) & 7) * 16384)
    def stage_slot(stage):
        return ((stage if fuse is None else stage + 2) % 4) * SLOT
    def w_dma(step):
        for em in w_dma_l(step): em()
    def w_dma_l(step):
        return [lambda hf=hf: w_dma1(step, hf) for hf in range(2)]
    def w_dma1(step, hf):
        if True:
            kk_of(step, s_t0)
            a.e("s_lshl_b32 s%d, s%d, 19", s_t0, s_t0)
            a.e("s_add_u32 m0, s%d, %d", s_wm0, wq_lds(step) + hf * 8192)
            a.e("s_add_u32 s%d, s%d, s%d", s_t0, s_t0, s_wof)
            if hf: a.e("s_add_u32 s%d, s%d, 128", s_t0, s_t0)
            a.e("buffer_load_dwordx4 v%d, s[%d:%d], s%d offen lds", v_wdma, S_WQ, S_WQ + 3, s_t0)
            vm.issue(("W", step))
    def xn_load(step):
        for em in xn_load_l(step): em()
    def xn_load_l(step):
        L = []
        for u in range(2):
            for qb in range(2):
                def em(u=u, qb=qb):
                    if u == 0 and qb == 0:
                        kk_of(step, s_x1)
                        a.e("s_lshl_b32 s%d, s%d, 11", s_x1, s_x1)
                        a.e("s_add_u32 s%d, s%d, s%d", s_x1, s_x1, s_xn)
                        a.e("s_add_u32 s%d, s%d, 16384", s_x2, s_x1)
                    r = XN + ((step * 2 + u) * 2 + qb) * 4
                    a.e("buffer_load_dwordx4 v[%d:%d], v%d, s[%d:%d], s%d offen offset:%d%s", r, r + 3, v_l16, S_WS, S_WS + 3,
                        s_x1 if qb == 0 else s_x2, u * 1024, SC1)
                    vm.issue(("x", step))
                L.append(em)
        return L
    def stage_addr_static(stage):
        a.e("s_add_u32 s%d, s%d, 0x%x", s_kof, s_hb, WS_K + (stage + 1) * 16384)
        a.e("s_add_u32 s%d, s%d, 0x%x", s_vof, s_hb, WS_V + max(stage, 0) * 16384)
        a.e("s_lshl_b32 s%d, s%d, 12", s_lslot, s_wl)
        a.e("s_add_u32 s%d, s%d, %d", s_lslot, s_lslot, stage_slot(stage) if stage >= 0 else 4 * SLOT)
    def stage_loads(part, tag=None, track=True):
        L = []
        for i in range(4):
            def em(i=i):
                if i == 0:
                    a.e("s_add_u32 m0, s%d, %d", s_lslot, 0 if part == "K" else 16384)
                    a.e("s_nop 0")
                a.e("buffer_load_dwordx4 v%d, s[%d:%d], s%d offen offset:%d%s lds", v_l16, S_WS, S_WS + 3,
                    s_kof if part == "K" else s_vof, i * 1024, SC1)
                if track: vm.issue(tag)
            L.append(em)
        return L
    def only_A(fn):
        l = a.newlabel("LnA")
        a.e("s_cmp_eq_u32 s%d, 0", s_isA)
        a.e("s_cbranch_scc1 %s", l)
        fn()
        a.label(l)

    def vec_setup():
        if fuse is not None: a.e("v_lshlrev_b32 v%d, 4, v%d", v_l16, v_lane)
        a.e("v_add_u32 v%d, 0x10000, v%d", v_hiE, v_trE)
        a.e("v_add_u32 v%d, 0x10000, v%d", v_hiO, v_trO)
        a.e("v_and_b32 v%d, 31, v%d", v_qrel, v_lane)
        a.e("s_lshl_b32 s%d, s%d, 5", s_t0, s_qb)
        a.e("v_add_u32 v%d, s%d, v%d", v_qrel, s_t0, v_qrel)
        a.e("v_lshrrev_b32 v%d, 5, v%d", v_t, v_lane)
        a.e("v_lshlrev_b32 v%d, 2, v%d", v_t, v_t)
        a.e("v_sub_u32 v%d, v%d, v%d", v_qrel, v_qrel, v_t)
    def only_wave(w, fn):
        l = a.newlabel("Lw1")
        a.e("s_cmp_lg_u32 s%d, %d", s_w, w)
        a.e("s_cbranch_scc1 %s", l)
        fn()
        a.label(l)
    def poll(wave, s_off):
        only_wave(wave, lambda: a.e("buffer_load_dword v%d, off, s[%d:%d], %s sc1", v_t, S_DBG, S_DBG + 3, s_off))
    def poll_check(wave, s_off, target, younger):
        only_wave(wave, lambda: poll_check1(s_off, target, younger))
    def poll_check1(s_off, target, younger):
        ok, sp = a.newlabel("Lpok"), a.newlabel("Lpsp")
        a.e("s_waitcnt vmcnt(%d)", younger)
        a.e("v_readfirstlane_b32 s%d, v%d", s_poll, v_t)
        a.e("s_nop 3")
        a.e("s_cmp_ge_u32 s%d, %d", s_poll, target)
        a.e("s_cbranch_scc1 %s", ok)
        a.e("s_mov_b32 s%d, 0x20000", s_n)
        a.label(sp)
        a.e("s_sleep 16")
        a.e("buffer_load_dword v%d, off, s[%d:%d], %s sc1", v_t, S_DBG, S_DBG + 3, s_off)
        a.e("s_waitcnt vmcnt(0)")
        a.e("v_readfirstlane_b32 s%d, v%d", s_poll, v_t)
        a.e("s_nop 3")
        a.e("s_cmp_ge_u32 s%d, %d", s_poll, target)
        a.e("s_cbranch_scc1 %s", ok)
        a.e("s_sub_u32 s%d, s%d, 1", s_n, s_n)
        a.e("s_cbranch_scc0 %s", sp)
        a.label(ok)
    def signal(s_off, track=False):
        l, l2 = a.newlabel("Lsig"), a.newlabel("Lsig")
        a.e("s_cmp_lg_u32 s%d, 0", s_w)
        a.e("s_cbranch_scc1 %s", l)
        a.e("v_mov_b32 v%d, 1", v_t + 1)
        a.e("s_mov_b64 exec, 1")
        a.e("buffer_atomic_add v%d, off, s[%d:%d], %s sc1", v_t + 1, S_DBG, S_DBG + 3, s_off)
        a.e("s_mov_b64 exec, -1")
        if track: a.e("s_branch %s", l2)
        a.label(l)
        if track:
            a.e("buffer_load_dword v%d, off, s[%d:%d], s%d", v_t + 1, S_DBG, S_DBG + 3, s_oob)
            a.label(l2)
            vm.issue("sig")
    def flag_store(val, tag=None, base=WS_FLAG):
        a.e("s_lshl_b32 s%d, s2, 7", s_poll)
        a.e("s_add_u32 s%d, s%d, 0x%x", s_poll, s_poll, base)
        a.e("v_mov_b32 v%d, %d", v_t + 1, val)
        a.e("s_mov_b64 exec, 1")
        a.e("buffer_store_dword v%d, off, s[%d:%d], s%d sc1", v_t + 1, S_WS, S_WS + 3, s_poll)
        a.e("s_mov_b64 exec, -1")
        if tag: vm.issue(tag)
    def flags_load():
        a.e("v_and_b32 v%d, 7, v%d", v_t + 1, v_lane)
        a.e("v_lshlrev_b32 v%d, 12, v%d", v_t + 1, v_t + 1)
        a.e("s_lshl_b32 s%d, s%d, 7", s_poll, s_h)
        a.e("s_add_u32 s%d, s%d, 0x%x", s_poll, s_poll, WS_FLAG)
        a.e("buffer_load_dword v%d, v%d, s[%d:%d], s%d offen sc1", v_t, v_t + 1, S_WS, S_WS + 3, s_poll)
    def flags_check():
        ok, sp = a.newlabel("Lfok"), a.newlabel("Lfsp")
        a.e("s_waitcnt vmcnt(0)")
        a.e("v_cmp_eq_u32 vcc, 1, v%d", v_t)
        a.e("s_nop 3")
        a.e("s_cmp_eq_u64 vcc, -1")
        a.e("s_cbranch_scc1 %s", ok)
        a.e("s_mov_b32 s%d, 0x20000", s_n)
        a.label(sp)
        a.e("s_sleep 8")
        a.e("buffer_load_dword v%d, v%d, s[%d:%d], s%d offen sc1", v_t, v_t + 1, S_WS, S_WS + 3, s_poll)
        a.e("s_waitcnt vmcnt(0)")
        a.e("v_cmp_eq_u32 vcc, 1, v%d", v_t)
        a.e("s_nop 3")
        a.e("s_cmp_eq_u64 vcc, -1")
        a.e("s_cbranch_scc1 %s", ok)
        a.e("s_sub_u32 s%d, s%d, 1", s_n, s_n)
        a.e("s_cbranch_scc0 %s", sp)
        a.label(ok)
    if fuse is not None:
        late_stores = []
        yield dict(late_stores=late_stores, flag_store=flag_store, role_setup=role_setup, vec_setup=vec_setup, w_dma_l=w_dma_l, xn_load_l=xn_load_l, poll=poll, poll_check=poll_check,
                   signal=signal, S_DBG=S_DBG, s_h=s_h, s_poll=s_poll)
    vmB = Cnt(a, "vmcnt", 63)
    vmB.ops = list(vm.ops)
    class Both:
        def issue(self, tag, onlyA=False):
            pass
    def issue_both(tag):
        vmB.ops.append(tag)
    _issue = vm.issue
    state = {"A_only": False}
    def issue2(tag):
        _issue(tag)
        if not state["A_only"]: vmB.ops.append(tag)
    vm.issue = issue2
    def wait_common(tags):
        nA, nB = vm.need(tags), vmB.need(tags)
        if nA is None and nB is None: return
        if nA == nB or nB is None or nA is None:
            n = min(x for x in (nA, nB) if x is not None)
            a.e("s_waitcnt vmcnt(%d)", n)
        else:
            l1, l2 = a.newlabel("Lw"), a.newlabel("Lw")
            a.e("s_cmp_eq_u32 s%d, 0", s_isA)
            a.e("s_cbranch_scc1 %s", l1)
            a.e("s_waitcnt vmcnt(%d)", nA)
            a.e("s_branch %s", l2)
            a.label(l1)
            a.e("s_waitcnt vmcnt(%d)", nB)
            a.label(l2)
        for tr, n in ((vm, nA), (vmB, nB)):
            if n is not None: tr.ops = tr.ops[len(tr.ops) - n:] if n > 0 else []
    def a_loads(stage, part=None):
        def fn():
            state["A_only"] = True
            stage_addr_static(stage)
            if part in (None, "K"):
                for em in stage_loads("K", ("st", stage)): em()
            if stage >= 0 and part in (None, "V"):
                for em in stage_loads("V", ("st", stage)): em()
            state["A_only"] = False
        only_A(fn)
    if fuse is not None:
        s_hoff = s_mfrom
        a.e("s_lshl_b32 s%d, s%d, 2", s_hoff, s_h)
        a.e("s_add_u32 s%d, s%d, 128", s_hoff, s_hoff)
    def mark_poll(): pass

    if fuse is None:
        for s in range(2):
            w_dma(s); xn_load(s)
        st.mark()
        a.e("v_bfe_u32 v%d, v%d, 2, 2", v_t, v_lane)
        a.e("v_lshlrev_b32 v%d, 6, v%d", v_t, v_t)
        a.e("v_and_b32 v%d, 3, v%d", v_t + 1, v_lane)
        a.e("v_lshl_add_u32 v%d, v%d, 3, v%d", v_t, v_t + 1, v_t)
        a.e("v_lshrrev_b32 v%d, 4, v%d", v_t + 1, v_lane)
        a.e("v_lshl_add_u32 v%d, v%d, 10, v%d", v_t, v_t + 1, v_t)
        a.e("v_and_b32 v%d, 1, v%d", v_t + 1, v_t + 1)
        a.e("v_lshl_add_u32 v%d, v%d, 5, v%d", v_trE, v_t + 1, v_t)
        a.e("v_xor_b32 v%d, 32, v%d", v_trO, v_trE)
        vec_setup()

    qfr = []
    for s in range(8):
        for u in range(2):
            for cb in range(8):
                off = (wq_lds(s) & 0xffff) + (cb >> 2) * 8192 + u * 4096 + ((cb >> 1) & 1) * 512
                dg = cb >> 1
                accs = [ACC + ((dg * 2 + qb) * 2 + (cb & 1)) * 4 for qb in range(2)]
                xfs = [XN + ((s * 2 + u) * 2 + qb) * 4 for qb in range(2)]
                qfr.append((s, off, cb & 1, accs, xfs, s == 0 and u == 0))
    def w_read(gi):
        s, off, odd, accs, xfs, first = qfr[gi]
        r = WF + (gi % NRW) * 4
        base = (v_trO if odd else v_trE) if wq_lds(s) < 65536 else (v_hiO if odd else v_hiE)
        for t in range(2):
            a.e("ds_read_b64_tr_b16 v[%d:%d], v%d offset:%d", r + 2 * t, r + 2 * t + 1, base, off + t * 256)
            lg.issue(("W", gi))
    wait_common([("W", 0), ("x", 0)] + ([("W", 1)] if fuse is not None else []))
    a.e("s_barrier")
    if fuse is None: st.mark()
    PRE = NRW - 1
    nread = [0]
    SIGSTEP = 2 if 'early' in exp else (4 if 'latev0' in exp else 3)
    POLLSTEP = 5 if 'poll5' in exp else 4
    for gi, (s, off, odd, accs, xfs, first) in enumerate(qfr):
        k = gi % 16
        if k == 0:
            if s > 0: a.e("s_barrier")
            if "fq" in exp and s in (1, 2, 4, 5): st.mark()
            pend = []
            if fuse is None:
                if s == 0:
                    pend = w_dma_l(2) + xn_load_l(2) + w_dma_l(3) + xn_load_l(3) + [lambda: a_loads(-1)]
                elif s + 3 < 8:
                    pend = w_dma_l(s + 3) + xn_load_l(s + 3)
                if s in (2, 4, 6): pend.append(lambda s=s: a_loads(s // 2 - 1))
            else:
                if "early" in exp:
                    if s < 4: pend = w_dma_l(s + 4)
                    if s == 0: pend += xn_load_l(6) + xn_load_l(7)
                else:
                    if s == 0: pend = w_dma_l(2) + xn_load_l(2) + w_dma_l(3) + late_stores[:4]
                    elif s == 1: pend = xn_load_l(3) + w_dma_l(4) + xn_load_l(4) + late_stores[4:]
                    elif s + 3 < 8: pend = w_dma_l(s + 3) + xn_load_l(s + 3)
                if s == SIGSTEP: pend = pend + [lambda: only_wave(0, lambda: flag_store(1))]
                if s == POLLSTEP:
                    pend = pend + [lambda: only_wave(4, flags_load)]
                if s == POLLSTEP + 1: pend = pend + [lambda: a_loads(-1, "K"), lambda: None, lambda: a_loads(0, "K"), lambda: None, lambda: a_loads(0, "V"),
                                   lambda: None, lambda: a_loads(1, "K"), lambda: None, lambda: a_loads(1, "V")]
                if s == max(6, POLLSTEP + 2) - (0): pend = pend + [lambda: a_loads(2, "K"), lambda: a_loads(2, "V")]
        lim = 16 if (s == 0 and fuse is None) else len(qfr)
        while nread[0] < min(gi + PRE + 1, lim): w_read(nread[0]); nread[0] += 1
        lg.wait(("W", gi))
        wf = WF + (gi % NRW) * 4
        for qb in range(2):
            d, xf = accs[qb], xfs[qb]
            c = "0" if first else "v[%d:%d]" % (d, d + 3)
            a.e("v_mfma_f32_16x16x32_bf16 v[%d:%d], v[%d:%d], v[%d:%d], %s", d, d + 3, wf, wf + 3, xf, xf + 3, c)
        if pend and k >= 1: pend.pop(0)()
        if k == (15 if ((s == 0 and (fuse is None or "early" not in exp)) or (s == 1 and "latev0" in exp)) else 11) and s + 1 < 8:
            assert not pend
            tags = [("x", s + 1), ("W", s + 1)] + ([("W", s + 2)] if s + 2 < 8 else [])
            if fuse is not None and s == SIGSTEP - 1: tags.append("st")
            wait_common(tags)
        if fuse is not None and s == POLLSTEP and k == 15:
            only_wave(4, flags_check)
    if "fq" not in exp: st.mark()
    a.e("s_nop 7")
    for blk in range(8):
        for i in range(4):
            a.e("v_cvt_pk_bf16_f32 v%d, v%d, v%d", Q + blk * 4 + i, ACC + blk * 8 + 2 * i, ACC + blk * 8 + 2 * i + 1)
    a.e("s_nop 1")
    for dg in range(4):
        for i in range(4):
            a.e("v_permlane16_swap_b32 v%d, v%d", Q + (dg * 2) * 4 + i, Q + (dg * 2 + 1) * 4 + i)
    wait_common([("st", -1), ("st", 0)])
    a.e("s_barrier")
    a.e("v_mov_b32 v%d, 0", v_l)
    a.e("v_mov_b32 v%d, 0xff800000", v_ninf)
    a.e("s_mov_b32 s%d, %d", s_cur, stage_slot(0))
    a.e("v_add_u32 v%d, %d, v%d", v_rd, stage_slot(0), v_l16)
    a.e("s_mov_b32 s%d, 3", s_ld)
    a.e("s_mov_b32 s%d, %d", s_lst, stage_slot(3))
    if fuse is None: st.mark()

    def dyn_stage_setup():
        L = []
        L.append("s_lshl_b32 s%d, s%d, 14" % (s_t0, s_ld))
        L.append("s_add_u32 s%d, s%d, s%d" % (s_t0, s_t0, s_hb))
        L.append("s_add_u32 s%d, s%d, 0x%x" % (s_kof, s_t0, WS_K + 16384))
        L.append("s_add_u32 s%d, s%d, 0x%x" % (s_vof, s_t0, WS_V))
        L.append("s_cmp_lt_u32 s%d, s%d" % (s_ld, s_TB))
        L.append("s_cselect_b32 s%d, s%d, s%d" % (s_kof, s_kof, s_oob))
        L.append("s_cselect_b32 s%d, s%d, s%d" % (s_vof, s_vof, s_oob))
        L.append("s_lshl_b32 s%d, s%d, 12" % (s_lslot, s_wl))
        L.append("s_add_u32 s%d, s%d, s%d" % (s_lslot, s_lslot, s_lst))
        return L
    def dyn_stage_advance():
        return ["s_add_u32 s%d, s%d, 1" % (s_ld, s_ld),
                "s_add_u32 s%d, s%d, %d" % (s_lst, s_lst, SLOT),
                "s_and_b32 s%d, s%d, %d" % (s_lst, s_lst, 4 * SLOT - 1)]
    def kfrag_off(b, ks): return (b * 8 + ks) * 1024
    def vfrag_off(b, s_, db): return 16384 + (b * 8 + s_ * 4 + db) * 1024
    seq = []
    for ks in range(8): seq.append(("QK", 0, ks, kfrag_off(0, ks)))
    for s_ in range(2):
        for db in range(4): seq.append(("PV", 0, (s_, db), vfrag_off(0, s_, db)))
    for ks in range(8): seq.append(("QK", 1, ks, kfrag_off(1, ks)))
    for s_ in range(2):
        for db in range(4): seq.append(("PV", 1, (s_, db), vfrag_off(1, s_, db)))
    def mfma(item, reg, c0=None):
        kind, b, idx, off = item
        if "m16" in exp:
            if kind == "QK":
                for z in range(2):
                    d = S[b] + 4 * ((2 * idx + z) % 4)
                    q = Q + ((idx + z) % 8) * 4
                    c = ("v[%d:%d]" % (NEGM, NEGM + 3)) if idx < 2 else "v[%d:%d]" % (d, d + 3)
                    a.e("v_mfma_f32_16x16x32_bf16 v[%d:%d], v[%d:%d], v[%d:%d], %s", d, d + 3, reg, reg + 3, q, q + 3, c)
            else:
                s_, db = idx
                for z in range(2):
                    d = O + db * 16 + s_ * 8 + z * 4
                    a.e("v_mfma_f32_16x16x32_bf16 v[%d:%d], v[%d:%d], v[%d:%d], v[%d:%d]", d, d + 3, reg, reg + 3, P[b] + 4 * z, P[b] + 4 * z + 3, d, d + 3)
            return
        if kind == "QK":
            c = ("v[%d:%d]" % (NEGM, NEGM + 15) if c0 is None else c0) if idx == 0 else "v[%d:%d]" % (S[b], S[b] + 15)
            a.e("v_mfma_f32_32x32x16_bf16 v[%d:%d], v[%d:%d], v[%d:%d], %s", S[b], S[b] + 15, reg, reg + 3, Q + idx * 4, Q + idx * 4 + 3, c)
        else:
            s_, db = idx
            a.e("v_mfma_f32_32x32x16_bf16 v[%d:%d], v[%d:%d], v[%d:%d], v[%d:%d]", O + db * 16, O + db * 16 + 15, reg, reg + 3,
                P[b] + 4 * s_, P[b] + 4 * s_ + 3, O + db * 16, O + db * 16 + 15)
    def sm_stream(b):
        L = []
        for r in range(17):
            if r < 16: L.append((r, 0, "v_exp_f32 v%d, v%d" % (TT + r % 4, S[b] + r)))
            if "pk" in exp:
                pp = v_pk[b]
                if r == 2: L.append((r, 1, "v_mov_b32 v%d, v%d" % (pp, TT + 0)))
                elif r == 3: L.append((r, 1, "v_mov_b32 v%d, v%d" % (pp + 1, TT + 1)))
                elif r >= 4 and r % 2 == 0:
                    t0 = TT + (r - 2) % 4
                    L.append((r, 1, "v_pk_add_f32 v[%d:%d], v[%d:%d], v[%d:%d]" % (pp, pp + 1, pp, pp + 1, t0, t0 + 1)))
                    if r == 16: L.append((r, 1, "v_add_f32 v%d, v%d, v%d" % (v_ps[b], pp, pp + 1)))
            elif r == 2: L.append((r, 1, "v_add_f32 v%d, v%d, v%d" % (v_ps[b], TT + 0, TT + 1)))
            elif r >= 3: L.append((r, 1, "v_add_f32 v%d, v%d, v%d" % (v_ps[b], v_ps[b], TT + (r - 1) % 4)))
            if r >= 2 and r % 2 == 0:
                i = r // 2 - 1
                L.append((r, 2, "v_cvt_pk_bf16_f32 v%d, v%d, v%d" % (P[b] + i, TT + (2 * i) % 4, TT + (2 * i + 1) % 4)))
        return L
    def sm_plain(b, lo=0, hi=16):
        for r in range(lo, hi + 1):
            for (rr, pos, ins) in sm_stream(b):
                if rr == r: a.e(ins)
            if r == 15 or r == hi: a.e("s_nop 0")
    START = [12, 28]
    stubs = []
    def cmp_ps(b): a.e("v_cmp_lt_f32 vcc, s%d, v%d", s_thr, v_ps[b])
    def br_slow(b, tag, replay):
        lab = "%s_chk%d_%s" % (name, b, tag)
        a.e("s_cbranch_vccnz %s", lab)
        a.label(lab + "_ret")
        stubs.append((lab, "%s_slow%d_%d" % (name, b, replay), lab + "_ret"))
    def ladd(b): a.e("v_add_f32 v%d, v%d, v%d", v_l, v_l, v_ps[b])

    def emit_mask(b, tile_expr_off):
        a.e("s_add_u32 s%d, s%d, %d", s_kb, s_t, tile_expr_off)
        a.e("s_lshl_b32 s%d, s%d, 6", s_kb, s_kb)
        a.e("s_add_u32 s%d, s%d, %d", s_kb, s_kb, 32 * b)
        a.e("v_subrev_u32 v%d, s%d, v%d", v_D, s_kb, v_qrel)
        for r0 in range(0, 16, 4):
            for j in range(4):
                r = r0 + j; i = r >> 2
                cst = 16 * (i & 1) + 8 * (i >> 1) + (r & 3)
                a.e("v_cmp_le_i32 s[%d:%d], %d, v%d", s_m + 2 * j, s_m + 2 * j + 1, cst, v_D)
            a.e("s_nop 1")
            for j in range(4):
                r = r0 + j
                a.e("v_cndmask_b32 v%d, v%d, v%d, s[%d:%d]", S[b] + r, v_ninf, S[b] + r, s_m + 2 * j, s_m + 2 * j + 1)

    def max16(dst, regs):
        a.e("v_max3_f32 v%d, v%d, v%d, v%d", dst, regs[0], regs[1], regs[2])
        i = 3
        while i < len(regs):
            if i + 1 < len(regs):
                a.e("v_max3_f32 v%d, v%d, v%d, v%d", dst, dst, regs[i], regs[i + 1]); i += 2
            else:
                a.e("v_max_f32 v%d, v%d, v%d", dst, dst, regs[i]); i += 1
    def crosshalf_max(r, t):
        a.e("v_mov_b32 v%d, v%d", t, r)
        a.e("s_nop 1")
        a.e("v_permlane32_swap_b32 v%d, v%d", r, t)
        a.e("s_nop 1")
        a.e("v_max_f32 v%d, v%d, v%d", r, r, t)

    def kv_read(i, base):
        item = seq[i % 32]
        r = RING + (i % NR) * 4
        a.e("ds_read_b128 v[%d:%d], v%d offset:%d", r, r + 3, base, item[3])

    def preloop(tag):
        def k0read(i):
            a.e("ds_read_b128 v[%d:%d], v%d offset:%d", RING + i * 4, RING + i * 4 + 3, v_rdn, kfrag_off(i >> 3, i & 7))
        for i in range(12): k0read(i)
        oz = 0
        for ks in range(8):
            if ks % 4 == 0: a.e("s_waitcnt lgkmcnt(8)")
            mfma(("QK", 0, ks, 0), RING + ks * 4, c0="0")
            if ks < 4: k0read(12 + ks)
            for _ in range(5):
                if oz < 64: a.e("v_mov_b32 v%d, 0", O + oz); oz += 1
        while oz < 64: a.e("v_mov_b32 v%d, 0", O + oz); oz += 1
        l = a.newlabel("Lpm")
        a.e("s_cmp_lg_u32 s%d, 1", s_T)
        a.e("s_cbranch_scc1 %s", l)
        a.e("s_mov_b32 s%d, -1", s_t)
        emit_mask(0, 1)
        a.label(l)
        max16(v_mx, [S[0] + i for i in range(16)])
        crosshalf_max(v_mx, v_f)
        for i in range(16):
            a.e("v_sub_f32 v%d, 0, v%d", NEGM + i, v_mx)
        for i in range(16):
            a.e("v_sub_f32 v%d, v%d, v%d", S[0] + i, S[0] + i, v_mx)
        a.e("s_waitcnt lgkmcnt(0)")
        items = [ins for (r, pos, ins) in sm_stream(0)]
        per = (len(items) + 7) // 8
        for ks in range(8):
            mfma(("QK", 1, ks, 0), RING + (8 + ks) * 4)
            for ins in items[ks * per:(ks + 1) * per]: a.e(ins)
        for i in range(PD): kv_read(i, v_rd)
        l = a.newlabel("Lpm")
        a.e("s_cmp_lg_u32 s%d, 1", s_T)
        a.e("s_cbranch_scc1 %s", l)
        emit_mask(1, 1)
        a.label(l)
        sm_plain(1, 0, 3)
        a.e("s_waitcnt lgkmcnt(0)")

    def iteration(tag, masked):
        tg = tag + ("m" if masked else "")
        top = "%s_loop%s" % (name, tg)
        streams = {}
        for b in range(2):
            for (r, pos, ins) in sm_stream(b):
                streams.setdefault(((START[b] + r) % 32, pos), []).append(ins)
        misc = {k: [] for k in range(32)}
        misc[1].append("s_waitcnt lgkmcnt(4)"); misc[9].append("s_waitcnt lgkmcnt(4)")
        misc[17].append("s_waitcnt lgkmcnt(4)"); misc[25].append("s_waitcnt lgkmcnt(4)")
        misc[3].append(lambda: ladd(0)); misc[21].append(lambda: ladd(1))
        misc[5].append("s_add_u32 s%d, s%d, %d" % (s_cur, s_cur, SLOT))
        misc[7].append("s_and_b32 s%d, s%d, %d" % (s_cur, s_cur, 4 * SLOT - 1))
        if tag == "A": misc[13].append("s_waitcnt vmcnt(8)")
        if "nobar" not in exp: misc[13].append("s_barrier")
        misc[15].append(lambda: br_slow(1, tg, 3))
        misc[19].append("v_add_u32 v%d, s%d, v%d" % (v_rd, s_cur, v_l16))
        misc[31].append(lambda: br_slow(0, tg, 3))
        if masked: misc[23].append("s_add_u32 s%d, s%d, 1" % (s_t, s_t))
        if tag == "A":
            setup = dyn_stage_setup()
            ld = stage_loads("K", track=False) + stage_loads("V", track=False)
            adv = dyn_stage_advance()
            for l_ in setup[:5]: misc[14].append(l_)
            for l_ in setup[5:]: misc[16].append(l_)
            for i, em in enumerate(ld): misc[[18, 20, 22, 23, 24, 26, 27, 28][i]].append(em)
            for l_ in adv: misc[29].append(l_)
        a(".p2align 3")
        a.label(top)
        for k in range(32):
            mfma(seq[k], RING + (k % NR) * 4)
            if "nords" not in exp: kv_read(k + PD, v_rd)
            if masked and k == START[0]: emit_mask(0, 1)
            if masked and k == START[1]: emit_mask(1, 0)
            for pos in range(3):
                if pos == 1 and k == 29: cmp_ps(0)
                if pos == 1 and k == 13: cmp_ps(1)
                for ins in streams.get((k, pos), []):
                    if "nosm" in exp: continue
                    a.e(ins)
            for m_ in misc[k]:
                if callable(m_): m_()
                else: a.e(m_)
        a.e("s_sub_u32 s%d, s%d, 1", s_cnt, s_cnt)
        a.e("s_cbranch_scc0 %s", top)

    def mainloop(tag):
        lsk, lend = a.newlabel("Lsk"), a.newlabel("Lend")
        a.e("s_cmp_lt_u32 s%d, 2", s_T)
        a.e("s_cbranch_scc1 %s", lend)
        a.e("s_cmp_lt_u32 s%d, 3", s_T)
        a.e("s_cbranch_scc1 %s", lsk)
        a.e("s_sub_u32 s%d, s%d, 3", s_cnt, s_T)
        iteration(tag, False)
        a.label(lsk)
        a.e("s_sub_u32 s%d, s%d, 2", s_t, s_T)
        a.e("s_mov_b32 s%d, 0", s_cnt)
        iteration(tag, True)
        a.label(lend)

    def final(tag):
        a.e("s_waitcnt lgkmcnt(0)")
        if tag == "B" and "nobar" not in exp:
            lb = a.newlabel("Lnb")
            a.e("s_cmp_eq_u32 s%d, s%d", s_T, s_TB)
            a.e("s_cbranch_scc1 %s", lb)
            a.e("s_barrier")
            a.label(lb)
        pv0 = [("PV", 0, (s_, db), vfrag_off(0, s_, db)) for s_ in range(2) for db in range(4)]
        pv1 = [("PV", 1, (s_, db), vfrag_off(1, s_, db)) for db in range(4) for s_ in range(2)]
        pv = pv0 + pv1
        for i in range(12):
            r = RING + i * 4
            a.e("ds_read_b128 v[%d:%d], v%d offset:%d", r, r + 3, v_rd, pv[i][3])
        ladd(0)
        rest = [ins for (r, pos, ins) in sm_stream(1) if r >= 4]
        per = (len(rest) + 7) // 8
        for i in range(8):
            if i % 4 == 0: a.e("s_waitcnt lgkmcnt(8)")
            mfma(pv[i], RING + i * 4)
            if i < 4:
                r = RING + (12 + i) * 4
                a.e("ds_read_b128 v[%d:%d], v%d offset:%d", r, r + 3, v_rd, pv[12 + i][3])
            for ins in rest[i * per:(i + 1) * per]: a.e(ins)
        cmp_ps(1)
        a.e("s_nop 1")
        br_slow(1, "fin" + tag, 9)
        ladd(1)
        a.e("v_mov_b32 v%d, v%d", v_f, v_l)
        a.e("s_lshl_b32 s%d, s%d, 5", s_t0, s_qb)
        a.e("s_add_u32 s%d, s%d, s%d", s_t0, s_t0, s_h)
        a.e("v_permlane32_swap_b32 v%d, v%d", v_l, v_f)
        a.e("s_lshl_b32 s%d, s%d, 13", s_t0, s_t0)
        a.e("s_add_u32 s%d, s%d, 0x%x", s_t0, s_t0, WS_CTX)
        a.e("v_add_f32 v%d, v%d, v%d", v_l, v_l, v_f)
        a.e("v_rcp_f32 v%d, v%d", v_l, v_l)
        a.e("s_add_u32 s%d, s%d, 4096", s_t1, s_t0)
        def epi(db):
            L = []
            for hfz in range(2):
                base = O + db * 16 + hfz * 8
                for i in range(8): L.append("v_mul_f32 v%d, v%d, v%d" % (base + i, base + i, v_l))
                for i in range(4): L.append("v_cvt_pk_bf16_f32 v%d, v%d, v%d" % (base + i, base + 2 * i, base + 2 * i + 1))
                ds = 2 * db + hfz
                L.append("buffer_store_dwordx4 v[%d:%d], v%d, s[%d:%d], s%d offen offset:%d" % (base, base + 3, v_l16, S_WS, S_WS + 3,
                         s_t0 if ds < 4 else s_t1, (ds & 3) * 1024))
            return L
        a.e("s_waitcnt lgkmcnt(0)")
        pend = []
        for i in range(8):
            mfma(pv[8 + i], RING + (8 + i) * 4)
            if i >= 4 and i % 2 == 0:
                pend += epi((i - 4) // 2)
            n = 0
            while pend and n < 13: a.e(pend.pop(0)); n += 1
            if not pend and i < 4: a.e("s_nop 3")
        a.e("s_nop 7")
        for ins in pend: a.e(ins)
        a.e("s_nop 3")
        for db in (2, 3):
            for ins in epi(db): a.e(ins)

    LA = name + "_roleA"
    a.e("v_add_u32 v%d, %d, v%d", v_rdn, 4 * SLOT, v_l16)
    a.e("s_cmp_lg_u32 s%d, 0", s_isA)
    a.e("s_cbranch_scc1 %s", LA)
    if "prioB" in exp: a.e("s_setprio 1")
    preloop("B")
    if "fq" not in exp: st.mark()
    mainloop("B")
    if "fq" not in exp: st.mark()
    final("B")
    if diag:
        a.e("s_waitcnt vmcnt(0)")
        if "fq" not in exp: st.mark()
        st.dump(S_WS, s_w, v_t, s_t0)
    a.e("s_endpgm")
    a.label(LA)
    preloop("A")
    mainloop("A")
    final("A")
    NPF = 0
    if "pf" in exp:
        NPF = 8
        SP = SPF
        for (karg, size, per, n_i) in ((A_WO, 4 << 20, 16384, 4), (B_W1, 1792 * 1024, 8192, 2), (B_W2, 1792 * 1024, 8192, 2)):
            a.e("s_load_dwordx2 s[%d:%d], s[0:1], %d", SP, SP + 1, karg)
            a.e("s_mul_i32 s%d, s2, %d", s_t0, per)
            a.e("s_mul_i32 s%d, s%d, %d", s_t1, s_wl, per // 4)
            a.e("s_add_u32 s%d, s%d, s%d", s_t0, s_t0, s_t1)
            a.e("s_waitcnt lgkmcnt(0)")
            srd(a, SP, SP, size)
            for i in range(n_i):
                a.e("buffer_load_dwordx4 v[%d:%d], v%d, s[%d:%d], s%d offen offset:%d", 144 + 4 * i, 147 + 4 * i, v_l16, SP, SP + 3, s_t0, i * 1024)
    a.e("s_mov_b32 s%d, 0", s_n)
    ll = name + "_ldloop"
    a.label(ll)
    a.e("s_cmp_lt_u32 s%d, 2", s_n)
    a.e("s_cbranch_scc1 %s_w16", ll)
    a.e("s_waitcnt vmcnt(8)")
    a.e("s_branch %s_go", ll)
    a.label(ll + "_w16")
    a.e("s_waitcnt vmcnt(%d)", 16 + NPF)
    a.label(ll + "_go")
    if "nobar" not in exp: a.e("s_barrier")
    for l in dyn_stage_setup(): a.e(l)
    for em in stage_loads("K", track=False) + stage_loads("V", track=False): em()
    for l in dyn_stage_advance(): a.e(l)
    a.e("s_add_u32 s%d, s%d, 1", s_n, s_n)
    a.e("s_add_u32 s%d, s%d, s%d", s_t0, s_n, s_T)
    a.e("s_cmp_lt_u32 s%d, s%d", s_t0, s_TB)
    a.e("s_cbranch_scc1 %s", ll)
    if "pf" in exp:
        SP = SPF
        a.e("s_load_dwordx2 s[%d:%d], s[0:1], %d", SP, SP + 1, A_WO)
        a.e("s_bfe_u32 s%d, s2, 0x20001", s_t0)
        a.e("s_lshl_b32 s%d, s%d, 20", s_t0, s_t0)
        a.e("s_lshr_b32 s%d, s2, 3", s_t1)
        a.e("s_lshl_b32 s%d, s%d, 15", s_t1, s_t1)
        a.e("s_add_u32 s%d, s%d, s%d", s_t0, s_t0, s_t1)
        a.e("s_lshl_b32 s%d, s%d, 13", s_t1, s_wl)
        a.e("s_add_u32 s%d, s%d, s%d", s_t0, s_t0, s_t1)
        a.e("s_waitcnt lgkmcnt(0)")
        srd(a, SP, SP, 4 << 20)
        for i in range(8):
            if i == 4: a.e("s_add_u32 s%d, s%d, 4096", s_t0, s_t0)
            a.e("buffer_load_dwordx4 v[%d:%d], v%d, s[%d:%d], s%d offen offset:%d", 144 + 4 * (i & 3), 147 + 4 * (i & 3), v_l16, SP, SP + 3, s_t0, (i & 3) * 1024)
    if "cpnext" in exp:
        l_ = a.newlabel("Lcp")
        a.e("s_cmp_lg_u32 s%d, 0", s_wl); a.e("s_cbranch_scc1 %s", l_)
        code_prefetch(a, None, NEXTK, NEXTK + "_end", SPF, s_t0, v_lane, v_t, 160)
        a.label(l_)
    a.label(name + "_end")
    a.e("s_endpgm")

    done = set()
    for (lab, target, ret) in stubs:
        a.label(lab)
        a.e("s_call_b64 s[%d:%d], %s", s_ret, s_ret + 1, target)
        a.e("s_branch %s", ret)
    for (lab, target, ret) in stubs:
        if target in done: continue
        done.add(target)
        b = int(target.split("_slow")[1][0]); replay = int(target.split("_slow")[1][2:])
        a.label(target)
        a.e("s_nop 15")
        max16(v_mx, [S[b] + i for i in range(16)])
        crosshalf_max(v_mx, v_f)
        a.e("v_ceil_f32 v%d, v%d", v_mx, v_mx)
        a.e("v_max_f32 v%d, 0, v%d", v_mx, v_mx)
        a.e("v_sub_f32 v%d, 0, v%d", v_f, v_mx)
        a.e("v_exp_f32 v%d, v%d", v_f, v_f)
        a.e("s_nop 0")
        for i in range(64): a.e("v_mul_f32 v%d, v%d, v%d", O + i, O + i, v_f)
        a.e("v_mul_f32 v%d, v%d, v%d", v_l, v_l, v_f)
        if False:
            o = 1 - b
            for i in range(8):
                a.e("v_lshlrev_b32 v%d, 16, v%d", U, P[o] + i)
                a.e("v_and_b32 v%d, 0xffff0000, v%d", U + 1, P[o] + i)
                a.e("v_mul_f32 v%d, v%d, v%d", U, U, v_f)
                a.e("v_mul_f32 v%d, v%d, v%d", U + 1, U + 1, v_f)
                a.e("v_cvt_pk_bf16_f32 v%d, v%d, v%d", P[o] + i, U, U + 1)
        for bb in range(2):
            for i in range(16): a.e("v_sub_f32 v%d, v%d, v%d", S[bb] + i, S[bb] + i, v_mx)
        for i in range(16): a.e("v_sub_f32 v%d, v%d, v%d", NEGM + i, NEGM + i, v_mx)
        sm_plain(b)
        if replay != 9: sm_plain(1 - b, 0, replay)
        a.e("s_nop 1")
        a.e("s_setpc_b64 s[%d:%d]", s_ret, s_ret + 1)
```

```python
from gen_common import *
import gen_common

def gen_k35(a, kind, name, kidx, diag=False, exp="", s_wave_in=None):
    fused = s_wave_in is not None
    SC1 = " sc1" if fused else ""
    if not fused: kernel_begin(a, name)
    st = Stamps(a, diag, kidx, base=56, maxn=10)
    vm = Cnt(a, "vmcnt", 63); lg = Cnt(a, "lgkmcnt", 15)
    proj = kind == "proj"
    NKS = 32 if proj else 14
    ACT_QB = 256 * 1024 if proj else 112 * 1024
    WS_ACT = WS_CTX if proj else WS_F
    S_W, S_WS, S_X, S_O, S_B = 4, 8, 12, 16, 20
    s_w, s_rt, s_ct, s_t0, s_t1, s_t2, s_a0, s_a1, s_wb, s_m0, s_rot = 24, 25, 26, 27, 28, 29, 30, 31, 32, 33, 34
    v_lane, v_l16, v_wd, v_tr, v_t = 0, 1, 2, 3, 4
    ACC = 64
    DEPTH = 6 if proj else 7
    for d_ in (2, 3, 4, 5):
        if 'depth%d' % d_ in exp: DEPTH = d_
    AF = 128
    WFR = 16
    LDSW = DEPTH * 2048

    if not fused:
        a.e("s_cmp_ge_u32 s2, 256")
        a.e("s_cbranch_scc1 %s_end", name)
    st.mark()
    if proj:
        a.e("s_load_dwordx2 s[4:5], s[0:1], %d", A_WO)
        a.e("s_load_dwordx2 s[12:13], s[0:1], %d", A_X)
    else:
        a.e("s_load_dwordx2 s[4:5], s[0:1], %d", B_W2)
        a.e("s_load_dwordx2 s[16:17], s[0:1], %d", OUT)
        a.e("s_load_dwordx2 s[20:21], s[0:1], %d", B_B2)
    a.e("s_load_dwordx2 s[8:9], s[0:1], %d", WS)
    if fused:
        a.e("s_mov_b32 s%d, s%d", s_w, s_wave_in)
    else:
        a.e("v_lshrrev_b32 v%d, 6, v0", v_t)
        a.e("v_and_b32 v%d, 63, v0", v_lane)
        a.e("v_readfirstlane_b32 s%d, v%d", s_w, v_t)
    if "map84" in exp:
        a.e("s_and_b32 s%d, s2, 7", s_t0)
        a.e("s_lshr_b32 s%d, s2, 3", s_t1)
        a.e("s_and_b32 s%d, s%d, 1", s_ct, s_t0)
        a.e("s_lshl_b32 s%d, s%d, 2", s_ct, s_ct)
        a.e("s_and_b32 s%d, s%d, 3", s_t2, s_t1)
        a.e("s_add_u32 s%d, s%d, s%d", s_ct, s_ct, s_t2)
        a.e("s_lshr_b32 s%d, s%d, 1", s_rt, s_t0)
        a.e("s_lshl_b32 s%d, s%d, 3", s_rt, s_rt)
        a.e("s_lshr_b32 s%d, s%d, 2", s_t1, s_t1)
        a.e("s_add_u32 s%d, s%d, s%d", s_rt, s_rt, s_t1)
    else:
        a.e("s_and_b32 s%d, s2, 31", s_rt)
        a.e("s_lshr_b32 s%d, s2, 5", s_ct)
    a.e("v_lshlrev_b32 v%d, 4, v%d", v_l16, v_lane)
    a.e("v_lshrrev_b32 v%d, 5, v%d", v_t, v_lane)
    a.e("v_bfe_u32 v%d, v%d, 2, 2", v_t + 1, v_lane)
    a.e("v_lshl_add_u32 v%d, v%d, 2, v%d", v_t, v_t, v_t + 1)
    a.e("v_lshlrev_b32 v%d, 10, v%d", v_wd, v_t)
    a.e("v_bfe_u32 v%d, v%d, 4, 1", v_t, v_lane)
    a.e("v_lshl_add_u32 v%d, v%d, 6, v%d", v_wd, v_t, v_wd)
    a.e("v_and_b32 v%d, 3, v%d", v_t, v_lane)
    a.e("v_lshl_add_u32 v%d, v%d, 4, v%d", v_wd, v_t, v_wd)
    a.e("v_lshrrev_b32 v%d, 5, v%d", v_t, v_lane)
    a.e("v_lshlrev_b32 v%d, 9, v%d", v_tr, v_t)
    a.e("v_bfe_u32 v%d, v%d, 2, 2", v_t, v_lane)
    a.e("v_lshl_add_u32 v%d, v%d, 6, v%d", v_tr, v_t, v_tr)
    a.e("v_bfe_u32 v%d, v%d, 4, 1", v_t, v_lane)
    a.e("v_lshl_add_u32 v%d, v%d, 5, v%d", v_tr, v_t, v_tr)
    a.e("v_and_b32 v%d, 3, v%d", v_t, v_lane)
    a.e("v_lshl_add_u32 v%d, v%d, 3, v%d", v_tr, v_t, v_tr)
    a.e("s_mul_i32 s%d, s%d, %d", s_m0, s_w, LDSW)
    a.e("v_add_u32 v%d, s%d, v%d", v_tr, s_m0, v_tr)
    a.e("s_waitcnt lgkmcnt(0)")
    srd(a, S_W, S_W, (4096 if proj else 1792) * 1024); srd(a, S_WS, S_WS, WS_BYTES)
    if proj: srd(a, S_X, S_X, 2 << 20)
    else:
        srd(a, S_O, S_O, 2 << 20); srd(a, S_B, S_B, 1024)
    a.e("s_mul_i32 s%d, s%d, %d", s_a0, s_rt, 2 * ACT_QB)
    a.e("s_mul_i32 s%d, s%d, %d", s_t0, s_w, NKS * 1024)
    a.e("s_add_u32 s%d, s%d, s%d", s_a0, s_a0, s_t0)
    a.e("s_add_u32 s%d, s%d, 0x%x", s_a0, s_a0, WS_ACT)
    a.e("s_add_u32 s%d, s%d, %d", s_a1, s_a0, ACT_QB)
    a.e("s_mul_i32 s%d, s%d, %d", s_wb, s_w, NKS * 16384)
    a.e("s_lshl_b32 s%d, s%d, 7", s_t0, s_ct)
    a.e("s_add_u32 s%d, s%d, s%d", s_wb, s_wb, s_t0)

    a.e("s_lshl_b32 s%d, s%d, 2", s_rot, s_ct)
    a.e("s_lshr_b32 s%d, s%d, 3", s_t0, s_rt)
    a.e("s_lshl_b32 s%d, s%d, 3", s_t0, s_t0)
    a.e("s_add_u32 s%d, s%d, s%d", s_rot, s_rot, s_t0)
    if proj:
        a.e("s_and_b32 s%d, s%d, 31", s_rot, s_rot)
    else:
        a.e("s_and_b32 s%d, s%d, 31", s_rot, s_rot)
        a.e("s_mul_i32 s%d, s%d, 7", s_rot, s_rot)
        a.e("s_lshr_b32 s%d, s%d, 4", s_rot, s_rot)
    if "norot" in exp: a.e("s_mov_b32 s%d, 0", s_rot)
    def loads(ks, part="wa"):
        sl = ks % DEPTH
        if "w" in part:
            a.e("s_lshl_b32 s%d, s%d, 14", s_t0, s_rot)
            a.e("s_add_u32 s%d, s%d, s%d", s_t0, s_t0, s_wb)
            a.e("s_add_u32 m0, s%d, %d", s_m0, sl * 2048)
            a.e("s_add_u32 s%d, s%d, 8192", s_t1, s_t0)
            a.e("buffer_load_dwordx4 v%d, s[%d:%d], s%d offen lds", v_wd, S_W, S_W + 3, s_t0)
            vm.issue(("w", ks))
            a.e("s_add_u32 m0, s%d, %d", s_m0, sl * 2048 + 1024)
            a.e("s_nop 0")
            a.e("buffer_load_dwordx4 v%d, s[%d:%d], s%d offen lds", v_wd, S_W, S_W + 3, s_t1)
            vm.issue(("w", ks))
        if "a" in part:
            a.e("s_lshl_b32 s%d, s%d, 10", s_t0, s_rot)
            a.e("s_add_u32 s%d, s%d, s%d", s_t2, s_a0, s_t0)
            a.e("s_add_u32 s%d, s%d, s%d", s_t1, s_a1, s_t0)
        a.e("s_add_u32 s%d, s%d, 1", s_rot, s_rot)
        a.e("s_cmp_eq_u32 s%d, %d", s_rot, NKS)
        a.e("s_cselect_b32 s%d, 0, s%d", s_rot, s_rot)
        if "a" in part:
            r = AF + sl * 8
            a.e("buffer_load_dwordx4 v[%d:%d], v%d, s[%d:%d], s%d offen%s", r, r + 3, v_l16, S_WS, S_WS + 3, s_t2, SC1)
            vm.issue(("a", ks))
            a.e("buffer_load_dwordx4 v[%d:%d], v%d, s[%d:%d], s%d offen%s", r + 4, r + 7, v_l16, S_WS, S_WS + 3, s_t1, SC1)
            vm.issue(("a", ks))
    def wreads(ks):
        sl = ks % DEPTH
        for fb in range(2):
            r = WFR + (ks & 1) * 8 + fb * 4
            for t in range(2):
                a.e("ds_read_b64_tr_b16 v[%d:%d], v%d offset:%d", r + 2 * t, r + 2 * t + 1, v_tr, sl * 2048 + t * 1024 + fb * 256)
                lg.issue(("w", ks))

    INIT = 2 if "ramp" in exp else DEPTH
    issued = [0]
    if fused:
        s_rot0 = 41
        a.e("s_mov_b32 s%d, s%d", s_rot0, s_rot)
        for ks in range(min(INIT, NKS)): loads(ks, "w")
        a.e("s_mov_b32 s%d, s%d", s_rot, s_rot0)
        lw, ok, sp = a.newlabel("Lpw"), a.newlabel("Lfok"), a.newlabel("Lfsp")
        a.e("s_cmp_lg_u32 s%d, 0", s_w); a.e("s_cbranch_scc1 %s", lw)
        a.e("v_cmp_gt_u32 vcc, 14, v%d", v_lane)
        a.e("s_nop 1")
        a.e("v_cndmask_b32 v%d, 0, v%d, vcc", v_t, v_lane)
        a.e("v_lshrrev_b32 v%d, 1, v%d", v_t + 1, v_t)
        a.e("v_lshlrev_b32 v%d, 5, v%d", v_t + 1, v_t + 1)
        a.e("v_and_b32 v%d, 1, v%d", v_t, v_t)
        a.e("v_add_u32 v%d, v%d, v%d", v_t, v_t, v_t + 1)
        a.e("s_lshr_b32 s%d, s%d, 1", s_t0, s_rt)
        a.e("s_and_b32 s%d, s%d, 3", s_t1, s_t0)
        a.e("s_lshl_b32 s%d, s%d, 3", s_t1, s_t1)
        a.e("s_lshr_b32 s%d, s%d, 2", s_t0, s_t0)
        a.e("s_lshl_b32 s%d, s%d, 1", s_t0, s_t0)
        a.e("s_add_u32 s%d, s%d, s%d", s_t0, s_t0, s_t1)
        a.e("v_add_u32 v%d, s%d, v%d", v_t, s_t0, v_t)
        a.e("v_lshlrev_b32 v%d, 7, v%d", v_t, v_t)
        a.e("s_mov_b32 s%d, 0x%x", s_t2, WS_FLAG3)
        a.e("s_mov_b32 s42, 0x40000")
        a.label(sp)
        a.e("buffer_load_dword v%d, v%d, s[%d:%d], s%d offen sc1", v_t + 1, v_t, S_WS, S_WS + 3, s_t2)
        a.e("s_waitcnt vmcnt(0)")
        a.e("v_cmp_eq_u32 vcc, 1, v%d", v_t + 1)
        a.e("s_nop 3")
        a.e("s_cmp_eq_u64 vcc, -1")
        a.e("s_cbranch_scc1 %s", ok)
        a.e("s_sleep %d", 24 if "sl24" in exp else 4)
        a.e("s_sub_u32 s42, s42, 1")
        a.e("s_cbranch_scc0 %s", sp)
        a.label(ok)
        a.label(lw)
        a.e("s_barrier")
        for ks in range(min(INIT, NKS)): loads(ks, "a"); issued[0] += 1
    else:
        for ks in range(min(INIT, NKS)): loads(ks); issued[0] += 1
    s_fb, s_qb, s_s, s_row, s_f16 = 36, 37, 38, 39, 40
    a.e("s_lshr_b32 s%d, s%d, 2", s_fb, s_w)
    a.e("s_bfe_u32 s%d, s%d, 0x10001", s_qb, s_w)
    a.e("s_and_b32 s%d, s%d, 1", s_s, s_w)
    a.e("s_lshl_b32 s%d, s%d, 1", s_row, s_rt)
    a.e("s_add_u32 s%d, s%d, s%d", s_row, s_row, s_qb)
    a.e("s_lshl_b32 s%d, s%d, 2", s_f16, s_ct)
    a.e("s_lshl_b32 s%d, s%d, 1", s_t0, s_fb)
    a.e("s_add_u32 s%d, s%d, s%d", s_f16, s_f16, s_t0)
    a.e("s_add_u32 s%d, s%d, s%d", s_f16, s_f16, s_s)
    R0 = 40
    v_q, v_hf = 8, 9
    a.e("v_and_b32 v%d, 31, v%d", v_q, v_lane)
    a.e("v_lshrrev_b32 v%d, 5, v%d", v_hf, v_lane)
    if proj:
        a.e("v_lshlrev_b32 v%d, 10, v%d", 10, v_q)
        a.e("v_lshl_add_u32 v%d, v%d, 3, v%d", 10, v_hf, 10)
        a.e("s_lshl_b32 s%d, s%d, 15", s_t0, s_row)
        a.e("s_lshl_b32 s%d, s%d, 5", s_t1, s_f16)
        a.e("s_add_u32 s%d, s%d, s%d", s_t0, s_t0, s_t1)
        a.e("buffer_load_dwordx2 v[%d:%d], v10, s[%d:%d], s%d offen", R0, R0 + 1, S_X, S_X + 3, s_t0)
        a.e("buffer_load_dwordx2 v[%d:%d], v10, s[%d:%d], s%d offen offset:16", R0 + 2, R0 + 3, S_X, S_X + 3, s_t0)
        vm.issue("res"); vm.issue("res")
    else:
        a.e("s_lshl_b32 s%d, s%d, 5", s_t0, s_row)
        a.e("s_add_u32 s%d, s%d, s%d", s_t0, s_t0, s_f16)
        a.e("s_lshl_b32 s%d, s%d, 10", s_t0, s_t0)
        a.e("s_add_u32 s%d, s%d, 0x%x", s_t0, s_t0, WS_H)
        a.e("buffer_load_dwordx4 v[%d:%d], v%d, s[%d:%d], s%d offen%s", R0, R0 + 3, v_l16, S_WS, S_WS + 3, s_t0, SC1)
        a.e("v_lshlrev_b32 v10, 3, v%d", v_hf)
        a.e("s_lshl_b32 s%d, s%d, 5", s_t1, s_f16)
        a.e("buffer_load_dwordx2 v[%d:%d], v10, s[%d:%d], s%d offen", R0 + 4, R0 + 5, S_B, S_B + 3, s_t1)
        a.e("buffer_load_dwordx2 v[%d:%d], v10, s[%d:%d], s%d offen offset:16", R0 + 6, R0 + 7, S_B, S_B + 3, s_t1)
        vm.issue("res"); vm.issue("res"); vm.issue("res")
    st.mark()
    vm.wait([("w", 0), ("a", 0)])
    wreads(0)
    for ks in range(NKS):
        if ks + 1 < NKS:
            assert issued[0] > ks + 1
            vm.wait([("w", ks + 1), ("a", ks + 1)])
            wreads(ks + 1)
        lg.wait(("w", ks))
        sl = ks % DEPTH
        for fb in range(2):
            for qb in range(2):
                d = ACC + (fb * 2 + qb) * 16
                wf = WFR + (ks & 1) * 8 + fb * 4
                af = AF + sl * 8 + qb * 4
                c = "0" if ks == 0 else "v[%d:%d]" % (d, d + 15)
                a.e("v_mfma_f32_32x32x16_bf16 v[%d:%d], v[%d:%d], v[%d:%d], %s", d, d + 15, wf, wf + 3, af, af + 3, c)
        n = 0
        while issued[0] < min(ks + DEPTH + 1, NKS) and n < 2:
            loads(issued[0]); issued[0] += 1; n += 1
    st.mark()
    a.e("s_barrier")
    a.e("s_lshl_b32 s%d, s%d, 14", s_t0, s_w)
    a.e("v_add_u32 v%d, s%d, v%d", v_t, s_t0, v_l16)
    a.e("s_nop 7")
    for tile in range(4):
        for i in range(4):
            r = ACC + tile * 16 + i * 4
            a.e("ds_write_b128 v%d, v[%d:%d] offset:%d", v_t, r, r + 3, (tile * 4 + i) * 1024)
    a.e("s_waitcnt lgkmcnt(0)")
    st.mark()
    a.e("s_barrier")
    a.e("s_lshr_b32 s%d, s%d, 1", s_t0, s_w)
    a.e("s_lshl_b32 s%d, s%d, 2", s_t0, s_t0)
    a.e("s_lshl_b32 s%d, s%d, 1", s_t1, s_s)
    a.e("s_add_u32 s%d, s%d, s%d", s_t0, s_t0, s_t1)
    a.e("s_lshl_b32 s%d, s%d, 10", s_t0, s_t0)
    a.e("v_add_u32 v%d, s%d, v%d", v_t, s_t0, v_l16)
    a.e("v_add_u32 v%d, 0x10000, v%d", v_t + 1, v_t)
    PR = 64
    for p in range(8):
        for u in range(2):
            r = PR + (p * 2 + u) * 4
            a.e("ds_read_b128 v[%d:%d], v%d offset:%d", r, r + 3, v_t if p < 4 else v_t + 1, (p & 3) * 16384 + u * 1024)
        if p == 3: a.e("s_waitcnt lgkmcnt(0)")
    a.e("s_waitcnt lgkmcnt(0)")
    for p in range(1, 8):
        for e in range(8):
            a.e("v_add_f32 v%d, v%d, v%d", PR + e, PR + e, PR + p * 8 + e)
    A = PR
    vm.waitall()
    F = 48
    def unpack(src, n, dst):
        for i in range(n):
            a.e("v_lshlrev_b32 v%d, 16, v%d", dst + 2 * i, src + i)
            a.e("v_and_b32 v%d, 0xffff0000, v%d", dst + 2 * i + 1, src + i)
    if proj:
        unpack(R0, 4, F)
        for e in range(8): a.e("v_add_f32 v%d, v%d, v%d", A + e, A + e, F + e)
        for i in range(4): a.e("v_cvt_pk_bf16_f32 v%d, v%d, v%d", F + 8 + i, A + 2 * i, A + 2 * i + 1)
        a.e("s_lshl_b32 s%d, s%d, 5", s_t0, s_row)
        a.e("s_add_u32 s%d, s%d, s%d", s_t0, s_t0, s_f16)
        a.e("s_lshl_b32 s%d, s%d, 10", s_t1, s_t0)
        a.e("s_add_u32 s%d, s%d, 0x%x", s_t1, s_t1, WS_H)
        a.e("buffer_store_dwordx4 v[%d:%d], v%d, s[%d:%d], s%d offen", F + 8, F + 11, v_l16, S_WS, S_WS + 3, s_t1)
        unpack(F + 8, 4, F)
        a.e("v_add_f32 v%d, v%d, v%d", A, F, F + 1)
        for e in range(2, 8): a.e("v_add_f32 v%d, v%d, v%d", A, A, F + e)
        a.e("v_mov_b32 v%d, v%d", A + 1, A)
        a.e("s_nop 1")
        a.e("v_permlane32_swap_b32 v%d, v%d", A, A + 1)
        a.e("s_nop 1")
        a.e("v_add_f32 v%d, v%d, v%d", A, A, A + 1)
        a.e("v_mul_f32 v%d, 0x3d800000, v%d", A, A)
        for e in range(8): a.e("v_sub_f32 v%d, v%d, v%d", F + e, F + e, A)
        a.e("v_mul_f32 v%d, v%d, v%d", A + 1, F, F)
        for e in range(1, 8): a.e("v_fmac_f32 v%d, v%d, v%d", A + 1, F + e, F + e)
        a.e("v_mov_b32 v%d, v%d", A + 2, A + 1)
        a.e("s_nop 1")
        a.e("v_permlane32_swap_b32 v%d, v%d", A + 1, A + 2)
        a.e("s_nop 1")
        a.e("v_add_f32 v%d, v%d, v%d", A + 1, A + 1, A + 2)
        a.e("s_lshl_b32 s%d, s%d, 8", s_t1, s_t0)
        a.e("s_add_u32 s%d, s%d, 0x%x", s_t1, s_t1, WS_ST)
        a.e("v_lshlrev_b32 v10, 3, v%d", v_q)
        a.e("v_cmp_gt_u32 vcc, 32, v%d", v_lane)
        a.e("s_and_saveexec_b64 s[42:43], vcc")
        a.e("buffer_store_dwordx2 v[%d:%d], v10, s[%d:%d], s%d offen", A, A + 1, S_WS, S_WS + 3, s_t1)
        a.e("s_mov_b64 exec, s[42:43]")
    else:
        unpack(R0, 4, F)
        for e in range(8): a.e("v_add_f32 v%d, v%d, v%d", A + e, A + e, F + e)
        unpack(R0 + 4, 4, F)
        for e in range(8): a.e("v_add_f32 v%d, v%d, v%d", A + e, A + e, F + e)
        for i in range(4): a.e("v_cvt_pk_bf16_f32 v%d, v%d, v%d", F + i, A + 2 * i, A + 2 * i + 1)
        a.e("s_nop 1")
        a.e("v_permlane32_swap_b32 v%d, v%d", F, F + 2)
        a.e("v_permlane32_swap_b32 v%d, v%d", F + 1, F + 3)
        a.e("v_lshlrev_b32 v10, 10, v%d", v_q)
        a.e("v_lshl_add_u32 v10, v%d, 4, v10", v_hf)
        a.e("s_lshl_b32 s%d, s%d, 15", s_t0, s_row)
        a.e("s_lshl_b32 s%d, s%d, 5", s_t1, s_f16)
        a.e("s_add_u32 s%d, s%d, s%d", s_t0, s_t0, s_t1)
        a.e("buffer_store_dwordx4 v[%d:%d], v10, s[%d:%d], s%d offen", F, F + 3, S_O, S_O + 3, s_t0)
    if diag:
        a.e("s_waitcnt vmcnt(0)")
        st.mark()
        st.dump(S_WS, s_w, 10, s_t0)
    if not fused: a.label(name + "_end")
    a.e("s_endpgm")
```

```python
from gen_common import *
from gen_k35 import gen_k35

def gen_rr(a, kind, name, kidx, diag=False, exp="", exp5="", cont=False, chain=None):
    if not cont: kernel_begin(a, name)
    st = Stamps(a, diag, kidx, base=56, maxn=10)
    vm = Cnt(a, "vmcnt", 63); lg = Cnt(a, "lgkmcnt", 15)
    proj = kind == "proj"
    fr = kind == "redffn1"
    NPH = 8 if proj else 4
    NWG = 256 if (proj or fr) else 224
    ROW = 1024 if proj else 3584
    S_W, S_WS, S_B = 4, 8, 12
    s_w, s_rt, s_ct, s_t0, s_t1, s_t2, s_ab, s_wb, s_m0, s_qb, s_rot, s_ksq, s_ph, s_isL = 16, 17, 18, 19, 20, 21, 22, 23, 24, 25, 26, 27, 28, 29
    v_lane, v_l16, v_wd, v_tr, v_tr2, v_t, v_hf = 0, 1, 2, 3, 4, 5, 8
    AF = 128
    ACC = 64
    WFR, NRW = 16, 7
    LDS_B = 131072

    if not cont:
        a.e("s_cmp_ge_u32 s2, %d", NWG)
        a.e("s_cbranch_scc1 %s_end", name)
    st.mark()
    if proj: a.e("s_load_dwordx2 s[4:5], s[0:1], %d", A_WO)
    else: a.e("s_load_dwordx4 s[4:7], s[0:1], %d", B_W1)
    a.e("s_load_dwordx2 s[8:9], s[0:1], %d", WS)
    S_X = 40
    if fr: a.e("s_load_dwordx2 s[%d:%d], s[0:1], %d", S_X, S_X + 1, A_X)
    t2 = fr and "tail2" in exp
    S_WAVE = 46
    if cont:
        a.e("s_mov_b32 s%d, s%d", s_w, S_WAVE)
    else:
        a.e("v_lshrrev_b32 v%d, 6, v0", v_t)
        a.e("v_and_b32 v%d, 63, v0", v_lane)
        a.e("v_readfirstlane_b32 s%d, v%d", s_w, v_t)
        a.e("s_nop 3")
        if t2 or chain: a.e("s_mov_b32 s%d, s%d", S_WAVE, s_w)
    a.e("s_lshr_b32 s%d, s%d, 2", s_isL, s_w)
    a.e("s_and_b32 s%d, s%d, 3", s_w, s_w)
    LT1 = name + "_t1"
    LT0 = name + "_t0"
    if proj:
        a.e("s_bfe_u32 s%d, s2, 0x20001", s_ksq)
        a.e("s_and_b32 s%d, s2, 1", s_rt)
        a.e("s_lshl_b32 s%d, s%d, 3", s_rt, s_rt)
        a.e("s_lshr_b32 s%d, s2, 5", s_t0)
        a.e("s_add_u32 s%d, s%d, s%d", s_rt, s_rt, s_t0)
        a.e("s_bfe_u32 s%d, s2, 0x20003", s_ct)
        a.e("s_lshl_b32 s%d, s%d, 1", s_rot, s_ct)
        a.e("s_add_u32 s%d, s%d, s%d", s_rot, s_rot, s_t0)
        a.e("s_and_b32 s%d, s%d, 7", s_rot, s_rot)
    elif "map47" in exp:
        a.e("s_bfe_u32 s%d, s2, 0x20001", s_rt)
        a.e("s_lshl_b32 s%d, s%d, 2", s_rt, s_rt)
        a.e("s_bfe_u32 s%d, s2, 0x20003", s_t0)
        a.e("s_add_u32 s%d, s%d, s%d", s_rt, s_rt, s_t0)
        a.e("s_and_b32 s%d, s2, 1", s_ct)
        a.e("s_mul_i32 s%d, s%d, 7", s_ct, s_ct)
        a.e("s_lshr_b32 s%d, s2, 5", s_t0)
        a.e("s_add_u32 s%d, s%d, s%d", s_ct, s_ct, s_t0)
        a.e("s_mov_b32 s%d, 0", s_rot)
    else:
        a.e("s_and_b32 s%d, s2, 15", s_rt)
        a.e("s_lshr_b32 s%d, s2, 4", s_ct)
        a.e("s_lshr_b32 s%d, s%d, 3", s_t0, s_rt)
        a.e("s_lshl_b32 s%d, s%d, 1", s_t0, s_t0)
        a.e("s_add_u32 s%d, s%d, s%d", s_rot, s_ct, s_t0)
        a.e("s_and_b32 s%d, s%d, 3", s_rot, s_rot)
    if "norot" in exp: a.e("s_mov_b32 s%d, 0", s_rot)
    a.e("v_lshlrev_b32 v%d, 4, v%d", v_l16, v_lane)
    a.e("v_lshrrev_b32 v%d, 5, v%d", v_hf, v_lane)
    a.e("v_bfe_u32 v%d, v%d, 2, 2", v_t, v_lane)
    a.e("s_movk_i32 s%d, %d", s_t0, ROW)
    a.e("v_mul_lo_u32 v%d, v%d, s%d", v_wd, v_t, s_t0)
    a.e("v_lshrrev_b32 v%d, 4, v%d", v_t, v_lane)
    a.e("v_lshl_add_u32 v%d, v%d, 6, v%d", v_wd, v_t, v_wd)
    a.e("v_and_b32 v%d, 3, v%d", v_t, v_lane)
    a.e("v_lshl_add_u32 v%d, v%d, 4, v%d", v_wd, v_t, v_wd)
    a.e("v_lshlrev_b32 v%d, 10, v%d", v_tr, v_hf)
    a.e("v_bfe_u32 v%d, v%d, 2, 2", v_t, v_lane)
    a.e("v_lshl_add_u32 v%d, v%d, 6, v%d", v_tr, v_t, v_tr)
    a.e("v_bfe_u32 v%d, v%d, 4, 1", v_t, v_lane)
    a.e("v_lshl_add_u32 v%d, v%d, 5, v%d", v_tr, v_t, v_tr)
    a.e("v_and_b32 v%d, 3, v%d", v_t, v_lane)
    a.e("v_lshl_add_u32 v%d, v%d, 3, v%d", v_tr, v_t, v_tr)
    a.e("v_add_u32 v%d, 0x10000, v%d", v_tr2, v_tr)
    a.e("s_waitcnt lgkmcnt(0)")
    if not proj:
        a.e("s_mov_b32 s12, s6"); a.e("s_mov_b32 s13, s7")
        srd(a, S_B, S_B, 1792 * 2)
    srd(a, S_W, S_W, (4096 if proj else 512) * ROW); srd(a, S_WS, S_WS, WS_BYTES)
    if fr: srd(a, S_X, S_X, 2 << 20)
    SC1 = " sc1" if fr else ""
    def flag_store(base, val, v1):
        a.e("s_lshl_b32 s%d, s2, 7", s_t2)
        a.e("s_add_u32 s%d, s%d, 0x%x", s_t2, s_t2, base)
        a.e("v_mov_b32 v%d, %d", v1, val)
        a.e("s_mov_b64 exec, 1")
        a.e("buffer_store_dword v%d, off, s[%d:%d], s%d sc1", v1, S_WS, S_WS + 3, s_t2)
        a.e("s_mov_b64 exec, -1")
    if proj and "clr2" in exp:
        l_ = a.newlabel("Lclr")
        a.e("s_cmp_lg_u32 s%d, 0", s_w); a.e("s_cbranch_scc1 %s", l_)
        a.e("s_cmp_lg_u32 s%d, 1", s_isL); a.e("s_cbranch_scc1 %s", l_)
        flag_store(WS_FLAG2, 0, v_t)
        flag_store(WS_FLAG3, 0, v_t)
        a.label(l_)
    a.e("s_lshl_b32 s%d, s%d, 2", s_qb, s_rt)
    a.e("s_add_u32 s%d, s%d, s%d", s_qb, s_qb, s_w)
    if proj:
        a.e("s_lshl_b32 s%d, s%d, 18", s_ab, s_qb)
        a.e("s_lshl_b32 s%d, s%d, 16", s_t0, s_ksq)
        a.e("s_add_u32 s%d, s%d, s%d", s_ab, s_ab, s_t0)
        a.e("s_add_u32 s%d, s%d, 0x%x", s_ab, s_ab, WS_CTX)
        a.e("s_lshl_b32 s%d, s%d, 20", s_wb, s_ksq)
    else:
        a.e("s_lshl_b32 s%d, s%d, 15", s_ab, s_qb)
        a.e("s_add_u32 s%d, s%d, 0x%x", s_ab, s_ab, WS_HN)
        a.e("s_mov_b32 s%d, 0", s_wb)
    a.e("s_mul_i32 s%d, s%d, %d", s_t0, s_w, 4 * ROW)
    a.e("s_add_u32 s%d, s%d, s%d", s_wb, s_wb, s_t0)
    a.e("s_lshl_b32 s%d, s%d, 8", s_t0, s_ct)
    a.e("s_add_u32 s%d, s%d, s%d", s_wb, s_wb, s_t0)
    a.e("s_lshl_b32 s%d, s%d, 10", s_m0, s_w)

    def phase_head(p, dst_w, dst_a):
        a.e("s_add_u32 s%d, s%d, %d", s_ph, s_rot, p)
        a.e("s_and_b32 s%d, s%d, %d", s_ph, s_ph, NPH - 1)
        if dst_w is not None:
            a.e("s_mul_i32 s%d, s%d, %d", dst_w, s_ph, 128 * ROW)
            a.e("s_add_u32 s%d, s%d, s%d", dst_w, dst_w, s_wb)
        if dst_a is not None:
            a.e("s_lshl_b32 s%d, s%d, 13", dst_a, s_ph)
            a.e("s_add_u32 s%d, s%d, s%d", dst_a, dst_a, s_ab)
    def w_loads(p, cnt):
        phase_head(p, s_t1, None)
        if "whit" in exp: a.e("s_mov_b32 s%d, 0", s_t1)
        for i in range(8):
            a.e("s_add_u32 m0, s%d, %d", s_m0, (p & 3) * 32768 + i * 4096)
            a.e("s_add_u32 s%d, s%d, %d", s_t0, s_t1, i * 16 * ROW)
            a.e("buffer_load_dwordx4 v%d, s[%d:%d], s%d offen lds", v_wd, S_W, S_W + 3, s_t0)
            cnt.issue(("w", p))
    def a_loads(p):
        L = []
        for i in range(8):
            def em(i=i):
                if i == 0:
                    phase_head(p, None, s_t2)
                    if "ahit" in exp: a.e("s_mov_b32 s%d, 0x%x", s_t2, WS_CTX)
                r = AF + ((p & 3) * 8 + i) * 4
                if i == 4: a.e("s_add_u32 s%d, s%d, 4096", s_t2, s_t2)
                a.e("buffer_load_dwordx4 v[%d:%d], v%d, s[%d:%d], s%d offen offset:%d%s", r, r + 3, v_l16, S_WS, S_WS + 3, s_t2, (i & 3) * 1024, SC1)
                vm.issue(("a", p))
            L.append(em)
        return L
    def red_part():
        PR, XR, A, F, H = 64, 96, 104, 120, 128
        v_r, v_h2, v_g, v_u, v_x = 9, 10, 11, 12, 13
        SCR = LDS_B + 256
        s_rb, s_r0 = 44, 45
        a.e("s_lshr_b32 s%d, s2, 2", s_rb)
        a.e("s_and_b32 s%d, s2, 3", s_r0)
        a.e("s_lshl_b32 s%d, s%d, 3", s_r0, s_r0)
        a.e("v_and_b32 v%d, 7, v%d", v_r, v_lane)
        a.e("v_bfe_u32 v%d, v%d, 3, 1", v_h2, v_lane)
        a.e("v_lshrrev_b32 v%d, 4, v%d", v_g, v_lane)
        a.e("s_lshl_b32 s%d, s%d, 3", s_t0, s_w)
        a.e("v_add_u32 v%d, s%d, v%d", v_g, s_t0, v_g)
        a.e("v_add_u32 v%d, s%d, v%d", v_t, s_r0, v_r)
        a.e("v_lshlrev_b32 v%d, 4, v%d", v_u, v_t)
        a.e("v_lshl_add_u32 v%d, v%d, 9, v%d", v_u, v_h2, v_u)
        a.e("v_lshl_add_u32 v%d, v%d, 10, v%d", v_u, v_g, v_u)
        a.e("v_lshlrev_b32 v%d, 10, v%d", v_x, v_t)
        a.e("v_lshl_add_u32 v%d, v%d, 5, v%d", v_x, v_g, v_x)
        a.e("v_lshl_add_u32 v%d, v%d, 3, v%d", v_x, v_h2, v_x)
        a.e("s_lshl_b32 s%d, s%d, 15", s_rb, s_rb)
        if cont:
            for u in range(2):
                a.e("buffer_load_dwordx2 v[%d:%d], v%d, s[%d:%d], s%d offen offset:%d", XR + 4 * u, XR + 4 * u + 1, v_x, S_X, S_X + 3, s_rb, u * 128)
                a.e("buffer_load_dwordx2 v[%d:%d], v%d, s[%d:%d], s%d offen offset:%d", XR + 4 * u + 2, XR + 4 * u + 3, v_x, S_X, S_X + 3, s_rb, u * 128 + 16)
            ok1, sp1 = a.newlabel("Lfok"), a.newlabel("Lfsp")
            a.e("v_and_b32 v%d, 3, v%d", F, v_lane)
            a.e("v_lshlrev_b32 v%d, 3, v%d", F, F)
            a.e("v_bfe_u32 v%d, v%d, 2, 2", F + 1, v_lane)
            a.e("v_lshl_add_u32 v%d, v%d, 1, v%d", F, F + 1, F)
            a.e("s_lshr_b32 s%d, s2, 4", s_t0)
            a.e("s_and_b32 s%d, s%d, 7", s_t1, s_t0)
            a.e("s_lshl_b32 s%d, s%d, 5", s_t1, s_t1)
            a.e("s_lshr_b32 s%d, s%d, 3", s_t0, s_t0)
            a.e("s_add_u32 s%d, s%d, s%d", s_t0, s_t0, s_t1)
            a.e("v_add_u32 v%d, s%d, v%d", F, s_t0, F)
            a.e("v_lshlrev_b32 v%d, 7, v%d", F, F)
            a.e("s_mov_b32 s%d, 0x%x", s_t2, WS_FLAG1)
            a.e("s_mov_b32 s47, 0x40000")
            a.label(sp1)
            a.e("buffer_load_dword v%d, v%d, s[%d:%d], s%d offen sc1", F + 1, F, S_WS, S_WS + 3, s_t2)
            a.e("s_waitcnt vmcnt(0)")
            a.e("v_cmp_eq_u32 vcc, 1, v%d", F + 1)
            a.e("s_nop 3")
            a.e("s_cmp_eq_u64 vcc, -1")
            a.e("s_cbranch_scc1 %s", ok1)
            a.e("s_sleep 3")
            a.e("s_sub_u32 s47, s47, 1")
            a.e("s_cbranch_scc0 %s", sp1)
            a.label(ok1)
        a.e("s_add_u32 s%d, s%d, 0x%x", s_t1, s_rb, WS_P)
        for p in range(4):
            for u in range(2):
                r = PR + (p * 2 + u) * 4
                a.e("s_add_u32 s%d, s%d, %d", s_t0, s_t1, u * 4096)
                a.e("buffer_load_dwordx4 v[%d:%d], v%d, s[%d:%d], s%d offen%s", r, r + 3, v_u, S_WS, S_WS + 3, s_t0, " sc1" if cont else "")
            if p < 3: a.e("s_add_u32 s%d, s%d, 0x%x", s_t1, s_t1, 64 * 32768)
        if not cont:
            for u in range(2):
                a.e("buffer_load_dwordx2 v[%d:%d], v%d, s[%d:%d], s%d offen offset:%d", XR + 4 * u, XR + 4 * u + 1, v_x, S_X, S_X + 3, s_rb, u * 128)
                a.e("buffer_load_dwordx2 v[%d:%d], v%d, s[%d:%d], s%d offen offset:%d", XR + 4 * u + 2, XR + 4 * u + 3, v_x, S_X, S_X + 3, s_rb, u * 128 + 16)
        a.e("s_barrier")
        st.mark()
        def unpack(src, dst):
            for i in range(4):
                a.e("v_lshlrev_b32 v%d, 16, v%d", dst + 2 * i, src + i)
                a.e("v_and_b32 v%d, 0xffff0000, v%d", dst + 2 * i + 1, src + i)
        NX = 0 if cont else 4
        a.e("s_waitcnt vmcnt(%d)", 6 + NX)
        unpack(PR, A); unpack(PR + 4, A + 8)
        for p in range(1, 4):
            a.e("s_waitcnt vmcnt(%d)", 6 + NX - 2 * p)
            for u in range(2):
                unpack(PR + (p * 2 + u) * 4, F)
                for e in range(8): a.e("v_add_f32 v%d, v%d, v%d", A + u * 8 + e, A + u * 8 + e, F + e)
        a.e("s_waitcnt vmcnt(0)")
        for u in range(2):
            unpack(XR + 4 * u, F)
            for e in range(8): a.e("v_add_f32 v%d, v%d, v%d", A + u * 8 + e, A + u * 8 + e, F + e)
        for i in range(8): a.e("v_cvt_pk_bf16_f32 v%d, v%d, v%d", H + i, A + 2 * i, A + 2 * i + 1)
        a.e("s_add_u32 s%d, s%d, 0x%x", s_t1, s_rb, WS_H)
        a.e("s_add_u32 s%d, s%d, 4096", s_t0, s_t1)
        a.e("buffer_store_dwordx4 v[%d:%d], v%d, s[%d:%d], s%d offen", H, H + 3, v_u, S_WS, S_WS + 3, s_t1)
        a.e("buffer_store_dwordx4 v[%d:%d], v%d, s[%d:%d], s%d offen", H + 4, H + 7, v_u, S_WS, S_WS + 3, s_t0)
        unpack(H, A); unpack(H + 4, A + 8)
        def rowreduce(r, slot):
            a.e("s_nop 1")
            a.e("v_add_f32_dpp v%d, v%d, v%d row_ror:8 row_mask:0xf bank_mask:0xf", r, r, r)
            a.e("v_mov_b32 v%d, v%d", F, r)
            a.e("s_nop 1")
            a.e("v_permlane16_swap_b32 v%d, v%d", r, F)
            a.e("s_nop 1")
            a.e("v_add_f32 v%d, v%d, v%d", r, r, F)
            a.e("v_mov_b32 v%d, v%d", F, r)
            a.e("s_nop 1")
            a.e("v_permlane32_swap_b32 v%d, v%d", r, F)
            a.e("s_nop 1")
            a.e("v_add_f32 v%d, v%d, v%d", r, r, F)
            a.e("v_lshlrev_b32 v%d, 4, v%d", F, v_r)
            a.e("v_add_u32 v%d, %d, v%d", F, SCR + slot * 128, F)
            a.e("s_lshl_b32 s%d, s%d, 2", s_t1, s_w)
            a.e("v_add_u32 v%d, s%d, v%d", F + 1, s_t1, F)
            a.e("ds_write_b32 v%d, v%d", F + 1, r)
            a.e("s_waitcnt lgkmcnt(0)")
            a.e("s_barrier")
            a.e("ds_read_b128 v[%d:%d], v%d", F + 4, F + 7, F)
            a.e("s_waitcnt lgkmcnt(0)")
            a.e("v_add_f32 v%d, v%d, v%d", r, F + 4, F + 5)
            a.e("v_add_f32 v%d, v%d, v%d", r, r, F + 6)
            a.e("v_add_f32 v%d, v%d, v%d", r, r, F + 7)
        M, V2 = 136, 137
        a.e("v_add_f32 v%d, v%d, v%d", M, A, A + 1)
        for e in range(2, 16): a.e("v_add_f32 v%d, v%d, v%d", M, M, A + e)
        rowreduce(M, 0)
        a.e("v_mul_f32 v%d, 0x3b000000, v%d", M, M)
        for e in range(16): a.e("v_sub_f32 v%d, v%d, v%d", A + e, A + e, M)
        a.e("v_mul_f32 v%d, v%d, v%d", V2, A, A)
        for e in range(1, 16): a.e("v_fmac_f32 v%d, v%d, v%d", V2, A + e, A + e)
        rowreduce(V2, 1)
        a.e("v_mov_b32 v%d, 0x3727c5ac", M)
        a.e("v_fmac_f32 v%d, 0x3b000000, v%d", M, V2)
        a.e("v_rsq_f32 v%d, v%d", M, M)
        a.e("s_nop 0")
        for e in range(16): a.e("v_mul_f32 v%d, v%d, v%d", A + e, A + e, M)
        HN = 140
        for i in range(8): a.e("v_cvt_pk_bf16_f32 v%d, v%d, v%d", HN + i, A + 2 * i, A + 2 * i + 1)
        a.e("s_add_u32 s%d, s%d, 0x%x", s_t1, s_rb, WS_HN)
        a.e("s_add_u32 s%d, s%d, 4096", s_t0, s_t1)
        a.e("buffer_store_dwordx4 v[%d:%d], v%d, s[%d:%d], s%d offen", HN, HN + 3, v_u, S_WS, S_WS + 3, s_t1)
        a.e("buffer_store_dwordx4 v[%d:%d], v%d, s[%d:%d], s%d offen", HN + 4, HN + 7, v_u, S_WS, S_WS + 3, s_t0)
        a.e("s_waitcnt vmcnt(0)")
        a.e("s_barrier")
        l_ = a.newlabel("Lfl")
        a.e("s_cmp_lg_u32 s%d, 0", s_w); a.e("s_cbranch_scc1 %s", l_)
        flag_store(WS_FLAG2, 1, F)
        a.label(l_)
        a.e("s_cmp_ge_u32 s2, 224")
        a.e("s_cbranch_scc1 %s", LT1 if t2 else name + "_end")
        st.mark()
        ok, sp = a.newlabel("Lfok"), a.newlabel("Lfsp")
        a.e("v_and_b32 v%d, 15, v%d", F, v_lane)
        a.e("v_lshlrev_b32 v%d, 7, v%d", F, F)
        a.e("s_lshl_b32 s%d, s%d, 11", s_t2, s_rt)
        a.e("s_add_u32 s%d, s%d, 0x%x", s_t2, s_t2, WS_FLAG2)
        a.e("s_mov_b32 s%d, 0x40000", s_r0)
        a.label(sp)
        a.e("buffer_load_dword v%d, v%d, s[%d:%d], s%d offen sc1", F + 1, F, S_WS, S_WS + 3, s_t2)
        a.e("s_waitcnt vmcnt(0)")
        a.e("v_cmp_eq_u32 vcc, 1, v%d", F + 1)
        a.e("s_nop 3")
        a.e("s_cmp_eq_u64 vcc, -1")
        a.e("s_cbranch_scc1 %s", ok)
        a.e("s_sleep 2")
        a.e("s_sub_u32 s%d, s%d, 1", s_r0, s_r0)
        a.e("s_cbranch_scc0 %s", sp)
        a.label(ok)
        if "fine" in exp: st.mark()
    LC = name + "_compute"
    a.e("s_cmp_eq_u32 s%d, 0", s_isL)
    a.e("s_cbranch_scc1 %s", LC)
    vl = Cnt(a, "vmcnt", 63)
    if fr:
        lt = a.newlabel("Ltile")
        a.e("s_cmp_lt_u32 s2, 224"); a.e("s_cbranch_scc1 %s", lt)
        for _ in range(4): a.e("s_barrier")
        if t2: a.e("s_branch %s", LT1)
        else: a.e("s_endpgm")
        a.label(lt)
        if not cont: a.e("s_barrier")
    w_loads(0, vl)
    if not proj:
        a.e("v_lshlrev_b32 v%d, 2, v%d", v_t, v_lane)
        a.e("s_lshl_b32 s%d, s%d, 8", s_t0, s_ct)
        a.e("s_mov_b32 m0, %d", LDS_B)
        a.e("s_nop 0")
        a.e("buffer_load_dword v%d, s[%d:%d], s%d offen lds", v_t, S_B, S_B + 3, s_t0)
        vl.issue("b")
    if fr:
        w_loads(1, vl)
        if cont: a.e("s_barrier")
        a.e("s_barrier"); a.e("s_barrier")
        if "wmid" in exp:
            w_loads(2, vl)
            a.e("s_barrier")
            w_loads(3, vl)
        elif "wlate" in exp:
            a.e("s_barrier")
            w_loads(2, vl); w_loads(3, vl)
        else:
            w_loads(2, vl); w_loads(3, vl)
            a.e("s_barrier")
    nxt = NPH if fr else 1
    for p in range(NPH):
        if fr and "strict" in exp: vl.wait([("w", 0), "b"] if p == 0 else [("w", p)])
        else: vl.wait([("w", 0), "b"] if p == 0 else ([("w", 1)] if p == 1 else [("w", p), ("w", min(p + 1, NPH - 1))]))
        a.e("s_barrier")
        upto = 2 if p == 0 else min(p + 3, NPH - 1)
        while nxt <= min(upto, NPH - 1):
            w_loads(nxt, vl); nxt += 1
        if "pf" in exp and proj and p == NPH - 4:
            a.e("s_lshr_b32 s34, s2, 3")
            for ins in l2_prefetch(a, (B_W1, 1792 * 1024), 1792 * 1024, 32, 4, 34, s_w, 36, 35, s_t1, v_l16, 64):
                a.e(ins)
                if ins.startswith("buffer"): vl.issue("pf")
        if "pf" in exp and not proj and p == 1:
            a.e("s_lshr_b32 s34, s2, 3")
            for ins in l2_prefetch(a, (B_W2, 1792 * 1024), 1792 * 1024, 28, 4, 34, s_w, 36, 35, s_t1, v_l16, 64):
                a.e(ins)
                if ins.startswith("buffer"): vl.issue("pf")
    if "cpnext" in exp and not t2 and not chain:
        l_ = a.newlabel("Lcp")
        a.e("s_cmp_lg_u32 s%d, 0", s_w); a.e("s_cbranch_scc1 %s", l_)
        nxt_k = ("redffn1_kernel" if proj else "ffn2_kernel")
        code_prefetch(a, None, nxt_k, nxt_k + "_end", 36, s_t0, v_lane, v_t, 64)
        a.label(l_)
    if t2: a.e("s_branch %s", LT1)
    elif chain: a.e("s_branch %s", LT0)
    else: a.e("s_endpgm")
    a.label(LC)
    if fr: red_part()
    for em in a_loads(0): em()
    if not fr: st.mark()
    frs = [(p, j, cb) for p in range(NPH) for j in range(8) for cb in range(4)]
    def w_read(gi):
        p, j, cb = frs[gi]
        r = WFR + (gi % NRW) * 4
        for t in range(2):
            off = (p & 3) * 32768 + (4 * j + 2 * t) * 1024 + cb * 256
            a.e("ds_read_b64_tr_b16 v[%d:%d], v%d offset:%d", r + 2 * t, r + 2 * t + 1, v_tr if off < 65536 else v_tr2, off & 0xffff)
            lg.issue(("w", gi))
    PRE = NRW - 1
    pend = []
    nread = 0
    for gi, (p, j, cb) in enumerate(frs):
        k = gi % 32
        if k == 0:
            a.e("s_barrier")
            if (p == 0 and not fr) or (fr and "fine" in exp and p in (0, 1, 2)): st.mark()
            pend = (a_loads(1) if p == 0 else []) + (a_loads(p + 2) if p + 2 < NPH else [])
        lim = 32 * (p + 1) if (p <= 1 or (fr and "strict" in exp)) else len(frs)
        while nread < min(gi + PRE + 1, lim, len(frs)):
            w_read(nread); nread += 1
        if cb == 0: vm.wait(("a", p)) if j == 0 else None
        if fr and "fine" in exp and gi == 0: st.mark()
        if gi % 2 == 0: lg.wait([("w", gi), ("w", gi + 1)])
        wf = WFR + (gi % NRW) * 4
        d = ACC + cb * 16
        af = AF + ((p & 3) * 8 + j) * 4
        c = "0" if gi < 4 else "v[%d:%d]" % (d, d + 15)
        a.e("v_mfma_f32_32x32x16_bf16 v[%d:%d], v[%d:%d], v[%d:%d], %s", d, d + 15, wf, wf + 3, af, af + 3, c)
        if pend and (k % 3 == 2 or (p == 0 and k % 3 != 0) or (p == 0 and k < 12)): pend.pop(0)()
    st.mark()
    a.e("s_nop 7")
    if proj:
        a.e("s_lshl_b32 s%d, s%d, 6", s_t0, s_ksq)
        a.e("s_add_u32 s%d, s%d, s%d", s_t0, s_t0, s_qb)
        a.e("s_lshl_b32 s%d, s%d, 15", s_t0, s_t0)
        a.e("s_lshl_b32 s%d, s%d, 13", s_t1, s_ct)
        a.e("s_add_u32 s%d, s%d, s%d", s_t0, s_t0, s_t1)
        a.e("s_add_u32 s%d, s%d, 0x%x", s_t0, s_t0, WS_P)
    else:
        a.e("s_mul_i32 s%d, s%d, %d", s_t0, s_qb, 112 * 1024)
        a.e("s_lshl_b32 s%d, s%d, 13", s_t1, s_ct)
        a.e("s_add_u32 s%d, s%d, s%d", s_t0, s_t0, s_t1)
        a.e("s_add_u32 s%d, s%d, 0x%x", s_t0, s_t0, WS_F)
        a.e("v_lshlrev_b32 v%d, 3, v%d", v_t, v_hf)
        a.e("v_add_u32 v%d, %d, v%d", v_t, LDS_B, v_t)
        BR = 128
        for cb in range(4):
            for i in range(4):
                r = BR + (cb * 4 + i) * 2
                a.e("ds_read_b64 v[%d:%d], v%d offset:%d", r, r + 1, v_t, cb * 64 + i * 16)
            if cb == 1: a.e("s_waitcnt lgkmcnt(0)")
        a.e("s_waitcnt lgkmcnt(0)")
    a.e("s_add_u32 s%d, s%d, 4096", s_t1, s_t0)
    a.e("s_nop 3")
    for cb in range(4):
        for hz in range(2):
            base = ACC + cb * 16 + hz * 8
            if not proj:
                for ii in range(2):
                    r = 128 + (cb * 4 + hz * 2 + ii) * 2
                    T = 176
                    a.e("v_lshlrev_b32 v%d, 16, v%d", T, r)
                    a.e("v_and_b32 v%d, 0xffff0000, v%d", T + 1, r)
                    a.e("v_lshlrev_b32 v%d, 16, v%d", T + 2, r + 1)
                    a.e("v_and_b32 v%d, 0xffff0000, v%d", T + 3, r + 1)
                    for j in range(4):
                        a.e("v_add_f32 v%d, v%d, v%d", base + ii * 4 + j, base + ii * 4 + j, T + j)
                for e in range(8):
                    a.e("v_max_f32 v%d, 0, v%d", base + e, base + e)
                for e in range(8):
                    a.e("v_mul_f32 v%d, v%d, v%d", base + e, base + e, base + e)
            for i in range(4):
                a.e("v_cvt_pk_bf16_f32 v%d, v%d, v%d", base + i, base + 2 * i, base + 2 * i + 1)
            ds = 2 * cb + hz
            a.e("buffer_store_dwordx4 v[%d:%d], v%d, s[%d:%d], s%d offen offset:%d", base, base + 3, v_l16, S_WS, S_WS + 3,
                s_t0 if ds < 4 else s_t1, (ds & 3) * 1024)
    if diag:
        a.e("s_waitcnt vmcnt(0)")
        st.mark()
        st.dump(S_WS, s_w, 10, s_t2)
    if t2:
        a.e("s_waitcnt vmcnt(0)")
        a.label(LT1)
        a.e("s_barrier")
        l_ = a.newlabel("Lf3")
        a.e("s_cmp_lg_u32 s%d, 0", S_WAVE); a.e("s_cbranch_scc1 %s", l_)
        a.e("s_cmp_ge_u32 s2, 224"); a.e("s_cbranch_scc1 %s", l_)
        flag_store(WS_FLAG3, 1, v_t)
        a.label(l_)
        gen_k35(a, "ffn2", name + "_ffn2", 4, diag=diag, exp=exp5, s_wave_in=S_WAVE)
    if chain:
        a.e("s_waitcnt vmcnt(0)")
        a.label(LT0)
        a.e("s_barrier")
        l_ = a.newlabel("Lf1")
        a.e("s_cmp_lg_u32 s%d, 0", S_WAVE); a.e("s_cbranch_scc1 %s", l_)
        flag_store(WS_FLAG1, 1, v_t)
        a.label(l_)
        chain()
    if not cont: a.label(name + "_end")
    a.e("s_endpgm")


def gen_red(a, name, kidx, diag=False, exp=""):
    kernel_begin(a, name)
    st = Stamps(a, diag, kidx, base=56, maxn=10)
    S_X, S_WS = 4, 8
    s_w, s_t0, s_t1, s_qb, s_r0 = 12, 13, 14, 15, 16
    v_lane, v_r, v_hf, v_g, v_u, v_t = 0, 1, 2, 3, 4, 5
    PR, XR, A, F = 16, 32, 40, 48
    a.e("s_cmp_ge_u32 s2, 256")
    a.e("s_cbranch_scc1 %s_end", name)
    st.mark()
    a.e("s_load_dwordx2 s[4:5], s[0:1], %d", A_X)
    a.e("s_load_dwordx2 s[8:9], s[0:1], %d", WS)
    a.e("v_lshrrev_b32 v%d, 6, v0", v_t)
    a.e("v_and_b32 v%d, 63, v0", v_lane)
    a.e("v_readfirstlane_b32 s%d, v%d", s_w, v_t)
    a.e("s_lshr_b32 s%d, s2, 2", s_qb)
    a.e("s_and_b32 s%d, s2, 3", s_r0)
    a.e("s_lshl_b32 s%d, s%d, 3", s_r0, s_r0)
    a.e("v_and_b32 v%d, 7, v%d", v_r, v_lane)
    a.e("v_bfe_u32 v%d, v%d, 3, 1", v_hf, v_lane)
    a.e("v_lshrrev_b32 v%d, 4, v%d", v_g, v_lane)
    a.e("s_lshl_b32 s%d, s%d, 2", s_t0, s_w)
    a.e("v_add_u32 v%d, s%d, v%d", v_g, s_t0, v_g)
    a.e("v_add_u32 v%d, s%d, v%d", v_t, s_r0, v_r)
    a.e("v_lshlrev_b32 v%d, 4, v%d", v_u, v_t)
    a.e("v_lshl_add_u32 v%d, v%d, 9, v%d", v_u, v_hf, v_u)
    a.e("v_lshl_add_u32 v%d, v%d, 10, v%d", v_u, v_g, v_u)
    a.e("v_lshlrev_b32 v%d, 10, v%d", v_t + 1, v_t)
    a.e("v_lshl_add_u32 v%d, v%d, 5, v%d", v_t + 1, v_g, v_t + 1)
    a.e("v_lshl_add_u32 v%d, v%d, 3, v%d", v_t + 1, v_hf, v_t + 1)
    a.e("s_waitcnt lgkmcnt(0)")
    srd(a, S_X, S_X, 2 << 20); srd(a, S_WS, S_WS, WS_BYTES)
    a.e("s_lshl_b32 s%d, s%d, 15", s_t0, s_qb)
    a.e("s_add_u32 s%d, s%d, 0x%x", s_t1, s_t0, WS_P)
    for p in range(4):
        a.e("buffer_load_dwordx4 v[%d:%d], v%d, s[%d:%d], s%d offen", PR + 4 * p, PR + 4 * p + 3, v_u, S_WS, S_WS + 3, s_t1)
        if p < 3: a.e("s_add_u32 s%d, s%d, 0x%x", s_t1, s_t1, 64 * 32768)
    a.e("buffer_load_dwordx2 v[%d:%d], v%d, s[%d:%d], s%d offen", XR, XR + 1, v_t + 1, S_X, S_X + 3, s_t0)
    a.e("buffer_load_dwordx2 v[%d:%d], v%d, s[%d:%d], s%d offen offset:16", XR + 2, XR + 3, v_t + 1, S_X, S_X + 3, s_t0)
    if "pf" in exp:
        a.e("v_lshlrev_b32 v12, 4, v%d", v_lane)
        a.e("s_lshr_b32 s20, s2, 3")
        for ins in l2_prefetch(a, (B_W1, 1792 * 1024), 1792 * 1024, 32, 8, 20, s_w, 24, 21, 22, 12, 64 - 16 + 16): a.e(ins)
    st.mark()
    def unpack(src, dst):
        for i in range(4):
            a.e("v_lshlrev_b32 v%d, 16, v%d", dst + 2 * i, src + i)
            a.e("v_and_b32 v%d, 0xffff0000, v%d", dst + 2 * i + 1, src + i)
    NPF = 7 if "pf" in exp else 0
    a.e("s_waitcnt vmcnt(%d)", 5 + NPF)
    unpack(PR, A)
    for p in range(1, 4):
        a.e("s_waitcnt vmcnt(%d)", 5 - p + NPF)
        unpack(PR + 4 * p, F)
        for e in range(8): a.e("v_add_f32 v%d, v%d, v%d", A + e, A + e, F + e)
    a.e("s_waitcnt vmcnt(%d)", NPF)
    unpack(XR, F)
    for e in range(8): a.e("v_add_f32 v%d, v%d, v%d", A + e, A + e, F + e)
    H = 56
    for i in range(4): a.e("v_cvt_pk_bf16_f32 v%d, v%d, v%d", H + i, A + 2 * i, A + 2 * i + 1)
    a.e("s_add_u32 s%d, s%d, 0x%x", s_t1, s_t0, WS_H)
    a.e("buffer_store_dwordx4 v[%d:%d], v%d, s[%d:%d], s%d offen", H, H + 3, v_u, S_WS, S_WS + 3, s_t1)
    unpack(H, A)
    def rowreduce(r, slot):
        a.e("s_nop 1")
        a.e("v_add_f32_dpp v%d, v%d, v%d row_ror:8 row_mask:0xf bank_mask:0xf", r, r, r)
        a.e("v_mov_b32 v%d, v%d", F, r)
        a.e("s_nop 1")
        a.e("v_permlane16_swap_b32 v%d, v%d", r, F)
        a.e("s_nop 1")
        a.e("v_add_f32 v%d, v%d, v%d", r, r, F)
        a.e("v_mov_b32 v%d, v%d", F, r)
        a.e("s_nop 1")
        a.e("v_permlane32_swap_b32 v%d, v%d", r, F)
        a.e("s_nop 1")
        a.e("v_add_f32 v%d, v%d, v%d", r, r, F)
        a.e("v_lshlrev_b32 v%d, 5, v%d", F, v_r)
        a.e("s_lshl_b32 s%d, s%d, 2", s_t1, s_w)
        a.e("v_add_u32 v%d, s%d, v%d", F + 1, s_t1, F)
        a.e("ds_write_b32 v%d, v%d offset:%d", F + 1, r, slot * 256)
        a.e("s_waitcnt lgkmcnt(0)")
        a.e("s_barrier")
        a.e("ds_read_b128 v[%d:%d], v%d offset:%d", F + 4, F + 7, F, slot * 256)
        a.e("ds_read_b128 v[%d:%d], v%d offset:%d", F + 8, F + 11, F, slot * 256 + 16)
        a.e("s_waitcnt lgkmcnt(0)")
        a.e("v_add_f32 v%d, v%d, v%d", r, F + 4, F + 5)
        for i in range(6, 12): a.e("v_add_f32 v%d, v%d, v%d", r, r, F + i)
    M, V2 = 60, 61
    a.e("v_add_f32 v%d, v%d, v%d", M, A, A + 1)
    for e in range(2, 8): a.e("v_add_f32 v%d, v%d, v%d", M, M, A + e)
    rowreduce(M, 0)
    a.e("v_mul_f32 v%d, 0x3b000000, v%d", M, M)
    for e in range(8): a.e("v_sub_f32 v%d, v%d, v%d", A + e, A + e, M)
    a.e("v_mul_f32 v%d, v%d, v%d", V2, A, A)
    for e in range(1, 8): a.e("v_fmac_f32 v%d, v%d, v%d", V2, A + e, A + e)
    rowreduce(V2, 1)
    a.e("v_mov_b32 v%d, 0x3727c5ac", M)
    a.e("v_fmac_f32 v%d, 0x3b000000, v%d", M, V2)
    a.e("v_rsq_f32 v%d, v%d", M, M)
    a.e("s_nop 0")
    for e in range(8): a.e("v_mul_f32 v%d, v%d, v%d", A + e, A + e, M)
    for i in range(4): a.e("v_cvt_pk_bf16_f32 v%d, v%d, v%d", H + i - 0, A + 2 * i, A + 2 * i + 1) if False else None
    HN = 32
    for i in range(4): a.e("v_cvt_pk_bf16_f32 v%d, v%d, v%d", HN + i, A + 2 * i, A + 2 * i + 1)
    a.e("s_add_u32 s%d, s%d, 0x%x", s_t1, s_t0, WS_HN)
    a.e("buffer_store_dwordx4 v[%d:%d], v%d, s[%d:%d], s%d offen", HN, HN + 3, v_u, S_WS, S_WS + 3, s_t1)
    if diag:
        a.e("s_waitcnt vmcnt(0)")
        st.mark()
        st.dump(S_WS, s_w, 10, s_t0)
    a.label(name + "_end")
    a.e("s_endpgm")
```

```python
import sys
from gen_common import *
from gen_k1 import gen_k1
from gen_k2 import gen_k2, gen_k2_iter
from gen_k35 import gen_k35
from gen_rr import gen_rr, gen_red

def header(a, launches):
    hdr = open("sequential_preLN__compressed_kv_cla__dense_activation_squared_relu__prompt.s.ref").read().split("\n")
    for l in hdr:
        if l.startswith("; Override launch"): break
        a(l)
    for (k, g, b, lds) in launches:
        a("; @launch kernel=%s grid=(%d,1,1) block=(%d,1,1) lds=%d" % (k, g, b, lds))
    a('.amdgcn_target "amdgcn-amd-amdhsa--gfx950"')
    a(".text")

def main(out, which, diag=False, exp=''):
    a = Asm()
    L = []
    if "1" in which: L.append(("kv_kernel", 256, 512, 131072 + 8192 + 1024))
    if "2" in which: L.append(("attn_kernel", 256, 512, 147456))
    if "f" in which: L.insert(0, ("kvattn_kernel", 256, 512, 147456))
    if "3" in which: L.append(("proj_kernel", 256, 512, 131072))
    if "T" in which: L.append(("tail_kernel", 256, 512, 131072 + 512))
    if "r" in which: L.append(("red_kernel", 256, 512, 1024))
    if "4" in which: L.append(("ffn1_kernel", 224, 512, 131072 + 256))
    if "R" in which: L.append(("redffn1_kernel", 256, 512, 131072 + 512))
    if "5" in which: L.append(("ffn2_kernel", 256, 512, 131072))
    header(a, L)
    descs = []
    def EX(k):
        out = []
        for f in exp.split(","):
            if ":" in f:
                kk, ff = f.split(":")
                if k in kk: out.append(ff)
            else: out.append(f)
        return ",".join(out)
    import gen_common
    pol = "sc1" if "sc1" in exp else ("nt" if "stnt" in exp else ("sc0 sc1" if "sc01" in exp else ""))
    if "sc01" in exp: pol = "sc0 sc1"
    def setpol(k):
        e = EX(k)
        gen_common.STORE_POLICY["v"] = "sc1" if "sc1" in e else ("nt" if "stnt" in e else "")
    if "1" in which:
        setpol('1'); gen_k1(a, diag=diag, exp=EX('1')); descs.append(("kv_kernel", 256, 102))
    if "2" in which:
        setpol('2'); gen_k2(a, diag=diag, exp=EX('2'), thr_log2=(2 if "thr" in exp else 40)); descs.append(("attn_kernel", 256, 102))
    if "f" in which:
        setpol("2")
        e2 = EX("2")
        gen_k1(a, "kvattn_kernel", diag=diag, exp=EX("1"),
               fused=lambda vm, lg, st: gen_k2_iter(a, "kvattn_kernel", diag, e2, 2 if "thr" in exp else 40, dict(vm=vm, lg=lg, st=st)))
        descs.append(("kvattn_kernel", 256, 102))
    if "3" in which:
        setpol("3"); gen_rr(a, "proj", "proj_kernel", 2, diag=diag, exp=EX("3")); descs.append(("proj_kernel", 256, 102))
    if "T" in which:
        setpol("3")
        def rest():
            setpol("4")
            gen_rr(a, "redffn1", "tail_kernel_b", 3, diag=diag, exp=EX("4"), exp5=EX("5"), cont=True)
        gen_rr(a, "proj", "tail_kernel", 2, diag=diag, exp=EX("3"), chain=rest)
        descs.append(("tail_kernel", 256, 102))
    if "r" in which:
        setpol("r"); gen_red(a, "red_kernel", 5, diag=diag, exp=EX("r")); descs.append(("red_kernel", 96, 102))
    if "4" in which:
        setpol("4"); gen_rr(a, "ffn1", "ffn1_kernel", 3, diag=diag, exp=EX("4")); descs.append(("ffn1_kernel", 256, 102))
    if "R" in which:
        setpol("4"); gen_rr(a, "redffn1", "redffn1_kernel", 3, diag=diag, exp=EX("4"), exp5=EX("5")); descs.append(("redffn1_kernel", 256, 102))
    if "5" in which:
        setpol("5"); gen_k35(a, "ffn2", "ffn2_kernel", 4, diag=diag, exp=EX("5")); descs.append(("ffn2_kernel", 256, 102))
    a.label("all_code_end")
    a.e("s_endpgm")
    a('.section .rodata,"a"')
    for (n, v, s) in descs:
        a(kernel_desc(n, v, s))
    open(out, "w").write(a.text())

if __name__ == "__main__":
    main(sys.argv[1], sys.argv[2], len(sys.argv) > 3 and sys.argv[3] == 'diag', sys.argv[4] if len(sys.argv) > 4 else '')
```

```python
from gen_common import *
import math, struct
QSCALE_BITS = struct.unpack('<I', struct.pack('<f', math.log2(math.e) / math.sqrt(128.0)))[0]
import gen_common

def gen_k1(a, name="kv_kernel", diag=False, exp="", fused=None):
    kernel_begin(a, name)
    st = Stamps(a, diag, 0) if fused is None else Stamps(a, diag, 0, base=76, maxn=6)
    vm = Cnt(a, "vmcnt", 63); lg = Cnt(a, "lgkmcnt", 15)
    k2, H = None, None
    if fused is not None:
        k2 = fused(vm, lg, st)
        H = next(k2)
    mark = st.mark if fused is None else (lambda: None)
    S_X, S_C, S_WUK, S_WUV, S_W1, S_WS = 4, 8, 12, 16, 20, 24
    s_h, s_j, s_w, s_t0, s_t1, s_t2, s_kk0, s_wof, s_kst, s_vst, s_oct = 28, 29, 30, 31, 32, 33, 34, 35, 36, 37, 38
    s_c0, s_wm0, s_cm0, s_t3 = 39, 40, 41, 42
    s_cp = 62
    v_lane, v_wdma, v_cdE, v_cdO, v_trE, v_trO, v_cr0, v_cr1, v_kst, v_vst, v_t = 0, 1, 2, 3, 4, 5, 6, 7, 8, 9, 10
    WF, NRING = 12, 5
    ACCA, ACCB, CF = 32, 96, 128
    LDS_W, LDS_C, LDS_SCR = 0, 65536, 131072
    T = ACCB

    a.e("s_cmp_ge_u32 s2, 256")
    a.e("s_cbranch_scc1 %s_end", name)
    st.mark()
    a.e("s_load_dwordx4 s[4:7], s[0:1], %d", A_X)
    a.e("s_load_dwordx4 s[12:15], s[0:1], %d", A_WUK)
    a.e("s_load_dwordx2 s[24:25], s[0:1], %d", WS)
    a.e("s_load_dwordx2 s[20:21], s[0:1], %d", A_WQ)
    if fused is not None: a.e("s_load_dwordx2 s[%d:%d], s[0:1], %d", H["S_DBG"], H["S_DBG"] + 1, DBG)
    a.e("v_lshrrev_b32 v%d, 6, v0", v_t)
    a.e("v_mov_b32 v%d, v0", T + 31)
    a.e("v_readfirstlane_b32 s%d, v%d", s_w, v_t)
    a.e("v_and_b32 v%d, 63, v0", v_lane)
    v_x16, v_g = T + 29, T + 30
    a.e("v_and_b32 v%d, 15, v%d", v_x16, v_lane)
    a.e("v_lshrrev_b32 v%d, 4, v%d", v_g, v_lane)
    a.e("s_and_b32 s%d, s2, 31", s_h)
    if "hrot" in exp:
        a.e("s_add_u32 s%d, s%d, 3", s_h, s_h); a.e("s_and_b32 s%d, s%d, 31", s_h, s_h)
    a.e("s_lshr_b32 s%d, s2, 5", s_j)
    a.e("s_lshr_b32 s%d, s%d, 3", s_t0, s_h)
    a.e("s_lshl_b32 s%d, s%d, 1", s_t0, s_t0)
    a.e("s_add_u32 s%d, s%d, s%d", s_kk0, s_t0, s_j)
    a.e("s_and_b32 s%d, s%d, 7", s_kk0, s_kk0)
    if "norot" in exp: a.e("s_mov_b32 s%d, 0", s_kk0)
    if "rot2" in exp or "rot4" in exp:
        a.e("s_lshr_b32 s%d, s%d, 3", s_t0, s_h)
        a.e("s_add_u32 s%d, s%d, s%d", s_kk0, s_t0, s_j)
        if "rot2" in exp:
            a.e("s_and_b32 s%d, s%d, 1", s_kk0, s_kk0); a.e("s_lshl_b32 s%d, s%d, 2", s_kk0, s_kk0)
        else:
            a.e("s_and_b32 s%d, s%d, 3", s_kk0, s_kk0); a.e("s_lshl_b32 s%d, s%d, 1", s_kk0, s_kk0)
    a.e("v_bfe_u32 v%d, v%d, 2, 2", v_t, v_lane)
    a.e("v_bfe_u32 v%d, v%d, 4, 1", v_t + 1, v_lane)
    a.e("v_lshl_add_u32 v%d, v%d, 2, v%d", v_t, v_t + 1, v_t)
    a.e("v_lshlrev_b32 v%d, 13, v%d", v_t, v_t)
    a.e("s_and_b32 s%d, s%d, 1", s_t0, s_w)
    a.e("s_lshl_b32 s%d, s%d, 1", s_t0, s_t0)
    a.e("v_and_b32 v%d, 3, v%d", v_t + 1, v_lane)
    a.e("v_xor_b32 v%d, s%d, v%d", v_t + 1, s_t0, v_t + 1)
    a.e("v_lshrrev_b32 v%d, 5, v%d", v_wdma, v_lane)
    a.e("v_lshl_add_u32 v%d, v%d, 2, v%d", v_t + 1, v_wdma, v_t + 1)
    a.e("v_lshl_add_u32 v%d, v%d, 4, v%d", v_wdma, v_t + 1, v_t)
    a.e("v_lshrrev_b32 v%d, 3, v%d", v_t, v_lane)
    a.e("v_lshrrev_b32 v%d, 1, v%d", v_t + 1, v_t)
    a.e("v_and_b32 v%d, 7, v%d", v_cdE, v_lane)
    a.e("v_xor_b32 v%d, v%d, v%d", v_cdE, v_cdE, v_t + 1)
    a.e("v_lshlrev_b32 v%d, 4, v%d", v_cdE, v_cdE)
    a.e("v_lshl_add_u32 v%d, v%d, 10, v%d", v_cdE, v_t, v_cdE)
    a.e("v_xor_b32 v%d, 64, v%d", v_cdO, v_cdE)
    a.e("s_waitcnt lgkmcnt(0)")
    mark()
    a.e("s_mov_b32 s8, s6"); a.e("s_mov_b32 s9, s7")
    a.e("s_mov_b32 s16, s14"); a.e("s_mov_b32 s17, s15")
    srd(a, S_X, S_X, 2 << 20); srd(a, S_C, S_C, 2 << 20)
    srd(a, S_WUK, S_WUK, 4 << 20); srd(a, S_WUV, S_WUV, 4 << 20)
    srd(a, S_WS, S_WS, WS_BYTES); srd(a, S_W1, S_W1, 4 << 20)
    if fused is not None: srd(a, H["S_DBG"], H["S_DBG"], 256)
    a.e("s_lshl_b32 s%d, s%d, 16", s_wof, s_w)
    a.e("s_lshl_b32 s%d, s%d, 8", s_t0, s_h)
    a.e("s_add_u32 s%d, s%d, s%d", s_wof, s_wof, s_t0)
    a.e("s_lshl_b32 s%d, s%d, 10", s_wm0, s_w)
    a.e("s_lshl_b32 s%d, s%d, 18", s_c0, s_j)
    a.e("s_lshl_b32 s%d, s%d, 15", s_t0, s_w)
    a.e("s_add_u32 s%d, s%d, s%d", s_c0, s_c0, s_t0)
    a.e("s_lshl_b32 s%d, s%d, 13", s_cm0, s_w)
    a.e("s_add_u32 s%d, s%d, %d", s_cm0, s_cm0, LDS_C)

    def kk_of(i, dst):
        a.e("s_add_u32 s%d, s%d, %d", dst, s_kk0, i)
        a.e("s_and_b32 s%d, s%d, 7", dst, dst)
    def w_dma(step):
        slot = step & 3
        L = []
        for hf in range(2):
            if step < 8:
                S, kki, col = S_WUK, step, hf * 128
            else:
                cv = (step - 8) >> 2
                S, kki, col = S_WUV, 2 * ((step - 8) & 3) + hf, cv * 128
            def em(S=S, kki=kki, col=col, hf=hf):
                kk_of(kki, s_t0)
                a.e("s_lshl_b32 s%d, s%d, 19", s_t0, s_t0)
                a.e("s_add_u32 m0, s%d, %d", s_wm0, LDS_W + slot * 16384 + hf * 8192)
                a.e("s_add_u32 s%d, s%d, s%d", s_t0, s_t0, s_wof)
                if col: a.e("s_add_u32 s%d, s%d, %d", s_t0, s_t0, col)
                a.e("buffer_load_dwordx4 v%d, s[%d:%d], s%d offen lds", v_wdma, S, S + 3, s_t0)
                vm.issue(("W", step))
            L.append(em)
        return L
    def c_dma(step):
        slot = step & 1
        L = []
        for q in range(4):
            def em(q=q):
                if q == 0:
                    kk_of(step, s_t1)
                    a.e("s_lshl_b32 s%d, s%d, 7", s_t1, s_t1)
                    a.e("s_add_u32 s%d, s%d, s%d", s_t1, s_t1, s_c0)
                else:
                    a.e("s_add_u32 s%d, s%d, 8192", s_t1, s_t1)
                a.e("s_add_u32 m0, s%d, %d", s_cm0, slot * 4096 + q * 1024)
                a.e("s_nop 0")
                a.e("buffer_load_dwordx4 v%d, s[%d:%d], s%d offen lds", v_cdE if (q & 1) == 0 else v_cdO, S_C, S_C + 3, s_t1)
                vm.issue(("c", step))
            L.append(em)
        return L

    if "wpfk0" in exp:
        a.e("v_lshlrev_b32 v%d, 4, v%d", v_t + 1, v_lane)
        a.e("s_lshl_b32 s%d, s2, 14", s_t0)
        a.e("s_lshl_b32 s%d, s%d, 11", s_t1, s_w)
        a.e("s_add_u32 s%d, s%d, s%d", s_t0, s_t0, s_t1)
        a.e("s_mov_b32 m0, %d", LDS_SCR + 8192)
        for i in range(2):
            a.e("s_add_u32 s%d, s%d, %d", s_t1, s_t0, i * 1024)
            a.e("buffer_load_dwordx4 v%d, s[%d:%d], s%d offen lds", v_t + 1, S_WUK, S_WUK + 3, s_t1)
            vm.issue("wpf")
    for em in c_dma(0) + w_dma(0): em()
    for em in c_dma(1) + w_dma(1): em()
    a.e("s_lshl_b32 s%d, s2, 3", s_t0)
    a.e("s_add_u32 s%d, s%d, s%d", s_t0, s_t0, s_w)
    a.e("s_lshl_b32 s%d, s%d, 10", s_t0, s_t0)
    a.e("v_lshlrev_b32 v%d, 4, v%d", v_t, v_lane)
    a.e("buffer_load_dwordx4 v[%d:%d], v%d, s[%d:%d], s%d offen", T, T + 3, v_t, S_X, S_X + 3, s_t0)
    vm.issue("x")
    mark()

    if "wpf" in exp:
        a.e("v_lshlrev_b32 v%d, 4, v%d", v_t + 1, v_lane)
        a.e("s_lshl_b32 s%d, s2, 14", s_t0)
        a.e("s_lshl_b32 s%d, s%d, 11", s_t1, s_w)
        a.e("s_add_u32 s%d, s%d, s%d", s_t0, s_t0, s_t1)
        a.e("s_mov_b32 m0, %d", LDS_SCR + 8192)
        a.e("s_nop 0")
        for S_ in ([S_WUV] if "wpfv" in exp else ([S_WUV, S_W1] if "wpfq" in exp else [S_WUK, S_WUV])):
            for i in range(2):
                a.e("s_add_u32 s%d, s%d, %d", s_t1, s_t0, i * 1024)
                a.e("buffer_load_dwordx4 v%d, s[%d:%d], s%d offen lds", v_t + 1, S_, S_ + 3, s_t1)
                vm.issue("wpf")
    if "cp0" in exp:
        lpc = name + "_pc"
        a.e("s_getpc_b64 s[%d:%d]", s_cp, s_cp + 1)
        a.label(lpc)
        a.e("s_sub_u32 s%d, s%d, %s - %s", s_cp, s_cp, lpc, name)
        a.e("s_subb_u32 s%d, s%d, 0", s_cp + 1, s_cp + 1)
        a.e("s_lshr_b32 s%d, s2, 3", s_t0)
        a.e("s_lshl_b32 s%d, s%d, 3", s_t0, s_t0)
        a.e("s_add_u32 s%d, s%d, s%d", s_t0, s_t0, s_w)
        a.e("s_lshl_b32 s%d, s%d, 8", s_t0, s_t0)
        a.e("v_lshl_add_u32 v%d, v%d, 2, s%d", v_t + 1, v_lane, s_t0)
        a.e("s_mov_b32 s%d, all_code_end - %s - 4", s_t0, name)
        a.e("v_min_u32 v%d, s%d, v%d", v_t + 1, s_t0, v_t + 1)
        a.e("global_load_dword v%d, v%d, s[%d:%d]", T + 28, v_t + 1, s_cp, s_cp + 1)
        vm.issue("cpf")
    if fused is not None:
        H["role_setup"]()
        H["flag_store"](0, "clr")
        if "clrtail" in exp:
            for base in (WS_FLAG1, WS_FLAG2, WS_FLAG3) + ((WS_FLAGC,) if "onel" in exp else ()): H["flag_store"](0, "clr", base)
    a.e("v_bfe_u32 v%d, v%d, 2, 2", v_t, v_lane)
    a.e("v_lshlrev_b32 v%d, 6, v%d", v_t, v_t)
    a.e("v_and_b32 v%d, 3, v%d", v_t + 1, v_lane)
    a.e("v_lshl_add_u32 v%d, v%d, 3, v%d", v_t, v_t + 1, v_t)
    a.e("v_lshl_add_u32 v%d, v%d, 10, v%d", v_t, v_g, v_t)
    a.e("v_and_b32 v%d, 1, v%d", v_t + 1, v_g)
    a.e("v_lshl_add_u32 v%d, v%d, 5, v%d", v_trE, v_t + 1, v_t)
    a.e("v_xor_b32 v%d, 32, v%d", v_trO, v_trE)
    a.e("v_lshrrev_b32 v%d, 1, v%d", v_t, v_x16)
    a.e("v_xor_b32 v%d, v%d, v%d", v_t, v_t, v_g)
    a.e("v_lshlrev_b32 v%d, 4, v%d", v_t, v_t)
    a.e("v_lshl_add_u32 v%d, v%d, 7, v%d", v_t, v_x16, v_t)
    a.e("v_add_u32 v%d, s%d, v%d", v_cr0, s_cm0, v_t)
    a.e("v_xor_b32 v%d, 64, v%d", v_cr1, v_cr0)
    a.e("v_and_b32 v%d, 1, v%d", v_t, v_g)
    a.e("v_lshlrev_b32 v%d, 10, v%d", v_kst, v_t)
    a.e("v_lshrrev_b32 v%d, 1, v%d", v_t, v_g)
    a.e("v_lshl_add_u32 v%d, v%d, 9, v%d", v_kst, v_t, v_kst)
    a.e("v_lshrrev_b32 v%d, 3, v%d", v_t, v_x16)
    a.e("v_lshl_add_u32 v%d, v%d, 8, v%d", v_kst, v_t, v_kst)
    a.e("v_and_b32 v%d, 7, v%d", v_t, v_x16)
    a.e("v_lshl_add_u32 v%d, v%d, 4, v%d", v_kst, v_t, v_kst)
    a.e("v_lshrrev_b32 v%d, 1, v%d", v_t, v_g)
    a.e("v_lshlrev_b32 v%d, 12, v%d", v_vst, v_t)
    a.e("v_and_b32 v%d, 1, v%d", v_t, v_g)
    a.e("v_lshl_add_u32 v%d, v%d, 9, v%d", v_vst, v_t, v_vst)
    a.e("v_lshl_add_u32 v%d, v%d, 4, v%d", v_vst, v_x16, v_vst)
    a.e("s_mul_i32 s%d, s%d, %d", s_kst, s_h, HEAD_STRIDE)
    a.e("s_lshl_b32 s%d, s%d, 16", s_t0, s_j)
    a.e("s_add_u32 s%d, s%d, s%d", s_kst, s_kst, s_t0)
    a.e("s_lshl_b32 s%d, s%d, 13", s_t0, s_w)
    a.e("s_add_u32 s%d, s%d, s%d", s_kst, s_kst, s_t0)
    a.e("s_add_u32 s%d, s%d, 0x%x", s_vst, s_kst, WS_V)

    class Rec:
        def __init__(self): self.L = []
        def e(self, fmt, *x): self.L.append(fmt % x if x else fmt)
    r_ = Rec()
    F = T + 8
    for i in range(4):
        r_.e("v_lshlrev_b32 v%d, 16, v%d", F + 2 * i, T + i)
        r_.e("v_and_b32 v%d, 0xffff0000, v%d", F + 2 * i + 1, T + i)
    M, TT, V2, RS = T + 16, T + 17, T + 18, T + 19
    r_.e("v_add_f32 v%d, v%d, v%d", M, F, F + 1)
    for i in range(2, 8):
        r_.e("v_add_f32 v%d, v%d, v%d", M, M, F + i)
    allsum64(r_, M, TT)
    r_.e("v_mul_f32 v%d, 0x3b000000, v%d", M, M)
    for i in range(8):
        r_.e("v_sub_f32 v%d, v%d, v%d", F + i, F + i, M)
    r_.e("v_mul_f32 v%d, v%d, v%d", V2, F, F)
    for i in range(1, 8):
        r_.e("v_fmac_f32 v%d, v%d, v%d", V2, F + i, F + i)
    allsum64(r_, V2, TT)
    r_.e("v_mov_b32 v%d, 0x3727c5ac", RS)
    r_.e("v_fmac_f32 v%d, 0x3b000000, v%d", RS, V2)
    r_.e("v_rsq_f32 v%d, v%d", RS, RS)
    r_.e("s_nop 0")
    r_.e("v_mul_f32 v%d, 0x%x, v%d", RS, QSCALE_BITS, RS)
    for i in range(8):
        r_.e("v_mul_f32 v%d, v%d, v%d", F + i, F + i, RS)
    for i in range(4):
        r_.e("v_cvt_pk_bf16_f32 v%d, v%d, v%d", T + i, F + 2 * i, F + 2 * i + 1)
    r_.e("s_lshl_b32 s%d, s%d, 10", s_t3, s_w)
    r_.e("s_add_u32 s%d, s%d, %d", s_t3, s_t3, LDS_SCR)
    r_.e("v_lshl_add_u32 v%d, v%d, 4, s%d", T + 20, v_lane, s_t3)
    LN1 = r_.L
    r2 = Rec()
    X0, X1, X2 = T + 20, T + 21, T + 22
    r2.e("v_and_b32 v%d, 7, v%d", X0, v_lane)
    r2.e("v_lshrrev_b32 v%d, 3, v%d", X1, v_lane)
    r2.e("s_lshl_b32 s%d, s%d, 3", s_t3, s_w)
    r2.e("v_add_u32 v%d, s%d, v%d", X1, s_t3, X1)
    r2.e("v_lshlrev_b32 v%d, 10, v%d", F, X0)
    r2.e("v_lshl_add_u32 v%d, v%d, 4, v%d", F, X1, F)
    r2.e("v_add_u32 v%d, %d, v%d", F, LDS_SCR, F)
    LN2a = r2.L
    r3 = Rec()
    r3.e("v_lshrrev_b32 v%d, 2, v%d", F + 1, X1)
    r3.e("v_lshlrev_b32 v%d, 10, v%d", F + 1, F + 1)
    r3.e("v_and_b32 v%d, 3, v%d", X1, X1)
    r3.e("v_lshl_add_u32 v%d, v%d, 8, v%d", F + 1, X1, F + 1)
    r3.e("v_lshl_add_u32 v%d, v%d, 4, v%d", F + 1, X0, F + 1)
    r3.e("s_lshr_b32 s%d, s2, 1", s_t3)
    r3.e("s_lshl_b32 s%d, s%d, 14", s_t3, s_t3)
    r3.e("s_and_b32 s%d, s2, 1", s_oct)
    r3.e("s_lshl_b32 s%d, s%d, 7", s_oct, s_oct)
    r3.e("s_add_u32 s%d, s%d, s%d", s_t3, s_t3, s_oct)
    r3.e("s_add_u32 s%d, s%d, 0x%x", s_t3, s_t3, WS_XN)
    LN2b = r3.L

    v_lin = v_trO
    if 'b128test' in exp: a.e('v_lshlrev_b32 v%d, 4, v%d', v_lin, v_lane)
    def c_reads(step):
        for u in range(2):
            for kb in range(2):
                r = CF + ((step * 2 + u) * 2 + kb) * 4
                a.e("ds_read_b128 v[%d:%d], v%d offset:%d", r, r + 3, v_cr0 if u == 0 else v_cr1, (step & 1) * 4096 + kb * 2048)
                lg.issue(("c", step))

    vm.wait([("c", 0), ("W", 0)])
    c_reads(0)
    mark()
    a.e("s_barrier")
    mark()

    def step_frags(step):
        L = []
        if step < 8:
            for u in range(2):
                for cb in range(8):
                    off = (cb >> 2) * 8192 + u * 4096 + ((cb >> 1) & 1) * 512
                    dg = cb >> 1
                    accs = [ACCA + ((dg * 2 + kb) * 2 + (cb & 1)) * 4 for kb in range(2)]
                    cfs = [CF + ((step * 2 + u) * 2 + kb) * 4 for kb in range(2)]
                    L.append((off, cb & 1, accs, cfs, step == 0 and u == 0))
        else:
            base = ACCB if step < 12 else ACCA
            i2 = (step - 8) & 3
            for hf in range(2):
                for u in range(2):
                    for cb in range(4):
                        off = hf * 8192 + u * 4096 + (cb >> 1) * 512
                        accs = [base + (cb * 2 + kb) * 4 for kb in range(2)]
                        ci = (2 * i2 + hf)
                        cfs = [CF + ((ci * 2 + u) * 2 + kb) * 4 for kb in range(2)]
                        L.append((off, cb & 1, accs, cfs, i2 == 0 and hf == 0 and u == 0))
        return L
    frags = [(s, f) for s in range(16) for f in step_frags(s)]
    def w_read(gi):
        s, (off, odd, accs, cfs, first) = frags[gi]
        r = WF + (gi % NRING) * 4
        if "b128test" in exp:
            a.e("ds_read_b128 v[%d:%d], v%d offset:%d", r, r + 3, v_cr0 if False else v_lin, LDS_W + (s & 3) * 16384 + (gi % 16) * 1024)
            lg.issue(("W", gi))
            return
        for t in range(2):
            a.e("ds_read_b64_tr_b16 v[%d:%d], v%d offset:%d", r + 2 * t, r + 2 * t + 1, v_trO if odd else v_trE,
                LDS_W + (s & 3) * 16384 + off + t * 256)
            lg.issue(("W", gi))
    def epi(kind):
        L = []
        if kind == "K":
            for dg in range(4):
                for kb in range(2):
                    A = ACCA + (dg * 2 + kb) * 8
                    g = []
                    for i in range(4):
                        g.append("v_cvt_pk_bf16_f32 v%d, v%d, v%d" % (A + i, A + 2 * i, A + 2 * i + 1))
                    g.append("s_add_u32 s%d, s%d, %d" % (s_t2, s_kst, (dg >> 1) * 4096))
                    g.append(("st", "buffer_store_dwordx4 v[%d:%d], v%d, s[%d:%d], s%d offen offset:%d" % (A, A + 3, v_kst, S_WS, S_WS + 3, s_t2, kb * 128 + (dg & 1) * 2048)))
                    L += g
        else:
            cv = 0 if kind == "V0" else 1
            base = ACCB if cv == 0 else ACCA
            for cb in range(4):
                A = base + cb * 8
                for i in range(4):
                    L.append("v_cvt_pk_bf16_f32 v%d, v%d, v%d" % (A + i, A + 2 * i, A + 2 * i + 1))
                L.append("s_add_u32 s%d, s%d, %d" % (s_t2, s_vst, cv * 2048))
                L.append(("st", "buffer_store_dwordx4 v[%d:%d], v%d, s[%d:%d], s%d offen offset:%d" % (A, A + 3, v_vst, S_WS, S_WS + 3, s_t2, (cb >> 1) * 1024 + (cb & 1) * 256)))
        return L
    def emit_epi(x):
        if isinstance(x, tuple):
            if "nost" in exp: return
            a.e(x[1]); vm.issue("st")
        else:
            a.e(x)

    def emit_main(dk0, epk0, last):
        PRE = NRING - 1
        nread = 0
        npoll = [0]
        pend_epi = []
        ln = list(LN1); ln2a = list(LN2a); ln2b = list(LN2b)
        for gi, (s, (off, odd, accs, cfs, first)) in enumerate(frags):
            k = gi % 16
            dmas = []
            if k == 0:
                a("; ---- step %d" % s)
                if s in (4, 8, 12): (mark() if last else None)
                if s > 0 and "nobar" not in exp and not ("bar2" in exp and s >= 9 and s % 2 == 1):
                    a.e("s_barrier")
                if s == 8:
                    ek = epi("K"); pend_epi = ek[:36]; ek_rest = ek[36:]
                if s == 12:
                    if fused is not None and "latev0" in exp:
                        ev = epi("V0")
                        pend_epi = ek_rest + [x for x in ev if not isinstance(x, tuple) and not x.startswith("s_add")]
                        for cb in range(4):
                            def st0(cb=cb):
                                A = ACCB + cb * 8
                                a.e("s_add_u32 s%d, s%d, 0", s_t2, s_vst)
                                a.e("buffer_store_dwordx4 v[%d:%d], v%d, s[%d:%d], s%d offen offset:%d", A, A + 3, v_vst, S_WS, S_WS + 3, s_t2, (cb >> 1) * 1024 + (cb & 1) * 256)
                                vm.issue("st")
                            H["late_stores"].append(st0)
                    else:
                        pend_epi = ek_rest + epi("V0")
                step_dmas = []
                if s == 0: step_dmas += w_dma(2)
                if s + 3 < 16: step_dmas += w_dma(s + 3)
                if s + 2 < 8: step_dmas += c_dma(s + 2)
            lim = 16 if s == 0 else len(frags)
            while nread < min(gi + PRE + 1, lim):
                w_read(nread); nread += 1
            lg.wait([("W", gi), ("c", s)] if k == 0 else ("W", gi))
            wf = WF + (gi % NRING) * 4
            for kb in range(2):
                d, cf = accs[kb], cfs[kb]
                c = "0" if first else "v[%d:%d]" % (d, d + 3)
                if s < 8:
                    a.e("v_mfma_f32_16x16x32_bf16 v[%d:%d], v[%d:%d], v[%d:%d], %s", d, d + 3, wf, wf + 3, cf, cf + 3, c)
                else:
                    a.e("v_mfma_f32_16x16x32_bf16 v[%d:%d], v[%d:%d], v[%d:%d], %s", d, d + 3, cf, cf + 3, wf, wf + 3, c)
            if k >= dk0 and step_dmas:
                if "nodma" in exp and s >= 2: step_dmas.pop(0)
                else: step_dmas.pop(0)()
            if s == 1 and k == 0: vm.wait("x")
            if s in (1, 2) and ln:
                for _ in range(4):
                    if ln: a.e(ln.pop(0))
            if s == 2 and k == 15:
                assert not ln
                a.e("ds_write_b128 v%d, v[%d:%d]", T + 20, T, T + 3); lg.issue("lnw")
                lg.wait("lnw")
            if s == 3:
                if k < 4:
                    for _ in range(2):
                        if ln2a: a.e(ln2a.pop(0))
                if k == 4:
                    a.e("ds_read_b128 v[%d:%d], v%d", T, T + 3, F); lg.issue("lnr")
                if 5 <= k < 11:
                    for _ in range(2):
                        if ln2b: a.e(ln2b.pop(0))
                if k == 12:
                    assert not ln2a and not ln2b
                    lg.wait("lnr")
                    a.e("buffer_store_dwordx4 v[%d:%d], v%d, s[%d:%d], s%d offen", T, T + 3, F + 1, S_WS, S_WS + 3, s_t3)
                    vm.issue("xn")
            if k == (15 if s == 0 else 11) and s + 1 < 16:
                tags = [("W", s + 1), ("W", s + 2), ("c", s + 1)]
                if fused is not None and s == 5: tags += ["xn", "clr"]
                vm.wait(tags)
                if s + 1 < 8: c_reads(s + 1)
            if fused is not None:
                if s == 6 and k == 12: H["signal"]("0", True)
                if s == 8 and k == 1: H["vec_setup"]()
                if "early" in exp:
                    if 9 <= s <= 12 and k in (5, 9): H["w_dma_l"](s - 9)[0 if k == 5 else 1]()
                else:
                    if s in (12, 13) and k in (5, 9): H["w_dma_l"](s - 12)[0 if k == 5 else 1]()
                if s == 10 and k == 2:
                    H["poll"](0, "0"); npoll[0] = vm.total
                if s == 12 and k == 13: H["poll_check"](0, "0", 256, min(vm.total - npoll[0], len(vm.ops)))
                if "early" in exp:
                    if s >= 13 and k in (1, 3, 5, 7, 9, 10, 12, 14):
                        i_ = (1, 3, 5, 7, 9, 10, 12, 14).index(k)
                        if i_ == 0: xl = H["xn_load_l"](2 * (s - 13)) + H["xn_load_l"](2 * (s - 13) + 1)
                        xl[i_]()
                elif s >= 14 and k in (2, 5, 8, 12):
                    i_ = (2, 5, 8, 12).index(k)
                    if i_ == 0: xl = H["xn_load_l"](s - 14)
                    xl[i_]()
            if "pf" in exp and fused is None and s == 10 and k in (4, 8):
                a.e("v_lshrrev_b32 v%d, 4, v%d", v_t, v_lane)
                a.e("v_lshlrev_b32 v%d, 13, v%d", v_t, v_t)
                a.e("v_and_b32 v%d, 15, v%d", v_t + 1, v_lane)
                a.e("v_lshl_add_u32 v%d, v%d, 4, v%d", v_t, v_t + 1, v_t)
                a.e("s_lshl_b32 s%d, s%d, 3", s_t3, s_j)
                a.e("s_add_u32 s%d, s%d, s%d", s_t3, s_t3, s_w)
                a.e("s_lshl_b32 s%d, s%d, 16", s_t3, s_t3)
                a.e("s_lshl_b32 s%d, s%d, 8", s_t1, s_h)
                a.e("s_add_u32 s%d, s%d, s%d", s_t3, s_t3, s_t1)
                if k == 8: a.e("s_add_u32 s%d, s%d, 32768", s_t3, s_t3)
                a.e("s_mov_b32 m0, s%d", s_cm0)
                a.e("s_nop 0")
                a.e("buffer_load_dwordx4 v%d, s[%d:%d], s%d offen lds", v_t, S_W1, S_W1 + 3, s_t3)
                vm.issue("pf")
            if pend_epi and k >= 3:
                emit_epi(pend_epi.pop(0))
                if pend_epi and s >= 12: emit_epi(pend_epi.pop(0))
        assert not pend_epi
        (st.mark() if last else None)
        a.e("s_nop 7")
        if fused is not None and "early" not in exp:
            late = []
            for cb in range(4):
                A, D = ACCA + cb * 8, ACCB + cb * 8 + 4
                for i in range(4):
                    a.e("v_cvt_pk_bf16_f32 v%d, v%d, v%d", D + i, A + 2 * i, A + 2 * i + 1)
                def st_(cb=cb, D=D):
                    a.e("s_add_u32 s%d, s%d, 2048", s_t2, s_vst)
                    a.e("buffer_store_dwordx4 v[%d:%d], v%d, s[%d:%d], s%d offen offset:%d", D, D + 3, v_vst, S_WS, S_WS + 3, s_t2, (cb >> 1) * 1024 + (cb & 1) * 256)
                    vm.issue("st")
                late.append(st_)
            H["late_stores"].extend(late)
        else:
            for x in epi("V1"): emit_epi(x)
        if fused is not None:
            for _ in k2: pass
            return
        if diag and last:
            a.e("s_waitcnt vmcnt(0)")
            (mark() if last else None)
            st.dump(S_WS, s_w, 10, s_t0)

    if "stag" in exp:
        l2 = name + "_late"
        vm0, lg0 = list(vm.ops), list(lg.ops)
        a.e("s_cmp_ge_u32 s%d, 4", s_w)
        a.e("s_cbranch_scc1 %s", l2)
        emit_main(1, 3, True)
        a.e("s_endpgm")
        a.label(l2)
        vm.ops, lg.ops = vm0, lg0
        emit_main(6 if "stag6" in exp else 8, 3, False)
    else:
        emit_main(1, 3, True)
    if fused is None:
        a.label(name + "_end")
        a.e("s_endpgm")
```

```python
from gen_common import *
import gen_common
import math, struct

def f32bits(x):
    return struct.unpack("<I", struct.pack("<f", x))[0]

def gen_k2(a, name="attn_kernel", diag=False, exp="", thr_log2=40):
    for _ in gen_k2_iter(a, name, diag, exp, thr_log2, None): pass

def gen_k2_iter(a, name, diag, exp, thr_log2, fuse):
    if fuse is None:
        kernel_begin(a, name)
        st = Stamps(a, diag, 1, base=56, maxn=11)
        vm = Cnt(a, "vmcnt", 63); lg = Cnt(a, "lgkmcnt", 15)
    else:
        vm, lg, st = fuse["vm"], fuse["lg"], fuse["st"]
    SC1 = " sc1" if fuse is not None else ""
    NEXTK = "tail_kernel" if "nexttail" in exp else "proj_kernel"
    QSCALE = f32bits(math.log2(math.e) / math.sqrt(128.0))
    THR = f32bits(2.0 ** thr_log2)
    S_WQ, S_WS = 4, 8
    s_h, s_x, s_w, s_t0, s_t1, s_t2, s_kk0, s_wof, s_wm0 = 12, 13, 14, 15, 16, 17, 18, 19, 20
    s_xn, s_T, s_TB, s_t, s_cur, s_nxt, s_ld, s_kof, s_vof, s_wl = 21, 22, 23, 24, 25, 26, 27, 28, 29, 30
    s_qb, s_mfrom, s_kb, s_isA, s_lslot, s_lst, s_thr, s_oob = 31, 32, 33, 34, 35, 36, 37, 38
    s_ret = 40
    s_m = 42
    s_hb = 50
    s_n = 51
    s_cnt = 52
    s_x1, s_x2 = 53, 54
    SPF = 56
    if fuse is not None:
        S_WQ, S_WS = 20, 24
        s_h, s_x, s_w, s_t0, s_t1, s_t2, s_kk0, s_wof, s_wm0 = 28, 29, 30, 31, 32, 33, 34, 35, 40
        s_xn, s_T, s_TB, s_t, s_cur, s_nxt, s_ld, s_kof, s_vof, s_wl = 44, 45, 46, 47, 48, 49, 50, 51, 52, 53
        s_qb, s_mfrom, s_kb, s_isA, s_lslot, s_lst, s_thr, s_oob = 54, 55, 56, 57, 58, 59, 60, 61
        s_m = 8
        s_hb, s_n, s_cnt, s_x1, s_x2, s_poll = 64, 65, 66, 67, 68, 69
        s_ret = 70
        S_DBG = 72
        SPF = 4
    v_lane, v_wdma, v_trE, v_trO, v_l16, v_rd, v_rdn, v_qrel, v_t = 0, 1, 2, 3, 4, 5, 6, 7, 8
    v_hiE, v_hiO = v_rd, v_rdn
    if fuse is not None:
        v_lane, v_wdma, v_l16, v_qrel, v_trE, v_trO, v_hiE, v_hiO, v_rd, v_rdn, v_t = 0, 1, 2, 3, 4, 5, 6, 7, 8, 9, 10
    WF, NRW = 12, 5
    ACC = 32
    XN = 128
    Q = 96
    RING, NR, PD = 12, 16, 12
    TT = 80
    v_ps, v_l, v_D, v_ninf, v_mx, v_f = [84, 85], 86, 87, 88, 89, 90
    U = 76
    v_pk = [92, 94]
    NEGM, P, S, O = 128, [144, 152], [160, 176], 192
    SLOT = 32768

    def role_setup():
        a.e("s_lshr_b32 s%d, s%d, 2", s_isA, s_w)
        a.e("s_sub_u32 s%d, 15, s%d", s_t0, s_x)
        a.e("s_lshl_b32 s%d, s%d, 1", s_TB, s_t0)
        a.e("s_add_u32 s%d, s%d, 2", s_TB, s_TB)
        a.e("s_sub_u32 s%d, 7, s%d", s_t1, s_w)
        a.e("s_cmp_eq_u32 s%d, 0", s_isA)
        a.e("s_cselect_b32 s%d, s%d, s%d", s_t0, s_t0, s_x)
        a.e("s_cselect_b32 s%d, s%d, s%d", s_t1, s_w, s_t1)
        a.e("s_lshl_b32 s%d, s%d, 1", s_T, s_t0)
        a.e("s_lshr_b32 s%d, s%d, 1", s_t2, s_t1)
        a.e("s_add_u32 s%d, s%d, s%d", s_T, s_T, s_t2)
        a.e("s_add_u32 s%d, s%d, 1", s_T, s_T)
        a.e("s_lshl_b32 s%d, s%d, 2", s_qb, s_t0)
        a.e("s_add_u32 s%d, s%d, s%d", s_qb, s_qb, s_t1)
        a.e("s_sub_u32 s%d, s%d, 3", s_mfrom, s_T)
        a.e("s_and_b32 s%d, s%d, 3", s_wl, s_w)
        a.e("s_lshl_b32 s%d, s%d, 15", s_xn, s_qb)
        a.e("s_add_u32 s%d, s%d, 0x%x", s_xn, s_xn, WS_XN)
        a.e("s_mul_i32 s%d, s%d, %d", s_hb, s_h, HEAD_STRIDE)
        a.e("s_lshl_b32 s%d, s%d, 12", s_t0, s_wl)
        a.e("s_add_u32 s%d, s%d, s%d", s_hb, s_hb, s_t0)
        a.e("s_mov_b32 s%d, 0x7ff00000", s_oob)
        a.e("s_mov_b32 s%d, 0x%x", s_thr, THR)

    if fuse is None:
        a.e("s_cmp_ge_u32 s2, 256")
        a.e("s_cbranch_scc1 %s_end", name)
        st.mark()
        a.e("s_load_dwordx2 s[4:5], s[0:1], %d", A_WQ)
        a.e("s_load_dwordx2 s[8:9], s[0:1], %d", WS)
        a.e("v_lshrrev_b32 v%d, 6, v0", v_t)
        a.e("v_and_b32 v%d, 63, v0", v_lane)
        a.e("v_readfirstlane_b32 s%d, v%d", s_w, v_t)
        a.e("s_and_b32 s%d, s2, 31", s_h)
        a.e("s_lshr_b32 s%d, s2, 5", s_x)
        a.e("s_lshr_b32 s%d, s%d, 3", s_t0, s_h)
        a.e("s_lshl_b32 s%d, s%d, 1", s_t0, s_t0)
        a.e("s_add_u32 s%d, s%d, s%d", s_kk0, s_t0, s_x)
        a.e("s_and_b32 s%d, s%d, 7", s_kk0, s_kk0)
        a.e("v_bfe_u32 v%d, v%d, 2, 2", v_t, v_lane)
        a.e("v_bfe_u32 v%d, v%d, 4, 1", v_t + 1, v_lane)
        a.e("v_lshl_add_u32 v%d, v%d, 2, v%d", v_t, v_t + 1, v_t)
        a.e("v_lshlrev_b32 v%d, 13, v%d", v_t, v_t)
        a.e("s_and_b32 s%d, s%d, 1", s_t0, s_w)
        a.e("s_lshl_b32 s%d, s%d, 1", s_t0, s_t0)
        a.e("v_and_b32 v%d, 3, v%d", v_t + 1, v_lane)
        a.e("v_xor_b32 v%d, s%d, v%d", v_t + 1, s_t0, v_t + 1)
        a.e("v_lshrrev_b32 v%d, 5, v%d", v_wdma, v_lane)
        a.e("v_lshl_add_u32 v%d, v%d, 2, v%d", v_t + 1, v_wdma, v_t + 1)
        a.e("v_lshl_add_u32 v%d, v%d, 4, v%d", v_wdma, v_t + 1, v_t)
        a.e("v_lshlrev_b32 v%d, 4, v%d", v_l16, v_lane)
        a.e("s_waitcnt lgkmcnt(0)")
        srd(a, S_WQ, S_WQ, 4 << 20); srd(a, S_WS, S_WS, WS_BYTES)
        a.e("s_lshl_b32 s%d, s%d, 16", s_wof, s_w)
        a.e("s_lshl_b32 s%d, s%d, 8", s_t0, s_h)
        a.e("s_add_u32 s%d, s%d, s%d", s_wof, s_wof, s_t0)
        a.e("s_lshl_b32 s%d, s%d, 10", s_wm0, s_w)
        role_setup()

    def kk_of(i, dst):
        a.e("s_add_u32 s%d, s%d, %d", dst, s_kk0, i)
        a.e("s_and_b32 s%d, s%d, 7", dst, dst)
    def wq_lds(step):
        return (step * 16384) if fuse is None else (((step + 4) & 7) * 16384)
    def stage_slot(stage):
        return ((stage if fuse is None else stage + 2) % 4) * SLOT
    def w_dma(step):
        for em in w_dma_l(step): em()
    def w_dma_l(step):
        return [lambda hf=hf: w_dma1(step, hf) for hf in range(2)]
    def w_dma1(step, hf):
        if True:
            kk_of(step, s_t0)
            a.e("s_lshl_b32 s%d, s%d, 19", s_t0, s_t0)
            a.e("s_add_u32 m0, s%d, %d", s_wm0, wq_lds(step) + hf * 8192)
            a.e("s_add_u32 s%d, s%d, s%d", s_t0, s_t0, s_wof)
            if hf: a.e("s_add_u32 s%d, s%d, 128", s_t0, s_t0)
            a.e("buffer_load_dwordx4 v%d, s[%d:%d], s%d offen lds", v_wdma, S_WQ, S_WQ + 3, s_t0)
            vm.issue(("W", step))
    def xn_load(step):
        for em in xn_load_l(step): em()
    def xn_load_l(step):
        L = []
        for u in range(2):
            for qb in range(2):
                def em(u=u, qb=qb):
                    if u == 0 and qb == 0:
                        kk_of(step, s_x1)
                        a.e("s_lshl_b32 s%d, s%d, 11", s_x1, s_x1)
                        a.e("s_add_u32 s%d, s%d, s%d", s_x1, s_x1, s_xn)
                        a.e("s_add_u32 s%d, s%d, 16384", s_x2, s_x1)
                    r = XN + ((step * 2 + u) * 2 + qb) * 4
                    a.e("buffer_load_dwordx4 v[%d:%d], v%d, s[%d:%d], s%d offen offset:%d%s", r, r + 3, v_l16, S_WS, S_WS + 3,
                        s_x1 if qb == 0 else s_x2, u * 1024, SC1)
                    vm.issue(("x", step))
                L.append(em)
        return L
    def stage_addr_static(stage):
        a.e("s_add_u32 s%d, s%d, 0x%x", s_kof, s_hb, WS_K + (stage + 1) * 16384)
        a.e("s_add_u32 s%d, s%d, 0x%x", s_vof, s_hb, WS_V + max(stage, 0) * 16384)
        a.e("s_lshl_b32 s%d, s%d, 12", s_lslot, s_wl)
        a.e("s_add_u32 s%d, s%d, %d", s_lslot, s_lslot, stage_slot(stage) if stage >= 0 else 4 * SLOT)
    def stage_loads(part, tag=None, track=True):
        L = []
        for i in range(4):
            def em(i=i):
                if i == 0:
                    a.e("s_add_u32 m0, s%d, %d", s_lslot, 0 if part == "K" else 16384)
                    a.e("s_nop 0")
                a.e("buffer_load_dwordx4 v%d, s[%d:%d], s%d offen offset:%d%s lds", v_l16, S_WS, S_WS + 3,
                    s_kof if part == "K" else s_vof, i * 1024, SC1)
                if track: vm.issue(tag)
            L.append(em)
        return L
    def only_A(fn):
        l = a.newlabel("LnA")
        a.e("s_cmp_eq_u32 s%d, 0", s_isA)
        a.e("s_cbranch_scc1 %s", l)
        fn()
        a.label(l)

    def vec_setup():
        if fuse is not None: a.e("v_lshlrev_b32 v%d, 4, v%d", v_l16, v_lane)
        a.e("v_add_u32 v%d, 0x10000, v%d", v_hiE, v_trE)
        a.e("v_add_u32 v%d, 0x10000, v%d", v_hiO, v_trO)
        a.e("v_and_b32 v%d, 31, v%d", v_qrel, v_lane)
        a.e("s_lshl_b32 s%d, s%d, 5", s_t0, s_qb)
        a.e("v_add_u32 v%d, s%d, v%d", v_qrel, s_t0, v_qrel)
        a.e("v_lshrrev_b32 v%d, 5, v%d", v_t, v_lane)
        a.e("v_lshlrev_b32 v%d, 2, v%d", v_t, v_t)
        a.e("v_sub_u32 v%d, v%d, v%d", v_qrel, v_qrel, v_t)
    def only_wave(w, fn):
        l = a.newlabel("Lw1")
        a.e("s_cmp_lg_u32 s%d, %d", s_w, w)
        a.e("s_cbranch_scc1 %s", l)
        fn()
        a.label(l)
    def poll(wave, s_off):
        only_wave(wave, lambda: a.e("buffer_load_dword v%d, off, s[%d:%d], %s sc1", v_t, S_DBG, S_DBG + 3, s_off))
    def poll_check(wave, s_off, target, younger):
        only_wave(wave, lambda: poll_check1(s_off, target, younger))
    def poll_check1(s_off, target, younger):
        ok, sp = a.newlabel("Lpok"), a.newlabel("Lpsp")
        a.e("s_waitcnt vmcnt(%d)", younger)
        a.e("v_readfirstlane_b32 s%d, v%d", s_poll, v_t)
        a.e("s_nop 3")
        a.e("s_cmp_ge_u32 s%d, %d", s_poll, target)
        a.e("s_cbranch_scc1 %s", ok)
        a.e("s_mov_b32 s%d, 0x20000", s_n)
        a.label(sp)
        a.e("s_sleep 16")
        a.e("buffer_load_dword v%d, off, s[%d:%d], %s sc1", v_t, S_DBG, S_DBG + 3, s_off)
        a.e("s_waitcnt vmcnt(0)")
        a.e("v_readfirstlane_b32 s%d, v%d", s_poll, v_t)
        a.e("s_nop 3")
        a.e("s_cmp_ge_u32 s%d, %d", s_poll, target)
        a.e("s_cbranch_scc1 %s", ok)
        a.e("s_sub_u32 s%d, s%d, 1", s_n, s_n)
        a.e("s_cbranch_scc0 %s", sp)
        a.label(ok)
    def signal(s_off, track=False):
        l, l2 = a.newlabel("Lsig"), a.newlabel("Lsig")
        a.e("s_cmp_lg_u32 s%d, 0", s_w)
        a.e("s_cbranch_scc1 %s", l)
        a.e("v_mov_b32 v%d, 1", v_t + 1)
        a.e("s_mov_b64 exec, 1")
        a.e("buffer_atomic_add v%d, off, s[%d:%d], %s sc1", v_t + 1, S_DBG, S_DBG + 3, s_off)
        a.e("s_mov_b64 exec, -1")
        if track: a.e("s_branch %s", l2)
        a.label(l)
        if track:
            a.e("buffer_load_dword v%d, off, s[%d:%d], s%d", v_t + 1, S_DBG, S_DBG + 3, s_oob)
            a.label(l2)
            vm.issue("sig")
    def flag_store(val, tag=None, base=WS_FLAG):
        a.e("s_lshl_b32 s%d, s2, 7", s_poll)
        a.e("s_add_u32 s%d, s%d, 0x%x", s_poll, s_poll, base)
        a.e("v_mov_b32 v%d, %d", v_t + 1, val)
        a.e("s_mov_b64 exec, 1")
        a.e("buffer_store_dword v%d, off, s[%d:%d], s%d sc1", v_t + 1, S_WS, S_WS + 3, s_poll)
        a.e("s_mov_b64 exec, -1")
        if tag: vm.issue(tag)
    def flags_load():
        a.e("v_and_b32 v%d, 7, v%d", v_t + 1, v_lane)
        a.e("v_lshlrev_b32 v%d, 12, v%d", v_t + 1, v_t + 1)
        a.e("s_lshl_b32 s%d, s%d, 7", s_poll, s_h)
        a.e("s_add_u32 s%d, s%d, 0x%x", s_poll, s_poll, WS_FLAG)
        a.e("buffer_load_dword v%d, v%d, s[%d:%d], s%d offen sc1", v_t, v_t + 1, S_WS, S_WS + 3, s_poll)
    def flags_check():
        ok, sp = a.newlabel("Lfok"), a.newlabel("Lfsp")
        a.e("s_waitcnt vmcnt(0)")
        a.e("v_cmp_eq_u32 vcc, 1, v%d", v_t)
        a.e("s_nop 3")
        a.e("s_cmp_eq_u64 vcc, -1")
        a.e("s_cbranch_scc1 %s", ok)
        a.e("s_mov_b32 s%d, 0x20000", s_n)
        a.label(sp)
        a.e("s_sleep 8")
        a.e("buffer_load_dword v%d, v%d, s[%d:%d], s%d offen sc1", v_t, v_t + 1, S_WS, S_WS + 3, s_poll)
        a.e("s_waitcnt vmcnt(0)")
        a.e("v_cmp_eq_u32 vcc, 1, v%d", v_t)
        a.e("s_nop 3")
        a.e("s_cmp_eq_u64 vcc, -1")
        a.e("s_cbranch_scc1 %s", ok)
        a.e("s_sub_u32 s%d, s%d, 1", s_n, s_n)
        a.e("s_cbranch_scc0 %s", sp)
        a.label(ok)
    if fuse is not None:
        late_stores = []
        yield dict(late_stores=late_stores, flag_store=flag_store, role_setup=role_setup, vec_setup=vec_setup, w_dma_l=w_dma_l, xn_load_l=xn_load_l, poll=poll, poll_check=poll_check,
                   signal=signal, S_DBG=S_DBG, s_h=s_h, s_poll=s_poll)
    vmB = Cnt(a, "vmcnt", 63)
    vmB.ops = list(vm.ops)
    class Both:
        def issue(self, tag, onlyA=False):
            pass
    def issue_both(tag):
        vmB.ops.append(tag)
    _issue = vm.issue
    state = {"A_only": False}
    def issue2(tag):
        _issue(tag)
        if not state["A_only"]: vmB.ops.append(tag)
    vm.issue = issue2
    def wait_common(tags):
        nA, nB = vm.need(tags), vmB.need(tags)
        if nA is None and nB is None: return
        if nA == nB or nB is None or nA is None:
            n = min(x for x in (nA, nB) if x is not None)
            a.e("s_waitcnt vmcnt(%d)", n)
        else:
            l1, l2 = a.newlabel("Lw"), a.newlabel("Lw")
            a.e("s_cmp_eq_u32 s%d, 0", s_isA)
            a.e("s_cbranch_scc1 %s", l1)
            a.e("s_waitcnt vmcnt(%d)", nA)
            a.e("s_branch %s", l2)
            a.label(l1)
            a.e("s_waitcnt vmcnt(%d)", nB)
            a.label(l2)
        for tr, n in ((vm, nA), (vmB, nB)):
            if n is not None: tr.ops = tr.ops[len(tr.ops) - n:] if n > 0 else []
    def a_loads(stage, part=None):
        def fn():
            state["A_only"] = True
            stage_addr_static(stage)
            if part in (None, "K"):
                for em in stage_loads("K", ("st", stage)): em()
            if stage >= 0 and part in (None, "V"):
                for em in stage_loads("V", ("st", stage)): em()
            state["A_only"] = False
        only_A(fn)
    if fuse is not None:
        s_hoff = s_mfrom
        a.e("s_lshl_b32 s%d, s%d, 2", s_hoff, s_h)
        a.e("s_add_u32 s%d, s%d, 128", s_hoff, s_hoff)
    def mark_poll(): pass

    if fuse is None:
        for s in range(2):
            w_dma(s); xn_load(s)
        st.mark()
        a.e("v_bfe_u32 v%d, v%d, 2, 2", v_t, v_lane)
        a.e("v_lshlrev_b32 v%d, 6, v%d", v_t, v_t)
        a.e("v_and_b32 v%d, 3, v%d", v_t + 1, v_lane)
        a.e("v_lshl_add_u32 v%d, v%d, 3, v%d", v_t, v_t + 1, v_t)
        a.e("v_lshrrev_b32 v%d, 4, v%d", v_t + 1, v_lane)
        a.e("v_lshl_add_u32 v%d, v%d, 10, v%d", v_t, v_t + 1, v_t)
        a.e("v_and_b32 v%d, 1, v%d", v_t + 1, v_t + 1)
        a.e("v_lshl_add_u32 v%d, v%d, 5, v%d", v_trE, v_t + 1, v_t)
        a.e("v_xor_b32 v%d, 32, v%d", v_trO, v_trE)
        vec_setup()

    qfr = []
    for s in range(8):
        for u in range(2):
            for cb in range(8):
                off = (wq_lds(s) & 0xffff) + (cb >> 2) * 8192 + u * 4096 + ((cb >> 1) & 1) * 512
                dg = cb >> 1
                accs = [ACC + ((dg * 2 + qb) * 2 + (cb & 1)) * 4 for qb in range(2)]
                xfs = [XN + ((s * 2 + u) * 2 + qb) * 4 for qb in range(2)]
                qfr.append((s, off, cb & 1, accs, xfs, s == 0 and u == 0))
    def w_read(gi):
        s, off, odd, accs, xfs, first = qfr[gi]
        r = WF + (gi % NRW) * 4
        base = (v_trO if odd else v_trE) if wq_lds(s) < 65536 else (v_hiO if odd else v_hiE)
        for t in range(2):
            a.e("ds_read_b64_tr_b16 v[%d:%d], v%d offset:%d", r + 2 * t, r + 2 * t + 1, base, off + t * 256)
            lg.issue(("W", gi))
    wait_common([("W", 0), ("x", 0)] + ([("W", 1)] if fuse is not None else []))
    a.e("s_barrier")
    if fuse is None: st.mark()
    PRE = NRW - 1
    nread = [0]
    SIGSTEP = 2 if 'early' in exp else (4 if 'latev0' in exp else 3)
    POLLSTEP = 5 if 'poll5' in exp else 4
    for gi, (s, off, odd, accs, xfs, first) in enumerate(qfr):
        k = gi % 16
        if k == 0:
            if s > 0: a.e("s_barrier")
            if "fq" in exp and s in (1, 2, 4, 5): st.mark()
            pend = []
            if fuse is None:
                if s == 0:
                    pend = w_dma_l(2) + xn_load_l(2) + w_dma_l(3) + xn_load_l(3) + [lambda: a_loads(-1)]
                elif s + 3 < 8:
                    pend = w_dma_l(s + 3) + xn_load_l(s + 3)
                if s in (2, 4, 6): pend.append(lambda s=s: a_loads(s // 2 - 1))
            else:
                if "early" in exp:
                    if s < 4: pend = w_dma_l(s + 4)
                    if s == 0: pend += xn_load_l(6) + xn_load_l(7)
                else:
                    if s == 0: pend = w_dma_l(2) + xn_load_l(2) + w_dma_l(3) + late_stores[:4]
                    elif s == 1: pend = xn_load_l(3) + w_dma_l(4) + xn_load_l(4) + late_stores[4:]
                    elif s + 3 < 8: pend = w_dma_l(s + 3) + xn_load_l(s + 3)
                if s == SIGSTEP: pend = pend + [lambda: only_wave(0, lambda: flag_store(1))]
                if s == POLLSTEP:
                    pend = pend + [lambda: only_wave(4, flags_load)]
                if s == POLLSTEP + 1: pend = pend + [lambda: a_loads(-1, "K"), lambda: None, lambda: a_loads(0, "K"), lambda: None, lambda: a_loads(0, "V"),
                                   lambda: None, lambda: a_loads(1, "K"), lambda: None, lambda: a_loads(1, "V")]
                if s == max(6, POLLSTEP + 2) - (0): pend = pend + [lambda: a_loads(2, "K"), lambda: a_loads(2, "V")]
        lim = 16 if (s == 0 and fuse is None) else len(qfr)
        while nread[0] < min(gi + PRE + 1, lim): w_read(nread[0]); nread[0] += 1
        lg.wait(("W", gi))
        wf = WF + (gi % NRW) * 4
        for qb in range(2):
            d, xf = accs[qb], xfs[qb]
            c = "0" if first else "v[%d:%d]" % (d, d + 3)
            a.e("v_mfma_f32_16x16x32_bf16 v[%d:%d], v[%d:%d], v[%d:%d], %s", d, d + 3, wf, wf + 3, xf, xf + 3, c)
        if pend and k >= 1: pend.pop(0)()
        if k == (15 if ((s == 0 and (fuse is None or "early" not in exp)) or (s == 1 and "latev0" in exp)) else 11) and s + 1 < 8:
            assert not pend
            tags = [("x", s + 1), ("W", s + 1)] + ([("W", s + 2)] if s + 2 < 8 else [])
            if fuse is not None and s == SIGSTEP - 1: tags.append("st")
            wait_common(tags)
        if fuse is not None and s == POLLSTEP and k == 15:
            only_wave(4, flags_check)
    if "fq" not in exp: st.mark()
    a.e("s_nop 7")
    for blk in range(8):
        for i in range(4):
            a.e("v_cvt_pk_bf16_f32 v%d, v%d, v%d", Q + blk * 4 + i, ACC + blk * 8 + 2 * i, ACC + blk * 8 + 2 * i + 1)
    a.e("s_nop 1")
    for dg in range(4):
        for i in range(4):
            a.e("v_permlane16_swap_b32 v%d, v%d", Q + (dg * 2) * 4 + i, Q + (dg * 2 + 1) * 4 + i)
    wait_common([("st", -1), ("st", 0)])
    a.e("s_barrier")
    a.e("v_mov_b32 v%d, 0", v_l)
    a.e("v_mov_b32 v%d, 0xff800000", v_ninf)
    a.e("s_mov_b32 s%d, %d", s_cur, stage_slot(0))
    a.e("v_add_u32 v%d, %d, v%d", v_rd, stage_slot(0), v_l16)
    a.e("s_mov_b32 s%d, 3", s_ld)
    a.e("s_mov_b32 s%d, %d", s_lst, stage_slot(3))
    if fuse is None: st.mark()

    def dyn_stage_setup():
        L = []
        L.append("s_lshl_b32 s%d, s%d, 14" % (s_t0, s_ld))
        L.append("s_add_u32 s%d, s%d, s%d" % (s_t0, s_t0, s_hb))
        L.append("s_add_u32 s%d, s%d, 0x%x" % (s_kof, s_t0, WS_K + 16384))
        L.append("s_add_u32 s%d, s%d, 0x%x" % (s_vof, s_t0, WS_V))
        L.append("s_cmp_lt_u32 s%d, s%d" % (s_ld, s_TB))
        L.append("s_cselect_b32 s%d, s%d, s%d" % (s_kof, s_kof, s_oob))
        L.append("s_cselect_b32 s%d, s%d, s%d" % (s_vof, s_vof, s_oob))
        L.append("s_lshl_b32 s%d, s%d, 12" % (s_lslot, s_wl))
        L.append("s_add_u32 s%d, s%d, s%d" % (s_lslot, s_lslot, s_lst))
        return L
    def dyn_stage_advance():
        return ["s_add_u32 s%d, s%d, 1" % (s_ld, s_ld),
                "s_add_u32 s%d, s%d, %d" % (s_lst, s_lst, SLOT),
                "s_and_b32 s%d, s%d, %d" % (s_lst, s_lst, 4 * SLOT - 1)]
    def kfrag_off(b, ks): return (b * 8 + ks) * 1024
    def vfrag_off(b, s_, db): return 16384 + (b * 8 + s_ * 4 + db) * 1024
    seq = []
    for ks in range(8): seq.append(("QK", 0, ks, kfrag_off(0, ks)))
    for s_ in range(2):
        for db in range(4): seq.append(("PV", 0, (s_, db), vfrag_off(0, s_, db)))
    for ks in range(8): seq.append(("QK", 1, ks, kfrag_off(1, ks)))
    for s_ in range(2):
        for db in range(4): seq.append(("PV", 1, (s_, db), vfrag_off(1, s_, db)))
    def mfma(item, reg, c0=None):
        kind, b, idx, off = item
        if "m16" in exp:
            if kind == "QK":
                for z in range(2):
                    d = S[b] + 4 * ((2 * idx + z) % 4)
                    q = Q + ((idx + z) % 8) * 4
                    c = ("v[%d:%d]" % (NEGM, NEGM + 3)) if idx < 2 else "v[%d:%d]" % (d, d + 3)
                    a.e("v_mfma_f32_16x16x32_bf16 v[%d:%d], v[%d:%d], v[%d:%d], %s", d, d + 3, reg, reg + 3, q, q + 3, c)
            else:
                s_, db = idx
                for z in range(2):
                    d = O + db * 16 + s_ * 8 + z * 4
                    a.e("v_mfma_f32_16x16x32_bf16 v[%d:%d], v[%d:%d], v[%d:%d], v[%d:%d]", d, d + 3, reg, reg + 3, P[b] + 4 * z, P[b] + 4 * z + 3, d, d + 3)
            return
        if kind == "QK":
            c = ("v[%d:%d]" % (NEGM, NEGM + 15) if c0 is None else c0) if idx == 0 else "v[%d:%d]" % (S[b], S[b] + 15)
            a.e("v_mfma_f32_32x32x16_bf16 v[%d:%d], v[%d:%d], v[%d:%d], %s", S[b], S[b] + 15, reg, reg + 3, Q + idx * 4, Q + idx * 4 + 3, c)
        else:
            s_, db = idx
            a.e("v_mfma_f32_32x32x16_bf16 v[%d:%d], v[%d:%d], v[%d:%d], v[%d:%d]", O + db * 16, O + db * 16 + 15, reg, reg + 3,
                P[b] + 4 * s_, P[b] + 4 * s_ + 3, O + db * 16, O + db * 16 + 15)
    def sm_stream(b):
        L = []
        for r in range(17):
            if r < 16: L.append((r, 0, "v_exp_f32 v%d, v%d" % (TT + r % 4, S[b] + r)))
            if "pk" in exp:
                pp = v_pk[b]
                if r == 2: L.append((r, 1, "v_mov_b32 v%d, v%d" % (pp, TT + 0)))
                elif r == 3: L.append((r, 1, "v_mov_b32 v%d, v%d" % (pp + 1, TT + 1)))
                elif r >= 4 and r % 2 == 0:
                    t0 = TT + (r - 2) % 4
                    L.append((r, 1, "v_pk_add_f32 v[%d:%d], v[%d:%d], v[%d:%d]" % (pp, pp + 1, pp, pp + 1, t0, t0 + 1)))
                    if r == 16: L.append((r, 1, "v_add_f32 v%d, v%d, v%d" % (v_ps[b], pp, pp + 1)))
            elif r == 2: L.append((r, 1, "v_add_f32 v%d, v%d, v%d" % (v_ps[b], TT + 0, TT + 1)))
            elif r >= 3: L.append((r, 1, "v_add_f32 v%d, v%d, v%d" % (v_ps[b], v_ps[b], TT + (r - 1) % 4)))
            if r >= 2 and r % 2 == 0:
                i = r // 2 - 1
                L.append((r, 2, "v_cvt_pk_bf16_f32 v%d, v%d, v%d" % (P[b] + i, TT + (2 * i) % 4, TT + (2 * i + 1) % 4)))
        return L
    def sm_plain(b, lo=0, hi=16):
        for r in range(lo, hi + 1):
            for (rr, pos, ins) in sm_stream(b):
                if rr == r: a.e(ins)
            if r == 15 or r == hi: a.e("s_nop 0")
    START = [12, 28]
    stubs = []
    def cmp_ps(b): a.e("v_cmp_lt_f32 vcc, s%d, v%d", s_thr, v_ps[b])
    def br_slow(b, tag, replay):
        lab = "%s_chk%d_%s" % (name, b, tag)
        a.e("s_cbranch_vccnz %s", lab)
        a.label(lab + "_ret")
        stubs.append((lab, "%s_slow%d_%d" % (name, b, replay), lab + "_ret"))
    def ladd(b): a.e("v_add_f32 v%d, v%d, v%d", v_l, v_l, v_ps[b])

    def emit_mask(b, tile_expr_off):
        a.e("s_add_u32 s%d, s%d, %d", s_kb, s_t, tile_expr_off)
        a.e("s_lshl_b32 s%d, s%d, 6", s_kb, s_kb)
        a.e("s_add_u32 s%d, s%d, %d", s_kb, s_kb, 32 * b)
        a.e("v_subrev_u32 v%d, s%d, v%d", v_D, s_kb, v_qrel)
        for r0 in range(0, 16, 4):
            for j in range(4):
                r = r0 + j; i = r >> 2
                cst = 16 * (i & 1) + 8 * (i >> 1) + (r & 3)
                a.e("v_cmp_le_i32 s[%d:%d], %d, v%d", s_m + 2 * j, s_m + 2 * j + 1, cst, v_D)
            a.e("s_nop 1")
            for j in range(4):
                r = r0 + j
                a.e("v_cndmask_b32 v%d, v%d, v%d, s[%d:%d]", S[b] + r, v_ninf, S[b] + r, s_m + 2 * j, s_m + 2 * j + 1)

    def max16(dst, regs):
        a.e("v_max3_f32 v%d, v%d, v%d, v%d", dst, regs[0], regs[1], regs[2])
        i = 3
        while i < len(regs):
            if i + 1 < len(regs):
                a.e("v_max3_f32 v%d, v%d, v%d, v%d", dst, dst, regs[i], regs[i + 1]); i += 2
            else:
                a.e("v_max_f32 v%d, v%d, v%d", dst, dst, regs[i]); i += 1
    def crosshalf_max(r, t):
        a.e("v_mov_b32 v%d, v%d", t, r)
        a.e("s_nop 1")
        a.e("v_permlane32_swap_b32 v%d, v%d", r, t)
        a.e("s_nop 1")
        a.e("v_max_f32 v%d, v%d, v%d", r, r, t)

    def kv_read(i, base):
        item = seq[i % 32]
        r = RING + (i % NR) * 4
        a.e("ds_read_b128 v[%d:%d], v%d offset:%d", r, r + 3, base, item[3])

    def preloop(tag):
        def k0read(i):
            a.e("ds_read_b128 v[%d:%d], v%d offset:%d", RING + i * 4, RING + i * 4 + 3, v_rdn, kfrag_off(i >> 3, i & 7))
        for i in range(12): k0read(i)
        oz = 0
        for ks in range(8):
            if ks % 4 == 0: a.e("s_waitcnt lgkmcnt(8)")
            mfma(("QK", 0, ks, 0), RING + ks * 4, c0="0")
            if ks < 4: k0read(12 + ks)
            for _ in range(5):
                if oz < 64: a.e("v_mov_b32 v%d, 0", O + oz); oz += 1
        while oz < 64: a.e("v_mov_b32 v%d, 0", O + oz); oz += 1
        l = a.newlabel("Lpm")
        a.e("s_cmp_lg_u32 s%d, 1", s_T)
        a.e("s_cbranch_scc1 %s", l)
        a.e("s_mov_b32 s%d, -1", s_t)
        emit_mask(0, 1)
        a.label(l)
        max16(v_mx, [S[0] + i for i in range(16)])
        crosshalf_max(v_mx, v_f)
        for i in range(16):
            a.e("v_sub_f32 v%d, 0, v%d", NEGM + i, v_mx)
        for i in range(16):
            a.e("v_sub_f32 v%d, v%d, v%d", S[0] + i, S[0] + i, v_mx)
        a.e("s_waitcnt lgkmcnt(0)")
        items = [ins for (r, pos, ins) in sm_stream(0)]
        per = (len(items) + 7) // 8
        for ks in range(8):
            mfma(("QK", 1, ks, 0), RING + (8 + ks) * 4)
            for ins in items[ks * per:(ks + 1) * per]: a.e(ins)
        for i in range(PD): kv_read(i, v_rd)
        l = a.newlabel("Lpm")
        a.e("s_cmp_lg_u32 s%d, 1", s_T)
        a.e("s_cbranch_scc1 %s", l)
        emit_mask(1, 1)
        a.label(l)
        sm_plain(1, 0, 3)
        a.e("s_waitcnt lgkmcnt(0)")

    def iteration(tag, masked):
        tg = tag + ("m" if masked else "")
        top = "%s_loop%s" % (name, tg)
        streams = {}
        for b in range(2):
            for (r, pos, ins) in sm_stream(b):
                streams.setdefault(((START[b] + r) % 32, pos), []).append(ins)
        misc = {k: [] for k in range(32)}
        misc[1].append("s_waitcnt lgkmcnt(4)"); misc[9].append("s_waitcnt lgkmcnt(4)")
        misc[17].append("s_waitcnt lgkmcnt(4)"); misc[25].append("s_waitcnt lgkmcnt(4)")
        misc[3].append(lambda: ladd(0)); misc[21].append(lambda: ladd(1))
        misc[5].append("s_add_u32 s%d, s%d, %d" % (s_cur, s_cur, SLOT))
        misc[7].append("s_and_b32 s%d, s%d, %d" % (s_cur, s_cur, 4 * SLOT - 1))
        if tag == "A": misc[13].append("s_waitcnt vmcnt(8)")
        if "nobar" not in exp: misc[13].append("s_barrier")
        misc[15].append(lambda: br_slow(1, tg, 3))
        misc[19].append("v_add_u32 v%d, s%d, v%d" % (v_rd, s_cur, v_l16))
        misc[31].append(lambda: br_slow(0, tg, 3))
        if masked: misc[23].append("s_add_u32 s%d, s%d, 1" % (s_t, s_t))
        if tag == "A":
            setup = dyn_stage_setup()
            ld = stage_loads("K", track=False) + stage_loads("V", track=False)
            adv = dyn_stage_advance()
            for l_ in setup[:5]: misc[14].append(l_)
            for l_ in setup[5:]: misc[16].append(l_)
            for i, em in enumerate(ld): misc[[18, 20, 22, 23, 24, 26, 27, 28][i]].append(em)
            for l_ in adv: misc[29].append(l_)
        a(".p2align 3")
        a.label(top)
        for k in range(32):
            mfma(seq[k], RING + (k % NR) * 4)
            if "nords" not in exp: kv_read(k + PD, v_rd)
            if masked and k == START[0]: emit_mask(0, 1)
            if masked and k == START[1]: emit_mask(1, 0)
            for pos in range(3):
                if pos == 1 and k == 29: cmp_ps(0)
                if pos == 1 and k == 13: cmp_ps(1)
                for ins in streams.get((k, pos), []):
                    if "nosm" in exp: continue
                    a.e(ins)
            for m_ in misc[k]:
                if callable(m_): m_()
                else: a.e(m_)
        a.e("s_sub_u32 s%d, s%d, 1", s_cnt, s_cnt)
        a.e("s_cbranch_scc0 %s", top)

    def mainloop(tag):
        lsk, lend = a.newlabel("Lsk"), a.newlabel("Lend")
        a.e("s_cmp_lt_u32 s%d, 2", s_T)
        a.e("s_cbranch_scc1 %s", lend)
        a.e("s_cmp_lt_u32 s%d, 3", s_T)
        a.e("s_cbranch_scc1 %s", lsk)
        a.e("s_sub_u32 s%d, s%d, 3", s_cnt, s_T)
        iteration(tag, False)
        a.label(lsk)
        a.e("s_sub_u32 s%d, s%d, 2", s_t, s_T)
        a.e("s_mov_b32 s%d, 0", s_cnt)
        iteration(tag, True)
        a.label(lend)

    def final(tag):
        a.e("s_waitcnt lgkmcnt(0)")
        if tag == "B" and "nobar" not in exp:
            lb = a.newlabel("Lnb")
            a.e("s_cmp_eq_u32 s%d, s%d", s_T, s_TB)
            a.e("s_cbranch_scc1 %s", lb)
            a.e("s_barrier")
            a.label(lb)
        pv0 = [("PV", 0, (s_, db), vfrag_off(0, s_, db)) for s_ in range(2) for db in range(4)]
        pv1 = [("PV", 1, (s_, db), vfrag_off(1, s_, db)) for db in range(4) for s_ in range(2)]
        pv = pv0 + pv1
        for i in range(12):
            r = RING + i * 4
            a.e("ds_read_b128 v[%d:%d], v%d offset:%d", r, r + 3, v_rd, pv[i][3])
        ladd(0)
        rest = [ins for (r, pos, ins) in sm_stream(1) if r >= 4]
        per = (len(rest) + 7) // 8
        for i in range(8):
            if i % 4 == 0: a.e("s_waitcnt lgkmcnt(8)")
            mfma(pv[i], RING + i * 4)
            if i < 4:
                r = RING + (12 + i) * 4
                a.e("ds_read_b128 v[%d:%d], v%d offset:%d", r, r + 3, v_rd, pv[12 + i][3])
            for ins in rest[i * per:(i + 1) * per]: a.e(ins)
        cmp_ps(1)
        a.e("s_nop 1")
        br_slow(1, "fin" + tag, 9)
        ladd(1)
        a.e("v_mov_b32 v%d, v%d", v_f, v_l)
        a.e("s_lshl_b32 s%d, s%d, 5", s_t0, s_qb)
        a.e("s_add_u32 s%d, s%d, s%d", s_t0, s_t0, s_h)
        a.e("v_permlane32_swap_b32 v%d, v%d", v_l, v_f)
        a.e("s_lshl_b32 s%d, s%d, 13", s_t0, s_t0)
        a.e("s_add_u32 s%d, s%d, 0x%x", s_t0, s_t0, WS_CTX)
        a.e("v_add_f32 v%d, v%d, v%d", v_l, v_l, v_f)
        a.e("v_rcp_f32 v%d, v%d", v_l, v_l)
        a.e("s_add_u32 s%d, s%d, 4096", s_t1, s_t0)
        def epi(db):
            L = []
            for hfz in range(2):
                base = O + db * 16 + hfz * 8
                for i in range(8): L.append("v_mul_f32 v%d, v%d, v%d" % (base + i, base + i, v_l))
                for i in range(4): L.append("v_cvt_pk_bf16_f32 v%d, v%d, v%d" % (base + i, base + 2 * i, base + 2 * i + 1))
                ds = 2 * db + hfz
                L.append("buffer_store_dwordx4 v[%d:%d], v%d, s[%d:%d], s%d offen offset:%d" % (base, base + 3, v_l16, S_WS, S_WS + 3,
                         s_t0 if ds < 4 else s_t1, (ds & 3) * 1024))
            return L
        a.e("s_waitcnt lgkmcnt(0)")
        pend = []
        for i in range(8):
            mfma(pv[8 + i], RING + (8 + i) * 4)
            if i >= 4 and i % 2 == 0:
                pend += epi((i - 4) // 2)
            n = 0
            while pend and n < 13: a.e(pend.pop(0)); n += 1
            if not pend and i < 4: a.e("s_nop 3")
        a.e("s_nop 7")
        for ins in pend: a.e(ins)
        a.e("s_nop 3")
        for db in (2, 3):
            for ins in epi(db): a.e(ins)

    LA = name + "_roleA"
    a.e("v_add_u32 v%d, %d, v%d", v_rdn, 4 * SLOT, v_l16)
    a.e("s_cmp_lg_u32 s%d, 0", s_isA)
    a.e("s_cbranch_scc1 %s", LA)
    if "prioB" in exp: a.e("s_setprio 1")
    preloop("B")
    if "fq" not in exp: st.mark()
    mainloop("B")
    if "fq" not in exp: st.mark()
    final("B")
    if diag:
        a.e("s_waitcnt vmcnt(0)")
        if "fq" not in exp: st.mark()
        st.dump(S_WS, s_w, v_t, s_t0)
        if "dbgst" in exp: st.dump_dbg(S_DBG, s_w, v_t, 2)
    after = fuse.get("after") if fuse is not None else None
    LTA = name + "_ta"
    if after:
        a.e("s_waitcnt vmcnt(0)")
        a.e("s_branch %s", LTA)
    else:
        a.e("s_endpgm")
    a.label(LA)
    preloop("A")
    mainloop("A")
    final("A")
    NPF = 0
    if "pf" in exp:
        NPF = 8
        SP = SPF
        for (karg, size, per, n_i) in ((A_WO, 4 << 20, 16384, 4), (B_W1, 1792 * 1024, 8192, 2), (B_W2, 1792 * 1024, 8192, 2)):
            a.e("s_load_dwordx2 s[%d:%d], s[0:1], %d", SP, SP + 1, karg)
            a.e("s_mul_i32 s%d, s2, %d", s_t0, per)
            a.e("s_mul_i32 s%d, s%d, %d", s_t1, s_wl, per // 4)
            a.e("s_add_u32 s%d, s%d, s%d", s_t0, s_t0, s_t1)
            a.e("s_waitcnt lgkmcnt(0)")
            srd(a, SP, SP, size)
            for i in range(n_i):
                a.e("buffer_load_dwordx4 v[%d:%d], v%d, s[%d:%d], s%d offen offset:%d", 144 + 4 * i, 147 + 4 * i, v_l16, SP, SP + 3, s_t0, i * 1024)
    a.e("s_mov_b32 s%d, 0", s_n)
    ll = name + "_ldloop"
    a.label(ll)
    a.e("s_cmp_lt_u32 s%d, 2", s_n)
    a.e("s_cbranch_scc1 %s_w16", ll)
    a.e("s_waitcnt vmcnt(8)")
    a.e("s_branch %s_go", ll)
    a.label(ll + "_w16")
    a.e("s_waitcnt vmcnt(%d)", 16 + NPF)
    a.label(ll + "_go")
    if "nobar" not in exp: a.e("s_barrier")
    for l in dyn_stage_setup(): a.e(l)
    for em in stage_loads("K", track=False) + stage_loads("V", track=False): em()
    for l in dyn_stage_advance(): a.e(l)
    a.e("s_add_u32 s%d, s%d, 1", s_n, s_n)
    a.e("s_add_u32 s%d, s%d, s%d", s_t0, s_n, s_T)
    a.e("s_cmp_lt_u32 s%d, s%d", s_t0, s_TB)
    a.e("s_cbranch_scc1 %s", ll)
    if "pf" in exp:
        SP = SPF
        a.e("s_load_dwordx2 s[%d:%d], s[0:1], %d", SP, SP + 1, A_WO)
        a.e("s_bfe_u32 s%d, s2, 0x20001", s_t0)
        a.e("s_lshl_b32 s%d, s%d, 20", s_t0, s_t0)
        a.e("s_lshr_b32 s%d, s2, 3", s_t1)
        a.e("s_lshl_b32 s%d, s%d, 15", s_t1, s_t1)
        a.e("s_add_u32 s%d, s%d, s%d", s_t0, s_t0, s_t1)
        a.e("s_lshl_b32 s%d, s%d, 13", s_t1, s_wl)
        a.e("s_add_u32 s%d, s%d, s%d", s_t0, s_t0, s_t1)
        a.e("s_waitcnt lgkmcnt(0)")
        srd(a, SP, SP, 4 << 20)
        for i in range(8):
            if i == 4: a.e("s_add_u32 s%d, s%d, 4096", s_t0, s_t0)
            a.e("buffer_load_dwordx4 v[%d:%d], v%d, s[%d:%d], s%d offen offset:%d", 144 + 4 * (i & 3), 147 + 4 * (i & 3), v_l16, SP, SP + 3, s_t0, (i & 3) * 1024)
    if "cpnext" in exp:
        l_ = a.newlabel("Lcp")
        a.e("s_cmp_lg_u32 s%d, 0", s_wl); a.e("s_cbranch_scc1 %s", l_)
        code_prefetch(a, None, NEXTK, NEXTK + "_end", SPF, s_t0, v_lane, v_t, 160)
        a.label(l_)
    if after:
        a.e("s_waitcnt vmcnt(0)")
        a.label(LTA)
        a.e("s_barrier")
        only_wave(0, lambda: flag_store(1, None, WS_FLAGC))
        a.e("s_mov_b32 s46, s%d", s_w)
        after()
    a.label(name + "_end")
    a.e("s_endpgm")

    done = set()
    for (lab, target, ret) in stubs:
        a.label(lab)
        a.e("s_call_b64 s[%d:%d], %s", s_ret, s_ret + 1, target)
        a.e("s_branch %s", ret)
    for (lab, target, ret) in stubs:
        if target in done: continue
        done.add(target)
        b = int(target.split("_slow")[1][0]); replay = int(target.split("_slow")[1][2:])
        a.label(target)
        a.e("s_nop 15")
        max16(v_mx, [S[b] + i for i in range(16)])
        crosshalf_max(v_mx, v_f)
        a.e("v_ceil_f32 v%d, v%d", v_mx, v_mx)
        a.e("v_max_f32 v%d, 0, v%d", v_mx, v_mx)
        a.e("v_sub_f32 v%d, 0, v%d", v_f, v_mx)
        a.e("v_exp_f32 v%d, v%d", v_f, v_f)
        a.e("s_nop 0")
        for i in range(64): a.e("v_mul_f32 v%d, v%d, v%d", O + i, O + i, v_f)
        a.e("v_mul_f32 v%d, v%d, v%d", v_l, v_l, v_f)
        if False:
            o = 1 - b
            for i in range(8):
                a.e("v_lshlrev_b32 v%d, 16, v%d", U, P[o] + i)
                a.e("v_and_b32 v%d, 0xffff0000, v%d", U + 1, P[o] + i)
                a.e("v_mul_f32 v%d, v%d, v%d", U, U, v_f)
                a.e("v_mul_f32 v%d, v%d, v%d", U + 1, U + 1, v_f)
                a.e("v_cvt_pk_bf16_f32 v%d, v%d, v%d", P[o] + i, U, U + 1)
        for bb in range(2):
            for i in range(16): a.e("v_sub_f32 v%d, v%d, v%d", S[bb] + i, S[bb] + i, v_mx)
        for i in range(16): a.e("v_sub_f32 v%d, v%d, v%d", NEGM + i, NEGM + i, v_mx)
        sm_plain(b)
        if replay != 9: sm_plain(1 - b, 0, replay)
        a.e("s_nop 1")
        a.e("s_setpc_b64 s[%d:%d]", s_ret, s_ret + 1)
```

```python
from gen_common import *
from gen_k35 import gen_k35

def gen_rr(a, kind, name, kidx, diag=False, exp="", exp5="", cont=False, chain=None):
    if not cont: kernel_begin(a, name)
    st = Stamps(a, diag, kidx, base=56, maxn=10)
    vm = Cnt(a, "vmcnt", 63); lg = Cnt(a, "lgkmcnt", 15)
    proj = kind == "proj"
    fr = kind == "redffn1"
    NPH = 8 if proj else 4
    NWG = 256 if (proj or fr) else 224
    ROW = 1024 if proj else 3584
    S_W, S_WS, S_B = 4, 8, 12
    s_w, s_rt, s_ct, s_t0, s_t1, s_t2, s_ab, s_wb, s_m0, s_qb, s_rot, s_ksq, s_ph, s_isL = 16, 17, 18, 19, 20, 21, 22, 23, 24, 25, 26, 27, 28, 29
    v_lane, v_l16, v_wd, v_tr, v_tr2, v_t, v_hf = 0, 1, 2, 3, 4, 5, 8
    AF = 128
    ACC = 64
    WFR, NRW = 16, 7
    LDS_B = 131072

    if not cont:
        a.e("s_cmp_ge_u32 s2, %d", NWG)
        a.e("s_cbranch_scc1 %s_end", name)
    st.mark()
    if proj: a.e("s_load_dwordx2 s[4:5], s[0:1], %d", A_WO)
    else: a.e("s_load_dwordx4 s[4:7], s[0:1], %d", B_W1)
    a.e("s_load_dwordx2 s[8:9], s[0:1], %d", WS)
    S_X = 40
    if fr: a.e("s_load_dwordx2 s[%d:%d], s[0:1], %d", S_X, S_X + 1, A_X)
    t2 = fr and "tail2" in exp
    S_WAVE = 46
    if cont:
        a.e("s_mov_b32 s%d, s%d", s_w, S_WAVE)
    else:
        a.e("v_lshrrev_b32 v%d, 6, v0", v_t)
        a.e("v_and_b32 v%d, 63, v0", v_lane)
        a.e("v_readfirstlane_b32 s%d, v%d", s_w, v_t)
        a.e("s_nop 3")
        if t2 or chain: a.e("s_mov_b32 s%d, s%d", S_WAVE, s_w)
    a.e("s_lshr_b32 s%d, s%d, 2", s_isL, s_w)
    a.e("s_and_b32 s%d, s%d, 3", s_w, s_w)
    LT1 = name + "_t1"
    LT0 = name + "_t0"
    if proj:
        a.e("s_bfe_u32 s%d, s2, 0x20001", s_ksq)
        a.e("s_and_b32 s%d, s2, 1", s_rt)
        a.e("s_lshl_b32 s%d, s%d, 3", s_rt, s_rt)
        a.e("s_lshr_b32 s%d, s2, 5", s_t0)
        a.e("s_add_u32 s%d, s%d, s%d", s_rt, s_rt, s_t0)
        a.e("s_bfe_u32 s%d, s2, 0x20003", s_ct)
        a.e("s_lshl_b32 s%d, s%d, 1", s_rot, s_ct)
        a.e("s_add_u32 s%d, s%d, s%d", s_rot, s_rot, s_t0)
        a.e("s_and_b32 s%d, s%d, 7", s_rot, s_rot)
    elif "map47" in exp:
        a.e("s_bfe_u32 s%d, s2, 0x20001", s_rt)
        a.e("s_lshl_b32 s%d, s%d, 2", s_rt, s_rt)
        a.e("s_bfe_u32 s%d, s2, 0x20003", s_t0)
        a.e("s_add_u32 s%d, s%d, s%d", s_rt, s_rt, s_t0)
        a.e("s_and_b32 s%d, s2, 1", s_ct)
        a.e("s_mul_i32 s%d, s%d, 7", s_ct, s_ct)
        a.e("s_lshr_b32 s%d, s2, 5", s_t0)
        a.e("s_add_u32 s%d, s%d, s%d", s_ct, s_ct, s_t0)
        a.e("s_and_b32 s%d, s%d, 3", s_rot, s_t0)
    else:
        a.e("s_and_b32 s%d, s2, 15", s_rt)
        a.e("s_lshr_b32 s%d, s2, 4", s_ct)
        a.e("s_lshr_b32 s%d, s%d, 3", s_t0, s_rt)
        a.e("s_lshl_b32 s%d, s%d, 1", s_t0, s_t0)
        a.e("s_add_u32 s%d, s%d, s%d", s_rot, s_ct, s_t0)
        a.e("s_and_b32 s%d, s%d, 3", s_rot, s_rot)
    if "norot" in exp: a.e("s_mov_b32 s%d, 0", s_rot)
    a.e("v_lshlrev_b32 v%d, 4, v%d", v_l16, v_lane)
    a.e("v_lshrrev_b32 v%d, 5, v%d", v_hf, v_lane)
    a.e("v_bfe_u32 v%d, v%d, 2, 2", v_t, v_lane)
    a.e("s_movk_i32 s%d, %d", s_t0, ROW)
    a.e("v_mul_lo_u32 v%d, v%d, s%d", v_wd, v_t, s_t0)
    a.e("v_lshrrev_b32 v%d, 4, v%d", v_t, v_lane)
    a.e("v_lshl_add_u32 v%d, v%d, 6, v%d", v_wd, v_t, v_wd)
    a.e("v_and_b32 v%d, 3, v%d", v_t, v_lane)
    a.e("v_lshl_add_u32 v%d, v%d, 4, v%d", v_wd, v_t, v_wd)
    a.e("v_lshlrev_b32 v%d, 10, v%d", v_tr, v_hf)
    a.e("v_bfe_u32 v%d, v%d, 2, 2", v_t, v_lane)
    a.e("v_lshl_add_u32 v%d, v%d, 6, v%d", v_tr, v_t, v_tr)
    a.e("v_bfe_u32 v%d, v%d, 4, 1", v_t, v_lane)
    a.e("v_lshl_add_u32 v%d, v%d, 5, v%d", v_tr, v_t, v_tr)
    a.e("v_and_b32 v%d, 3, v%d", v_t, v_lane)
    a.e("v_lshl_add_u32 v%d, v%d, 3, v%d", v_tr, v_t, v_tr)
    a.e("v_add_u32 v%d, 0x10000, v%d", v_tr2, v_tr)
    a.e("s_waitcnt lgkmcnt(0)")
    if not proj:
        a.e("s_mov_b32 s12, s6"); a.e("s_mov_b32 s13, s7")
        srd(a, S_B, S_B, 1792 * 2)
    srd(a, S_W, S_W, (4096 if proj else 512) * ROW); srd(a, S_WS, S_WS, WS_BYTES)
    if fr: srd(a, S_X, S_X, 2 << 20)
    SC1 = " sc1" if (fr or cont) else ""
    def flag_store(base, val, v1):
        a.e("s_lshl_b32 s%d, s2, 7", s_t2)
        a.e("s_add_u32 s%d, s%d, 0x%x", s_t2, s_t2, base)
        a.e("v_mov_b32 v%d, %d", v1, val)
        a.e("s_mov_b64 exec, 1")
        a.e("buffer_store_dword v%d, off, s[%d:%d], s%d sc1", v1, S_WS, S_WS + 3, s_t2)
        a.e("s_mov_b64 exec, -1")
    if proj and "clr2" in exp:
        l_ = a.newlabel("Lclr")
        a.e("s_cmp_lg_u32 s%d, 0", s_w); a.e("s_cbranch_scc1 %s", l_)
        a.e("s_cmp_lg_u32 s%d, 1", s_isL); a.e("s_cbranch_scc1 %s", l_)
        flag_store(WS_FLAG2, 0, v_t)
        flag_store(WS_FLAG3, 0, v_t)
        a.label(l_)
    a.e("s_lshl_b32 s%d, s%d, 2", s_qb, s_rt)
    a.e("s_add_u32 s%d, s%d, s%d", s_qb, s_qb, s_w)
    if proj:
        a.e("s_lshl_b32 s%d, s%d, 18", s_ab, s_qb)
        a.e("s_lshl_b32 s%d, s%d, 16", s_t0, s_ksq)
        a.e("s_add_u32 s%d, s%d, s%d", s_ab, s_ab, s_t0)
        a.e("s_add_u32 s%d, s%d, 0x%x", s_ab, s_ab, WS_CTX)
        a.e("s_lshl_b32 s%d, s%d, 20", s_wb, s_ksq)
    else:
        a.e("s_lshl_b32 s%d, s%d, 15", s_ab, s_qb)
        a.e("s_add_u32 s%d, s%d, 0x%x", s_ab, s_ab, WS_HN)
        a.e("s_mov_b32 s%d, 0", s_wb)
    a.e("s_mul_i32 s%d, s%d, %d", s_t0, s_w, 4 * ROW)
    a.e("s_add_u32 s%d, s%d, s%d", s_wb, s_wb, s_t0)
    a.e("s_lshl_b32 s%d, s%d, 8", s_t0, s_ct)
    a.e("s_add_u32 s%d, s%d, s%d", s_wb, s_wb, s_t0)
    a.e("s_lshl_b32 s%d, s%d, 10", s_m0, s_w)

    def phase_head(p, dst_w, dst_a):
        a.e("s_add_u32 s%d, s%d, %d", s_ph, s_rot, p)
        a.e("s_and_b32 s%d, s%d, %d", s_ph, s_ph, NPH - 1)
        if dst_w is not None:
            a.e("s_mul_i32 s%d, s%d, %d", dst_w, s_ph, 128 * ROW)
            a.e("s_add_u32 s%d, s%d, s%d", dst_w, dst_w, s_wb)
        if dst_a is not None:
            a.e("s_lshl_b32 s%d, s%d, 13", dst_a, s_ph)
            a.e("s_add_u32 s%d, s%d, s%d", dst_a, dst_a, s_ab)
    def w_loads(p, cnt):
        phase_head(p, s_t1, None)
        if "whit" in exp: a.e("s_mov_b32 s%d, 0", s_t1)
        for i in range(8):
            a.e("s_add_u32 m0, s%d, %d", s_m0, (p & 3) * 32768 + i * 4096)
            a.e("s_add_u32 s%d, s%d, %d", s_t0, s_t1, i * 16 * ROW)
            a.e("buffer_load_dwordx4 v%d, s[%d:%d], s%d offen lds", v_wd, S_W, S_W + 3, s_t0)
            cnt.issue(("w", p))
    def a_loads(p):
        L = []
        for i in range(8):
            def em(i=i):
                if i == 0:
                    phase_head(p, None, s_t2)
                    if "ahit" in exp: a.e("s_mov_b32 s%d, 0x%x", s_t2, WS_CTX)
                r = AF + ((p & 3) * 8 + i) * 4
                if i == 4: a.e("s_add_u32 s%d, s%d, 4096", s_t2, s_t2)
                a.e("buffer_load_dwordx4 v[%d:%d], v%d, s[%d:%d], s%d offen offset:%d%s", r, r + 3, v_l16, S_WS, S_WS + 3, s_t2, (i & 3) * 1024, SC1)
                vm.issue(("a", p))
            L.append(em)
        return L
    def red_part():
        PR, XR, A, F, H = 64, 96, 104, 120, 128
        v_r, v_h2, v_g, v_u, v_x = 9, 10, 11, 12, 13
        SCR = LDS_B + 256
        s_rb, s_r0 = 44, 45
        a.e("s_lshr_b32 s%d, s2, 2", s_rb)
        a.e("s_and_b32 s%d, s2, 3", s_r0)
        a.e("s_lshl_b32 s%d, s%d, 3", s_r0, s_r0)
        a.e("v_and_b32 v%d, 7, v%d", v_r, v_lane)
        a.e("v_bfe_u32 v%d, v%d, 3, 1", v_h2, v_lane)
        a.e("v_lshrrev_b32 v%d, 4, v%d", v_g, v_lane)
        a.e("s_lshl_b32 s%d, s%d, 3", s_t0, s_w)
        a.e("v_add_u32 v%d, s%d, v%d", v_g, s_t0, v_g)
        a.e("v_add_u32 v%d, s%d, v%d", v_t, s_r0, v_r)
        a.e("v_lshlrev_b32 v%d, 4, v%d", v_u, v_t)
        a.e("v_lshl_add_u32 v%d, v%d, 9, v%d", v_u, v_h2, v_u)
        a.e("v_lshl_add_u32 v%d, v%d, 10, v%d", v_u, v_g, v_u)
        a.e("v_lshlrev_b32 v%d, 10, v%d", v_x, v_t)
        a.e("v_lshl_add_u32 v%d, v%d, 5, v%d", v_x, v_g, v_x)
        a.e("v_lshl_add_u32 v%d, v%d, 3, v%d", v_x, v_h2, v_x)
        a.e("s_lshl_b32 s%d, s%d, 15", s_rb, s_rb)
        if cont:
            for u in range(2):
                a.e("buffer_load_dwordx2 v[%d:%d], v%d, s[%d:%d], s%d offen offset:%d", XR + 4 * u, XR + 4 * u + 1, v_x, S_X, S_X + 3, s_rb, u * 128)
                a.e("buffer_load_dwordx2 v[%d:%d], v%d, s[%d:%d], s%d offen offset:%d", XR + 4 * u + 2, XR + 4 * u + 3, v_x, S_X, S_X + 3, s_rb, u * 128 + 16)
            ok1, sp1 = a.newlabel("Lfok"), a.newlabel("Lfsp")
            a.e("v_and_b32 v%d, 3, v%d", F, v_lane)
            a.e("v_lshlrev_b32 v%d, 3, v%d", F, F)
            a.e("v_bfe_u32 v%d, v%d, 2, 2", F + 1, v_lane)
            a.e("v_lshl_add_u32 v%d, v%d, 1, v%d", F, F + 1, F)
            a.e("s_lshr_b32 s%d, s2, 4", s_t0)
            a.e("s_and_b32 s%d, s%d, 7", s_t1, s_t0)
            a.e("s_lshl_b32 s%d, s%d, 5", s_t1, s_t1)
            a.e("s_lshr_b32 s%d, s%d, 3", s_t0, s_t0)
            a.e("s_add_u32 s%d, s%d, s%d", s_t0, s_t0, s_t1)
            a.e("v_add_u32 v%d, s%d, v%d", F, s_t0, F)
            a.e("v_lshlrev_b32 v%d, 7, v%d", F, F)
            a.e("s_mov_b32 s%d, 0x%x", s_t2, WS_FLAG1)
            a.e("s_mov_b32 s47, 0x40000")
            a.label(sp1)
            a.e("buffer_load_dword v%d, v%d, s[%d:%d], s%d offen sc1", F + 1, F, S_WS, S_WS + 3, s_t2)
            a.e("s_waitcnt vmcnt(0)")
            a.e("v_cmp_eq_u32 vcc, 1, v%d", F + 1)
            a.e("s_nop 3")
            a.e("s_cmp_eq_u64 vcc, -1")
            a.e("s_cbranch_scc1 %s", ok1)
            a.e("s_sleep 3")
            a.e("s_sub_u32 s47, s47, 1")
            a.e("s_cbranch_scc0 %s", sp1)
            a.label(ok1)
        a.e("s_add_u32 s%d, s%d, 0x%x", s_t1, s_rb, WS_P)
        for p in range(4):
            for u in range(2):
                r = PR + (p * 2 + u) * 4
                a.e("s_add_u32 s%d, s%d, %d", s_t0, s_t1, u * 4096)
                a.e("buffer_load_dwordx4 v[%d:%d], v%d, s[%d:%d], s%d offen%s", r, r + 3, v_u, S_WS, S_WS + 3, s_t0, " sc1" if cont else "")
            if p < 3: a.e("s_add_u32 s%d, s%d, 0x%x", s_t1, s_t1, 64 * 32768)
        if not cont:
            for u in range(2):
                a.e("buffer_load_dwordx2 v[%d:%d], v%d, s[%d:%d], s%d offen offset:%d", XR + 4 * u, XR + 4 * u + 1, v_x, S_X, S_X + 3, s_rb, u * 128)
                a.e("buffer_load_dwordx2 v[%d:%d], v%d, s[%d:%d], s%d offen offset:%d", XR + 4 * u + 2, XR + 4 * u + 3, v_x, S_X, S_X + 3, s_rb, u * 128 + 16)
        a.e("s_barrier")
        st.mark()
        def unpack(src, dst):
            for i in range(4):
                a.e("v_lshlrev_b32 v%d, 16, v%d", dst + 2 * i, src + i)
                a.e("v_and_b32 v%d, 0xffff0000, v%d", dst + 2 * i + 1, src + i)
        NX = 0 if cont else 4
        a.e("s_waitcnt vmcnt(%d)", 6 + NX)
        unpack(PR, A); unpack(PR + 4, A + 8)
        for p in range(1, 4):
            a.e("s_waitcnt vmcnt(%d)", 6 + NX - 2 * p)
            for u in range(2):
                unpack(PR + (p * 2 + u) * 4, F)
                for e in range(8): a.e("v_add_f32 v%d, v%d, v%d", A + u * 8 + e, A + u * 8 + e, F + e)
        a.e("s_waitcnt vmcnt(0)")
        for u in range(2):
            unpack(XR + 4 * u, F)
            for e in range(8): a.e("v_add_f32 v%d, v%d, v%d", A + u * 8 + e, A + u * 8 + e, F + e)
        for i in range(8): a.e("v_cvt_pk_bf16_f32 v%d, v%d, v%d", H + i, A + 2 * i, A + 2 * i + 1)
        a.e("s_add_u32 s%d, s%d, 0x%x", s_t1, s_rb, WS_H)
        a.e("s_add_u32 s%d, s%d, 4096", s_t0, s_t1)
        a.e("buffer_store_dwordx4 v[%d:%d], v%d, s[%d:%d], s%d offen", H, H + 3, v_u, S_WS, S_WS + 3, s_t1)
        a.e("buffer_store_dwordx4 v[%d:%d], v%d, s[%d:%d], s%d offen", H + 4, H + 7, v_u, S_WS, S_WS + 3, s_t0)
        unpack(H, A); unpack(H + 4, A + 8)
        def rowreduce(r, slot):
            a.e("s_nop 1")
            a.e("v_add_f32_dpp v%d, v%d, v%d row_ror:8 row_mask:0xf bank_mask:0xf", r, r, r)
            a.e("v_mov_b32 v%d, v%d", F, r)
            a.e("s_nop 1")
            a.e("v_permlane16_swap_b32 v%d, v%d", r, F)
            a.e("s_nop 1")
            a.e("v_add_f32 v%d, v%d, v%d", r, r, F)
            a.e("v_mov_b32 v%d, v%d", F, r)
            a.e("s_nop 1")
            a.e("v_permlane32_swap_b32 v%d, v%d", r, F)
            a.e("s_nop 1")
            a.e("v_add_f32 v%d, v%d, v%d", r, r, F)
            a.e("v_lshlrev_b32 v%d, 4, v%d", F, v_r)
            a.e("v_add_u32 v%d, %d, v%d", F, SCR + slot * 128, F)
            a.e("s_lshl_b32 s%d, s%d, 2", s_t1, s_w)
            a.e("v_add_u32 v%d, s%d, v%d", F + 1, s_t1, F)
            a.e("ds_write_b32 v%d, v%d", F + 1, r)
            a.e("s_waitcnt lgkmcnt(0)")
            a.e("s_barrier")
            a.e("ds_read_b128 v[%d:%d], v%d", F + 4, F + 7, F)
            a.e("s_waitcnt lgkmcnt(0)")
            a.e("v_add_f32 v%d, v%d, v%d", r, F + 4, F + 5)
            a.e("v_add_f32 v%d, v%d, v%d", r, r, F + 6)
            a.e("v_add_f32 v%d, v%d, v%d", r, r, F + 7)
        M, V2 = 136, 137
        a.e("v_add_f32 v%d, v%d, v%d", M, A, A + 1)
        for e in range(2, 16): a.e("v_add_f32 v%d, v%d, v%d", M, M, A + e)
        rowreduce(M, 0)
        a.e("v_mul_f32 v%d, 0x3b000000, v%d", M, M)
        for e in range(16): a.e("v_sub_f32 v%d, v%d, v%d", A + e, A + e, M)
        a.e("v_mul_f32 v%d, v%d, v%d", V2, A, A)
        for e in range(1, 16): a.e("v_fmac_f32 v%d, v%d, v%d", V2, A + e, A + e)
        rowreduce(V2, 1)
        a.e("v_mov_b32 v%d, 0x3727c5ac", M)
        a.e("v_fmac_f32 v%d, 0x3b000000, v%d", M, V2)
        a.e("v_rsq_f32 v%d, v%d", M, M)
        a.e("s_nop 0")
        for e in range(16): a.e("v_mul_f32 v%d, v%d, v%d", A + e, A + e, M)
        HN = 140
        for i in range(8): a.e("v_cvt_pk_bf16_f32 v%d, v%d, v%d", HN + i, A + 2 * i, A + 2 * i + 1)
        a.e("s_add_u32 s%d, s%d, 0x%x", s_t1, s_rb, WS_HN)
        a.e("s_add_u32 s%d, s%d, 4096", s_t0, s_t1)
        a.e("buffer_store_dwordx4 v[%d:%d], v%d, s[%d:%d], s%d offen", HN, HN + 3, v_u, S_WS, S_WS + 3, s_t1)
        a.e("buffer_store_dwordx4 v[%d:%d], v%d, s[%d:%d], s%d offen", HN + 4, HN + 7, v_u, S_WS, S_WS + 3, s_t0)
        a.e("s_waitcnt vmcnt(0)")
        a.e("s_barrier")
        l_ = a.newlabel("Lfl")
        a.e("s_cmp_lg_u32 s%d, 0", s_w); a.e("s_cbranch_scc1 %s", l_)
        flag_store(WS_FLAG2, 1, F)
        a.label(l_)
        a.e("s_cmp_ge_u32 s2, 224")
        a.e("s_cbranch_scc1 %s", LT1 if t2 else name + "_end")
        st.mark()
        ok, sp = a.newlabel("Lfok"), a.newlabel("Lfsp")
        a.e("v_and_b32 v%d, 15, v%d", F, v_lane)
        a.e("v_lshlrev_b32 v%d, 7, v%d", F, F)
        a.e("s_lshl_b32 s%d, s%d, 11", s_t2, s_rt)
        a.e("s_add_u32 s%d, s%d, 0x%x", s_t2, s_t2, WS_FLAG2)
        a.e("s_mov_b32 s%d, 0x40000", s_r0)
        a.label(sp)
        a.e("buffer_load_dword v%d, v%d, s[%d:%d], s%d offen sc1", F + 1, F, S_WS, S_WS + 3, s_t2)
        a.e("s_waitcnt vmcnt(0)")
        a.e("v_cmp_eq_u32 vcc, 1, v%d", F + 1)
        a.e("s_nop 3")
        a.e("s_cmp_eq_u64 vcc, -1")
        a.e("s_cbranch_scc1 %s", ok)
        a.e("s_sleep 2")
        a.e("s_sub_u32 s%d, s%d, 1", s_r0, s_r0)
        a.e("s_cbranch_scc0 %s", sp)
        a.label(ok)
        if "fine" in exp: st.mark()
    LC = name + "_compute"
    a.e("s_cmp_eq_u32 s%d, 0", s_isL)
    a.e("s_cbranch_scc1 %s", LC)
    vl = Cnt(a, "vmcnt", 63)
    if fr:
        lt = a.newlabel("Ltile")
        a.e("s_cmp_lt_u32 s2, 224"); a.e("s_cbranch_scc1 %s", lt)
        for _ in range(4): a.e("s_barrier")
        if t2: a.e("s_branch %s", LT1)
        else: a.e("s_endpgm")
        a.label(lt)
        if not cont: a.e("s_barrier")
    w_loads(0, vl)
    if not proj:
        a.e("v_lshlrev_b32 v%d, 2, v%d", v_t, v_lane)
        a.e("s_lshl_b32 s%d, s%d, 8", s_t0, s_ct)
        a.e("s_mov_b32 m0, %d", LDS_B)
        a.e("s_nop 0")
        a.e("buffer_load_dword v%d, s[%d:%d], s%d offen lds", v_t, S_B, S_B + 3, s_t0)
        vl.issue("b")
    if fr:
        w_loads(1, vl)
        if cont and "w2first" in exp: w_loads(2, vl)
        if cont and "w3first" in exp: w_loads(2, vl); w_loads(3, vl)
        if cont: a.e("s_barrier")
        a.e("s_barrier"); a.e("s_barrier")
        if cont and "w3first" in exp:
            a.e("s_barrier")
        elif cont and "w2first" in exp:
            a.e("s_barrier")
            w_loads(3, vl)
        elif "wmid" in exp:
            w_loads(2, vl)
            a.e("s_barrier")
            w_loads(3, vl)
        elif "wlate" in exp:
            a.e("s_barrier")
            w_loads(2, vl); w_loads(3, vl)
        else:
            w_loads(2, vl); w_loads(3, vl)
            a.e("s_barrier")
    nxt = NPH if fr else 1
    for p in range(NPH):
        if fr and "strict" in exp: vl.wait([("w", 0), "b"] if p == 0 else [("w", p)])
        else: vl.wait([("w", 0), "b"] if p == 0 else ([("w", 1)] if p == 1 else [("w", p), ("w", min(p + 1, NPH - 1))]))
        a.e("s_barrier")
        upto = 2 if p == 0 else min(p + 3, NPH - 1)
        while nxt <= min(upto, NPH - 1):
            w_loads(nxt, vl); nxt += 1
        if "pf" in exp and proj and p == NPH - 4:
            a.e("s_lshr_b32 s34, s2, 3")
            for ins in l2_prefetch(a, (B_W1, 1792 * 1024), 1792 * 1024, 32, 4, 34, s_w, 36, 35, s_t1, v_l16, 64):
                a.e(ins)
                if ins.startswith("buffer"): vl.issue("pf")
        if "pf" in exp and not proj:
            PFAT = NPH - 1 if "pflast" in exp else 1
            if p == PFAT or ("pfspread" in exp and p == 1):
                a.e("s_lshr_b32 s34, s2, 3")
                pfl = l2_prefetch(a, (B_W2, 1792 * 1024), 1792 * 1024, 28, 4, 34, s_w, 36, 35, s_t1, v_l16, 64)
            if "pfspread" in exp:
                if p >= 1:
                    n_ = 0
                    while pfl and (n_ < 4 or p == NPH - 1):
                        ins = pfl.pop(0); a.e(ins)
                        if ins.startswith("buffer"): vl.issue("pf"); n_ += 1
            elif p == PFAT:
                for ins in pfl:
                    a.e(ins)
                    if ins.startswith("buffer"): vl.issue("pf")
    if "cpnext" in exp and not t2 and not chain:
        l_ = a.newlabel("Lcp")
        a.e("s_cmp_lg_u32 s%d, 0", s_w); a.e("s_cbranch_scc1 %s", l_)
        nxt_k = ("redffn1_kernel" if proj else "ffn2_kernel")
        code_prefetch(a, None, nxt_k, nxt_k + "_end", 36, s_t0, v_lane, v_t, 64)
        a.label(l_)
    if t2: a.e("s_branch %s", LT1)
    elif chain: a.e("s_branch %s", LT0)
    else: a.e("s_endpgm")
    a.label(LC)
    if fr: red_part()
    if proj and cont:
        okc, spc = a.newlabel("Lfok"), a.newlabel("Lfsp")
        a.e("s_sub_u32 s%d, 15, s%d", s_t0, s_rt)
        a.e("s_min_u32 s%d, s%d, s%d", s_t0, s_t0, s_rt)
        a.e("s_lshl_b32 s%d, s%d, 5", s_t0, s_t0)
        a.e("s_lshl_b32 s%d, s%d, 3", s_t1, s_ksq)
        a.e("s_add_u32 s%d, s%d, s%d", s_t0, s_t0, s_t1)
        a.e("v_and_b32 v%d, 7, v%d", 9, v_lane)
        a.e("v_add_u32 v%d, s%d, v%d", 9, s_t0, 9)
        a.e("v_lshlrev_b32 v%d, 7, v%d", 9, 9)
        a.e("s_mov_b32 s%d, 0x%x", s_t2, WS_FLAGC)
        a.e("s_mov_b32 s47, 0x40000")
        a.label(spc)
        a.e("buffer_load_dword v10, v9, s[%d:%d], s%d offen sc1", S_WS, S_WS + 3, s_t2)
        a.e("s_waitcnt vmcnt(0)")
        a.e("v_cmp_eq_u32 vcc, 1, v10")
        a.e("s_nop 3")
        a.e("s_cmp_eq_u64 vcc, -1")
        a.e("s_cbranch_scc1 %s", okc)
        a.e("s_sleep 3")
        a.e("s_sub_u32 s47, s47, 1")
        a.e("s_cbranch_scc0 %s", spc)
        a.label(okc)
    ALLA = fr and "alla" in exp
    for em in a_loads(0): em()
    if ALLA:
        for p_ in range(1, NPH):
            for em in a_loads(p_): em()
    if not fr: st.mark()
    frs = [(p, j, cb) for p in range(NPH) for j in range(8) for cb in range(4)]
    def w_read(gi):
        p, j, cb = frs[gi]
        r = WFR + (gi % NRW) * 4
        for t in range(2):
            off = (p & 3) * 32768 + (4 * j + 2 * t) * 1024 + cb * 256
            a.e("ds_read_b64_tr_b16 v[%d:%d], v%d offset:%d", r + 2 * t, r + 2 * t + 1, v_tr if off < 65536 else v_tr2, off & 0xffff)
            lg.issue(("w", gi))
    PRE = NRW - 1
    pend = []
    nread = 0
    for gi, (p, j, cb) in enumerate(frs):
        k = gi % 32
        if k == 0:
            a.e("s_barrier")
            if (p == 0 and not fr) or (fr and "fine" in exp and p in (0, 1, 2)): st.mark()
            pend = [] if ALLA else ((a_loads(1) if p == 0 else []) + (a_loads(p + 2) if p + 2 < NPH else []))
        lim = 32 * (p + 1) if (p <= 1 or (fr and "strict" in exp)) else len(frs)
        while nread < min(gi + PRE + 1, lim, len(frs)):
            w_read(nread); nread += 1
        if cb == 0: vm.wait(("a", p)) if j == 0 else None
        if fr and "fine" in exp and gi == 0: st.mark()
        if gi % 2 == 0: lg.wait([("w", gi), ("w", gi + 1)])
        wf = WFR + (gi % NRW) * 4
        d = ACC + cb * 16
        af = AF + ((p & 3) * 8 + j) * 4
        c = "0" if gi < 4 else "v[%d:%d]" % (d, d + 15)
        a.e("v_mfma_f32_32x32x16_bf16 v[%d:%d], v[%d:%d], v[%d:%d], %s", d, d + 15, wf, wf + 3, af, af + 3, c)
        if pend and (k % 3 == 2 or (p == 0 and k % 3 != 0) or (p == 0 and k < 12)): pend.pop(0)()
    st.mark()
    a.e("s_nop 7")
    if proj:
        a.e("s_lshl_b32 s%d, s%d, 6", s_t0, s_ksq)
        a.e("s_add_u32 s%d, s%d, s%d", s_t0, s_t0, s_qb)
        a.e("s_lshl_b32 s%d, s%d, 15", s_t0, s_t0)
        a.e("s_lshl_b32 s%d, s%d, 13", s_t1, s_ct)
        a.e("s_add_u32 s%d, s%d, s%d", s_t0, s_t0, s_t1)
        a.e("s_add_u32 s%d, s%d, 0x%x", s_t0, s_t0, WS_P)
    else:
        a.e("s_mul_i32 s%d, s%d, %d", s_t0, s_qb, 112 * 1024)
        a.e("s_lshl_b32 s%d, s%d, 13", s_t1, s_ct)
        a.e("s_add_u32 s%d, s%d, s%d", s_t0, s_t0, s_t1)
        a.e("s_add_u32 s%d, s%d, 0x%x", s_t0, s_t0, WS_F)
        a.e("v_lshlrev_b32 v%d, 3, v%d", v_t, v_hf)
        a.e("v_add_u32 v%d, %d, v%d", v_t, LDS_B, v_t)
        BR = 128
        for cb in range(4):
            for i in range(4):
                r = BR + (cb * 4 + i) * 2
                a.e("ds_read_b64 v[%d:%d], v%d offset:%d", r, r + 1, v_t, cb * 64 + i * 16)
            if cb == 1: a.e("s_waitcnt lgkmcnt(0)")
        a.e("s_waitcnt lgkmcnt(0)")
    a.e("s_add_u32 s%d, s%d, 4096", s_t1, s_t0)
    a.e("s_nop 3")
    for cb in range(4):
        for hz in range(2):
            base = ACC + cb * 16 + hz * 8
            if not proj:
                for ii in range(2):
                    r = 128 + (cb * 4 + hz * 2 + ii) * 2
                    T = 176
                    a.e("v_lshlrev_b32 v%d, 16, v%d", T, r)
                    a.e("v_and_b32 v%d, 0xffff0000, v%d", T + 1, r)
                    a.e("v_lshlrev_b32 v%d, 16, v%d", T + 2, r + 1)
                    a.e("v_and_b32 v%d, 0xffff0000, v%d", T + 3, r + 1)
                    for j in range(4):
                        a.e("v_add_f32 v%d, v%d, v%d", base + ii * 4 + j, base + ii * 4 + j, T + j)
                for e in range(8):
                    a.e("v_max_f32 v%d, 0, v%d", base + e, base + e)
                for e in range(8):
                    a.e("v_mul_f32 v%d, v%d, v%d", base + e, base + e, base + e)
            for i in range(4):
                a.e("v_cvt_pk_bf16_f32 v%d, v%d, v%d", base + i, base + 2 * i, base + 2 * i + 1)
            ds = 2 * cb + hz
            a.e("buffer_store_dwordx4 v[%d:%d], v%d, s[%d:%d], s%d offen offset:%d", base, base + 3, v_l16, S_WS, S_WS + 3,
                s_t0 if ds < 4 else s_t1, (ds & 3) * 1024)
    if diag:
        a.e("s_waitcnt vmcnt(0)")
        st.mark()
        st.dump(S_WS, s_w, 10, s_t2)
    if t2:
        a.e("s_waitcnt vmcnt(0)")
        a.label(LT1)
        a.e("s_barrier")
        l_ = a.newlabel("Lf3")
        a.e("s_cmp_lg_u32 s%d, 0", S_WAVE); a.e("s_cbranch_scc1 %s", l_)
        a.e("s_cmp_ge_u32 s2, 224"); a.e("s_cbranch_scc1 %s", l_)
        flag_store(WS_FLAG3, 1, v_t)
        a.label(l_)
        gen_k35(a, "ffn2", name + "_ffn2", 4, diag=diag, exp=exp5, s_wave_in=S_WAVE)
    if chain:
        a.e("s_waitcnt vmcnt(0)")
        a.label(LT0)
        a.e("s_barrier")
        l_ = a.newlabel("Lf1")
        a.e("s_cmp_lg_u32 s%d, 0", S_WAVE); a.e("s_cbranch_scc1 %s", l_)
        flag_store(WS_FLAG1, 1, v_t)
        a.label(l_)
        chain()
    if not cont: a.label(name + "_end")
    a.e("s_endpgm")


def gen_red(a, name, kidx, diag=False, exp=""):
    kernel_begin(a, name)
    st = Stamps(a, diag, kidx, base=56, maxn=10)
    S_X, S_WS = 4, 8
    s_w, s_t0, s_t1, s_qb, s_r0 = 12, 13, 14, 15, 16
    v_lane, v_r, v_hf, v_g, v_u, v_t = 0, 1, 2, 3, 4, 5
    PR, XR, A, F = 16, 32, 40, 48
    a.e("s_cmp_ge_u32 s2, 256")
    a.e("s_cbranch_scc1 %s_end", name)
    st.mark()
    a.e("s_load_dwordx2 s[4:5], s[0:1], %d", A_X)
    a.e("s_load_dwordx2 s[8:9], s[0:1], %d", WS)
    a.e("v_lshrrev_b32 v%d, 6, v0", v_t)
    a.e("v_and_b32 v%d, 63, v0", v_lane)
    a.e("v_readfirstlane_b32 s%d, v%d", s_w, v_t)
    a.e("s_lshr_b32 s%d, s2, 2", s_qb)
    a.e("s_and_b32 s%d, s2, 3", s_r0)
    a.e("s_lshl_b32 s%d, s%d, 3", s_r0, s_r0)
    a.e("v_and_b32 v%d, 7, v%d", v_r, v_lane)
    a.e("v_bfe_u32 v%d, v%d, 3, 1", v_hf, v_lane)
    a.e("v_lshrrev_b32 v%d, 4, v%d", v_g, v_lane)
    a.e("s_lshl_b32 s%d, s%d, 2", s_t0, s_w)
    a.e("v_add_u32 v%d, s%d, v%d", v_g, s_t0, v_g)
    a.e("v_add_u32 v%d, s%d, v%d", v_t, s_r0, v_r)
    a.e("v_lshlrev_b32 v%d, 4, v%d", v_u, v_t)
    a.e("v_lshl_add_u32 v%d, v%d, 9, v%d", v_u, v_hf, v_u)
    a.e("v_lshl_add_u32 v%d, v%d, 10, v%d", v_u, v_g, v_u)
    a.e("v_lshlrev_b32 v%d, 10, v%d", v_t + 1, v_t)
    a.e("v_lshl_add_u32 v%d, v%d, 5, v%d", v_t + 1, v_g, v_t + 1)
    a.e("v_lshl_add_u32 v%d, v%d, 3, v%d", v_t + 1, v_hf, v_t + 1)
    a.e("s_waitcnt lgkmcnt(0)")
    srd(a, S_X, S_X, 2 << 20); srd(a, S_WS, S_WS, WS_BYTES)
    a.e("s_lshl_b32 s%d, s%d, 15", s_t0, s_qb)
    a.e("s_add_u32 s%d, s%d, 0x%x", s_t1, s_t0, WS_P)
    for p in range(4):
        a.e("buffer_load_dwordx4 v[%d:%d], v%d, s[%d:%d], s%d offen", PR + 4 * p, PR + 4 * p + 3, v_u, S_WS, S_WS + 3, s_t1)
        if p < 3: a.e("s_add_u32 s%d, s%d, 0x%x", s_t1, s_t1, 64 * 32768)
    a.e("buffer_load_dwordx2 v[%d:%d], v%d, s[%d:%d], s%d offen", XR, XR + 1, v_t + 1, S_X, S_X + 3, s_t0)
    a.e("buffer_load_dwordx2 v[%d:%d], v%d, s[%d:%d], s%d offen offset:16", XR + 2, XR + 3, v_t + 1, S_X, S_X + 3, s_t0)
    if "pf" in exp:
        a.e("v_lshlrev_b32 v12, 4, v%d", v_lane)
        a.e("s_lshr_b32 s20, s2, 3")
        for ins in l2_prefetch(a, (B_W1, 1792 * 1024), 1792 * 1024, 32, 8, 20, s_w, 24, 21, 22, 12, 64 - 16 + 16): a.e(ins)
    st.mark()
    def unpack(src, dst):
        for i in range(4):
            a.e("v_lshlrev_b32 v%d, 16, v%d", dst + 2 * i, src + i)
            a.e("v_and_b32 v%d, 0xffff0000, v%d", dst + 2 * i + 1, src + i)
    NPF = 7 if "pf" in exp else 0
    a.e("s_waitcnt vmcnt(%d)", 5 + NPF)
    unpack(PR, A)
    for p in range(1, 4):
        a.e("s_waitcnt vmcnt(%d)", 5 - p + NPF)
        unpack(PR + 4 * p, F)
        for e in range(8): a.e("v_add_f32 v%d, v%d, v%d", A + e, A + e, F + e)
    a.e("s_waitcnt vmcnt(%d)", NPF)
    unpack(XR, F)
    for e in range(8): a.e("v_add_f32 v%d, v%d, v%d", A + e, A + e, F + e)
    H = 56
    for i in range(4): a.e("v_cvt_pk_bf16_f32 v%d, v%d, v%d", H + i, A + 2 * i, A + 2 * i + 1)
    a.e("s_add_u32 s%d, s%d, 0x%x", s_t1, s_t0, WS_H)
    a.e("buffer_store_dwordx4 v[%d:%d], v%d, s[%d:%d], s%d offen", H, H + 3, v_u, S_WS, S_WS + 3, s_t1)
    unpack(H, A)
    def rowreduce(r, slot):
        a.e("s_nop 1")
        a.e("v_add_f32_dpp v%d, v%d, v%d row_ror:8 row_mask:0xf bank_mask:0xf", r, r, r)
        a.e("v_mov_b32 v%d, v%d", F, r)
        a.e("s_nop 1")
        a.e("v_permlane16_swap_b32 v%d, v%d", r, F)
        a.e("s_nop 1")
        a.e("v_add_f32 v%d, v%d, v%d", r, r, F)
        a.e("v_mov_b32 v%d, v%d", F, r)
        a.e("s_nop 1")
        a.e("v_permlane32_swap_b32 v%d, v%d", r, F)
        a.e("s_nop 1")
        a.e("v_add_f32 v%d, v%d, v%d", r, r, F)
        a.e("v_lshlrev_b32 v%d, 5, v%d", F, v_r)
        a.e("s_lshl_b32 s%d, s%d, 2", s_t1, s_w)
        a.e("v_add_u32 v%d, s%d, v%d", F + 1, s_t1, F)
        a.e("ds_write_b32 v%d, v%d offset:%d", F + 1, r, slot * 256)
        a.e("s_waitcnt lgkmcnt(0)")
        a.e("s_barrier")
        a.e("ds_read_b128 v[%d:%d], v%d offset:%d", F + 4, F + 7, F, slot * 256)
        a.e("ds_read_b128 v[%d:%d], v%d offset:%d", F + 8, F + 11, F, slot * 256 + 16)
        a.e("s_waitcnt lgkmcnt(0)")
        a.e("v_add_f32 v%d, v%d, v%d", r, F + 4, F + 5)
        for i in range(6, 12): a.e("v_add_f32 v%d, v%d, v%d", r, r, F + i)
    M, V2 = 60, 61
    a.e("v_add_f32 v%d, v%d, v%d", M, A, A + 1)
    for e in range(2, 8): a.e("v_add_f32 v%d, v%d, v%d", M, M, A + e)
    rowreduce(M, 0)
    a.e("v_mul_f32 v%d, 0x3b000000, v%d", M, M)
    for e in range(8): a.e("v_sub_f32 v%d, v%d, v%d", A + e, A + e, M)
    a.e("v_mul_f32 v%d, v%d, v%d", V2, A, A)
    for e in range(1, 8): a.e("v_fmac_f32 v%d, v%d, v%d", V2, A + e, A + e)
    rowreduce(V2, 1)
    a.e("v_mov_b32 v%d, 0x3727c5ac", M)
    a.e("v_fmac_f32 v%d, 0x3b000000, v%d", M, V2)
    a.e("v_rsq_f32 v%d, v%d", M, M)
    a.e("s_nop 0")
    for e in range(8): a.e("v_mul_f32 v%d, v%d, v%d", A + e, A + e, M)
    for i in range(4): a.e("v_cvt_pk_bf16_f32 v%d, v%d, v%d", H + i - 0, A + 2 * i, A + 2 * i + 1) if False else None
    HN = 32
    for i in range(4): a.e("v_cvt_pk_bf16_f32 v%d, v%d, v%d", HN + i, A + 2 * i, A + 2 * i + 1)
    a.e("s_add_u32 s%d, s%d, 0x%x", s_t1, s_t0, WS_HN)
    a.e("buffer_store_dwordx4 v[%d:%d], v%d, s[%d:%d], s%d offen", HN, HN + 3, v_u, S_WS, S_WS + 3, s_t1)
    if diag:
        a.e("s_waitcnt vmcnt(0)")
        st.mark()
        st.dump(S_WS, s_w, 10, s_t0)
    a.label(name + "_end")
    a.e("s_endpgm")
```

```python
import sys
from gen_common import *
from gen_k1 import gen_k1
from gen_k2 import gen_k2, gen_k2_iter
from gen_k35 import gen_k35
from gen_rr import gen_rr, gen_red

OFFICIAL = 'sequential_preLN__compressed_kv_cla__dense_activation_squared_relu__prompt_kernel'
def header(a, launches):
    hdr = open("sequential_preLN__compressed_kv_cla__dense_activation_squared_relu__prompt.s.ref").read().split("\n")
    for l in hdr:
        if l.startswith("; Override launch"): break
        a(l)
    a("; One launch, 256 workgroups (one per CU, all co-resident), phases chained through hand-off flags:")
    a("; ordered by that counter); producers store with sc1, wait, barrier, set the flag; consumers poll and read with sc1 loads.")
    for (k, g, b, lds) in launches:
        if k == OFFICIAL: a("; @launch grid=(%d,1,1) block=(%d,1,1) lds=%d" % (g, b, lds))
        else: a("; @launch kernel=%s grid=(%d,1,1) block=(%d,1,1) lds=%d" % (k, g, b, lds))
    a('.amdgcn_target "amdgcn-amd-amdhsa--gfx950"')
    a(".text")

def main(out, which, diag=False, exp=''):
    a = Asm()
    L = []
    if "1" in which and "1L" not in which: L.append(("kv_kernel", 256, 512, 131072 + 8192 + 1024))
    if "2" in which: L.append(("attn_kernel", 256, 512, 147456))
    if "f" in which: L.insert(0, ("kvattn_kernel", 256, 512, 147456))
    KN = OFFICIAL if "official" in exp else "sequential_kernel"
    if "1L" in which: L.insert(0, (KN, 256, 512, 147456))
    if "3" in which: L.append(("proj_kernel", 256, 512, 131072))
    if "T" in which: L.append(("tail_kernel", 256, 512, 131072 + 512))
    if "r" in which: L.append(("red_kernel", 256, 512, 1024))
    if "4" in which: L.append(("ffn1_kernel", 224, 512, 131072 + 256))
    if "R" in which: L.append(("redffn1_kernel", 256, 512, 131072 + 512))
    if "5" in which: L.append(("ffn2_kernel", 256, 512, 131072))
    header(a, L)
    descs = []
    def EX(k):
        out = []
        for f in exp.split(","):
            if ":" in f:
                kk, ff = f.split(":")
                if k in kk: out.append(ff)
            else: out.append(f)
        return ",".join(out)
    import gen_common
    pol = "sc1" if "sc1" in exp else ("nt" if "stnt" in exp else ("sc0 sc1" if "sc01" in exp else ""))
    if "sc01" in exp: pol = "sc0 sc1"
    def setpol(k):
        e = EX(k)
        gen_common.STORE_POLICY["v"] = "sc1" if "sc1" in e else ("nt" if "stnt" in e else "")
    if "1" in which and "1L" not in which:
        setpol('1'); gen_k1(a, diag=diag, exp=EX('1')); descs.append(("kv_kernel", 256, 102))
    if "2" in which:
        setpol('2'); gen_k2(a, diag=diag, exp=EX('2'), thr_log2=(2 if "thr" in exp else 40)); descs.append(("attn_kernel", 256, 102))
    if "f" in which:
        setpol("2")
        e2 = EX("2")
        gen_k1(a, "kvattn_kernel", diag=diag, exp=EX("1"),
               fused=lambda vm, lg, st: gen_k2_iter(a, "kvattn_kernel", diag, e2, 2 if "thr" in exp else 40, dict(vm=vm, lg=lg, st=st)))
        descs.append(("kvattn_kernel", 256, 102))
    if "1L" in which:
        e2 = EX("2")
        def rest2():
            setpol("4")
            gen_rr(a, "redffn1", KN + "_b", 3, diag=diag, exp=EX("4"), exp5=EX("5"), cont=True)
        def rest1():
            setpol("3")
            gen_rr(a, "proj", KN + "_p", 2, diag=diag, exp=EX("3"), cont=True, chain=rest2)
            setpol("2")
        setpol("2")
        gen_k1(a, KN, diag=diag, exp=EX("1") + ",onel",
               fused=lambda vm, lg, st: gen_k2_iter(a, KN, diag, e2, 2 if "thr" in exp else 40, dict(vm=vm, lg=lg, st=st, after=rest1)))
        descs.append((KN, 256, 102))
    if "3" in which:
        setpol("3"); gen_rr(a, "proj", "proj_kernel", 2, diag=diag, exp=EX("3")); descs.append(("proj_kernel", 256, 102))
    if "T" in which:
        setpol("3")
        def rest():
            setpol("4")
            gen_rr(a, "redffn1", "tail_kernel_b", 3, diag=diag, exp=EX("4"), exp5=EX("5"), cont=True)
        gen_rr(a, "proj", "tail_kernel", 2, diag=diag, exp=EX("3"), chain=rest)
        descs.append(("tail_kernel", 256, 102))
    if "r" in which:
        setpol("r"); gen_red(a, "red_kernel", 5, diag=diag, exp=EX("r")); descs.append(("red_kernel", 96, 102))
    if "4" in which:
        setpol("4"); gen_rr(a, "ffn1", "ffn1_kernel", 3, diag=diag, exp=EX("4")); descs.append(("ffn1_kernel", 256, 102))
    if "R" in which:
        setpol("4"); gen_rr(a, "redffn1", "redffn1_kernel", 3, diag=diag, exp=EX("4"), exp5=EX("5")); descs.append(("redffn1_kernel", 256, 102))
    if "5" in which:
        setpol("5"); gen_k35(a, "ffn2", "ffn2_kernel", 4, diag=diag, exp=EX("5")); descs.append(("ffn2_kernel", 256, 102))
    a.label("all_code_end")
    a.e("s_endpgm")
    a('.section .rodata,"a"')
    for (n, v, s) in descs:
        a(kernel_desc(n, v, s))
    open(out, "w").write(a.text())

if __name__ == "__main__":
    main(sys.argv[1], sys.argv[2], len(sys.argv) > 3 and sys.argv[3] == 'diag', sys.argv[4] if len(sys.argv) > 4 else '')
```

```python
from asmlib import *

A_X, A_CKV, A_WQ, A_WUK, A_WUV, A_WO, B_X, B_W1, B_B1, B_W2, B_B2, OUT, DBG, WS = [8*i for i in range(14)]

WS_K    = 0
import os
HEAD_STRIDE = int(os.environ.get('HSTRIDE', str(512 << 10)), 0)
WS_V    = 18 << 20
WS_CTX  = 36 << 20
WS_XN   = 54 << 20
WS_H    = 56 << 20
WS_F    = 58 << 20
WS_HN   = 68 << 20
WS_P    = 70 << 20
WS_CS   = 80 << 20
WS_ST   = 81 << 20
WS_FLAG = 82 << 20
WS_FLAG2 = (82 << 20) + 65536
WS_FLAG3 = (82 << 20) + 131072
WS_FLAG1 = (82 << 20) + 196608
WS_FLAGC = (82 << 20) + 262144
WS_STAMP= 100 << 20
WS_BYTES = 268435456

def srd(a, s, ptr_s, nbytes):
    if ptr_s != s:
        a.e("s_mov_b32 s%d, s%d", s, ptr_s)
        a.e("s_mov_b32 s%d, s%d", s + 1, ptr_s + 1)
    a.e("s_mov_b32 s%d, 0x%x", s + 2, nbytes)
    a.e("s_mov_b32 s%d, 0x20000", s + 3)

def rowsum16(a, regs):
    steps = ["quad_perm:[1,0,3,2]", "quad_perm:[2,3,0,1]", "row_half_mirror", "row_mirror"]
    for st in steps:
        if len(regs) < 3:
            a.e("s_nop 1")
        for r in regs:
            a.e("v_add_f32_dpp v%d, v%d, v%d %s row_mask:0xf bank_mask:0xf", r, r, r, st)

def allsum64(a, r, t):
    rowsum16(a, [r])
    a.e("v_mov_b32 v%d, v%d", t, r)
    a.e("s_nop 1")
    a.e("v_permlane16_swap_b32 v%d, v%d", r, t)
    a.e("s_nop 1")
    a.e("v_add_f32 v%d, v%d, v%d", r, r, t)
    a.e("v_mov_b32 v%d, v%d", t, r)
    a.e("s_nop 1")
    a.e("v_permlane32_swap_b32 v%d, v%d", r, t)
    a.e("s_nop 1")
    a.e("v_add_f32 v%d, v%d, v%d", r, r, t)


class Stamps:
    def __init__(self, a, enabled, kidx, base=48, maxn=12):
        self.a, self.en, self.kidx, self.base, self.n, self.maxn = a, enabled, kidx, base, 0, maxn
    def mark(self):
        if not self.en: return
        assert self.n < self.maxn
        self.a.e("s_memrealtime s[%d:%d]", self.base + 4 * self.n, self.base + 4 * self.n + 1)
        self.a.e("s_memtime s[%d:%d]", self.base + 4 * self.n + 2, self.base + 4 * self.n + 3)
        self.n += 1
    def dump_dbg(self, s_dbg, s_w, vtmp, first_slot, wg=0):
        if not self.en: return
        a = self.a
        l = a.newlabel("Lsd")
        a.e("s_cmp_lg_u32 s2, %d", wg); a.e("s_cbranch_scc1 %s", l)
        a.e("s_cmp_lg_u32 s%d, 0", s_w); a.e("s_cbranch_scc1 %s", l)
        a.e("s_waitcnt lgkmcnt(0)")
        for i in range(self.n):
            a.e("v_mov_b32 v%d, s%d", vtmp, self.base + 4 * i)
            a.e("buffer_store_dword v%d, off, s[%d:%d], 0 offset:%d", vtmp, s_dbg, s_dbg + 3, 4 * (first_slot + i))
            a.e("s_nop 1")
        a.label(l)
    def dump(self, s_ws, s_w, vtmp, stmp, wave=0):
        if not self.en: return
        a = self.a
        l = a.newlabel("Lst")
        a.e("s_cmp_lg_u32 s%d, %d", s_w, wave)
        a.e("s_cbranch_scc1 %s", l)
        a.e("s_waitcnt lgkmcnt(0)")
        a.e("s_lshl_b32 s%d, s2, 7", stmp)
        a.e("s_add_u32 s%d, s%d, 0x%x", stmp, stmp, WS_STAMP + self.kidx * 65536)
        a.e("v_mov_b32 v%d, 0", vtmp + 1)
        for i in range(self.n):
            a.e("v_mov_b32 v%d, s%d", vtmp, self.base + 4 * i)
            a.e("buffer_store_dword v%d, v%d, s[%d:%d], s%d offen offset:%d", vtmp, vtmp + 1, s_ws, s_ws + 3, stmp, 8 * i)
            a.e("s_nop 1")
            a.e("v_mov_b32 v%d, s%d", vtmp, self.base + 4 * i + 2)
            a.e("buffer_store_dword v%d, v%d, s[%d:%d], s%d offen offset:%d", vtmp, vtmp + 1, s_ws, s_ws + 3, stmp, 8 * i + 4)
            a.e("s_nop 1")
        a.label(l)

class Cnt:
    def __init__(self, a, name, maxn):
        self.a, self.name, self.maxn, self.ops = a, name, maxn, []
        self.total = 0
    def issue(self, tag):
        self.ops.append(tag)
        self.total += 1
        assert len(self.ops) <= self.maxn, "too many outstanding %s: %d" % (self.name, len(self.ops))
    def need(self, tags):
        if not isinstance(tags, (list, set)): tags = [tags]
        idx = -1
        for i, t in enumerate(self.ops):
            if t in tags: idx = i
        if idx < 0: return None
        return len(self.ops) - 1 - idx
    def wait(self, tags):
        n = self.need(tags)
        if n is None: return
        self.a.e("s_waitcnt %s(%d)", self.name, n)
        self.ops = self.ops[len(self.ops) - n:] if n > 0 else []
    def waitall(self):
        if self.ops:
            self.a.e("s_waitcnt %s(0)", self.name)
        self.ops = []

STORE_POLICY = {"v": ""}
_old_e = Asm.e
def _e(self, fmt, *a):
    line = (fmt % a if a else fmt)
    if STORE_POLICY["v"] and line.startswith("buffer_store_dwordx4") :
        line += " " + STORE_POLICY["v"]
    self.lines.append("  " + line)
Asm.e = _e

def l2_prefetch(a, karg, total, nwg_x, nwaves, s_idx, s_w, S_N, s_t0, s_t1, v_l16, vdst, base=0, s_extra=None):
    per = total // nwg_x
    n_i = per // nwaves // 1024
    assert per % (nwaves * 1024) == 0
    a.e("s_load_dwordx2 s[%d:%d], s[0:1], %d", S_N, S_N + 1, karg[0])
    a.e("s_mul_i32 s%d, s%d, %d", s_t0, s_idx, per)
    a.e("s_mul_i32 s%d, s%d, %d", s_t1, s_w, n_i * 1024)
    a.e("s_add_u32 s%d, s%d, s%d", s_t0, s_t0, s_t1)
    if s_extra is not None: a.e("s_add_u32 s%d, s%d, s%d", s_t0, s_t0, s_extra)
    a.e("s_waitcnt lgkmcnt(0)")
    srd(a, S_N, S_N, karg[1])
    L = []
    for i in range(n_i):
        if i and i % 4 == 0: L.append("s_add_u32 s%d, s%d, 4096" % (s_t0, s_t0))
        L.append("buffer_load_dwordx4 v[%d:%d], v%d, s[%d:%d], s%d offen offset:%d" % (vdst + 4 * (i % 4), vdst + 3 + 4 * (i % 4), v_l16, S_N, S_N + 3, s_t0, (i & 3) * 1024))
    return L

def code_prefetch(a, cur_label_base, start, end, s_pair, s_t0, v_lane, v_tmp, v_dst):
    lpc = a.newlabel("Lpc")
    a.e("s_getpc_b64 s[%d:%d]", s_pair, s_pair + 1)
    a.label(lpc)
    a.e("s_add_u32 s%d, s%d, %s - %s", s_pair, s_pair, start, lpc)
    a.e("s_addc_u32 s%d, s%d, 0", s_pair + 1, s_pair + 1)
    a.e("s_lshr_b32 s%d, s2, 3", s_t0)
    a.e("s_lshl_b32 s%d, s%d, 9", s_t0, s_t0)
    a.e("v_lshl_add_u32 v%d, v%d, 3, s%d", v_tmp, v_lane, s_t0)
    a.e("s_mov_b32 s%d, %s - %s - 8", s_t0, end, start)
    a.e("v_min_u32 v%d, s%d, v%d", v_tmp, s_t0, v_tmp)
    a.e("global_load_dwordx2 v[%d:%d], v%d, s[%d:%d]", v_dst, v_dst + 1, v_tmp, s_pair, s_pair + 1)
```

```python
from gen_common import *
import gen_common

def gen_k35(a, kind, name, kidx, diag=False, exp="", s_wave_in=None):
    fused = s_wave_in is not None
    SC1 = " sc1" if fused else ""
    if not fused: kernel_begin(a, name)
    st = Stamps(a, diag, kidx, base=56, maxn=10)
    vm = Cnt(a, "vmcnt", 63); lg = Cnt(a, "lgkmcnt", 15)
    proj = kind == "proj"
    NKS = 32 if proj else 14
    ACT_QB = 256 * 1024 if proj else 112 * 1024
    WS_ACT = WS_CTX if proj else WS_F
    S_W, S_WS, S_X, S_O, S_B = 4, 8, 12, 16, 20
    s_w, s_rt, s_ct, s_t0, s_t1, s_t2, s_a0, s_a1, s_wb, s_m0, s_rot = 24, 25, 26, 27, 28, 29, 30, 31, 32, 33, 34
    v_lane, v_l16, v_wd, v_tr, v_t = 0, 1, 2, 3, 4
    ACC = 64
    DEPTH = 6 if proj else 7
    for d_ in (2, 3, 4, 5):
        if 'depth%d' % d_ in exp: DEPTH = d_
    AF = 128
    WFR = 16
    LDSW = DEPTH * 2048

    if not fused:
        a.e("s_cmp_ge_u32 s2, 256")
        a.e("s_cbranch_scc1 %s_end", name)
    st.mark()
    if proj:
        a.e("s_load_dwordx2 s[4:5], s[0:1], %d", A_WO)
        a.e("s_load_dwordx2 s[12:13], s[0:1], %d", A_X)
    else:
        a.e("s_load_dwordx2 s[4:5], s[0:1], %d", B_W2)
        a.e("s_load_dwordx2 s[16:17], s[0:1], %d", OUT)
        a.e("s_load_dwordx2 s[20:21], s[0:1], %d", B_B2)
    a.e("s_load_dwordx2 s[8:9], s[0:1], %d", WS)
    if fused:
        a.e("s_mov_b32 s%d, s%d", s_w, s_wave_in)
    else:
        a.e("v_lshrrev_b32 v%d, 6, v0", v_t)
        a.e("v_and_b32 v%d, 63, v0", v_lane)
        a.e("v_readfirstlane_b32 s%d, v%d", s_w, v_t)
    if "map84" in exp:
        a.e("s_and_b32 s%d, s2, 7", s_t0)
        a.e("s_lshr_b32 s%d, s2, 3", s_t1)
        a.e("s_and_b32 s%d, s%d, 1", s_ct, s_t0)
        a.e("s_lshl_b32 s%d, s%d, 2", s_ct, s_ct)
        a.e("s_and_b32 s%d, s%d, 3", s_t2, s_t1)
        a.e("s_add_u32 s%d, s%d, s%d", s_ct, s_ct, s_t2)
        a.e("s_lshr_b32 s%d, s%d, 1", s_rt, s_t0)
        a.e("s_lshl_b32 s%d, s%d, 3", s_rt, s_rt)
        a.e("s_lshr_b32 s%d, s%d, 2", s_t1, s_t1)
        a.e("s_add_u32 s%d, s%d, s%d", s_rt, s_rt, s_t1)
    else:
        a.e("s_and_b32 s%d, s2, 31", s_rt)
        a.e("s_lshr_b32 s%d, s2, 5", s_ct)
    a.e("v_lshlrev_b32 v%d, 4, v%d", v_l16, v_lane)
    a.e("v_lshrrev_b32 v%d, 5, v%d", v_t, v_lane)
    a.e("v_bfe_u32 v%d, v%d, 2, 2", v_t + 1, v_lane)
    a.e("v_lshl_add_u32 v%d, v%d, 2, v%d", v_t, v_t, v_t + 1)
    a.e("v_lshlrev_b32 v%d, 10, v%d", v_wd, v_t)
    a.e("v_bfe_u32 v%d, v%d, 4, 1", v_t, v_lane)
    a.e("v_lshl_add_u32 v%d, v%d, 6, v%d", v_wd, v_t, v_wd)
    a.e("v_and_b32 v%d, 3, v%d", v_t, v_lane)
    a.e("v_lshl_add_u32 v%d, v%d, 4, v%d", v_wd, v_t, v_wd)
    a.e("v_lshrrev_b32 v%d, 5, v%d", v_t, v_lane)
    a.e("v_lshlrev_b32 v%d, 9, v%d", v_tr, v_t)
    a.e("v_bfe_u32 v%d, v%d, 2, 2", v_t, v_lane)
    a.e("v_lshl_add_u32 v%d, v%d, 6, v%d", v_tr, v_t, v_tr)
    a.e("v_bfe_u32 v%d, v%d, 4, 1", v_t, v_lane)
    a.e("v_lshl_add_u32 v%d, v%d, 5, v%d", v_tr, v_t, v_tr)
    a.e("v_and_b32 v%d, 3, v%d", v_t, v_lane)
    a.e("v_lshl_add_u32 v%d, v%d, 3, v%d", v_tr, v_t, v_tr)
    a.e("s_mul_i32 s%d, s%d, %d", s_m0, s_w, LDSW)
    a.e("v_add_u32 v%d, s%d, v%d", v_tr, s_m0, v_tr)
    a.e("s_waitcnt lgkmcnt(0)")
    srd(a, S_W, S_W, (4096 if proj else 1792) * 1024); srd(a, S_WS, S_WS, WS_BYTES)
    if proj: srd(a, S_X, S_X, 2 << 20)
    else:
        srd(a, S_O, S_O, 2 << 20); srd(a, S_B, S_B, 1024)
    a.e("s_mul_i32 s%d, s%d, %d", s_a0, s_rt, 2 * ACT_QB)
    a.e("s_mul_i32 s%d, s%d, %d", s_t0, s_w, NKS * 1024)
    a.e("s_add_u32 s%d, s%d, s%d", s_a0, s_a0, s_t0)
    a.e("s_add_u32 s%d, s%d, 0x%x", s_a0, s_a0, WS_ACT)
    a.e("s_add_u32 s%d, s%d, %d", s_a1, s_a0, ACT_QB)
    a.e("s_mul_i32 s%d, s%d, %d", s_wb, s_w, NKS * 16384)
    a.e("s_lshl_b32 s%d, s%d, 7", s_t0, s_ct)
    a.e("s_add_u32 s%d, s%d, s%d", s_wb, s_wb, s_t0)

    a.e("s_lshl_b32 s%d, s%d, 2", s_rot, s_ct)
    a.e("s_lshr_b32 s%d, s%d, 3", s_t0, s_rt)
    a.e("s_lshl_b32 s%d, s%d, 3", s_t0, s_t0)
    a.e("s_add_u32 s%d, s%d, s%d", s_rot, s_rot, s_t0)
    if proj:
        a.e("s_and_b32 s%d, s%d, 31", s_rot, s_rot)
    else:
        a.e("s_and_b32 s%d, s%d, 31", s_rot, s_rot)
        a.e("s_mul_i32 s%d, s%d, 7", s_rot, s_rot)
        a.e("s_lshr_b32 s%d, s%d, 4", s_rot, s_rot)
    if "norot" in exp: a.e("s_mov_b32 s%d, 0", s_rot)
    def loads(ks, part="wa"):
        sl = ks % DEPTH
        if "w" in part:
            a.e("s_lshl_b32 s%d, s%d, 14", s_t0, s_rot)
            a.e("s_add_u32 s%d, s%d, s%d", s_t0, s_t0, s_wb)
            a.e("s_add_u32 m0, s%d, %d", s_m0, sl * 2048)
            a.e("s_add_u32 s%d, s%d, 8192", s_t1, s_t0)
            a.e("buffer_load_dwordx4 v%d, s[%d:%d], s%d offen lds", v_wd, S_W, S_W + 3, s_t0)
            vm.issue(("w", ks))
            a.e("s_add_u32 m0, s%d, %d", s_m0, sl * 2048 + 1024)
            a.e("s_nop 0")
            a.e("buffer_load_dwordx4 v%d, s[%d:%d], s%d offen lds", v_wd, S_W, S_W + 3, s_t1)
            vm.issue(("w", ks))
        if "a" in part:
            a.e("s_lshl_b32 s%d, s%d, 10", s_t0, s_rot)
            a.e("s_add_u32 s%d, s%d, s%d", s_t2, s_a0, s_t0)
            a.e("s_add_u32 s%d, s%d, s%d", s_t1, s_a1, s_t0)
        a.e("s_add_u32 s%d, s%d, 1", s_rot, s_rot)
        a.e("s_cmp_eq_u32 s%d, %d", s_rot, NKS)
        a.e("s_cselect_b32 s%d, 0, s%d", s_rot, s_rot)
        if "a" in part:
            r = AF + sl * 8
            a.e("buffer_load_dwordx4 v[%d:%d], v%d, s[%d:%d], s%d offen%s", r, r + 3, v_l16, S_WS, S_WS + 3, s_t2, SC1)
            vm.issue(("a", ks))
            a.e("buffer_load_dwordx4 v[%d:%d], v%d, s[%d:%d], s%d offen%s", r + 4, r + 7, v_l16, S_WS, S_WS + 3, s_t1, SC1)
            vm.issue(("a", ks))
    def wreads(ks):
        sl = ks % DEPTH
        for fb in range(2):
            r = WFR + (ks & 1) * 8 + fb * 4
            for t in range(2):
                a.e("ds_read_b64_tr_b16 v[%d:%d], v%d offset:%d", r + 2 * t, r + 2 * t + 1, v_tr, sl * 2048 + t * 1024 + fb * 256)
                lg.issue(("w", ks))

    INIT = 2 if "ramp" in exp else DEPTH
    issued = [0]
    if fused:
        s_rot0 = 41
        a.e("s_mov_b32 s%d, s%d", s_rot0, s_rot)
        for ks in range(min(INIT, NKS)): loads(ks, "w")
        a.e("s_mov_b32 s%d, s%d", s_rot, s_rot0)
        lw, ok, sp = a.newlabel("Lpw"), a.newlabel("Lfok"), a.newlabel("Lfsp")
        a.e("s_cmp_lg_u32 s%d, 0", s_w); a.e("s_cbranch_scc1 %s", lw)
        a.e("v_cmp_gt_u32 vcc, 14, v%d", v_lane)
        a.e("s_nop 1")
        a.e("v_cndmask_b32 v%d, 0, v%d, vcc", v_t, v_lane)
        a.e("v_lshrrev_b32 v%d, 1, v%d", v_t + 1, v_t)
        a.e("v_lshlrev_b32 v%d, 5, v%d", v_t + 1, v_t + 1)
        a.e("v_and_b32 v%d, 1, v%d", v_t, v_t)
        a.e("v_add_u32 v%d, v%d, v%d", v_t, v_t, v_t + 1)
        a.e("s_lshr_b32 s%d, s%d, 1", s_t0, s_rt)
        a.e("s_and_b32 s%d, s%d, 3", s_t1, s_t0)
        a.e("s_lshl_b32 s%d, s%d, 3", s_t1, s_t1)
        a.e("s_lshr_b32 s%d, s%d, 2", s_t0, s_t0)
        a.e("s_lshl_b32 s%d, s%d, 1", s_t0, s_t0)
        a.e("s_add_u32 s%d, s%d, s%d", s_t0, s_t0, s_t1)
        a.e("v_add_u32 v%d, s%d, v%d", v_t, s_t0, v_t)
        a.e("v_lshlrev_b32 v%d, 7, v%d", v_t, v_t)
        a.e("s_mov_b32 s%d, 0x%x", s_t2, WS_FLAG3)
        from gen_rr import poll_flags
        poll_flags(a, v_t, v_t + 1, v_t + 2, S_WS, s_t2, 42, "dblpoll" in exp)
        a.label(lw)
        a.e("s_barrier")
        for ks in range(min(INIT, NKS)): loads(ks, "a"); issued[0] += 1
    else:
        for ks in range(min(INIT, NKS)): loads(ks); issued[0] += 1
    s_fb, s_qb, s_s, s_row, s_f16 = 36, 37, 38, 39, 40
    a.e("s_lshr_b32 s%d, s%d, 2", s_fb, s_w)
    a.e("s_bfe_u32 s%d, s%d, 0x10001", s_qb, s_w)
    a.e("s_and_b32 s%d, s%d, 1", s_s, s_w)
    a.e("s_lshl_b32 s%d, s%d, 1", s_row, s_rt)
    a.e("s_add_u32 s%d, s%d, s%d", s_row, s_row, s_qb)
    a.e("s_lshl_b32 s%d, s%d, 2", s_f16, s_ct)
    a.e("s_lshl_b32 s%d, s%d, 1", s_t0, s_fb)
    a.e("s_add_u32 s%d, s%d, s%d", s_f16, s_f16, s_t0)
    a.e("s_add_u32 s%d, s%d, s%d", s_f16, s_f16, s_s)
    R0 = 40
    v_q, v_hf = 8, 9
    a.e("v_and_b32 v%d, 31, v%d", v_q, v_lane)
    a.e("v_lshrrev_b32 v%d, 5, v%d", v_hf, v_lane)
    if proj:
        a.e("v_lshlrev_b32 v%d, 10, v%d", 10, v_q)
        a.e("v_lshl_add_u32 v%d, v%d, 3, v%d", 10, v_hf, 10)
        a.e("s_lshl_b32 s%d, s%d, 15", s_t0, s_row)
        a.e("s_lshl_b32 s%d, s%d, 5", s_t1, s_f16)
        a.e("s_add_u32 s%d, s%d, s%d", s_t0, s_t0, s_t1)
        a.e("buffer_load_dwordx2 v[%d:%d], v10, s[%d:%d], s%d offen", R0, R0 + 1, S_X, S_X + 3, s_t0)
        a.e("buffer_load_dwordx2 v[%d:%d], v10, s[%d:%d], s%d offen offset:16", R0 + 2, R0 + 3, S_X, S_X + 3, s_t0)
        vm.issue("res"); vm.issue("res")
    else:
        a.e("s_lshl_b32 s%d, s%d, 5", s_t0, s_row)
        a.e("s_add_u32 s%d, s%d, s%d", s_t0, s_t0, s_f16)
        a.e("s_lshl_b32 s%d, s%d, 10", s_t0, s_t0)
        a.e("s_add_u32 s%d, s%d, 0x%x", s_t0, s_t0, WS_H)
        a.e("buffer_load_dwordx4 v[%d:%d], v%d, s[%d:%d], s%d offen%s", R0, R0 + 3, v_l16, S_WS, S_WS + 3, s_t0, SC1)
        a.e("v_lshlrev_b32 v10, 3, v%d", v_hf)
        a.e("s_lshl_b32 s%d, s%d, 5", s_t1, s_f16)
        a.e("buffer_load_dwordx2 v[%d:%d], v10, s[%d:%d], s%d offen", R0 + 4, R0 + 5, S_B, S_B + 3, s_t1)
        a.e("buffer_load_dwordx2 v[%d:%d], v10, s[%d:%d], s%d offen offset:16", R0 + 6, R0 + 7, S_B, S_B + 3, s_t1)
        vm.issue("res"); vm.issue("res"); vm.issue("res")
    st.mark()
    vm.wait([("w", 0), ("a", 0)])
    wreads(0)
    for ks in range(NKS):
        if ks + 1 < NKS:
            assert issued[0] > ks + 1
            vm.wait([("w", ks + 1), ("a", ks + 1)])
            wreads(ks + 1)
        lg.wait(("w", ks))
        sl = ks % DEPTH
        for fb in range(2):
            for qb in range(2):
                d = ACC + (fb * 2 + qb) * 16
                wf = WFR + (ks & 1) * 8 + fb * 4
                af = AF + sl * 8 + qb * 4
                c = "0" if ks == 0 else "v[%d:%d]" % (d, d + 15)
                a.e("v_mfma_f32_32x32x16_bf16 v[%d:%d], v[%d:%d], v[%d:%d], %s", d, d + 15, wf, wf + 3, af, af + 3, c)
        n = 0
        while issued[0] < min(ks + DEPTH + 1, NKS) and n < 2:
            loads(issued[0]); issued[0] += 1; n += 1
    st.mark()
    a.e("s_barrier")
    a.e("s_lshl_b32 s%d, s%d, 14", s_t0, s_w)
    a.e("v_add_u32 v%d, s%d, v%d", v_t, s_t0, v_l16)
    a.e("s_nop 7")
    for tile in range(4):
        for i in range(4):
            r = ACC + tile * 16 + i * 4
            a.e("ds_write_b128 v%d, v[%d:%d] offset:%d", v_t, r, r + 3, (tile * 4 + i) * 1024)
    a.e("s_waitcnt lgkmcnt(0)")
    st.mark()
    a.e("s_barrier")
    a.e("s_lshr_b32 s%d, s%d, 1", s_t0, s_w)
    a.e("s_lshl_b32 s%d, s%d, 2", s_t0, s_t0)
    a.e("s_lshl_b32 s%d, s%d, 1", s_t1, s_s)
    a.e("s_add_u32 s%d, s%d, s%d", s_t0, s_t0, s_t1)
    a.e("s_lshl_b32 s%d, s%d, 10", s_t0, s_t0)
    a.e("v_add_u32 v%d, s%d, v%d", v_t, s_t0, v_l16)
    a.e("v_add_u32 v%d, 0x10000, v%d", v_t + 1, v_t)
    PR = 64
    for p in range(8):
        for u in range(2):
            r = PR + (p * 2 + u) * 4
            a.e("ds_read_b128 v[%d:%d], v%d offset:%d", r, r + 3, v_t if p < 4 else v_t + 1, (p & 3) * 16384 + u * 1024)
        if p == 3: a.e("s_waitcnt lgkmcnt(0)")
    a.e("s_waitcnt lgkmcnt(0)")
    for p in range(1, 8):
        for e in range(8):
            a.e("v_add_f32 v%d, v%d, v%d", PR + e, PR + e, PR + p * 8 + e)
    A = PR
    vm.waitall()
    F = 48
    def unpack(src, n, dst):
        for i in range(n):
            a.e("v_lshlrev_b32 v%d, 16, v%d", dst + 2 * i, src + i)
            a.e("v_and_b32 v%d, 0xffff0000, v%d", dst + 2 * i + 1, src + i)
    if proj:
        unpack(R0, 4, F)
        for e in range(8): a.e("v_add_f32 v%d, v%d, v%d", A + e, A + e, F + e)
        for i in range(4): a.e("v_cvt_pk_bf16_f32 v%d, v%d, v%d", F + 8 + i, A + 2 * i, A + 2 * i + 1)
        a.e("s_lshl_b32 s%d, s%d, 5", s_t0, s_row)
        a.e("s_add_u32 s%d, s%d, s%d", s_t0, s_t0, s_f16)
        a.e("s_lshl_b32 s%d, s%d, 10", s_t1, s_t0)
        a.e("s_add_u32 s%d, s%d, 0x%x", s_t1, s_t1, WS_H)
        a.e("buffer_store_dwordx4 v[%d:%d], v%d, s[%d:%d], s%d offen", F + 8, F + 11, v_l16, S_WS, S_WS + 3, s_t1)
        unpack(F + 8, 4, F)
        a.e("v_add_f32 v%d, v%d, v%d", A, F, F + 1)
        for e in range(2, 8): a.e("v_add_f32 v%d, v%d, v%d", A, A, F + e)
        a.e("v_mov_b32 v%d, v%d", A + 1, A)
        a.e("s_nop 1")
        a.e("v_permlane32_swap_b32 v%d, v%d", A, A + 1)
        a.e("s_nop 1")
        a.e("v_add_f32 v%d, v%d, v%d", A, A, A + 1)
        a.e("v_mul_f32 v%d, 0x3d800000, v%d", A, A)
        for e in range(8): a.e("v_sub_f32 v%d, v%d, v%d", F + e, F + e, A)
        a.e("v_mul_f32 v%d, v%d, v%d", A + 1, F, F)
        for e in range(1, 8): a.e("v_fmac_f32 v%d, v%d, v%d", A + 1, F + e, F + e)
        a.e("v_mov_b32 v%d, v%d", A + 2, A + 1)
        a.e("s_nop 1")
        a.e("v_permlane32_swap_b32 v%d, v%d", A + 1, A + 2)
        a.e("s_nop 1")
        a.e("v_add_f32 v%d, v%d, v%d", A + 1, A + 1, A + 2)
        a.e("s_lshl_b32 s%d, s%d, 8", s_t1, s_t0)
        a.e("s_add_u32 s%d, s%d, 0x%x", s_t1, s_t1, WS_ST)
        a.e("v_lshlrev_b32 v10, 3, v%d", v_q)
        a.e("v_cmp_gt_u32 vcc, 32, v%d", v_lane)
        a.e("s_and_saveexec_b64 s[42:43], vcc")
        a.e("buffer_store_dwordx2 v[%d:%d], v10, s[%d:%d], s%d offen", A, A + 1, S_WS, S_WS + 3, s_t1)
        a.e("s_mov_b64 exec, s[42:43]")
    else:
        unpack(R0, 4, F)
        for e in range(8): a.e("v_add_f32 v%d, v%d, v%d", A + e, A + e, F + e)
        unpack(R0 + 4, 4, F)
        for e in range(8): a.e("v_add_f32 v%d, v%d, v%d", A + e, A + e, F + e)
        for i in range(4): a.e("v_cvt_pk_bf16_f32 v%d, v%d, v%d", F + i, A + 2 * i, A + 2 * i + 1)
        a.e("s_nop 1")
        a.e("v_permlane32_swap_b32 v%d, v%d", F, F + 2)
        a.e("v_permlane32_swap_b32 v%d, v%d", F + 1, F + 3)
        a.e("v_lshlrev_b32 v10, 10, v%d", v_q)
        a.e("v_lshl_add_u32 v10, v%d, 4, v10", v_hf)
        a.e("s_lshl_b32 s%d, s%d, 15", s_t0, s_row)
        a.e("s_lshl_b32 s%d, s%d, 5", s_t1, s_f16)
        a.e("s_add_u32 s%d, s%d, s%d", s_t0, s_t0, s_t1)
        pol_ = gen_common.STORE_POLICY["v"]
        if "outplain" in exp: gen_common.STORE_POLICY["v"] = ""
        if "outnt" in exp: gen_common.STORE_POLICY["v"] = "nt"
        a.e("buffer_store_dwordx4 v[%d:%d], v10, s[%d:%d], s%d offen", F, F + 3, S_O, S_O + 3, s_t0)
        gen_common.STORE_POLICY["v"] = pol_
    if diag:
        a.e("s_waitcnt vmcnt(0)")
        st.mark()
        st.dump(S_WS, s_w, 10, s_t0)
        if "dbgst" in exp:
            a.e("s_load_dwordx2 s[44:45], s[0:1], %d", DBG)
            a.e("s_waitcnt lgkmcnt(0)")
            srd(a, 44, 44, 256)
            st.dump_dbg(44, s_w, 10, 9)
    if not fused: a.label(name + "_end")
    a.e("s_endpgm")
```

```python
from gen_common import *
from gen_k35 import gen_k35

def poll_flags(a, v_off, v_a, v_b, S_WS, s_base, s_cnt, dbl):
    ok, sp = a.newlabel("Lfok"), a.newlabel("Lfsp")
    a.e("s_mov_b32 s%d, 0x40000", s_cnt)
    ld = lambda v: a.e("buffer_load_dword v%d, v%d, s[%d:%d], s%d offen sc1", v, v_off, S_WS, S_WS + 3, s_base)
    def chk(v, n):
        a.e("s_waitcnt vmcnt(%d)", n)
        a.e("v_cmp_eq_u32 vcc, 1, v%d", v)
        a.e("s_nop 3")
        a.e("s_cmp_eq_u64 vcc, -1")
        a.e("s_cbranch_scc1 %s", ok)
    if dbl:
        ld(v_a)
        a.label(sp)
        a.e("s_sleep 2"); ld(v_b); chk(v_a, 1)
        a.e("s_sleep 2"); ld(v_a); chk(v_b, 1)
    else:
        a.label(sp)
        ld(v_a); chk(v_a, 0)
        a.e("s_sleep 3")
    a.e("s_sub_u32 s%d, s%d, 1", s_cnt, s_cnt)
    a.e("s_cbranch_scc0 %s", sp)
    a.label(ok)
    if dbl: a.e("s_waitcnt vmcnt(0)")

def gen_rr(a, kind, name, kidx, diag=False, exp="", exp5="", cont=False, chain=None):
    if not cont: kernel_begin(a, name)
    st = Stamps(a, diag, kidx, base=56, maxn=10)
    vm = Cnt(a, "vmcnt", 63); lg = Cnt(a, "lgkmcnt", 15)
    proj = kind == "proj"
    fr = kind == "redffn1"
    NPH = 8 if proj else 4
    NWG = 256 if (proj or fr) else 224
    ROW = 1024 if proj else 3584
    S_W, S_WS, S_B = 4, 8, 12
    s_w, s_rt, s_ct, s_t0, s_t1, s_t2, s_ab, s_wb, s_m0, s_qb, s_rot, s_ksq, s_ph, s_isL = 16, 17, 18, 19, 20, 21, 22, 23, 24, 25, 26, 27, 28, 29
    v_lane, v_l16, v_wd, v_tr, v_tr2, v_t, v_hf = 0, 1, 2, 3, 4, 5, 8
    AF = 128
    ACC = 64
    WFR, NRW = 16, 7
    LDS_B = 131072

    if not cont:
        a.e("s_cmp_ge_u32 s2, %d", NWG)
        a.e("s_cbranch_scc1 %s_end", name)
    st.mark()
    if proj: a.e("s_load_dwordx2 s[4:5], s[0:1], %d", A_WO)
    else: a.e("s_load_dwordx4 s[4:7], s[0:1], %d", B_W1)
    a.e("s_load_dwordx2 s[8:9], s[0:1], %d", WS)
    S_X = 40
    if fr: a.e("s_load_dwordx2 s[%d:%d], s[0:1], %d", S_X, S_X + 1, A_X)
    t2 = fr and "tail2" in exp
    S_WAVE = 46
    if cont:
        a.e("s_mov_b32 s%d, s%d", s_w, S_WAVE)
    else:
        a.e("v_lshrrev_b32 v%d, 6, v0", v_t)
        a.e("v_and_b32 v%d, 63, v0", v_lane)
        a.e("v_readfirstlane_b32 s%d, v%d", s_w, v_t)
        a.e("s_nop 3")
        if t2 or chain: a.e("s_mov_b32 s%d, s%d", S_WAVE, s_w)
    a.e("s_lshr_b32 s%d, s%d, 2", s_isL, s_w)
    a.e("s_and_b32 s%d, s%d, 3", s_w, s_w)
    LT1 = name + "_t1"
    LT0 = name + "_t0"
    if proj:
        a.e("s_bfe_u32 s%d, s2, 0x20001", s_ksq)
        a.e("s_and_b32 s%d, s2, 1", s_rt)
        a.e("s_lshl_b32 s%d, s%d, 3", s_rt, s_rt)
        a.e("s_lshr_b32 s%d, s2, 5", s_t0)
        a.e("s_add_u32 s%d, s%d, s%d", s_rt, s_rt, s_t0)
        a.e("s_bfe_u32 s%d, s2, 0x20003", s_ct)
        a.e("s_lshl_b32 s%d, s%d, 1", s_rot, s_ct)
        a.e("s_add_u32 s%d, s%d, s%d", s_rot, s_rot, s_t0)
        a.e("s_and_b32 s%d, s%d, 7", s_rot, s_rot)
    elif "map47" in exp:
        a.e("s_bfe_u32 s%d, s2, 0x20001", s_rt)
        a.e("s_lshl_b32 s%d, s%d, 2", s_rt, s_rt)
        a.e("s_bfe_u32 s%d, s2, 0x20003", s_t0)
        a.e("s_add_u32 s%d, s%d, s%d", s_rt, s_rt, s_t0)
        a.e("s_and_b32 s%d, s2, 1", s_ct)
        a.e("s_mul_i32 s%d, s%d, 7", s_ct, s_ct)
        a.e("s_lshr_b32 s%d, s2, 5", s_t0)
        a.e("s_add_u32 s%d, s%d, s%d", s_ct, s_ct, s_t0)
        a.e("s_and_b32 s%d, s%d, 3", s_rot, s_t0)
    else:
        a.e("s_and_b32 s%d, s2, 15", s_rt)
        a.e("s_lshr_b32 s%d, s2, 4", s_ct)
        a.e("s_lshr_b32 s%d, s%d, 3", s_t0, s_rt)
        a.e("s_lshl_b32 s%d, s%d, 1", s_t0, s_t0)
        a.e("s_add_u32 s%d, s%d, s%d", s_rot, s_ct, s_t0)
        a.e("s_and_b32 s%d, s%d, 3", s_rot, s_rot)
    if "norot" in exp: a.e("s_mov_b32 s%d, 0", s_rot)
    a.e("v_lshlrev_b32 v%d, 4, v%d", v_l16, v_lane)
    a.e("v_lshrrev_b32 v%d, 5, v%d", v_hf, v_lane)
    a.e("v_bfe_u32 v%d, v%d, 2, 2", v_t, v_lane)
    a.e("s_movk_i32 s%d, %d", s_t0, ROW)
    a.e("v_mul_lo_u32 v%d, v%d, s%d", v_wd, v_t, s_t0)
    a.e("v_lshrrev_b32 v%d, 4, v%d", v_t, v_lane)
    a.e("v_lshl_add_u32 v%d, v%d, 6, v%d", v_wd, v_t, v_wd)
    a.e("v_and_b32 v%d, 3, v%d", v_t, v_lane)
    a.e("v_lshl_add_u32 v%d, v%d, 4, v%d", v_wd, v_t, v_wd)
    a.e("v_lshlrev_b32 v%d, 10, v%d", v_tr, v_hf)
    a.e("v_bfe_u32 v%d, v%d, 2, 2", v_t, v_lane)
    a.e("v_lshl_add_u32 v%d, v%d, 6, v%d", v_tr, v_t, v_tr)
    a.e("v_bfe_u32 v%d, v%d, 4, 1", v_t, v_lane)
    a.e("v_lshl_add_u32 v%d, v%d, 5, v%d", v_tr, v_t, v_tr)
    a.e("v_and_b32 v%d, 3, v%d", v_t, v_lane)
    a.e("v_lshl_add_u32 v%d, v%d, 3, v%d", v_tr, v_t, v_tr)
    a.e("v_add_u32 v%d, 0x10000, v%d", v_tr2, v_tr)
    a.e("s_waitcnt lgkmcnt(0)")
    if not proj:
        a.e("s_mov_b32 s12, s6"); a.e("s_mov_b32 s13, s7")
        srd(a, S_B, S_B, 1792 * 2)
    srd(a, S_W, S_W, (4096 if proj else 512) * ROW); srd(a, S_WS, S_WS, WS_BYTES)
    if fr: srd(a, S_X, S_X, 2 << 20)
    SC1 = " sc1" if (fr or cont) else ""
    def flag_store(base, val, v1):
        a.e("s_lshl_b32 s%d, s2, 7", s_t2)
        a.e("s_add_u32 s%d, s%d, 0x%x", s_t2, s_t2, base)
        a.e("v_mov_b32 v%d, %d", v1, val)
        a.e("s_mov_b64 exec, 1")
        a.e("buffer_store_dword v%d, off, s[%d:%d], s%d sc1", v1, S_WS, S_WS + 3, s_t2)
        a.e("s_mov_b64 exec, -1")
    if proj and "clr2" in exp:
        l_ = a.newlabel("Lclr")
        a.e("s_cmp_lg_u32 s%d, 0", s_w); a.e("s_cbranch_scc1 %s", l_)
        a.e("s_cmp_lg_u32 s%d, 1", s_isL); a.e("s_cbranch_scc1 %s", l_)
        flag_store(WS_FLAG2, 0, v_t)
        flag_store(WS_FLAG3, 0, v_t)
        a.label(l_)
    a.e("s_lshl_b32 s%d, s%d, 2", s_qb, s_rt)
    a.e("s_add_u32 s%d, s%d, s%d", s_qb, s_qb, s_w)
    if proj:
        a.e("s_lshl_b32 s%d, s%d, 18", s_ab, s_qb)
        a.e("s_lshl_b32 s%d, s%d, 16", s_t0, s_ksq)
        a.e("s_add_u32 s%d, s%d, s%d", s_ab, s_ab, s_t0)
        a.e("s_add_u32 s%d, s%d, 0x%x", s_ab, s_ab, WS_CTX)
        a.e("s_lshl_b32 s%d, s%d, 20", s_wb, s_ksq)
    else:
        a.e("s_lshl_b32 s%d, s%d, 15", s_ab, s_qb)
        a.e("s_add_u32 s%d, s%d, 0x%x", s_ab, s_ab, WS_HN)
        a.e("s_mov_b32 s%d, 0", s_wb)
    a.e("s_mul_i32 s%d, s%d, %d", s_t0, s_w, 4 * ROW)
    a.e("s_add_u32 s%d, s%d, s%d", s_wb, s_wb, s_t0)
    a.e("s_lshl_b32 s%d, s%d, 8", s_t0, s_ct)
    a.e("s_add_u32 s%d, s%d, s%d", s_wb, s_wb, s_t0)
    a.e("s_lshl_b32 s%d, s%d, 10", s_m0, s_w)

    def phase_head(p, dst_w, dst_a):
        a.e("s_add_u32 s%d, s%d, %d", s_ph, s_rot, p)
        a.e("s_and_b32 s%d, s%d, %d", s_ph, s_ph, NPH - 1)
        if dst_w is not None:
            a.e("s_mul_i32 s%d, s%d, %d", dst_w, s_ph, 128 * ROW)
            a.e("s_add_u32 s%d, s%d, s%d", dst_w, dst_w, s_wb)
        if dst_a is not None:
            a.e("s_lshl_b32 s%d, s%d, 13", dst_a, s_ph)
            a.e("s_add_u32 s%d, s%d, s%d", dst_a, dst_a, s_ab)
    def w_loads(p, cnt):
        phase_head(p, s_t1, None)
        if "whit" in exp: a.e("s_mov_b32 s%d, 0", s_t1)
        for i in range(8):
            a.e("s_add_u32 m0, s%d, %d", s_m0, (p & 3) * 32768 + i * 4096)
            a.e("s_add_u32 s%d, s%d, %d", s_t0, s_t1, i * 16 * ROW)
            a.e("buffer_load_dwordx4 v%d, s[%d:%d], s%d offen lds", v_wd, S_W, S_W + 3, s_t0)
            cnt.issue(("w", p))
    def a_loads(p):
        L = []
        for i in range(8):
            def em(i=i):
                if i == 0:
                    phase_head(p, None, s_t2)
                    if "ahit" in exp: a.e("s_mov_b32 s%d, 0x%x", s_t2, WS_CTX)
                r = AF + ((p & 3) * 8 + i) * 4
                if i == 4: a.e("s_add_u32 s%d, s%d, 4096", s_t2, s_t2)
                a.e("buffer_load_dwordx4 v[%d:%d], v%d, s[%d:%d], s%d offen offset:%d%s", r, r + 3, v_l16, S_WS, S_WS + 3, s_t2, (i & 3) * 1024, SC1)
                vm.issue(("a", p))
            L.append(em)
        return L
    def red_part():
        PR, XR, A, F, H = 64, 96, 104, 120, 128
        v_r, v_h2, v_g, v_u, v_x = 9, 10, 11, 12, 13
        SCR = LDS_B + 256
        s_rb, s_r0 = 44, 45
        a.e("s_lshr_b32 s%d, s2, 2", s_rb)
        a.e("s_and_b32 s%d, s2, 3", s_r0)
        a.e("s_lshl_b32 s%d, s%d, 3", s_r0, s_r0)
        a.e("v_and_b32 v%d, 7, v%d", v_r, v_lane)
        a.e("v_bfe_u32 v%d, v%d, 3, 1", v_h2, v_lane)
        a.e("v_lshrrev_b32 v%d, 4, v%d", v_g, v_lane)
        a.e("s_lshl_b32 s%d, s%d, 3", s_t0, s_w)
        a.e("v_add_u32 v%d, s%d, v%d", v_g, s_t0, v_g)
        a.e("v_add_u32 v%d, s%d, v%d", v_t, s_r0, v_r)
        a.e("v_lshlrev_b32 v%d, 4, v%d", v_u, v_t)
        a.e("v_lshl_add_u32 v%d, v%d, 9, v%d", v_u, v_h2, v_u)
        a.e("v_lshl_add_u32 v%d, v%d, 10, v%d", v_u, v_g, v_u)
        a.e("v_lshlrev_b32 v%d, 10, v%d", v_x, v_t)
        a.e("v_lshl_add_u32 v%d, v%d, 5, v%d", v_x, v_g, v_x)
        a.e("v_lshl_add_u32 v%d, v%d, 3, v%d", v_x, v_h2, v_x)
        a.e("s_lshl_b32 s%d, s%d, 15", s_rb, s_rb)
        if cont:
            for u in range(2):
                a.e("buffer_load_dwordx2 v[%d:%d], v%d, s[%d:%d], s%d offen offset:%d", XR + 4 * u, XR + 4 * u + 1, v_x, S_X, S_X + 3, s_rb, u * 128)
                a.e("buffer_load_dwordx2 v[%d:%d], v%d, s[%d:%d], s%d offen offset:%d", XR + 4 * u + 2, XR + 4 * u + 3, v_x, S_X, S_X + 3, s_rb, u * 128 + 16)
            ok1, sp1 = a.newlabel("Lfok"), a.newlabel("Lfsp")
            a.e("v_and_b32 v%d, 3, v%d", F, v_lane)
            a.e("v_lshlrev_b32 v%d, 3, v%d", F, F)
            a.e("v_bfe_u32 v%d, v%d, 2, 2", F + 1, v_lane)
            a.e("v_lshl_add_u32 v%d, v%d, 1, v%d", F, F + 1, F)
            a.e("s_lshr_b32 s%d, s2, 4", s_t0)
            a.e("s_and_b32 s%d, s%d, 7", s_t1, s_t0)
            a.e("s_lshl_b32 s%d, s%d, 5", s_t1, s_t1)
            a.e("s_lshr_b32 s%d, s%d, 3", s_t0, s_t0)
            a.e("s_add_u32 s%d, s%d, s%d", s_t0, s_t0, s_t1)
            a.e("v_add_u32 v%d, s%d, v%d", F, s_t0, F)
            a.e("v_lshlrev_b32 v%d, 7, v%d", F, F)
            a.e("s_mov_b32 s%d, 0x%x", s_t2, WS_FLAG1)
            poll_flags(a, F, F + 1, F + 2, S_WS, s_t2, 47, "dblpoll" in exp)
        a.e("s_add_u32 s%d, s%d, 0x%x", s_t1, s_rb, WS_P)
        for p in range(4):
            for u in range(2):
                r = PR + (p * 2 + u) * 4
                a.e("s_add_u32 s%d, s%d, %d", s_t0, s_t1, u * 4096)
                a.e("buffer_load_dwordx4 v[%d:%d], v%d, s[%d:%d], s%d offen%s", r, r + 3, v_u, S_WS, S_WS + 3, s_t0, " sc1" if cont else "")
            if p < 3: a.e("s_add_u32 s%d, s%d, 0x%x", s_t1, s_t1, 64 * 32768)
        if not cont:
            for u in range(2):
                a.e("buffer_load_dwordx2 v[%d:%d], v%d, s[%d:%d], s%d offen offset:%d", XR + 4 * u, XR + 4 * u + 1, v_x, S_X, S_X + 3, s_rb, u * 128)
                a.e("buffer_load_dwordx2 v[%d:%d], v%d, s[%d:%d], s%d offen offset:%d", XR + 4 * u + 2, XR + 4 * u + 3, v_x, S_X, S_X + 3, s_rb, u * 128 + 16)
        a.e("s_barrier")
        st.mark()
        def unpack(src, dst):
            for i in range(4):
                a.e("v_lshlrev_b32 v%d, 16, v%d", dst + 2 * i, src + i)
                a.e("v_and_b32 v%d, 0xffff0000, v%d", dst + 2 * i + 1, src + i)
        NX = 0 if cont else 4
        a.e("s_waitcnt vmcnt(%d)", 6 + NX)
        unpack(PR, A); unpack(PR + 4, A + 8)
        for p in range(1, 4):
            a.e("s_waitcnt vmcnt(%d)", 6 + NX - 2 * p)
            for u in range(2):
                unpack(PR + (p * 2 + u) * 4, F)
                for e in range(8): a.e("v_add_f32 v%d, v%d, v%d", A + u * 8 + e, A + u * 8 + e, F + e)
        a.e("s_waitcnt vmcnt(0)")
        for u in range(2):
            unpack(XR + 4 * u, F)
            for e in range(8): a.e("v_add_f32 v%d, v%d, v%d", A + u * 8 + e, A + u * 8 + e, F + e)
        for i in range(8): a.e("v_cvt_pk_bf16_f32 v%d, v%d, v%d", H + i, A + 2 * i, A + 2 * i + 1)
        a.e("s_add_u32 s%d, s%d, 0x%x", s_t1, s_rb, WS_H)
        a.e("s_add_u32 s%d, s%d, 4096", s_t0, s_t1)
        a.e("buffer_store_dwordx4 v[%d:%d], v%d, s[%d:%d], s%d offen", H, H + 3, v_u, S_WS, S_WS + 3, s_t1)
        a.e("buffer_store_dwordx4 v[%d:%d], v%d, s[%d:%d], s%d offen", H + 4, H + 7, v_u, S_WS, S_WS + 3, s_t0)
        unpack(H, A); unpack(H + 4, A + 8)
        def rowreduce(r, slot):
            a.e("s_nop 1")
            a.e("v_add_f32_dpp v%d, v%d, v%d row_ror:8 row_mask:0xf bank_mask:0xf", r, r, r)
            a.e("v_mov_b32 v%d, v%d", F, r)
            a.e("s_nop 1")
            a.e("v_permlane16_swap_b32 v%d, v%d", r, F)
            a.e("s_nop 1")
            a.e("v_add_f32 v%d, v%d, v%d", r, r, F)
            a.e("v_mov_b32 v%d, v%d", F, r)
            a.e("s_nop 1")
            a.e("v_permlane32_swap_b32 v%d, v%d", r, F)
            a.e("s_nop 1")
            a.e("v_add_f32 v%d, v%d, v%d", r, r, F)
            a.e("v_lshlrev_b32 v%d, 4, v%d", F, v_r)
            a.e("v_add_u32 v%d, %d, v%d", F, SCR + slot * 128, F)
            a.e("s_lshl_b32 s%d, s%d, 2", s_t1, s_w)
            a.e("v_add_u32 v%d, s%d, v%d", F + 1, s_t1, F)
            a.e("ds_write_b32 v%d, v%d", F + 1, r)
            a.e("s_waitcnt lgkmcnt(0)")
            a.e("s_barrier")
            a.e("ds_read_b128 v[%d:%d], v%d", F + 4, F + 7, F)
            a.e("s_waitcnt lgkmcnt(0)")
            a.e("v_add_f32 v%d, v%d, v%d", r, F + 4, F + 5)
            a.e("v_add_f32 v%d, v%d, v%d", r, r, F + 6)
            a.e("v_add_f32 v%d, v%d, v%d", r, r, F + 7)
        M, V2 = 136, 137
        a.e("v_add_f32 v%d, v%d, v%d", M, A, A + 1)
        for e in range(2, 16): a.e("v_add_f32 v%d, v%d, v%d", M, M, A + e)
        rowreduce(M, 0)
        a.e("v_mul_f32 v%d, 0x3b000000, v%d", M, M)
        for e in range(16): a.e("v_sub_f32 v%d, v%d, v%d", A + e, A + e, M)
        a.e("v_mul_f32 v%d, v%d, v%d", V2, A, A)
        for e in range(1, 16): a.e("v_fmac_f32 v%d, v%d, v%d", V2, A + e, A + e)
        rowreduce(V2, 1)
        a.e("v_mov_b32 v%d, 0x3727c5ac", M)
        a.e("v_fmac_f32 v%d, 0x3b000000, v%d", M, V2)
        a.e("v_rsq_f32 v%d, v%d", M, M)
        a.e("s_nop 0")
        for e in range(16): a.e("v_mul_f32 v%d, v%d, v%d", A + e, A + e, M)
        HN = 140
        for i in range(8): a.e("v_cvt_pk_bf16_f32 v%d, v%d, v%d", HN + i, A + 2 * i, A + 2 * i + 1)
        a.e("s_add_u32 s%d, s%d, 0x%x", s_t1, s_rb, WS_HN)
        a.e("s_add_u32 s%d, s%d, 4096", s_t0, s_t1)
        a.e("buffer_store_dwordx4 v[%d:%d], v%d, s[%d:%d], s%d offen", HN, HN + 3, v_u, S_WS, S_WS + 3, s_t1)
        a.e("buffer_store_dwordx4 v[%d:%d], v%d, s[%d:%d], s%d offen", HN + 4, HN + 7, v_u, S_WS, S_WS + 3, s_t0)
        a.e("s_waitcnt vmcnt(0)")
        a.e("s_barrier")
        l_ = a.newlabel("Lfl")
        a.e("s_cmp_lg_u32 s%d, 0", s_w); a.e("s_cbranch_scc1 %s", l_)
        flag_store(WS_FLAG2, 1, F)
        a.label(l_)
        a.e("s_cmp_ge_u32 s2, 224")
        a.e("s_cbranch_scc1 %s", LT1 if t2 else name + "_end")
        st.mark()
        ok, sp = a.newlabel("Lfok"), a.newlabel("Lfsp")
        a.e("v_and_b32 v%d, 15, v%d", F, v_lane)
        a.e("v_lshlrev_b32 v%d, 7, v%d", F, F)
        a.e("s_lshl_b32 s%d, s%d, 11", s_t2, s_rt)
        a.e("s_add_u32 s%d, s%d, 0x%x", s_t2, s_t2, WS_FLAG2)
        poll_flags(a, F, F + 1, F + 2, S_WS, s_t2, s_r0, "dblpoll" in exp)
        if "fine" in exp: st.mark()
    LC = name + "_compute"
    a.e("s_cmp_eq_u32 s%d, 0", s_isL)
    a.e("s_cbranch_scc1 %s", LC)
    vl = Cnt(a, "vmcnt", 63)
    if fr:
        lt = a.newlabel("Ltile")
        a.e("s_cmp_lt_u32 s2, 224"); a.e("s_cbranch_scc1 %s", lt)
        for _ in range(4): a.e("s_barrier")
        if t2: a.e("s_branch %s", LT1)
        else: a.e("s_endpgm")
        a.label(lt)
        if not cont: a.e("s_barrier")
    w_loads(0, vl)
    if not proj:
        a.e("v_lshlrev_b32 v%d, 2, v%d", v_t, v_lane)
        a.e("s_lshl_b32 s%d, s%d, 8", s_t0, s_ct)
        a.e("s_mov_b32 m0, %d", LDS_B)
        a.e("s_nop 0")
        a.e("buffer_load_dword v%d, s[%d:%d], s%d offen lds", v_t, S_B, S_B + 3, s_t0)
        vl.issue("b")
    if fr:
        w_loads(1, vl)
        if cont and "w2first" in exp: w_loads(2, vl)
        if cont and "w3first" in exp: w_loads(2, vl); w_loads(3, vl)
        if cont: a.e("s_barrier")
        a.e("s_barrier"); a.e("s_barrier")
        if cont and "w3first" in exp:
            a.e("s_barrier")
        elif cont and "w2first" in exp:
            a.e("s_barrier")
            w_loads(3, vl)
        elif "wmid" in exp:
            w_loads(2, vl)
            a.e("s_barrier")
            w_loads(3, vl)
        elif "wlate" in exp:
            a.e("s_barrier")
            w_loads(2, vl); w_loads(3, vl)
        else:
            w_loads(2, vl); w_loads(3, vl)
            a.e("s_barrier")
    nxt = NPH if fr else 1
    if proj and cont and "winit3" in exp:
        w_loads(1, vl); w_loads(2, vl); nxt = 3
    for p in range(NPH):
        if fr and "strict" in exp: vl.wait([("w", 0), "b"] if p == 0 else [("w", p)])
        else: vl.wait([("w", 0), "b"] if p == 0 else ([("w", 1)] if p == 1 else [("w", p), ("w", min(p + 1, NPH - 1))]))
        a.e("s_barrier")
        upto = 2 if p == 0 else min(p + 3, NPH - 1)
        while nxt <= min(upto, NPH - 1):
            w_loads(nxt, vl); nxt += 1
        if "pf" in exp and proj and p == NPH - 4:
            a.e("s_lshr_b32 s34, s2, 3")
            for ins in l2_prefetch(a, (B_W1, 1792 * 1024), 1792 * 1024, 32, 4, 34, s_w, 36, 35, s_t1, v_l16, 64):
                a.e(ins)
                if ins.startswith("buffer"): vl.issue("pf")
        if "pf" in exp and not proj:
            PFAT = NPH - 1 if "pflast" in exp else 1
            if p == PFAT or ("pfspread" in exp and p == 1):
                a.e("s_lshr_b32 s34, s2, 3")
                pfl = l2_prefetch(a, (B_W2, 1792 * 1024), 1792 * 1024, 28, 4, 34, s_w, 36, 35, s_t1, v_l16, 64)
            if "pfspread" in exp:
                if p >= 1:
                    n_ = 0
                    while pfl and (n_ < 4 or p == NPH - 1):
                        ins = pfl.pop(0); a.e(ins)
                        if ins.startswith("buffer"): vl.issue("pf"); n_ += 1
            elif p == PFAT:
                for ins in pfl:
                    a.e(ins)
                    if ins.startswith("buffer"): vl.issue("pf")
    if "cpnext" in exp and not t2 and not chain:
        l_ = a.newlabel("Lcp")
        a.e("s_cmp_lg_u32 s%d, 0", s_w); a.e("s_cbranch_scc1 %s", l_)
        nxt_k = ("redffn1_kernel" if proj else "ffn2_kernel")
        code_prefetch(a, None, nxt_k, nxt_k + "_end", 36, s_t0, v_lane, v_t, 64)
        a.label(l_)
    if t2: a.e("s_branch %s", LT1)
    elif chain: a.e("s_branch %s", LT0)
    else: a.e("s_endpgm")
    a.label(LC)
    if fr: red_part()
    if proj and cont:
        okc, spc = a.newlabel("Lfok"), a.newlabel("Lfsp")
        a.e("s_sub_u32 s%d, 15, s%d", s_t0, s_rt)
        a.e("s_min_u32 s%d, s%d, s%d", s_t0, s_t0, s_rt)
        a.e("s_lshl_b32 s%d, s%d, 5", s_t0, s_t0)
        a.e("s_lshl_b32 s%d, s%d, 3", s_t1, s_ksq)
        a.e("s_add_u32 s%d, s%d, s%d", s_t0, s_t0, s_t1)
        a.e("v_and_b32 v%d, 7, v%d", 9, v_lane)
        a.e("v_add_u32 v%d, s%d, v%d", 9, s_t0, 9)
        a.e("v_lshlrev_b32 v%d, 7, v%d", 9, 9)
        a.e("s_mov_b32 s%d, 0x%x", s_t2, WS_FLAGC)
        poll_flags(a, 9, 10, 11, S_WS, s_t2, 47, "dblpoll" in exp)
    ALLA = fr and "alla" in exp
    for em in a_loads(0): em()
    if ALLA:
        for p_ in range(1, NPH):
            for em in a_loads(p_): em()
    if not fr: st.mark()
    frs = [(p, j, cb) for p in range(NPH) for j in range(8) for cb in range(4)]
    def w_read(gi):
        p, j, cb = frs[gi]
        r = WFR + (gi % NRW) * 4
        for t in range(2):
            off = (p & 3) * 32768 + (4 * j + 2 * t) * 1024 + cb * 256
            a.e("ds_read_b64_tr_b16 v[%d:%d], v%d offset:%d", r + 2 * t, r + 2 * t + 1, v_tr if off < 65536 else v_tr2, off & 0xffff)
            lg.issue(("w", gi))
    PRE = NRW - 1
    pend = []
    nread = 0
    for gi, (p, j, cb) in enumerate(frs):
        k = gi % 32
        if k == 0:
            a.e("s_barrier")
            if (p == 0 and not fr) or (fr and "fine" in exp and p in (0, 1, 2)): st.mark()
            pend = [] if ALLA else ((a_loads(1) if p == 0 else []) + (a_loads(p + 2) if p + 2 < NPH else []))
        lim = 32 * (p + 1) if (p <= 1 or (fr and "strict" in exp)) else len(frs)
        while nread < min(gi + PRE + 1, lim, len(frs)):
            w_read(nread); nread += 1
        if cb == 0: vm.wait(("a", p)) if j == 0 else None
        if fr and "fine" in exp and gi == 0: st.mark()
        if gi % 2 == 0: lg.wait([("w", gi), ("w", gi + 1)])
        wf = WFR + (gi % NRW) * 4
        d = ACC + cb * 16
        af = AF + ((p & 3) * 8 + j) * 4
        c = "0" if gi < 4 else "v[%d:%d]" % (d, d + 15)
        a.e("v_mfma_f32_32x32x16_bf16 v[%d:%d], v[%d:%d], v[%d:%d], %s", d, d + 15, wf, wf + 3, af, af + 3, c)
        if pend and (k % 3 == 2 or (p == 0 and k % 3 != 0) or (p == 0 and k < 12)): pend.pop(0)()
    st.mark()
    a.e("s_nop 7")
    if proj:
        a.e("s_lshl_b32 s%d, s%d, 6", s_t0, s_ksq)
        a.e("s_add_u32 s%d, s%d, s%d", s_t0, s_t0, s_qb)
        a.e("s_lshl_b32 s%d, s%d, 15", s_t0, s_t0)
        a.e("s_lshl_b32 s%d, s%d, 13", s_t1, s_ct)
        a.e("s_add_u32 s%d, s%d, s%d", s_t0, s_t0, s_t1)
        a.e("s_add_u32 s%d, s%d, 0x%x", s_t0, s_t0, WS_P)
    else:
        a.e("s_mul_i32 s%d, s%d, %d", s_t0, s_qb, 112 * 1024)
        a.e("s_lshl_b32 s%d, s%d, 13", s_t1, s_ct)
        a.e("s_add_u32 s%d, s%d, s%d", s_t0, s_t0, s_t1)
        a.e("s_add_u32 s%d, s%d, 0x%x", s_t0, s_t0, WS_F)
        a.e("v_lshlrev_b32 v%d, 3, v%d", v_t, v_hf)
        a.e("v_add_u32 v%d, %d, v%d", v_t, LDS_B, v_t)
        BR = 128
        for cb in range(4):
            for i in range(4):
                r = BR + (cb * 4 + i) * 2
                a.e("ds_read_b64 v[%d:%d], v%d offset:%d", r, r + 1, v_t, cb * 64 + i * 16)
            if cb == 1: a.e("s_waitcnt lgkmcnt(0)")
        a.e("s_waitcnt lgkmcnt(0)")
    a.e("s_add_u32 s%d, s%d, 4096", s_t1, s_t0)
    a.e("s_nop 3")
    for cb in range(4):
        for hz in range(2):
            base = ACC + cb * 16 + hz * 8
            if not proj:
                for ii in range(2):
                    r = 128 + (cb * 4 + hz * 2 + ii) * 2
                    T = 176
                    a.e("v_lshlrev_b32 v%d, 16, v%d", T, r)
                    a.e("v_and_b32 v%d, 0xffff0000, v%d", T + 1, r)
                    a.e("v_lshlrev_b32 v%d, 16, v%d", T + 2, r + 1)
                    a.e("v_and_b32 v%d, 0xffff0000, v%d", T + 3, r + 1)
                    for j in range(4):
                        a.e("v_add_f32 v%d, v%d, v%d", base + ii * 4 + j, base + ii * 4 + j, T + j)
                for e in range(8):
                    a.e("v_max_f32 v%d, 0, v%d", base + e, base + e)
                for e in range(8):
                    a.e("v_mul_f32 v%d, v%d, v%d", base + e, base + e, base + e)
            for i in range(4):
                a.e("v_cvt_pk_bf16_f32 v%d, v%d, v%d", base + i, base + 2 * i, base + 2 * i + 1)
            ds = 2 * cb + hz
            a.e("buffer_store_dwordx4 v[%d:%d], v%d, s[%d:%d], s%d offen offset:%d", base, base + 3, v_l16, S_WS, S_WS + 3,
                s_t0 if ds < 4 else s_t1, (ds & 3) * 1024)
    if diag:
        a.e("s_waitcnt vmcnt(0)")
        st.mark()
        st.dump(S_WS, s_w, 10, s_t2)
    if t2:
        a.e("s_waitcnt vmcnt(0)")
        a.label(LT1)
        a.e("s_barrier")
        l_ = a.newlabel("Lf3")
        a.e("s_cmp_lg_u32 s%d, 0", S_WAVE); a.e("s_cbranch_scc1 %s", l_)
        a.e("s_cmp_ge_u32 s2, 224"); a.e("s_cbranch_scc1 %s", l_)
        flag_store(WS_FLAG3, 1, v_t)
        a.label(l_)
        gen_k35(a, "ffn2", name + "_ffn2", 4, diag=diag, exp=exp5, s_wave_in=S_WAVE)
    if chain:
        a.e("s_waitcnt vmcnt(0)")
        a.label(LT0)
        a.e("s_barrier")
        l_ = a.newlabel("Lf1")
        a.e("s_cmp_lg_u32 s%d, 0", S_WAVE); a.e("s_cbranch_scc1 %s", l_)
        flag_store(WS_FLAG1, 1, v_t)
        a.label(l_)
        chain()
    if not cont: a.label(name + "_end")
    a.e("s_endpgm")


def gen_red(a, name, kidx, diag=False, exp=""):
    kernel_begin(a, name)
    st = Stamps(a, diag, kidx, base=56, maxn=10)
    S_X, S_WS = 4, 8
    s_w, s_t0, s_t1, s_qb, s_r0 = 12, 13, 14, 15, 16
    v_lane, v_r, v_hf, v_g, v_u, v_t = 0, 1, 2, 3, 4, 5
    PR, XR, A, F = 16, 32, 40, 48
    a.e("s_cmp_ge_u32 s2, 256")
    a.e("s_cbranch_scc1 %s_end", name)
    st.mark()
    a.e("s_load_dwordx2 s[4:5], s[0:1], %d", A_X)
    a.e("s_load_dwordx2 s[8:9], s[0:1], %d", WS)
    a.e("v_lshrrev_b32 v%d, 6, v0", v_t)
    a.e("v_and_b32 v%d, 63, v0", v_lane)
    a.e("v_readfirstlane_b32 s%d, v%d", s_w, v_t)
    a.e("s_lshr_b32 s%d, s2, 2", s_qb)
    a.e("s_and_b32 s%d, s2, 3", s_r0)
    a.e("s_lshl_b32 s%d, s%d, 3", s_r0, s_r0)
    a.e("v_and_b32 v%d, 7, v%d", v_r, v_lane)
    a.e("v_bfe_u32 v%d, v%d, 3, 1", v_hf, v_lane)
    a.e("v_lshrrev_b32 v%d, 4, v%d", v_g, v_lane)
    a.e("s_lshl_b32 s%d, s%d, 2", s_t0, s_w)
    a.e("v_add_u32 v%d, s%d, v%d", v_g, s_t0, v_g)
    a.e("v_add_u32 v%d, s%d, v%d", v_t, s_r0, v_r)
    a.e("v_lshlrev_b32 v%d, 4, v%d", v_u, v_t)
    a.e("v_lshl_add_u32 v%d, v%d, 9, v%d", v_u, v_hf, v_u)
    a.e("v_lshl_add_u32 v%d, v%d, 10, v%d", v_u, v_g, v_u)
    a.e("v_lshlrev_b32 v%d, 10, v%d", v_t + 1, v_t)
    a.e("v_lshl_add_u32 v%d, v%d, 5, v%d", v_t + 1, v_g, v_t + 1)
    a.e("v_lshl_add_u32 v%d, v%d, 3, v%d", v_t + 1, v_hf, v_t + 1)
    a.e("s_waitcnt lgkmcnt(0)")
    srd(a, S_X, S_X, 2 << 20); srd(a, S_WS, S_WS, WS_BYTES)
    a.e("s_lshl_b32 s%d, s%d, 15", s_t0, s_qb)
    a.e("s_add_u32 s%d, s%d, 0x%x", s_t1, s_t0, WS_P)
    for p in range(4):
        a.e("buffer_load_dwordx4 v[%d:%d], v%d, s[%d:%d], s%d offen", PR + 4 * p, PR + 4 * p + 3, v_u, S_WS, S_WS + 3, s_t1)
        if p < 3: a.e("s_add_u32 s%d, s%d, 0x%x", s_t1, s_t1, 64 * 32768)
    a.e("buffer_load_dwordx2 v[%d:%d], v%d, s[%d:%d], s%d offen", XR, XR + 1, v_t + 1, S_X, S_X + 3, s_t0)
    a.e("buffer_load_dwordx2 v[%d:%d], v%d, s[%d:%d], s%d offen offset:16", XR + 2, XR + 3, v_t + 1, S_X, S_X + 3, s_t0)
    if "pf" in exp:
        a.e("v_lshlrev_b32 v12, 4, v%d", v_lane)
        a.e("s_lshr_b32 s20, s2, 3")
        for ins in l2_prefetch(a, (B_W1, 1792 * 1024), 1792 * 1024, 32, 8, 20, s_w, 24, 21, 22, 12, 64 - 16 + 16): a.e(ins)
    st.mark()
    def unpack(src, dst):
        for i in range(4):
            a.e("v_lshlrev_b32 v%d, 16, v%d", dst + 2 * i, src + i)
            a.e("v_and_b32 v%d, 0xffff0000, v%d", dst + 2 * i + 1, src + i)
    NPF = 7 if "pf" in exp else 0
    a.e("s_waitcnt vmcnt(%d)", 5 + NPF)
    unpack(PR, A)
    for p in range(1, 4):
        a.e("s_waitcnt vmcnt(%d)", 5 - p + NPF)
        unpack(PR + 4 * p, F)
        for e in range(8): a.e("v_add_f32 v%d, v%d, v%d", A + e, A + e, F + e)
    a.e("s_waitcnt vmcnt(%d)", NPF)
    unpack(XR, F)
    for e in range(8): a.e("v_add_f32 v%d, v%d, v%d", A + e, A + e, F + e)
    H = 56
    for i in range(4): a.e("v_cvt_pk_bf16_f32 v%d, v%d, v%d", H + i, A + 2 * i, A + 2 * i + 1)
    a.e("s_add_u32 s%d, s%d, 0x%x", s_t1, s_t0, WS_H)
    a.e("buffer_store_dwordx4 v[%d:%d], v%d, s[%d:%d], s%d offen", H, H + 3, v_u, S_WS, S_WS + 3, s_t1)
    unpack(H, A)
    def rowreduce(r, slot):
        a.e("s_nop 1")
        a.e("v_add_f32_dpp v%d, v%d, v%d row_ror:8 row_mask:0xf bank_mask:0xf", r, r, r)
        a.e("v_mov_b32 v%d, v%d", F, r)
        a.e("s_nop 1")
        a.e("v_permlane16_swap_b32 v%d, v%d", r, F)
        a.e("s_nop 1")
        a.e("v_add_f32 v%d, v%d, v%d", r, r, F)
        a.e("v_mov_b32 v%d, v%d", F, r)
        a.e("s_nop 1")
        a.e("v_permlane32_swap_b32 v%d, v%d", r, F)
        a.e("s_nop 1")
        a.e("v_add_f32 v%d, v%d, v%d", r, r, F)
        a.e("v_lshlrev_b32 v%d, 5, v%d", F, v_r)
        a.e("s_lshl_b32 s%d, s%d, 2", s_t1, s_w)
        a.e("v_add_u32 v%d, s%d, v%d", F + 1, s_t1, F)
        a.e("ds_write_b32 v%d, v%d offset:%d", F + 1, r, slot * 256)
        a.e("s_waitcnt lgkmcnt(0)")
        a.e("s_barrier")
        a.e("ds_read_b128 v[%d:%d], v%d offset:%d", F + 4, F + 7, F, slot * 256)
        a.e("ds_read_b128 v[%d:%d], v%d offset:%d", F + 8, F + 11, F, slot * 256 + 16)
        a.e("s_waitcnt lgkmcnt(0)")
        a.e("v_add_f32 v%d, v%d, v%d", r, F + 4, F + 5)
        for i in range(6, 12): a.e("v_add_f32 v%d, v%d, v%d", r, r, F + i)
    M, V2 = 60, 61
    a.e("v_add_f32 v%d, v%d, v%d", M, A, A + 1)
    for e in range(2, 8): a.e("v_add_f32 v%d, v%d, v%d", M, M, A + e)
    rowreduce(M, 0)
    a.e("v_mul_f32 v%d, 0x3b000000, v%d", M, M)
    for e in range(8): a.e("v_sub_f32 v%d, v%d, v%d", A + e, A + e, M)
    a.e("v_mul_f32 v%d, v%d, v%d", V2, A, A)
    for e in range(1, 8): a.e("v_fmac_f32 v%d, v%d, v%d", V2, A + e, A + e)
    rowreduce(V2, 1)
    a.e("v_mov_b32 v%d, 0x3727c5ac", M)
    a.e("v_fmac_f32 v%d, 0x3b000000, v%d", M, V2)
    a.e("v_rsq_f32 v%d, v%d", M, M)
    a.e("s_nop 0")
    for e in range(8): a.e("v_mul_f32 v%d, v%d, v%d", A + e, A + e, M)
    for i in range(4): a.e("v_cvt_pk_bf16_f32 v%d, v%d, v%d", H + i - 0, A + 2 * i, A + 2 * i + 1) if False else None
    HN = 32
    for i in range(4): a.e("v_cvt_pk_bf16_f32 v%d, v%d, v%d", HN + i, A + 2 * i, A + 2 * i + 1)
    a.e("s_add_u32 s%d, s%d, 0x%x", s_t1, s_t0, WS_HN)
    a.e("buffer_store_dwordx4 v[%d:%d], v%d, s[%d:%d], s%d offen", HN, HN + 3, v_u, S_WS, S_WS + 3, s_t1)
    if diag:
        a.e("s_waitcnt vmcnt(0)")
        st.mark()
        st.dump(S_WS, s_w, 10, s_t0)
    a.label(name + "_end")
    a.e("s_endpgm")
```

```python
from gen_common import *
import math, struct
QSCALE_BITS = struct.unpack('<I', struct.pack('<f', math.log2(math.e) / math.sqrt(128.0)))[0]
import gen_common

def gen_k1(a, name="kv_kernel", diag=False, exp="", fused=None):
    kernel_begin(a, name)
    st = Stamps(a, diag, 0) if fused is None else Stamps(a, diag, 0, base=76, maxn=6)
    vm = Cnt(a, "vmcnt", 63); lg = Cnt(a, "lgkmcnt", 15)
    k2, H = None, None
    if fused is not None:
        k2 = fused(vm, lg, st)
        H = next(k2)
    mark = st.mark if fused is None else (lambda: None)
    S_X, S_C, S_WUK, S_WUV, S_W1, S_WS = 4, 8, 12, 16, 20, 24
    s_h, s_j, s_w, s_t0, s_t1, s_t2, s_kk0, s_wof, s_kst, s_vst, s_oct = 28, 29, 30, 31, 32, 33, 34, 35, 36, 37, 38
    s_c0, s_wm0, s_cm0, s_t3 = 39, 40, 41, 42
    s_cp = 62
    v_lane, v_wdma, v_cdE, v_cdO, v_trE, v_trO, v_cr0, v_cr1, v_kst, v_vst, v_t = 0, 1, 2, 3, 4, 5, 6, 7, 8, 9, 10
    WF, NRING = 12, 5
    ACCA, ACCB, CF = 32, 96, 128
    LDS_W, LDS_C, LDS_SCR = 0, 65536, 131072
    T = ACCB

    a.e("s_cmp_ge_u32 s2, 256")
    a.e("s_cbranch_scc1 %s_end", name)
    st.mark()
    a.e("s_load_dwordx4 s[4:7], s[0:1], %d", A_X)
    a.e("s_load_dwordx4 s[12:15], s[0:1], %d", A_WUK)
    a.e("s_load_dwordx2 s[24:25], s[0:1], %d", WS)
    a.e("s_load_dwordx2 s[20:21], s[0:1], %d", A_WQ)
    if fused is not None: a.e("s_load_dwordx2 s[%d:%d], s[0:1], %d", H["S_DBG"], H["S_DBG"] + 1, DBG)
    a.e("v_lshrrev_b32 v%d, 6, v0", v_t)
    a.e("v_mov_b32 v%d, v0", T + 31)
    a.e("v_readfirstlane_b32 s%d, v%d", s_w, v_t)
    a.e("v_and_b32 v%d, 63, v0", v_lane)
    v_x16, v_g = T + 29, T + 30
    a.e("v_and_b32 v%d, 15, v%d", v_x16, v_lane)
    a.e("v_lshrrev_b32 v%d, 4, v%d", v_g, v_lane)
    a.e("s_and_b32 s%d, s2, 31", s_h)
    if "hrot" in exp:
        a.e("s_add_u32 s%d, s%d, 3", s_h, s_h); a.e("s_and_b32 s%d, s%d, 31", s_h, s_h)
    a.e("s_lshr_b32 s%d, s2, 5", s_j)
    a.e("s_lshr_b32 s%d, s%d, 3", s_t0, s_h)
    a.e("s_lshl_b32 s%d, s%d, 1", s_t0, s_t0)
    a.e("s_add_u32 s%d, s%d, s%d", s_kk0, s_t0, s_j)
    a.e("s_and_b32 s%d, s%d, 7", s_kk0, s_kk0)
    if "norot" in exp: a.e("s_mov_b32 s%d, 0", s_kk0)
    if "rot2" in exp or "rot4" in exp:
        a.e("s_lshr_b32 s%d, s%d, 3", s_t0, s_h)
        a.e("s_add_u32 s%d, s%d, s%d", s_kk0, s_t0, s_j)
        if "rot2" in exp:
            a.e("s_and_b32 s%d, s%d, 1", s_kk0, s_kk0); a.e("s_lshl_b32 s%d, s%d, 2", s_kk0, s_kk0)
        else:
            a.e("s_and_b32 s%d, s%d, 3", s_kk0, s_kk0); a.e("s_lshl_b32 s%d, s%d, 1", s_kk0, s_kk0)
    a.e("v_bfe_u32 v%d, v%d, 2, 2", v_t, v_lane)
    a.e("v_bfe_u32 v%d, v%d, 4, 1", v_t + 1, v_lane)
    a.e("v_lshl_add_u32 v%d, v%d, 2, v%d", v_t, v_t + 1, v_t)
    a.e("v_lshlrev_b32 v%d, 13, v%d", v_t, v_t)
    a.e("s_and_b32 s%d, s%d, 1", s_t0, s_w)
    a.e("s_lshl_b32 s%d, s%d, 1", s_t0, s_t0)
    a.e("v_and_b32 v%d, 3, v%d", v_t + 1, v_lane)
    a.e("v_xor_b32 v%d, s%d, v%d", v_t + 1, s_t0, v_t + 1)
    a.e("v_lshrrev_b32 v%d, 5, v%d", v_wdma, v_lane)
    a.e("v_lshl_add_u32 v%d, v%d, 2, v%d", v_t + 1, v_wdma, v_t + 1)
    a.e("v_lshl_add_u32 v%d, v%d, 4, v%d", v_wdma, v_t + 1, v_t)
    a.e("v_lshrrev_b32 v%d, 3, v%d", v_t, v_lane)
    a.e("v_lshrrev_b32 v%d, 1, v%d", v_t + 1, v_t)
    a.e("v_and_b32 v%d, 7, v%d", v_cdE, v_lane)
    a.e("v_xor_b32 v%d, v%d, v%d", v_cdE, v_cdE, v_t + 1)
    a.e("v_lshlrev_b32 v%d, 4, v%d", v_cdE, v_cdE)
    a.e("v_lshl_add_u32 v%d, v%d, 10, v%d", v_cdE, v_t, v_cdE)
    a.e("v_xor_b32 v%d, 64, v%d", v_cdO, v_cdE)
    a.e("s_waitcnt lgkmcnt(0)")
    mark()
    a.e("s_mov_b32 s8, s6"); a.e("s_mov_b32 s9, s7")
    a.e("s_mov_b32 s16, s14"); a.e("s_mov_b32 s17, s15")
    srd(a, S_X, S_X, 2 << 20); srd(a, S_C, S_C, 2 << 20)
    srd(a, S_WUK, S_WUK, 4 << 20); srd(a, S_WUV, S_WUV, 4 << 20)
    srd(a, S_WS, S_WS, WS_BYTES); srd(a, S_W1, S_W1, 4 << 20)
    if fused is not None: srd(a, H["S_DBG"], H["S_DBG"], 256)
    a.e("s_lshl_b32 s%d, s%d, 16", s_wof, s_w)
    a.e("s_lshl_b32 s%d, s%d, 8", s_t0, s_h)
    a.e("s_add_u32 s%d, s%d, s%d", s_wof, s_wof, s_t0)
    a.e("s_lshl_b32 s%d, s%d, 10", s_wm0, s_w)
    a.e("s_lshl_b32 s%d, s%d, 18", s_c0, s_j)
    a.e("s_lshl_b32 s%d, s%d, 15", s_t0, s_w)
    a.e("s_add_u32 s%d, s%d, s%d", s_c0, s_c0, s_t0)
    a.e("s_lshl_b32 s%d, s%d, 13", s_cm0, s_w)
    a.e("s_add_u32 s%d, s%d, %d", s_cm0, s_cm0, LDS_C)

    def kk_of(i, dst):
        a.e("s_add_u32 s%d, s%d, %d", dst, s_kk0, i)
        a.e("s_and_b32 s%d, s%d, 7", dst, dst)
    def w_dma(step):
        slot = step & 3
        L = []
        for hf in range(2):
            if step < 8:
                S, kki, col = S_WUK, step, hf * 128
            else:
                cv = (step - 8) >> 2
                S, kki, col = S_WUV, 2 * ((step - 8) & 3) + hf, cv * 128
            def em(S=S, kki=kki, col=col, hf=hf):
                kk_of(kki, s_t0)
                a.e("s_lshl_b32 s%d, s%d, 19", s_t0, s_t0)
                a.e("s_add_u32 m0, s%d, %d", s_wm0, LDS_W + slot * 16384 + hf * 8192)
                a.e("s_add_u32 s%d, s%d, s%d", s_t0, s_t0, s_wof)
                if col: a.e("s_add_u32 s%d, s%d, %d", s_t0, s_t0, col)
                a.e("buffer_load_dwordx4 v%d, s[%d:%d], s%d offen lds", v_wdma, S, S + 3, s_t0)
                vm.issue(("W", step))
            L.append(em)
        return L
    def c_dma(step):
        slot = step & 1
        L = []
        for q in range(4):
            def em(q=q):
                if q == 0:
                    kk_of(step, s_t1)
                    a.e("s_lshl_b32 s%d, s%d, 7", s_t1, s_t1)
                    a.e("s_add_u32 s%d, s%d, s%d", s_t1, s_t1, s_c0)
                else:
                    a.e("s_add_u32 s%d, s%d, 8192", s_t1, s_t1)
                a.e("s_add_u32 m0, s%d, %d", s_cm0, slot * 4096 + q * 1024)
                a.e("s_nop 0")
                a.e("buffer_load_dwordx4 v%d, s[%d:%d], s%d offen lds", v_cdE if (q & 1) == 0 else v_cdO, S_C, S_C + 3, s_t1)
                vm.issue(("c", step))
            L.append(em)
        return L

    if "wpfk0" in exp:
        a.e("v_lshlrev_b32 v%d, 4, v%d", v_t + 1, v_lane)
        a.e("s_lshl_b32 s%d, s2, 14", s_t0)
        a.e("s_lshl_b32 s%d, s%d, 11", s_t1, s_w)
        a.e("s_add_u32 s%d, s%d, s%d", s_t0, s_t0, s_t1)
        a.e("s_mov_b32 m0, %d", LDS_SCR + 8192)
        for i in range(2):
            a.e("s_add_u32 s%d, s%d, %d", s_t1, s_t0, i * 1024)
            a.e("buffer_load_dwordx4 v%d, s[%d:%d], s%d offen lds", v_t + 1, S_WUK, S_WUK + 3, s_t1)
            vm.issue("wpf")
    for em in c_dma(0) + w_dma(0): em()
    for em in c_dma(1) + w_dma(1): em()
    a.e("s_lshl_b32 s%d, s2, 3", s_t0)
    a.e("s_add_u32 s%d, s%d, s%d", s_t0, s_t0, s_w)
    a.e("s_lshl_b32 s%d, s%d, 10", s_t0, s_t0)
    a.e("v_lshlrev_b32 v%d, 4, v%d", v_t, v_lane)
    a.e("buffer_load_dwordx4 v[%d:%d], v%d, s[%d:%d], s%d offen", T, T + 3, v_t, S_X, S_X + 3, s_t0)
    vm.issue("x")
    mark()

    if "wpf" in exp:
        a.e("v_lshlrev_b32 v%d, 4, v%d", v_t + 1, v_lane)
        a.e("s_lshl_b32 s%d, s2, 14", s_t0)
        a.e("s_lshl_b32 s%d, s%d, 11", s_t1, s_w)
        a.e("s_add_u32 s%d, s%d, s%d", s_t0, s_t0, s_t1)
        a.e("s_mov_b32 m0, %d", LDS_SCR + 8192)
        a.e("s_nop 0")
        for S_ in ([S_WUV] if "wpfv" in exp else ([S_WUV, S_W1] if "wpfq" in exp else [S_WUK, S_WUV])):
            for i in range(2):
                a.e("s_add_u32 s%d, s%d, %d", s_t1, s_t0, i * 1024)
                a.e("buffer_load_dwordx4 v%d, s[%d:%d], s%d offen lds", v_t + 1, S_, S_ + 3, s_t1)
                vm.issue("wpf")
    if "cp0" in exp:
        lpc = name + "_pc"
        a.e("s_getpc_b64 s[%d:%d]", s_cp, s_cp + 1)
        a.label(lpc)
        a.e("s_sub_u32 s%d, s%d, %s - %s", s_cp, s_cp, lpc, name)
        a.e("s_subb_u32 s%d, s%d, 0", s_cp + 1, s_cp + 1)
        a.e("s_lshr_b32 s%d, s2, 3", s_t0)
        a.e("s_lshl_b32 s%d, s%d, 3", s_t0, s_t0)
        a.e("s_add_u32 s%d, s%d, s%d", s_t0, s_t0, s_w)
        a.e("s_lshl_b32 s%d, s%d, 8", s_t0, s_t0)
        a.e("v_lshl_add_u32 v%d, v%d, 2, s%d", v_t + 1, v_lane, s_t0)
        a.e("s_mov_b32 s%d, all_code_end - %s - 4", s_t0, name)
        a.e("v_min_u32 v%d, s%d, v%d", v_t + 1, s_t0, v_t + 1)
        a.e("global_load_dword v%d, v%d, s[%d:%d]", T + 28, v_t + 1, s_cp, s_cp + 1)
        vm.issue("cpf")
    if fused is not None:
        H["role_setup"]()
        H["flag_store"](0, "clr")
        if "clrtail" in exp:
            for base in (WS_FLAG1, WS_FLAG2, WS_FLAG3) + ((WS_FLAGC,) if "onel" in exp else ()): H["flag_store"](0, "clr", base)
    a.e("v_bfe_u32 v%d, v%d, 2, 2", v_t, v_lane)
    a.e("v_lshlrev_b32 v%d, 6, v%d", v_t, v_t)
    a.e("v_and_b32 v%d, 3, v%d", v_t + 1, v_lane)
    a.e("v_lshl_add_u32 v%d, v%d, 3, v%d", v_t, v_t + 1, v_t)
    a.e("v_lshl_add_u32 v%d, v%d, 10, v%d", v_t, v_g, v_t)
    a.e("v_and_b32 v%d, 1, v%d", v_t + 1, v_g)
    a.e("v_lshl_add_u32 v%d, v%d, 5, v%d", v_trE, v_t + 1, v_t)
    a.e("v_xor_b32 v%d, 32, v%d", v_trO, v_trE)
    a.e("v_lshrrev_b32 v%d, 1, v%d", v_t, v_x16)
    a.e("v_xor_b32 v%d, v%d, v%d", v_t, v_t, v_g)
    a.e("v_lshlrev_b32 v%d, 4, v%d", v_t, v_t)
    a.e("v_lshl_add_u32 v%d, v%d, 7, v%d", v_t, v_x16, v_t)
    a.e("v_add_u32 v%d, s%d, v%d", v_cr0, s_cm0, v_t)
    a.e("v_xor_b32 v%d, 64, v%d", v_cr1, v_cr0)
    a.e("v_and_b32 v%d, 1, v%d", v_t, v_g)
    a.e("v_lshlrev_b32 v%d, 10, v%d", v_kst, v_t)
    a.e("v_lshrrev_b32 v%d, 1, v%d", v_t, v_g)
    a.e("v_lshl_add_u32 v%d, v%d, 9, v%d", v_kst, v_t, v_kst)
    a.e("v_lshrrev_b32 v%d, 3, v%d", v_t, v_x16)
    a.e("v_lshl_add_u32 v%d, v%d, 8, v%d", v_kst, v_t, v_kst)
    a.e("v_and_b32 v%d, 7, v%d", v_t, v_x16)
    a.e("v_lshl_add_u32 v%d, v%d, 4, v%d", v_kst, v_t, v_kst)
    a.e("v_lshrrev_b32 v%d, 1, v%d", v_t, v_g)
    a.e("v_lshlrev_b32 v%d, 12, v%d", v_vst, v_t)
    a.e("v_and_b32 v%d, 1, v%d", v_t, v_g)
    a.e("v_lshl_add_u32 v%d, v%d, 9, v%d", v_vst, v_t, v_vst)
    a.e("v_lshl_add_u32 v%d, v%d, 4, v%d", v_vst, v_x16, v_vst)
    a.e("s_mul_i32 s%d, s%d, %d", s_kst, s_h, HEAD_STRIDE)
    a.e("s_lshl_b32 s%d, s%d, 16", s_t0, s_j)
    a.e("s_add_u32 s%d, s%d, s%d", s_kst, s_kst, s_t0)
    a.e("s_lshl_b32 s%d, s%d, 13", s_t0, s_w)
    a.e("s_add_u32 s%d, s%d, s%d", s_kst, s_kst, s_t0)
    a.e("s_add_u32 s%d, s%d, 0x%x", s_vst, s_kst, WS_V)

    class Rec:
        def __init__(self): self.L = []
        def e(self, fmt, *x): self.L.append(fmt % x if x else fmt)
    r_ = Rec()
    F = T + 8
    for i in range(4):
        r_.e("v_lshlrev_b32 v%d, 16, v%d", F + 2 * i, T + i)
        r_.e("v_and_b32 v%d, 0xffff0000, v%d", F + 2 * i + 1, T + i)
    M, TT, V2, RS = T + 16, T + 17, T + 18, T + 19
    r_.e("v_add_f32 v%d, v%d, v%d", M, F, F + 1)
    for i in range(2, 8):
        r_.e("v_add_f32 v%d, v%d, v%d", M, M, F + i)
    allsum64(r_, M, TT)
    r_.e("v_mul_f32 v%d, 0x3b000000, v%d", M, M)
    for i in range(8):
        r_.e("v_sub_f32 v%d, v%d, v%d", F + i, F + i, M)
    r_.e("v_mul_f32 v%d, v%d, v%d", V2, F, F)
    for i in range(1, 8):
        r_.e("v_fmac_f32 v%d, v%d, v%d", V2, F + i, F + i)
    allsum64(r_, V2, TT)
    r_.e("v_mov_b32 v%d, 0x3727c5ac", RS)
    r_.e("v_fmac_f32 v%d, 0x3b000000, v%d", RS, V2)
    r_.e("v_rsq_f32 v%d, v%d", RS, RS)
    r_.e("s_nop 0")
    r_.e("v_mul_f32 v%d, 0x%x, v%d", RS, QSCALE_BITS, RS)
    for i in range(8):
        r_.e("v_mul_f32 v%d, v%d, v%d", F + i, F + i, RS)
    for i in range(4):
        r_.e("v_cvt_pk_bf16_f32 v%d, v%d, v%d", T + i, F + 2 * i, F + 2 * i + 1)
    r_.e("s_lshl_b32 s%d, s%d, 10", s_t3, s_w)
    r_.e("s_add_u32 s%d, s%d, %d", s_t3, s_t3, LDS_SCR)
    r_.e("v_lshl_add_u32 v%d, v%d, 4, s%d", T + 20, v_lane, s_t3)
    LN1 = r_.L
    r2 = Rec()
    X0, X1, X2 = T + 20, T + 21, T + 22
    r2.e("v_and_b32 v%d, 7, v%d", X0, v_lane)
    r2.e("v_lshrrev_b32 v%d, 3, v%d", X1, v_lane)
    r2.e("s_lshl_b32 s%d, s%d, 3", s_t3, s_w)
    r2.e("v_add_u32 v%d, s%d, v%d", X1, s_t3, X1)
    r2.e("v_lshlrev_b32 v%d, 10, v%d", F, X0)
    r2.e("v_lshl_add_u32 v%d, v%d, 4, v%d", F, X1, F)
    r2.e("v_add_u32 v%d, %d, v%d", F, LDS_SCR, F)
    LN2a = r2.L
    r3 = Rec()
    r3.e("v_lshrrev_b32 v%d, 2, v%d", F + 1, X1)
    r3.e("v_lshlrev_b32 v%d, 10, v%d", F + 1, F + 1)
    r3.e("v_and_b32 v%d, 3, v%d", X1, X1)
    r3.e("v_lshl_add_u32 v%d, v%d, 8, v%d", F + 1, X1, F + 1)
    r3.e("v_lshl_add_u32 v%d, v%d, 4, v%d", F + 1, X0, F + 1)
    r3.e("s_lshr_b32 s%d, s2, 1", s_t3)
    r3.e("s_lshl_b32 s%d, s%d, 14", s_t3, s_t3)
    r3.e("s_and_b32 s%d, s2, 1", s_oct)
    r3.e("s_lshl_b32 s%d, s%d, 7", s_oct, s_oct)
    r3.e("s_add_u32 s%d, s%d, s%d", s_t3, s_t3, s_oct)
    r3.e("s_add_u32 s%d, s%d, 0x%x", s_t3, s_t3, WS_XN)
    LN2b = r3.L

    v_lin = v_trO
    if 'b128test' in exp: a.e('v_lshlrev_b32 v%d, 4, v%d', v_lin, v_lane)
    def c_reads(step):
        for u in range(2):
            for kb in range(2):
                r = CF + ((step * 2 + u) * 2 + kb) * 4
                a.e("ds_read_b128 v[%d:%d], v%d offset:%d", r, r + 3, v_cr0 if u == 0 else v_cr1, (step & 1) * 4096 + kb * 2048)
                lg.issue(("c", step))

    vm.wait([("c", 0), ("W", 0)])
    c_reads(0)
    mark()
    a.e("s_barrier")
    mark()

    def step_frags(step):
        L = []
        if step < 8:
            for u in range(2):
                for cb in range(8):
                    off = (cb >> 2) * 8192 + u * 4096 + ((cb >> 1) & 1) * 512
                    dg = cb >> 1
                    accs = [ACCA + ((dg * 2 + kb) * 2 + (cb & 1)) * 4 for kb in range(2)]
                    cfs = [CF + ((step * 2 + u) * 2 + kb) * 4 for kb in range(2)]
                    L.append((off, cb & 1, accs, cfs, step == 0 and u == 0))
        else:
            base = ACCB if step < 12 else ACCA
            i2 = (step - 8) & 3
            for hf in range(2):
                for u in range(2):
                    for cb in range(4):
                        off = hf * 8192 + u * 4096 + (cb >> 1) * 512
                        accs = [base + (cb * 2 + kb) * 4 for kb in range(2)]
                        ci = (2 * i2 + hf)
                        cfs = [CF + ((ci * 2 + u) * 2 + kb) * 4 for kb in range(2)]
                        L.append((off, cb & 1, accs, cfs, i2 == 0 and hf == 0 and u == 0))
        return L
    frags = [(s, f) for s in range(16) for f in step_frags(s)]
    def w_read(gi):
        s, (off, odd, accs, cfs, first) = frags[gi]
        r = WF + (gi % NRING) * 4
        if "b128test" in exp:
            a.e("ds_read_b128 v[%d:%d], v%d offset:%d", r, r + 3, v_cr0 if False else v_lin, LDS_W + (s & 3) * 16384 + (gi % 16) * 1024)
            lg.issue(("W", gi))
            return
        for t in range(2):
            a.e("ds_read_b64_tr_b16 v[%d:%d], v%d offset:%d", r + 2 * t, r + 2 * t + 1, v_trO if odd else v_trE,
                LDS_W + (s & 3) * 16384 + off + t * 256)
            lg.issue(("W", gi))
    def epi(kind):
        L = []
        if kind == "K":
            for dg in range(4):
                for kb in range(2):
                    A = ACCA + (dg * 2 + kb) * 8
                    g = []
                    for i in range(4):
                        g.append("v_cvt_pk_bf16_f32 v%d, v%d, v%d" % (A + i, A + 2 * i, A + 2 * i + 1))
                    g.append("s_add_u32 s%d, s%d, %d" % (s_t2, s_kst, (dg >> 1) * 4096))
                    g.append(("st", "buffer_store_dwordx4 v[%d:%d], v%d, s[%d:%d], s%d offen offset:%d" % (A, A + 3, v_kst, S_WS, S_WS + 3, s_t2, kb * 128 + (dg & 1) * 2048)))
                    L += g
        else:
            cv = 0 if kind == "V0" else 1
            base = ACCB if cv == 0 else ACCA
            for cb in range(4):
                A = base + cb * 8
                for i in range(4):
                    L.append("v_cvt_pk_bf16_f32 v%d, v%d, v%d" % (A + i, A + 2 * i, A + 2 * i + 1))
                L.append("s_add_u32 s%d, s%d, %d" % (s_t2, s_vst, cv * 2048))
                L.append(("st", "buffer_store_dwordx4 v[%d:%d], v%d, s[%d:%d], s%d offen offset:%d" % (A, A + 3, v_vst, S_WS, S_WS + 3, s_t2, (cb >> 1) * 1024 + (cb & 1) * 256)))
        return L
    def emit_epi(x):
        if isinstance(x, tuple):
            if "nost" in exp: return
            a.e(x[1]); vm.issue("st")
        else:
            a.e(x)

    def emit_main(dk0, epk0, last):
        PRE = NRING - 1
        nread = 0
        npoll = [0]
        pend_epi = []
        ln = list(LN1); ln2a = list(LN2a); ln2b = list(LN2b)
        for gi, (s, (off, odd, accs, cfs, first)) in enumerate(frags):
            k = gi % 16
            dmas = []
            if k == 0:
                a("; ---- step %d" % s)
                if s in (4, 8, 12): (mark() if last else None)
                if s > 0 and "nobar" not in exp and not ("bar2" in exp and s >= 9 and s % 2 == 1):
                    a.e("s_barrier")
                if s == 8 and "even" in exp:
                    ek = epi("K"); ev = epi("V0")
                    groups = [ek[6 * n:6 * n + 6] for n in range(8)] + [ev[6 * n:6 * n + 6] for n in range(4)]
                    sched = {8 * 16 + 6 + 12 * n: groups[n] for n in range(11)}
                    sched[15 * 16 + 15] = groups[11][:4]
                    def v0last(g=groups[11]):
                        for x in g[4:]: emit_epi(x)
                    H["late_stores"].append(v0last)
                    pend_epi = []; ek_rest = []
                elif s == 8:
                    ek = epi("K"); pend_epi = ek[:36]; ek_rest = ek[36:]
                if s == 12 and "even" not in exp:
                    if fused is not None and "latev0" in exp:
                        ev = epi("V0")
                        pend_epi = ek_rest + [x for x in ev if not isinstance(x, tuple) and not x.startswith("s_add")]
                        for cb in range(4):
                            def st0(cb=cb):
                                A = ACCB + cb * 8
                                a.e("s_add_u32 s%d, s%d, 0", s_t2, s_vst)
                                a.e("buffer_store_dwordx4 v[%d:%d], v%d, s[%d:%d], s%d offen offset:%d", A, A + 3, v_vst, S_WS, S_WS + 3, s_t2, (cb >> 1) * 1024 + (cb & 1) * 256)
                                vm.issue("st")
                            H["late_stores"].append(st0)
                    else:
                        pend_epi = ek_rest + epi("V0")
                step_dmas = []
                if s == 0: step_dmas += w_dma(2)
                if s + 3 < 16: step_dmas += w_dma(s + 3)
                if s + 2 < 8: step_dmas += c_dma(s + 2)
            lim = 16 if s == 0 else len(frags)
            while nread < min(gi + PRE + 1, lim):
                w_read(nread); nread += 1
            lg.wait([("W", gi), ("c", s)] if k == 0 else ("W", gi))
            wf = WF + (gi % NRING) * 4
            for kb in range(2):
                d, cf = accs[kb], cfs[kb]
                c = "0" if first else "v[%d:%d]" % (d, d + 3)
                if s < 8:
                    a.e("v_mfma_f32_16x16x32_bf16 v[%d:%d], v[%d:%d], v[%d:%d], %s", d, d + 3, wf, wf + 3, cf, cf + 3, c)
                else:
                    a.e("v_mfma_f32_16x16x32_bf16 v[%d:%d], v[%d:%d], v[%d:%d], %s", d, d + 3, cf, cf + 3, wf, wf + 3, c)
            if k >= dk0 and step_dmas:
                if "nodma" in exp and s >= 2: step_dmas.pop(0)
                else: step_dmas.pop(0)()
            if s == 1 and k == 0: vm.wait("x")
            if s in (1, 2) and ln:
                for _ in range(4):
                    if ln: a.e(ln.pop(0))
            if s == 2 and k == 15:
                assert not ln
                a.e("ds_write_b128 v%d, v[%d:%d]", T + 20, T, T + 3); lg.issue("lnw")
                lg.wait("lnw")
            if s == 3:
                if k < 4:
                    for _ in range(2):
                        if ln2a: a.e(ln2a.pop(0))
                if k == 4:
                    a.e("ds_read_b128 v[%d:%d], v%d", T, T + 3, F); lg.issue("lnr")
                if 5 <= k < 11:
                    for _ in range(2):
                        if ln2b: a.e(ln2b.pop(0))
                if k == 12:
                    assert not ln2a and not ln2b
                    lg.wait("lnr")
                    a.e("buffer_store_dwordx4 v[%d:%d], v%d, s[%d:%d], s%d offen", T, T + 3, F + 1, S_WS, S_WS + 3, s_t3)
                    vm.issue("xn")
            if k == (15 if s == 0 else 11) and s + 1 < 16:
                tags = [("W", s + 1), ("W", s + 2), ("c", s + 1)]
                if fused is not None and s == 5: tags += ["xn", "clr"]
                vm.wait(tags)
                if s + 1 < 8: c_reads(s + 1)
            if fused is not None:
                if s == 6 and k == 12: H["signal"]("0", True)
                if s == 8 and k == 1: H["vec_setup"]()
                if "early" in exp:
                    if 9 <= s <= 12 and k in (5, 9): H["w_dma_l"](s - 9)[0 if k == 5 else 1]()
                elif "mid" in exp:
                    if s >= 12 and k in (6, 10): H["w_dma_l"](s - 12)[0 if k == 6 else 1]()
                else:
                    if s in (12, 13) and k in (5, 9): H["w_dma_l"](s - 12)[0 if k == 5 else 1]()
                if s == 10 and k == 2:
                    H["poll"](0, "0"); npoll[0] = vm.total
                if s == 12 and k == 13: H["poll_check"](0, "0", 256, min(vm.total - npoll[0], len(vm.ops)))
                if "early" in exp:
                    if s >= 13 and k in (1, 3, 5, 7, 9, 10, 12, 14):
                        i_ = (1, 3, 5, 7, 9, 10, 12, 14).index(k)
                        if i_ == 0: xl = H["xn_load_l"](2 * (s - 13)) + H["xn_load_l"](2 * (s - 13) + 1)
                        xl[i_]()
                elif "mid" in exp:
                    if s == 14 and k in (1, 3, 5, 7, 9, 11, 13, 15):
                        i_ = (1, 3, 5, 7, 9, 11, 13, 15).index(k)
                        if i_ == 0: xl = H["xn_load_l"](0) + H["xn_load_l"](1)
                        xl[i_]()
                    if s == 15 and k in (2, 5, 8, 12):
                        i_ = (2, 5, 8, 12).index(k)
                        if i_ == 0: xl = H["xn_load_l"](2)
                        xl[i_]()
                elif s >= 14 and k in (2, 5, 8, 12):
                    i_ = (2, 5, 8, 12).index(k)
                    if i_ == 0: xl = H["xn_load_l"](s - 14)
                    xl[i_]()
            if "pf" in exp and fused is None and s == 10 and k in (4, 8):
                a.e("v_lshrrev_b32 v%d, 4, v%d", v_t, v_lane)
                a.e("v_lshlrev_b32 v%d, 13, v%d", v_t, v_t)
                a.e("v_and_b32 v%d, 15, v%d", v_t + 1, v_lane)
                a.e("v_lshl_add_u32 v%d, v%d, 4, v%d", v_t, v_t + 1, v_t)
                a.e("s_lshl_b32 s%d, s%d, 3", s_t3, s_j)
                a.e("s_add_u32 s%d, s%d, s%d", s_t3, s_t3, s_w)
                a.e("s_lshl_b32 s%d, s%d, 16", s_t3, s_t3)
                a.e("s_lshl_b32 s%d, s%d, 8", s_t1, s_h)
                a.e("s_add_u32 s%d, s%d, s%d", s_t3, s_t3, s_t1)
                if k == 8: a.e("s_add_u32 s%d, s%d, 32768", s_t3, s_t3)
                a.e("s_mov_b32 m0, s%d", s_cm0)
                a.e("s_nop 0")
                a.e("buffer_load_dwordx4 v%d, s[%d:%d], s%d offen lds", v_t, S_W1, S_W1 + 3, s_t3)
                vm.issue("pf")
            if "even" in exp and s >= 8:
                for n_, (g0, grp) in enumerate(sorted(sched.items())):
                    j_ = gi - (g0 - 5)
                    if 0 <= j_ < len(grp): emit_epi(grp[j_])
            if pend_epi and k >= 3:
                emit_epi(pend_epi.pop(0))
                if pend_epi and s >= 12: emit_epi(pend_epi.pop(0))
        assert not pend_epi
        (st.mark() if last else None)
        a.e("s_nop 7")
        if fused is not None and "early" not in exp:
            late = []
            for cb in range(4):
                A, D = ACCA + cb * 8, ACCB + cb * 8 + 4
                for i in range(4):
                    a.e("v_cvt_pk_bf16_f32 v%d, v%d, v%d", D + i, A + 2 * i, A + 2 * i + 1)
                def st_(cb=cb, D=D):
                    a.e("s_add_u32 s%d, s%d, 2048", s_t2, s_vst)
                    a.e("buffer_store_dwordx4 v[%d:%d], v%d, s[%d:%d], s%d offen offset:%d", D, D + 3, v_vst, S_WS, S_WS + 3, s_t2, (cb >> 1) * 1024 + (cb & 1) * 256)
                    vm.issue("st")
                late.append(st_)
            H["late_stores"].extend(late)
        else:
            for x in epi("V1"): emit_epi(x)
        if fused is not None:
            for _ in k2: pass
            return
        if diag and last:
            a.e("s_waitcnt vmcnt(0)")
            (mark() if last else None)
            st.dump(S_WS, s_w, 10, s_t0)

    if "stag" in exp:
        l2 = name + "_late"
        vm0, lg0 = list(vm.ops), list(lg.ops)
        a.e("s_cmp_ge_u32 s%d, 4", s_w)
        a.e("s_cbranch_scc1 %s", l2)
        emit_main(1, 3, True)
        a.e("s_endpgm")
        a.label(l2)
        vm.ops, lg.ops = vm0, lg0
        emit_main(6 if "stag6" in exp else 8, 3, False)
    else:
        emit_main(1, 3, True)
    if fused is None:
        a.label(name + "_end")
        a.e("s_endpgm")
```

```python
from gen_common import *
import gen_common
import math, struct

def f32bits(x):
    return struct.unpack("<I", struct.pack("<f", x))[0]

def gen_k2(a, name="attn_kernel", diag=False, exp="", thr_log2=40):
    for _ in gen_k2_iter(a, name, diag, exp, thr_log2, None): pass

def gen_k2_iter(a, name, diag, exp, thr_log2, fuse):
    if fuse is None:
        kernel_begin(a, name)
        st = Stamps(a, diag, 1, base=56, maxn=11)
        vm = Cnt(a, "vmcnt", 63); lg = Cnt(a, "lgkmcnt", 15)
    else:
        vm, lg, st = fuse["vm"], fuse["lg"], fuse["st"]
    SC1 = " sc1" if fuse is not None else ""
    NEXTK = "tail_kernel" if "nexttail" in exp else "proj_kernel"
    QSCALE = f32bits(math.log2(math.e) / math.sqrt(128.0))
    THR = f32bits(2.0 ** thr_log2)
    S_WQ, S_WS = 4, 8
    s_h, s_x, s_w, s_t0, s_t1, s_t2, s_kk0, s_wof, s_wm0 = 12, 13, 14, 15, 16, 17, 18, 19, 20
    s_xn, s_T, s_TB, s_t, s_cur, s_nxt, s_ld, s_kof, s_vof, s_wl = 21, 22, 23, 24, 25, 26, 27, 28, 29, 30
    s_qb, s_mfrom, s_kb, s_isA, s_lslot, s_lst, s_thr, s_oob = 31, 32, 33, 34, 35, 36, 37, 38
    s_ret = 40
    s_m = 42
    s_hb = 50
    s_n = 51
    s_cnt = 52
    s_x1, s_x2 = 53, 54
    SPF = 56
    if fuse is not None:
        S_WQ, S_WS = 20, 24
        s_h, s_x, s_w, s_t0, s_t1, s_t2, s_kk0, s_wof, s_wm0 = 28, 29, 30, 31, 32, 33, 34, 35, 40
        s_xn, s_T, s_TB, s_t, s_cur, s_nxt, s_ld, s_kof, s_vof, s_wl = 44, 45, 46, 47, 48, 49, 50, 51, 52, 53
        s_qb, s_mfrom, s_kb, s_isA, s_lslot, s_lst, s_thr, s_oob = 54, 55, 56, 57, 58, 59, 60, 61
        s_m = 8
        s_hb, s_n, s_cnt, s_x1, s_x2, s_poll = 64, 65, 66, 67, 68, 69
        s_ret = 70
        S_DBG = 72
        SPF = 4
    v_lane, v_wdma, v_trE, v_trO, v_l16, v_rd, v_rdn, v_qrel, v_t = 0, 1, 2, 3, 4, 5, 6, 7, 8
    v_hiE, v_hiO = v_rd, v_rdn
    if fuse is not None:
        v_lane, v_wdma, v_l16, v_qrel, v_trE, v_trO, v_hiE, v_hiO, v_rd, v_rdn, v_t = 0, 1, 2, 3, 4, 5, 6, 7, 8, 9, 10
    WF, NRW = 12, 5
    ACC = 32
    XN = 128
    Q = 96
    RING, NR, PD = 12, 16, 12
    TT = 80
    v_ps, v_l, v_D, v_ninf, v_mx, v_f = [84, 85], 86, 87, 88, 89, 90
    U = 76
    v_pk = [92, 94]
    NEGM, P, S, O = 128, [144, 152], [160, 176], 192
    SLOT = 32768

    def role_setup():
        a.e("s_lshr_b32 s%d, s%d, 2", s_isA, s_w)
        a.e("s_sub_u32 s%d, 15, s%d", s_t0, s_x)
        a.e("s_lshl_b32 s%d, s%d, 1", s_TB, s_t0)
        a.e("s_add_u32 s%d, s%d, 2", s_TB, s_TB)
        a.e("s_sub_u32 s%d, 7, s%d", s_t1, s_w)
        a.e("s_cmp_eq_u32 s%d, 0", s_isA)
        a.e("s_cselect_b32 s%d, s%d, s%d", s_t0, s_t0, s_x)
        a.e("s_cselect_b32 s%d, s%d, s%d", s_t1, s_w, s_t1)
        a.e("s_lshl_b32 s%d, s%d, 1", s_T, s_t0)
        a.e("s_lshr_b32 s%d, s%d, 1", s_t2, s_t1)
        a.e("s_add_u32 s%d, s%d, s%d", s_T, s_T, s_t2)
        a.e("s_add_u32 s%d, s%d, 1", s_T, s_T)
        a.e("s_lshl_b32 s%d, s%d, 2", s_qb, s_t0)
        a.e("s_add_u32 s%d, s%d, s%d", s_qb, s_qb, s_t1)
        a.e("s_sub_u32 s%d, s%d, 3", s_mfrom, s_T)
        a.e("s_and_b32 s%d, s%d, 3", s_wl, s_w)
        a.e("s_lshl_b32 s%d, s%d, 15", s_xn, s_qb)
        a.e("s_add_u32 s%d, s%d, 0x%x", s_xn, s_xn, WS_XN)
        a.e("s_mul_i32 s%d, s%d, %d", s_hb, s_h, HEAD_STRIDE)
        a.e("s_lshl_b32 s%d, s%d, 12", s_t0, s_wl)
        a.e("s_add_u32 s%d, s%d, s%d", s_hb, s_hb, s_t0)
        a.e("s_mov_b32 s%d, 0x7ff00000", s_oob)
        a.e("s_mov_b32 s%d, 0x%x", s_thr, THR)

    if fuse is None:
        a.e("s_cmp_ge_u32 s2, 256")
        a.e("s_cbranch_scc1 %s_end", name)
        st.mark()
        a.e("s_load_dwordx2 s[4:5], s[0:1], %d", A_WQ)
        a.e("s_load_dwordx2 s[8:9], s[0:1], %d", WS)
        a.e("v_lshrrev_b32 v%d, 6, v0", v_t)
        a.e("v_and_b32 v%d, 63, v0", v_lane)
        a.e("v_readfirstlane_b32 s%d, v%d", s_w, v_t)
        a.e("s_and_b32 s%d, s2, 31", s_h)
        a.e("s_lshr_b32 s%d, s2, 5", s_x)
        a.e("s_lshr_b32 s%d, s%d, 3", s_t0, s_h)
        a.e("s_lshl_b32 s%d, s%d, 1", s_t0, s_t0)
        a.e("s_add_u32 s%d, s%d, s%d", s_kk0, s_t0, s_x)
        a.e("s_and_b32 s%d, s%d, 7", s_kk0, s_kk0)
        a.e("v_bfe_u32 v%d, v%d, 2, 2", v_t, v_lane)
        a.e("v_bfe_u32 v%d, v%d, 4, 1", v_t + 1, v_lane)
        a.e("v_lshl_add_u32 v%d, v%d, 2, v%d", v_t, v_t + 1, v_t)
        a.e("v_lshlrev_b32 v%d, 13, v%d", v_t, v_t)
        a.e("s_and_b32 s%d, s%d, 1", s_t0, s_w)
        a.e("s_lshl_b32 s%d, s%d, 1", s_t0, s_t0)
        a.e("v_and_b32 v%d, 3, v%d", v_t + 1, v_lane)
        a.e("v_xor_b32 v%d, s%d, v%d", v_t + 1, s_t0, v_t + 1)
        a.e("v_lshrrev_b32 v%d, 5, v%d", v_wdma, v_lane)
        a.e("v_lshl_add_u32 v%d, v%d, 2, v%d", v_t + 1, v_wdma, v_t + 1)
        a.e("v_lshl_add_u32 v%d, v%d, 4, v%d", v_wdma, v_t + 1, v_t)
        a.e("v_lshlrev_b32 v%d, 4, v%d", v_l16, v_lane)
        a.e("s_waitcnt lgkmcnt(0)")
        srd(a, S_WQ, S_WQ, 4 << 20); srd(a, S_WS, S_WS, WS_BYTES)
        a.e("s_lshl_b32 s%d, s%d, 16", s_wof, s_w)
        a.e("s_lshl_b32 s%d, s%d, 8", s_t0, s_h)
        a.e("s_add_u32 s%d, s%d, s%d", s_wof, s_wof, s_t0)
        a.e("s_lshl_b32 s%d, s%d, 10", s_wm0, s_w)
        role_setup()

    def kk_of(i, dst):
        a.e("s_add_u32 s%d, s%d, %d", dst, s_kk0, i)
        a.e("s_and_b32 s%d, s%d, 7", dst, dst)
    def wq_lds(step):
        return (step * 16384) if fuse is None else (((step + 4) & 7) * 16384)
    def stage_slot(stage):
        return ((stage if fuse is None else stage + 2) % 4) * SLOT
    def w_dma(step):
        for em in w_dma_l(step): em()
    def w_dma_l(step):
        return [lambda hf=hf: w_dma1(step, hf) for hf in range(2)]
    def w_dma1(step, hf):
        if True:
            kk_of(step, s_t0)
            a.e("s_lshl_b32 s%d, s%d, 19", s_t0, s_t0)
            a.e("s_add_u32 m0, s%d, %d", s_wm0, wq_lds(step) + hf * 8192)
            a.e("s_add_u32 s%d, s%d, s%d", s_t0, s_t0, s_wof)
            if hf: a.e("s_add_u32 s%d, s%d, 128", s_t0, s_t0)
            a.e("buffer_load_dwordx4 v%d, s[%d:%d], s%d offen lds", v_wdma, S_WQ, S_WQ + 3, s_t0)
            vm.issue(("W", step))
    def xn_load(step):
        for em in xn_load_l(step): em()
    def xn_load_l(step):
        L = []
        for u in range(2):
            for qb in range(2):
                def em(u=u, qb=qb):
                    if u == 0 and qb == 0:
                        kk_of(step, s_x1)
                        a.e("s_lshl_b32 s%d, s%d, 11", s_x1, s_x1)
                        a.e("s_add_u32 s%d, s%d, s%d", s_x1, s_x1, s_xn)
                        a.e("s_add_u32 s%d, s%d, 16384", s_x2, s_x1)
                    r = XN + ((step * 2 + u) * 2 + qb) * 4
                    a.e("buffer_load_dwordx4 v[%d:%d], v%d, s[%d:%d], s%d offen offset:%d%s", r, r + 3, v_l16, S_WS, S_WS + 3,
                        s_x1 if qb == 0 else s_x2, u * 1024, SC1)
                    vm.issue(("x", step))
                L.append(em)
        return L
    def stage_addr_static(stage):
        a.e("s_add_u32 s%d, s%d, 0x%x", s_kof, s_hb, WS_K + (stage + 1) * 16384)
        a.e("s_add_u32 s%d, s%d, 0x%x", s_vof, s_hb, WS_V + max(stage, 0) * 16384)
        a.e("s_lshl_b32 s%d, s%d, 12", s_lslot, s_wl)
        a.e("s_add_u32 s%d, s%d, %d", s_lslot, s_lslot, stage_slot(stage) if stage >= 0 else 4 * SLOT)
    def stage_loads(part, tag=None, track=True):
        L = []
        for i in range(4):
            def em(i=i):
                if i == 0:
                    a.e("s_add_u32 m0, s%d, %d", s_lslot, 0 if part == "K" else 16384)
                    a.e("s_nop 0")
                a.e("buffer_load_dwordx4 v%d, s[%d:%d], s%d offen offset:%d%s lds", v_l16, S_WS, S_WS + 3,
                    s_kof if part == "K" else s_vof, i * 1024, SC1)
                if track: vm.issue(tag)
            L.append(em)
        return L
    def only_A(fn):
        l = a.newlabel("LnA")
        a.e("s_cmp_eq_u32 s%d, 0", s_isA)
        a.e("s_cbranch_scc1 %s", l)
        fn()
        a.label(l)

    def vec_setup():
        if fuse is not None: a.e("v_lshlrev_b32 v%d, 4, v%d", v_l16, v_lane)
        a.e("v_add_u32 v%d, 0x10000, v%d", v_hiE, v_trE)
        a.e("v_add_u32 v%d, 0x10000, v%d", v_hiO, v_trO)
        a.e("v_and_b32 v%d, 31, v%d", v_qrel, v_lane)
        a.e("s_lshl_b32 s%d, s%d, 5", s_t0, s_qb)
        a.e("v_add_u32 v%d, s%d, v%d", v_qrel, s_t0, v_qrel)
        a.e("v_lshrrev_b32 v%d, 5, v%d", v_t, v_lane)
        a.e("v_lshlrev_b32 v%d, 2, v%d", v_t, v_t)
        a.e("v_sub_u32 v%d, v%d, v%d", v_qrel, v_qrel, v_t)
    def only_wave(w, fn):
        l = a.newlabel("Lw1")
        a.e("s_cmp_lg_u32 s%d, %d", s_w, w)
        a.e("s_cbranch_scc1 %s", l)
        fn()
        a.label(l)
    def poll(wave, s_off):
        only_wave(wave, lambda: a.e("buffer_load_dword v%d, off, s[%d:%d], %s sc1", v_t, S_DBG, S_DBG + 3, s_off))
    def poll_check(wave, s_off, target, younger):
        only_wave(wave, lambda: poll_check1(s_off, target, younger))
    def poll_check1(s_off, target, younger):
        ok, sp = a.newlabel("Lpok"), a.newlabel("Lpsp")
        a.e("s_waitcnt vmcnt(%d)", younger)
        a.e("v_readfirstlane_b32 s%d, v%d", s_poll, v_t)
        a.e("s_nop 3")
        a.e("s_cmp_ge_u32 s%d, %d", s_poll, target)
        a.e("s_cbranch_scc1 %s", ok)
        a.e("s_mov_b32 s%d, 0x20000", s_n)
        a.label(sp)
        a.e("s_sleep 16")
        a.e("buffer_load_dword v%d, off, s[%d:%d], %s sc1", v_t, S_DBG, S_DBG + 3, s_off)
        a.e("s_waitcnt vmcnt(0)")
        a.e("v_readfirstlane_b32 s%d, v%d", s_poll, v_t)
        a.e("s_nop 3")
        a.e("s_cmp_ge_u32 s%d, %d", s_poll, target)
        a.e("s_cbranch_scc1 %s", ok)
        a.e("s_sub_u32 s%d, s%d, 1", s_n, s_n)
        a.e("s_cbranch_scc0 %s", sp)
        a.label(ok)
    def signal(s_off, track=False):
        l, l2 = a.newlabel("Lsig"), a.newlabel("Lsig")
        a.e("s_cmp_lg_u32 s%d, 0", s_w)
        a.e("s_cbranch_scc1 %s", l)
        a.e("v_mov_b32 v%d, 1", v_t + 1)
        a.e("s_mov_b64 exec, 1")
        a.e("buffer_atomic_add v%d, off, s[%d:%d], %s sc1", v_t + 1, S_DBG, S_DBG + 3, s_off)
        a.e("s_mov_b64 exec, -1")
        if track: a.e("s_branch %s", l2)
        a.label(l)
        if track:
            a.e("buffer_load_dword v%d, off, s[%d:%d], s%d", v_t + 1, S_DBG, S_DBG + 3, s_oob)
            a.label(l2)
            vm.issue("sig")
    def flag_store(val, tag=None, base=WS_FLAG):
        a.e("s_lshl_b32 s%d, s2, 7", s_poll)
        a.e("s_add_u32 s%d, s%d, 0x%x", s_poll, s_poll, base)
        a.e("v_mov_b32 v%d, %d", v_t + 1, val)
        a.e("s_mov_b64 exec, 1")
        a.e("buffer_store_dword v%d, off, s[%d:%d], s%d sc1", v_t + 1, S_WS, S_WS + 3, s_poll)
        a.e("s_mov_b64 exec, -1")
        if tag: vm.issue(tag)
    def flags_load():
        a.e("v_and_b32 v%d, 7, v%d", v_t + 1, v_lane)
        a.e("v_lshlrev_b32 v%d, 12, v%d", v_t + 1, v_t + 1)
        a.e("s_lshl_b32 s%d, s%d, 7", s_poll, s_h)
        a.e("s_add_u32 s%d, s%d, 0x%x", s_poll, s_poll, WS_FLAG)
        a.e("buffer_load_dword v%d, v%d, s[%d:%d], s%d offen sc1", v_t, v_t + 1, S_WS, S_WS + 3, s_poll)
    def flags_check():
        ok, sp = a.newlabel("Lfok"), a.newlabel("Lfsp")
        a.e("s_waitcnt vmcnt(0)")
        a.e("v_cmp_eq_u32 vcc, 1, v%d", v_t)
        a.e("s_nop 3")
        a.e("s_cmp_eq_u64 vcc, -1")
        a.e("s_cbranch_scc1 %s", ok)
        a.e("s_mov_b32 s%d, 0x20000", s_n)
        a.label(sp)
        a.e("s_sleep 8")
        a.e("buffer_load_dword v%d, v%d, s[%d:%d], s%d offen sc1", v_t, v_t + 1, S_WS, S_WS + 3, s_poll)
        a.e("s_waitcnt vmcnt(0)")
        a.e("v_cmp_eq_u32 vcc, 1, v%d", v_t)
        a.e("s_nop 3")
        a.e("s_cmp_eq_u64 vcc, -1")
        a.e("s_cbranch_scc1 %s", ok)
        a.e("s_sub_u32 s%d, s%d, 1", s_n, s_n)
        a.e("s_cbranch_scc0 %s", sp)
        a.label(ok)
    if fuse is not None:
        late_stores = []
        yield dict(late_stores=late_stores, flag_store=flag_store, role_setup=role_setup, vec_setup=vec_setup, w_dma_l=w_dma_l, xn_load_l=xn_load_l, poll=poll, poll_check=poll_check,
                   signal=signal, S_DBG=S_DBG, s_h=s_h, s_poll=s_poll)
    vmB = Cnt(a, "vmcnt", 63)
    vmB.ops = list(vm.ops)
    class Both:
        def issue(self, tag, onlyA=False):
            pass
    def issue_both(tag):
        vmB.ops.append(tag)
    _issue = vm.issue
    state = {"A_only": False}
    def issue2(tag):
        _issue(tag)
        if not state["A_only"]: vmB.ops.append(tag)
    vm.issue = issue2
    def wait_common(tags):
        nA, nB = vm.need(tags), vmB.need(tags)
        if nA is None and nB is None: return
        if nA == nB or nB is None or nA is None:
            n = min(x for x in (nA, nB) if x is not None)
            a.e("s_waitcnt vmcnt(%d)", n)
        else:
            l1, l2 = a.newlabel("Lw"), a.newlabel("Lw")
            a.e("s_cmp_eq_u32 s%d, 0", s_isA)
            a.e("s_cbranch_scc1 %s", l1)
            a.e("s_waitcnt vmcnt(%d)", nA)
            a.e("s_branch %s", l2)
            a.label(l1)
            a.e("s_waitcnt vmcnt(%d)", nB)
            a.label(l2)
        for tr, n in ((vm, nA), (vmB, nB)):
            if n is not None: tr.ops = tr.ops[len(tr.ops) - n:] if n > 0 else []
    def a_loads(stage, part=None):
        def fn():
            state["A_only"] = True
            stage_addr_static(stage)
            if part in (None, "K"):
                for em in stage_loads("K", ("st", stage)): em()
            if stage >= 0 and part in (None, "V"):
                for em in stage_loads("V", ("st", stage)): em()
            state["A_only"] = False
        only_A(fn)
    if fuse is not None:
        s_hoff = s_mfrom
        a.e("s_lshl_b32 s%d, s%d, 2", s_hoff, s_h)
        a.e("s_add_u32 s%d, s%d, 128", s_hoff, s_hoff)
    def mark_poll(): pass

    if fuse is None:
        for s in range(2):
            w_dma(s); xn_load(s)
        st.mark()
        a.e("v_bfe_u32 v%d, v%d, 2, 2", v_t, v_lane)
        a.e("v_lshlrev_b32 v%d, 6, v%d", v_t, v_t)
        a.e("v_and_b32 v%d, 3, v%d", v_t + 1, v_lane)
        a.e("v_lshl_add_u32 v%d, v%d, 3, v%d", v_t, v_t + 1, v_t)
        a.e("v_lshrrev_b32 v%d, 4, v%d", v_t + 1, v_lane)
        a.e("v_lshl_add_u32 v%d, v%d, 10, v%d", v_t, v_t + 1, v_t)
        a.e("v_and_b32 v%d, 1, v%d", v_t + 1, v_t + 1)
        a.e("v_lshl_add_u32 v%d, v%d, 5, v%d", v_trE, v_t + 1, v_t)
        a.e("v_xor_b32 v%d, 32, v%d", v_trO, v_trE)
        vec_setup()

    qfr = []
    for s in range(8):
        for u in range(2):
            for cb in range(8):
                off = (wq_lds(s) & 0xffff) + (cb >> 2) * 8192 + u * 4096 + ((cb >> 1) & 1) * 512
                dg = cb >> 1
                accs = [ACC + ((dg * 2 + qb) * 2 + (cb & 1)) * 4 for qb in range(2)]
                xfs = [XN + ((s * 2 + u) * 2 + qb) * 4 for qb in range(2)]
                qfr.append((s, off, cb & 1, accs, xfs, s == 0 and u == 0))
    def w_read(gi):
        s, off, odd, accs, xfs, first = qfr[gi]
        r = WF + (gi % NRW) * 4
        base = (v_trO if odd else v_trE) if wq_lds(s) < 65536 else (v_hiO if odd else v_hiE)
        for t in range(2):
            a.e("ds_read_b64_tr_b16 v[%d:%d], v%d offset:%d", r + 2 * t, r + 2 * t + 1, base, off + t * 256)
            lg.issue(("W", gi))
    wait_common([("W", 0), ("x", 0)] + ([("W", 1)] if fuse is not None else []))
    a.e("s_barrier")
    if fuse is None: st.mark()
    PRE = NRW - 1
    _x6 = {}
    nread = [0]
    FQS = (1, 2, 4, 5) if 'fqb' not in exp else (3, 5, 6, 7)
    SIGSTEP = 2 if 'early' in exp else (5 if 'even' in exp else (4 if 'latev0' in exp else 3))
    POLLSTEP = 5 if 'poll5' in exp else 4
    assert POLLSTEP >= SIGSTEP
    for gi, (s, off, odd, accs, xfs, first) in enumerate(qfr):
        k = gi % 16
        if k == 0:
            if s > 0: a.e("s_barrier")
            if "fq" in exp and s in FQS: st.mark()
            pend = []
            if fuse is None:
                if s == 0:
                    pend = w_dma_l(2) + xn_load_l(2) + w_dma_l(3) + xn_load_l(3) + [lambda: a_loads(-1)]
                elif s + 3 < 8:
                    pend = w_dma_l(s + 3) + xn_load_l(s + 3)
                if s in (2, 4, 6): pend.append(lambda s=s: a_loads(s // 2 - 1))
            else:
                if "early" in exp:
                    if s < 4: pend = w_dma_l(s + 4)
                    if s == 0: pend += xn_load_l(6) + xn_load_l(7)
                else:
                    if "even" in exp:
                        ls = late_stores
                        if s == 0: pend = xn_load_l(3) + [ls[0]] + w_dma_l(4) + [lambda: None] * 4 + [ls[1]]
                        elif s == 1: pend = xn_load_l(4) + w_dma_l(5) + [lambda: None] * 2 + [ls[2]]
                        elif s == 2: pend = xn_load_l(5) + [ls[3]] + w_dma_l(6)
                        elif s == 3:
                            x6 = xn_load_l(6); pend = x6[:2] + [ls[4]] + x6[2:] + w_dma_l(7)
                        elif s == 4: pend = xn_load_l(7)
                    elif "mid" in exp:
                        if s == 0: pend = xn_load_l(3) + w_dma_l(4) + late_stores[:4]
                        elif s == 1: pend = xn_load_l(4) + w_dma_l(5) + late_stores[4:]
                        elif s <= 3: pend = xn_load_l(s + 3) + w_dma_l(s + 4)
                        elif s == 4: pend = xn_load_l(7)
                    elif s == 0: pend = w_dma_l(2) + xn_load_l(2) + w_dma_l(3) + late_stores[:4]
                    elif s == 1: pend = xn_load_l(3) + w_dma_l(4) + xn_load_l(4) + late_stores[4:]
                    elif s + 3 < 8: pend = w_dma_l(s + 3) + xn_load_l(s + 3)
                if s == SIGSTEP: pend = pend + [lambda: only_wave(0, lambda: flag_store(1))]
                if s == POLLSTEP:
                    pend = pend + [lambda: only_wave(4, flags_load)]
                if s == POLLSTEP + 1: pend = pend + [lambda: a_loads(-1, "K"), lambda: None, lambda: a_loads(0, "K"), lambda: None, lambda: a_loads(0, "V"),
                                   lambda: None, lambda: a_loads(1, "K"), lambda: None, lambda: a_loads(1, "V")]
                if s == max(6, POLLSTEP + 2) - (0): pend = pend + [lambda: a_loads(2, "K"), lambda: a_loads(2, "V")]
        lim = 16 if (s == 0 and fuse is None) else len(qfr)
        while nread[0] < min(gi + PRE + 1, lim): w_read(nread[0]); nread[0] += 1
        lg.wait(("W", gi))
        wf = WF + (gi % NRW) * 4
        for qb in range(2):
            d, xf = accs[qb], xfs[qb]
            c = "0" if first else "v[%d:%d]" % (d, d + 3)
            a.e("v_mfma_f32_16x16x32_bf16 v[%d:%d], v[%d:%d], v[%d:%d], %s", d, d + 3, wf, wf + 3, xf, xf + 3, c)
        if pend and k >= 1: pend.pop(0)()
        if k == (15 if ((s == 0 and (fuse is None or "early" not in exp)) or (s == 1 and "latev0" in exp)) else 11) and s + 1 < 8:
            assert not pend
            tags = [("x", s + 1), ("W", s + 1)] + ([("W", s + 2)] if s + 2 < 8 else [])
            if fuse is not None and s == SIGSTEP - 1: tags.append("st")
            wait_common(tags)
        if fuse is not None and s == POLLSTEP and k == 15:
            only_wave(4, flags_check)
    if "fq" not in exp: st.mark()
    a.e("s_nop 7")
    for blk in range(8):
        for i in range(4):
            a.e("v_cvt_pk_bf16_f32 v%d, v%d, v%d", Q + blk * 4 + i, ACC + blk * 8 + 2 * i, ACC + blk * 8 + 2 * i + 1)
    a.e("s_nop 1")
    for dg in range(4):
        for i in range(4):
            a.e("v_permlane16_swap_b32 v%d, v%d", Q + (dg * 2) * 4 + i, Q + (dg * 2 + 1) * 4 + i)
    wait_common([("st", -1), ("st", 0)])
    a.e("s_barrier")
    a.e("v_mov_b32 v%d, 0", v_l)
    a.e("v_mov_b32 v%d, 0xff800000", v_ninf)
    a.e("s_mov_b32 s%d, %d", s_cur, stage_slot(0))
    a.e("v_add_u32 v%d, %d, v%d", v_rd, stage_slot(0), v_l16)
    a.e("s_mov_b32 s%d, 3", s_ld)
    a.e("s_mov_b32 s%d, %d", s_lst, stage_slot(3))
    if fuse is None: st.mark()

    def dyn_stage_setup():
        L = []
        L.append("s_lshl_b32 s%d, s%d, 14" % (s_t0, s_ld))
        L.append("s_add_u32 s%d, s%d, s%d" % (s_t0, s_t0, s_hb))
        L.append("s_add_u32 s%d, s%d, 0x%x" % (s_kof, s_t0, WS_K + 16384))
        L.append("s_add_u32 s%d, s%d, 0x%x" % (s_vof, s_t0, WS_V))
        L.append("s_cmp_lt_u32 s%d, s%d" % (s_ld, s_TB))
        L.append("s_cselect_b32 s%d, s%d, s%d" % (s_kof, s_kof, s_oob))
        L.append("s_cselect_b32 s%d, s%d, s%d" % (s_vof, s_vof, s_oob))
        L.append("s_lshl_b32 s%d, s%d, 12" % (s_lslot, s_wl))
        L.append("s_add_u32 s%d, s%d, s%d" % (s_lslot, s_lslot, s_lst))
        return L
    def dyn_stage_advance():
        return ["s_add_u32 s%d, s%d, 1" % (s_ld, s_ld),
                "s_add_u32 s%d, s%d, %d" % (s_lst, s_lst, SLOT),
                "s_and_b32 s%d, s%d, %d" % (s_lst, s_lst, 4 * SLOT - 1)]
    def kfrag_off(b, ks): return (b * 8 + ks) * 1024
    def vfrag_off(b, s_, db): return 16384 + (b * 8 + s_ * 4 + db) * 1024
    seq = []
    for ks in range(8): seq.append(("QK", 0, ks, kfrag_off(0, ks)))
    for s_ in range(2):
        for db in range(4): seq.append(("PV", 0, (s_, db), vfrag_off(0, s_, db)))
    for ks in range(8): seq.append(("QK", 1, ks, kfrag_off(1, ks)))
    for s_ in range(2):
        for db in range(4): seq.append(("PV", 1, (s_, db), vfrag_off(1, s_, db)))
    def mfma(item, reg, c0=None):
        kind, b, idx, off = item
        if "m16" in exp:
            if kind == "QK":
                for z in range(2):
                    d = S[b] + 4 * ((2 * idx + z) % 4)
                    q = Q + ((idx + z) % 8) * 4
                    c = ("v[%d:%d]" % (NEGM, NEGM + 3)) if idx < 2 else "v[%d:%d]" % (d, d + 3)
                    a.e("v_mfma_f32_16x16x32_bf16 v[%d:%d], v[%d:%d], v[%d:%d], %s", d, d + 3, reg, reg + 3, q, q + 3, c)
            else:
                s_, db = idx
                for z in range(2):
                    d = O + db * 16 + s_ * 8 + z * 4
                    a.e("v_mfma_f32_16x16x32_bf16 v[%d:%d], v[%d:%d], v[%d:%d], v[%d:%d]", d, d + 3, reg, reg + 3, P[b] + 4 * z, P[b] + 4 * z + 3, d, d + 3)
            return
        if kind == "QK":
            c = ("v[%d:%d]" % (NEGM, NEGM + 15) if c0 is None else c0) if idx == 0 else "v[%d:%d]" % (S[b], S[b] + 15)
            a.e("v_mfma_f32_32x32x16_bf16 v[%d:%d], v[%d:%d], v[%d:%d], %s", S[b], S[b] + 15, reg, reg + 3, Q + idx * 4, Q + idx * 4 + 3, c)
        else:
            s_, db = idx
            a.e("v_mfma_f32_32x32x16_bf16 v[%d:%d], v[%d:%d], v[%d:%d], v[%d:%d]", O + db * 16, O + db * 16 + 15, reg, reg + 3,
                P[b] + 4 * s_, P[b] + 4 * s_ + 3, O + db * 16, O + db * 16 + 15)
    def sm_stream(b):
        L = []
        for r in range(17):
            if r < 16: L.append((r, 0, "v_exp_f32 v%d, v%d" % (TT + r % 4, S[b] + r)))
            if "pk" in exp:
                pp = v_pk[b]
                if r == 2: L.append((r, 1, "v_mov_b32 v%d, v%d" % (pp, TT + 0)))
                elif r == 3: L.append((r, 1, "v_mov_b32 v%d, v%d" % (pp + 1, TT + 1)))
                elif r >= 4 and r % 2 == 0:
                    t0 = TT + (r - 2) % 4
                    L.append((r, 1, "v_pk_add_f32 v[%d:%d], v[%d:%d], v[%d:%d]" % (pp, pp + 1, pp, pp + 1, t0, t0 + 1)))
                    if r == 16: L.append((r, 1, "v_add_f32 v%d, v%d, v%d" % (v_ps[b], pp, pp + 1)))
            elif r == 2: L.append((r, 1, "v_add_f32 v%d, v%d, v%d" % (v_ps[b], TT + 0, TT + 1)))
            elif r >= 3: L.append((r, 1, "v_add_f32 v%d, v%d, v%d" % (v_ps[b], v_ps[b], TT + (r - 1) % 4)))
            if r >= 2 and r % 2 == 0:
                i = r // 2 - 1
                L.append((r, 2, "v_cvt_pk_bf16_f32 v%d, v%d, v%d" % (P[b] + i, TT + (2 * i) % 4, TT + (2 * i + 1) % 4)))
        return L
    def sm_plain(b, lo=0, hi=16):
        for r in range(lo, hi + 1):
            for (rr, pos, ins) in sm_stream(b):
                if rr == r: a.e(ins)
            if r == 15 or r == hi: a.e("s_nop 0")
    START = [12, 28]
    stubs = []
    def cmp_ps(b): a.e("v_cmp_lt_f32 vcc, s%d, v%d", s_thr, v_ps[b])
    def br_slow(b, tag, replay):
        lab = "%s_chk%d_%s" % (name, b, tag)
        a.e("s_cbranch_vccnz %s", lab)
        a.label(lab + "_ret")
        stubs.append((lab, "%s_slow%d_%d" % (name, b, replay), lab + "_ret"))
    def ladd(b): a.e("v_add_f32 v%d, v%d, v%d", v_l, v_l, v_ps[b])

    def emit_mask(b, tile_expr_off):
        a.e("s_add_u32 s%d, s%d, %d", s_kb, s_t, tile_expr_off)
        a.e("s_lshl_b32 s%d, s%d, 6", s_kb, s_kb)
        a.e("s_add_u32 s%d, s%d, %d", s_kb, s_kb, 32 * b)
        a.e("v_subrev_u32 v%d, s%d, v%d", v_D, s_kb, v_qrel)
        for r0 in range(0, 16, 4):
            for j in range(4):
                r = r0 + j; i = r >> 2
                cst = 16 * (i & 1) + 8 * (i >> 1) + (r & 3)
                a.e("v_cmp_le_i32 s[%d:%d], %d, v%d", s_m + 2 * j, s_m + 2 * j + 1, cst, v_D)
            a.e("s_nop 1")
            for j in range(4):
                r = r0 + j
                a.e("v_cndmask_b32 v%d, v%d, v%d, s[%d:%d]", S[b] + r, v_ninf, S[b] + r, s_m + 2 * j, s_m + 2 * j + 1)

    def max16(dst, regs):
        a.e("v_max3_f32 v%d, v%d, v%d, v%d", dst, regs[0], regs[1], regs[2])
        i = 3
        while i < len(regs):
            if i + 1 < len(regs):
                a.e("v_max3_f32 v%d, v%d, v%d, v%d", dst, dst, regs[i], regs[i + 1]); i += 2
            else:
                a.e("v_max_f32 v%d, v%d, v%d", dst, dst, regs[i]); i += 1
    def crosshalf_max(r, t):
        a.e("v_mov_b32 v%d, v%d", t, r)
        a.e("s_nop 1")
        a.e("v_permlane32_swap_b32 v%d, v%d", r, t)
        a.e("s_nop 1")
        a.e("v_max_f32 v%d, v%d, v%d", r, r, t)

    def kv_read(i, base):
        item = seq[i % 32]
        r = RING + (i % NR) * 4
        a.e("ds_read_b128 v[%d:%d], v%d offset:%d", r, r + 3, base, item[3])

    def preloop(tag):
        def k0read(i):
            a.e("ds_read_b128 v[%d:%d], v%d offset:%d", RING + i * 4, RING + i * 4 + 3, v_rdn, kfrag_off(i >> 3, i & 7))
        for i in range(12): k0read(i)
        oz = 0
        for ks in range(8):
            if ks % 4 == 0: a.e("s_waitcnt lgkmcnt(8)")
            mfma(("QK", 0, ks, 0), RING + ks * 4, c0="0")
            if ks < 4: k0read(12 + ks)
            for _ in range(5):
                if oz < 64: a.e("v_mov_b32 v%d, 0", O + oz); oz += 1
        while oz < 64: a.e("v_mov_b32 v%d, 0", O + oz); oz += 1
        l = a.newlabel("Lpm")
        a.e("s_cmp_lg_u32 s%d, 1", s_T)
        a.e("s_cbranch_scc1 %s", l)
        a.e("s_mov_b32 s%d, -1", s_t)
        emit_mask(0, 1)
        a.label(l)
        max16(v_mx, [S[0] + i for i in range(16)])
        crosshalf_max(v_mx, v_f)
        for i in range(16):
            a.e("v_sub_f32 v%d, 0, v%d", NEGM + i, v_mx)
        for i in range(16):
            a.e("v_sub_f32 v%d, v%d, v%d", S[0] + i, S[0] + i, v_mx)
        a.e("s_waitcnt lgkmcnt(0)")
        items = [ins for (r, pos, ins) in sm_stream(0)]
        per = (len(items) + 7) // 8
        for ks in range(8):
            mfma(("QK", 1, ks, 0), RING + (8 + ks) * 4)
            for ins in items[ks * per:(ks + 1) * per]: a.e(ins)
        for i in range(PD): kv_read(i, v_rd)
        l = a.newlabel("Lpm")
        a.e("s_cmp_lg_u32 s%d, 1", s_T)
        a.e("s_cbranch_scc1 %s", l)
        emit_mask(1, 1)
        a.label(l)
        sm_plain(1, 0, 3)
        a.e("s_waitcnt lgkmcnt(0)")

    def iteration(tag, masked):
        tg = tag + ("m" if masked else "")
        top = "%s_loop%s" % (name, tg)
        streams = {}
        for b in range(2):
            for (r, pos, ins) in sm_stream(b):
                streams.setdefault(((START[b] + r) % 32, pos), []).append(ins)
        misc = {k: [] for k in range(32)}
        misc[1].append("s_waitcnt lgkmcnt(4)"); misc[9].append("s_waitcnt lgkmcnt(4)")
        misc[17].append("s_waitcnt lgkmcnt(4)"); misc[25].append("s_waitcnt lgkmcnt(4)")
        misc[3].append(lambda: ladd(0)); misc[21].append(lambda: ladd(1))
        misc[5].append("s_add_u32 s%d, s%d, %d" % (s_cur, s_cur, SLOT))
        misc[7].append("s_and_b32 s%d, s%d, %d" % (s_cur, s_cur, 4 * SLOT - 1))
        if tag == "A": misc[13].append("s_waitcnt vmcnt(8)")
        if "nobar" not in exp: misc[13].append("s_barrier")
        misc[15].append(lambda: br_slow(1, tg, 3))
        misc[19].append("v_add_u32 v%d, s%d, v%d" % (v_rd, s_cur, v_l16))
        misc[31].append(lambda: br_slow(0, tg, 3))
        if masked: misc[23].append("s_add_u32 s%d, s%d, 1" % (s_t, s_t))
        if tag == "A":
            setup = dyn_stage_setup()
            ld = stage_loads("K", track=False) + stage_loads("V", track=False)
            adv = dyn_stage_advance()
            for l_ in setup[:5]: misc[14].append(l_)
            for l_ in setup[5:]: misc[16].append(l_)
            for i, em in enumerate(ld): misc[[18, 20, 22, 23, 24, 26, 27, 28][i]].append(em)
            for l_ in adv: misc[29].append(l_)
        a(".p2align 3")
        a.label(top)
        for k in range(32):
            mfma(seq[k], RING + (k % NR) * 4)
            if "nords" not in exp: kv_read(k + PD, v_rd)
            if masked and k == START[0]: emit_mask(0, 1)
            if masked and k == START[1]: emit_mask(1, 0)
            for pos in range(3):
                if pos == 1 and k == 29: cmp_ps(0)
                if pos == 1 and k == 13: cmp_ps(1)
                for ins in streams.get((k, pos), []):
                    if "nosm" in exp: continue
                    a.e(ins)
            for m_ in misc[k]:
                if callable(m_): m_()
                else: a.e(m_)
        a.e("s_sub_u32 s%d, s%d, 1", s_cnt, s_cnt)
        a.e("s_cbranch_scc0 %s", top)

    def mainloop(tag):
        lsk, lend = a.newlabel("Lsk"), a.newlabel("Lend")
        a.e("s_cmp_lt_u32 s%d, 2", s_T)
        a.e("s_cbranch_scc1 %s", lend)
        a.e("s_cmp_lt_u32 s%d, 3", s_T)
        a.e("s_cbranch_scc1 %s", lsk)
        a.e("s_sub_u32 s%d, s%d, 3", s_cnt, s_T)
        iteration(tag, False)
        a.label(lsk)
        a.e("s_sub_u32 s%d, s%d, 2", s_t, s_T)
        a.e("s_mov_b32 s%d, 0", s_cnt)
        iteration(tag, True)
        a.label(lend)

    def final(tag):
        a.e("s_waitcnt lgkmcnt(0)")
        if tag == "B" and "nobar" not in exp:
            lb = a.newlabel("Lnb")
            a.e("s_cmp_eq_u32 s%d, s%d", s_T, s_TB)
            a.e("s_cbranch_scc1 %s", lb)
            a.e("s_barrier")
            a.label(lb)
        pv0 = [("PV", 0, (s_, db), vfrag_off(0, s_, db)) for s_ in range(2) for db in range(4)]
        pv1 = [("PV", 1, (s_, db), vfrag_off(1, s_, db)) for db in range(4) for s_ in range(2)]
        pv = pv0 + pv1
        for i in range(12):
            r = RING + i * 4
            a.e("ds_read_b128 v[%d:%d], v%d offset:%d", r, r + 3, v_rd, pv[i][3])
        ladd(0)
        rest = [ins for (r, pos, ins) in sm_stream(1) if r >= 4]
        per = (len(rest) + 7) // 8
        for i in range(8):
            if i % 4 == 0: a.e("s_waitcnt lgkmcnt(8)")
            mfma(pv[i], RING + i * 4)
            if i < 4:
                r = RING + (12 + i) * 4
                a.e("ds_read_b128 v[%d:%d], v%d offset:%d", r, r + 3, v_rd, pv[12 + i][3])
            for ins in rest[i * per:(i + 1) * per]: a.e(ins)
        cmp_ps(1)
        a.e("s_nop 1")
        br_slow(1, "fin" + tag, 9)
        ladd(1)
        a.e("v_mov_b32 v%d, v%d", v_f, v_l)
        a.e("s_lshl_b32 s%d, s%d, 5", s_t0, s_qb)
        a.e("s_add_u32 s%d, s%d, s%d", s_t0, s_t0, s_h)
        a.e("v_permlane32_swap_b32 v%d, v%d", v_l, v_f)
        a.e("s_lshl_b32 s%d, s%d, 13", s_t0, s_t0)
        a.e("s_add_u32 s%d, s%d, 0x%x", s_t0, s_t0, WS_CTX)
        a.e("v_add_f32 v%d, v%d, v%d", v_l, v_l, v_f)
        a.e("v_rcp_f32 v%d, v%d", v_l, v_l)
        a.e("s_add_u32 s%d, s%d, 4096", s_t1, s_t0)
        def epi(db):
            L = []
            for hfz in range(2):
                base = O + db * 16 + hfz * 8
                for i in range(8): L.append("v_mul_f32 v%d, v%d, v%d" % (base + i, base + i, v_l))
                for i in range(4): L.append("v_cvt_pk_bf16_f32 v%d, v%d, v%d" % (base + i, base + 2 * i, base + 2 * i + 1))
                ds = 2 * db + hfz
                L.append("buffer_store_dwordx4 v[%d:%d], v%d, s[%d:%d], s%d offen offset:%d" % (base, base + 3, v_l16, S_WS, S_WS + 3,
                         s_t0 if ds < 4 else s_t1, (ds & 3) * 1024))
            return L
        a.e("s_waitcnt lgkmcnt(0)")
        pend = []
        for i in range(8):
            mfma(pv[8 + i], RING + (8 + i) * 4)
            if i >= 4 and i % 2 == 0:
                pend += epi((i - 4) // 2)
            n = 0
            while pend and n < 13: a.e(pend.pop(0)); n += 1
            if not pend and i < 4: a.e("s_nop 3")
        a.e("s_nop 7")
        for ins in pend: a.e(ins)
        a.e("s_nop 3")
        for db in (2, 3):
            for ins in epi(db): a.e(ins)

    LA = name + "_roleA"
    a.e("v_add_u32 v%d, %d, v%d", v_rdn, 4 * SLOT, v_l16)
    a.e("s_cmp_lg_u32 s%d, 0", s_isA)
    a.e("s_cbranch_scc1 %s", LA)
    if "prioB" in exp: a.e("s_setprio 1")
    preloop("B")
    if "fq" not in exp: st.mark()
    mainloop("B")
    if "fq" not in exp: st.mark()
    final("B")
    if diag:
        a.e("s_waitcnt vmcnt(0)")
        if "fq" not in exp: st.mark()
        st.dump(S_WS, s_w, v_t, s_t0)
        if "dbgst" in exp: st.dump_dbg(S_DBG, s_w, v_t, 2)
    after = fuse.get("after") if fuse is not None else None
    LTA = name + "_ta"
    if after:
        a.e("s_waitcnt vmcnt(0)")
        a.e("s_branch %s", LTA)
    else:
        a.e("s_endpgm")
    a.label(LA)
    preloop("A")
    mainloop("A")
    final("A")
    NPF = 0
    if "pf" in exp:
        NPF = 8
        SP = SPF
        for (karg, size, per, n_i) in ((A_WO, 4 << 20, 16384, 4), (B_W1, 1792 * 1024, 8192, 2), (B_W2, 1792 * 1024, 8192, 2)):
            a.e("s_load_dwordx2 s[%d:%d], s[0:1], %d", SP, SP + 1, karg)
            a.e("s_mul_i32 s%d, s2, %d", s_t0, per)
            a.e("s_mul_i32 s%d, s%d, %d", s_t1, s_wl, per // 4)
            a.e("s_add_u32 s%d, s%d, s%d", s_t0, s_t0, s_t1)
            a.e("s_waitcnt lgkmcnt(0)")
            srd(a, SP, SP, size)
            for i in range(n_i):
                a.e("buffer_load_dwordx4 v[%d:%d], v%d, s[%d:%d], s%d offen offset:%d", 144 + 4 * i, 147 + 4 * i, v_l16, SP, SP + 3, s_t0, i * 1024)
    a.e("s_mov_b32 s%d, 0", s_n)
    ll = name + "_ldloop"
    a.label(ll)
    a.e("s_cmp_lt_u32 s%d, 2", s_n)
    a.e("s_cbranch_scc1 %s_w16", ll)
    a.e("s_waitcnt vmcnt(8)")
    a.e("s_branch %s_go", ll)
    a.label(ll + "_w16")
    a.e("s_waitcnt vmcnt(%d)", 16 + NPF)
    a.label(ll + "_go")
    if "nobar" not in exp: a.e("s_barrier")
    for l in dyn_stage_setup(): a.e(l)
    for em in stage_loads("K", track=False) + stage_loads("V", track=False): em()
    for l in dyn_stage_advance(): a.e(l)
    a.e("s_add_u32 s%d, s%d, 1", s_n, s_n)
    a.e("s_add_u32 s%d, s%d, s%d", s_t0, s_n, s_T)
    a.e("s_cmp_lt_u32 s%d, s%d", s_t0, s_TB)
    a.e("s_cbranch_scc1 %s", ll)
    if "pf" in exp:
        SP = SPF
        a.e("s_load_dwordx2 s[%d:%d], s[0:1], %d", SP, SP + 1, A_WO)
        a.e("s_bfe_u32 s%d, s2, 0x20001", s_t0)
        a.e("s_lshl_b32 s%d, s%d, 20", s_t0, s_t0)
        a.e("s_lshr_b32 s%d, s2, 3", s_t1)
        a.e("s_lshl_b32 s%d, s%d, 15", s_t1, s_t1)
        a.e("s_add_u32 s%d, s%d, s%d", s_t0, s_t0, s_t1)
        a.e("s_lshl_b32 s%d, s%d, 13", s_t1, s_wl)
        a.e("s_add_u32 s%d, s%d, s%d", s_t0, s_t0, s_t1)
        a.e("s_waitcnt lgkmcnt(0)")
        srd(a, SP, SP, 4 << 20)
        for i in range(8):
            if i == 4: a.e("s_add_u32 s%d, s%d, 4096", s_t0, s_t0)
            a.e("buffer_load_dwordx4 v[%d:%d], v%d, s[%d:%d], s%d offen offset:%d", 144 + 4 * (i & 3), 147 + 4 * (i & 3), v_l16, SP, SP + 3, s_t0, (i & 3) * 1024)
    if "cpnext" in exp:
        l_ = a.newlabel("Lcp")
        a.e("s_cmp_lg_u32 s%d, 0", s_wl); a.e("s_cbranch_scc1 %s", l_)
        code_prefetch(a, None, NEXTK, NEXTK + "_end", SPF, s_t0, v_lane, v_t, 160)
        a.label(l_)
    if after:
        a.e("s_waitcnt vmcnt(0)")
        a.label(LTA)
        a.e("s_barrier")
        only_wave(0, lambda: flag_store(1, None, WS_FLAGC))
        a.e("s_mov_b32 s46, s%d", s_w)
        after()
    a.label(name + "_end")
    a.e("s_endpgm")

    done = set()
    for (lab, target, ret) in stubs:
        a.label(lab)
        a.e("s_call_b64 s[%d:%d], %s", s_ret, s_ret + 1, target)
        a.e("s_branch %s", ret)
    for (lab, target, ret) in stubs:
        if target in done: continue
        done.add(target)
        b = int(target.split("_slow")[1][0]); replay = int(target.split("_slow")[1][2:])
        a.label(target)
        a.e("s_nop 15")
        max16(v_mx, [S[b] + i for i in range(16)])
        crosshalf_max(v_mx, v_f)
        a.e("v_ceil_f32 v%d, v%d", v_mx, v_mx)
        a.e("v_max_f32 v%d, 0, v%d", v_mx, v_mx)
        a.e("v_sub_f32 v%d, 0, v%d", v_f, v_mx)
        a.e("v_exp_f32 v%d, v%d", v_f, v_f)
        a.e("s_nop 0")
        for i in range(64): a.e("v_mul_f32 v%d, v%d, v%d", O + i, O + i, v_f)
        a.e("v_mul_f32 v%d, v%d, v%d", v_l, v_l, v_f)
        if False:
            o = 1 - b
            for i in range(8):
                a.e("v_lshlrev_b32 v%d, 16, v%d", U, P[o] + i)
                a.e("v_and_b32 v%d, 0xffff0000, v%d", U + 1, P[o] + i)
                a.e("v_mul_f32 v%d, v%d, v%d", U, U, v_f)
                a.e("v_mul_f32 v%d, v%d, v%d", U + 1, U + 1, v_f)
                a.e("v_cvt_pk_bf16_f32 v%d, v%d, v%d", P[o] + i, U, U + 1)
        for bb in range(2):
            for i in range(16): a.e("v_sub_f32 v%d, v%d, v%d", S[bb] + i, S[bb] + i, v_mx)
        for i in range(16): a.e("v_sub_f32 v%d, v%d, v%d", NEGM + i, NEGM + i, v_mx)
        sm_plain(b)
        if replay != 9: sm_plain(1 - b, 0, replay)
        a.e("s_nop 1")
        a.e("s_setpc_b64 s[%d:%d]", s_ret, s_ret + 1)
```

```python
from gen_common import *
from gen_k35 import gen_k35

def poll_flags(a, v_off, v_a, v_b, S_WS, s_base, s_cnt, dbl):
    ok, sp = a.newlabel("Lfok"), a.newlabel("Lfsp")
    a.e("s_mov_b32 s%d, 0x40000", s_cnt)
    ld = lambda v: a.e("buffer_load_dword v%d, v%d, s[%d:%d], s%d offen sc1", v, v_off, S_WS, S_WS + 3, s_base)
    def chk(v, n):
        a.e("s_waitcnt vmcnt(%d)", n)
        a.e("v_cmp_eq_u32 vcc, 1, v%d", v)
        a.e("s_nop 3")
        a.e("s_cmp_eq_u64 vcc, -1")
        a.e("s_cbranch_scc1 %s", ok)
    if dbl:
        ld(v_a)
        a.label(sp)
        a.e("s_sleep 2"); ld(v_b); chk(v_a, 1)
        a.e("s_sleep 2"); ld(v_a); chk(v_b, 1)
    else:
        a.label(sp)
        ld(v_a); chk(v_a, 0)
        a.e("s_sleep 3")
    a.e("s_sub_u32 s%d, s%d, 1", s_cnt, s_cnt)
    a.e("s_cbranch_scc0 %s", sp)
    a.label(ok)
    if dbl: a.e("s_waitcnt vmcnt(0)")

def gen_rr(a, kind, name, kidx, diag=False, exp="", exp5="", cont=False, chain=None):
    if not cont: kernel_begin(a, name)
    st = Stamps(a, diag, kidx, base=56, maxn=10)
    vm = Cnt(a, "vmcnt", 63); lg = Cnt(a, "lgkmcnt", 15)
    proj = kind == "proj"
    fr = kind == "redffn1"
    NPH = 8 if proj else 4
    NWG = 256 if (proj or fr) else 224
    ROW = 1024 if proj else 3584
    S_W, S_WS, S_B = 4, 8, 12
    s_w, s_rt, s_ct, s_t0, s_t1, s_t2, s_ab, s_wb, s_m0, s_qb, s_rot, s_ksq, s_ph, s_isL = 16, 17, 18, 19, 20, 21, 22, 23, 24, 25, 26, 27, 28, 29
    v_lane, v_l16, v_wd, v_tr, v_tr2, v_t, v_hf = 0, 1, 2, 3, 4, 5, 8
    AF = 128
    ACC = 64
    WFR, NRW = 16, 7
    LDS_B = 131072

    if not cont:
        a.e("s_cmp_ge_u32 s2, %d", NWG)
        a.e("s_cbranch_scc1 %s_end", name)
    st.mark()
    if proj: a.e("s_load_dwordx2 s[4:5], s[0:1], %d", A_WO)
    else: a.e("s_load_dwordx4 s[4:7], s[0:1], %d", B_W1)
    a.e("s_load_dwordx2 s[8:9], s[0:1], %d", WS)
    S_X = 40
    if fr: a.e("s_load_dwordx2 s[%d:%d], s[0:1], %d", S_X, S_X + 1, A_X)
    t2 = fr and "tail2" in exp
    S_WAVE = 46
    if cont:
        a.e("s_mov_b32 s%d, s%d", s_w, S_WAVE)
    else:
        a.e("v_lshrrev_b32 v%d, 6, v0", v_t)
        a.e("v_and_b32 v%d, 63, v0", v_lane)
        a.e("v_readfirstlane_b32 s%d, v%d", s_w, v_t)
        a.e("s_nop 3")
        if t2 or chain: a.e("s_mov_b32 s%d, s%d", S_WAVE, s_w)
    a.e("s_lshr_b32 s%d, s%d, 2", s_isL, s_w)
    a.e("s_and_b32 s%d, s%d, 3", s_w, s_w)
    LT1 = name + "_t1"
    LT0 = name + "_t0"
    if proj:
        a.e("s_bfe_u32 s%d, s2, 0x20001", s_ksq)
        a.e("s_and_b32 s%d, s2, 1", s_rt)
        a.e("s_lshl_b32 s%d, s%d, 3", s_rt, s_rt)
        a.e("s_lshr_b32 s%d, s2, 5", s_t0)
        a.e("s_add_u32 s%d, s%d, s%d", s_rt, s_rt, s_t0)
        a.e("s_bfe_u32 s%d, s2, 0x20003", s_ct)
        a.e("s_lshl_b32 s%d, s%d, 1", s_rot, s_ct)
        a.e("s_add_u32 s%d, s%d, s%d", s_rot, s_rot, s_t0)
        a.e("s_and_b32 s%d, s%d, 7", s_rot, s_rot)
    elif "map47" in exp:
        a.e("s_bfe_u32 s%d, s2, 0x20001", s_rt)
        a.e("s_lshl_b32 s%d, s%d, 2", s_rt, s_rt)
        a.e("s_bfe_u32 s%d, s2, 0x20003", s_t0)
        a.e("s_add_u32 s%d, s%d, s%d", s_rt, s_rt, s_t0)
        a.e("s_and_b32 s%d, s2, 1", s_ct)
        a.e("s_mul_i32 s%d, s%d, 7", s_ct, s_ct)
        a.e("s_lshr_b32 s%d, s2, 5", s_t0)
        a.e("s_add_u32 s%d, s%d, s%d", s_ct, s_ct, s_t0)
        a.e("s_and_b32 s%d, s%d, 3", s_rot, s_t0)
    else:
        a.e("s_and_b32 s%d, s2, 15", s_rt)
        a.e("s_lshr_b32 s%d, s2, 4", s_ct)
        a.e("s_lshr_b32 s%d, s%d, 3", s_t0, s_rt)
        a.e("s_lshl_b32 s%d, s%d, 1", s_t0, s_t0)
        a.e("s_add_u32 s%d, s%d, s%d", s_rot, s_ct, s_t0)
        a.e("s_and_b32 s%d, s%d, 3", s_rot, s_rot)
    if "norot" in exp: a.e("s_mov_b32 s%d, 0", s_rot)
    a.e("v_lshlrev_b32 v%d, 4, v%d", v_l16, v_lane)
    a.e("v_lshrrev_b32 v%d, 5, v%d", v_hf, v_lane)
    a.e("v_bfe_u32 v%d, v%d, 2, 2", v_t, v_lane)
    a.e("s_movk_i32 s%d, %d", s_t0, ROW)
    a.e("v_mul_lo_u32 v%d, v%d, s%d", v_wd, v_t, s_t0)
    a.e("v_lshrrev_b32 v%d, 4, v%d", v_t, v_lane)
    a.e("v_lshl_add_u32 v%d, v%d, 6, v%d", v_wd, v_t, v_wd)
    a.e("v_and_b32 v%d, 3, v%d", v_t, v_lane)
    a.e("v_lshl_add_u32 v%d, v%d, 4, v%d", v_wd, v_t, v_wd)
    a.e("v_lshlrev_b32 v%d, 10, v%d", v_tr, v_hf)
    a.e("v_bfe_u32 v%d, v%d, 2, 2", v_t, v_lane)
    a.e("v_lshl_add_u32 v%d, v%d, 6, v%d", v_tr, v_t, v_tr)
    a.e("v_bfe_u32 v%d, v%d, 4, 1", v_t, v_lane)
    a.e("v_lshl_add_u32 v%d, v%d, 5, v%d", v_tr, v_t, v_tr)
    a.e("v_and_b32 v%d, 3, v%d", v_t, v_lane)
    a.e("v_lshl_add_u32 v%d, v%d, 3, v%d", v_tr, v_t, v_tr)
    a.e("v_add_u32 v%d, 0x10000, v%d", v_tr2, v_tr)
    a.e("s_waitcnt lgkmcnt(0)")
    if not proj:
        a.e("s_mov_b32 s12, s6"); a.e("s_mov_b32 s13, s7")
        srd(a, S_B, S_B, 1792 * 2)
    srd(a, S_W, S_W, (4096 if proj else 512) * ROW); srd(a, S_WS, S_WS, WS_BYTES)
    if fr: srd(a, S_X, S_X, 2 << 20)
    SC1 = " sc1" if (fr or cont) else ""
    def flag_store(base, val, v1):
        a.e("s_lshl_b32 s%d, s2, 7", s_t2)
        a.e("s_add_u32 s%d, s%d, 0x%x", s_t2, s_t2, base)
        a.e("v_mov_b32 v%d, %d", v1, val)
        a.e("s_mov_b64 exec, 1")
        a.e("buffer_store_dword v%d, off, s[%d:%d], s%d sc1", v1, S_WS, S_WS + 3, s_t2)
        a.e("s_mov_b64 exec, -1")
    if proj and "clr2" in exp:
        l_ = a.newlabel("Lclr")
        a.e("s_cmp_lg_u32 s%d, 0", s_w); a.e("s_cbranch_scc1 %s", l_)
        a.e("s_cmp_lg_u32 s%d, 1", s_isL); a.e("s_cbranch_scc1 %s", l_)
        flag_store(WS_FLAG2, 0, v_t)
        flag_store(WS_FLAG3, 0, v_t)
        a.label(l_)
    a.e("s_lshl_b32 s%d, s%d, 2", s_qb, s_rt)
    a.e("s_add_u32 s%d, s%d, s%d", s_qb, s_qb, s_w)
    if proj:
        a.e("s_lshl_b32 s%d, s%d, 18", s_ab, s_qb)
        a.e("s_lshl_b32 s%d, s%d, 16", s_t0, s_ksq)
        a.e("s_add_u32 s%d, s%d, s%d", s_ab, s_ab, s_t0)
        a.e("s_add_u32 s%d, s%d, 0x%x", s_ab, s_ab, WS_CTX)
        a.e("s_lshl_b32 s%d, s%d, 20", s_wb, s_ksq)
    else:
        a.e("s_lshl_b32 s%d, s%d, 15", s_ab, s_qb)
        a.e("s_add_u32 s%d, s%d, 0x%x", s_ab, s_ab, WS_HN)
        a.e("s_mov_b32 s%d, 0", s_wb)
    a.e("s_mul_i32 s%d, s%d, %d", s_t0, s_w, 4 * ROW)
    a.e("s_add_u32 s%d, s%d, s%d", s_wb, s_wb, s_t0)
    a.e("s_lshl_b32 s%d, s%d, 8", s_t0, s_ct)
    a.e("s_add_u32 s%d, s%d, s%d", s_wb, s_wb, s_t0)
    a.e("s_lshl_b32 s%d, s%d, 10", s_m0, s_w)

    def phase_head(p, dst_w, dst_a):
        a.e("s_add_u32 s%d, s%d, %d", s_ph, s_rot, p)
        a.e("s_and_b32 s%d, s%d, %d", s_ph, s_ph, NPH - 1)
        if dst_w is not None:
            a.e("s_mul_i32 s%d, s%d, %d", dst_w, s_ph, 128 * ROW)
            a.e("s_add_u32 s%d, s%d, s%d", dst_w, dst_w, s_wb)
        if dst_a is not None:
            a.e("s_lshl_b32 s%d, s%d, 13", dst_a, s_ph)
            a.e("s_add_u32 s%d, s%d, s%d", dst_a, dst_a, s_ab)
    def w_loads(p, cnt):
        phase_head(p, s_t1, None)
        if "whit" in exp: a.e("s_mov_b32 s%d, 0", s_t1)
        for i in range(8):
            a.e("s_add_u32 m0, s%d, %d", s_m0, (p & 3) * 32768 + i * 4096)
            a.e("s_add_u32 s%d, s%d, %d", s_t0, s_t1, i * 16 * ROW)
            a.e("buffer_load_dwordx4 v%d, s[%d:%d], s%d offen lds", v_wd, S_W, S_W + 3, s_t0)
            cnt.issue(("w", p))
    def a_loads(p):
        L = []
        for i in range(8):
            def em(i=i):
                if i == 0:
                    phase_head(p, None, s_t2)
                    if "ahit" in exp: a.e("s_mov_b32 s%d, 0x%x", s_t2, WS_CTX)
                r = AF + ((p & 3) * 8 + i) * 4
                if i == 4: a.e("s_add_u32 s%d, s%d, 4096", s_t2, s_t2)
                a.e("buffer_load_dwordx4 v[%d:%d], v%d, s[%d:%d], s%d offen offset:%d%s", r, r + 3, v_l16, S_WS, S_WS + 3, s_t2, (i & 3) * 1024, SC1)
                vm.issue(("a", p))
            L.append(em)
        return L
    def red_part():
        PR, XR, A, F, H = 64, 96, 104, 120, 128
        v_r, v_h2, v_g, v_u, v_x = 9, 10, 11, 12, 13
        SCR = LDS_B + 256
        s_rb, s_r0 = 44, 45
        a.e("s_lshr_b32 s%d, s2, 2", s_rb)
        a.e("s_and_b32 s%d, s2, 3", s_r0)
        a.e("s_lshl_b32 s%d, s%d, 3", s_r0, s_r0)
        a.e("v_and_b32 v%d, 7, v%d", v_r, v_lane)
        a.e("v_bfe_u32 v%d, v%d, 3, 1", v_h2, v_lane)
        a.e("v_lshrrev_b32 v%d, 4, v%d", v_g, v_lane)
        a.e("s_lshl_b32 s%d, s%d, 3", s_t0, s_w)
        a.e("v_add_u32 v%d, s%d, v%d", v_g, s_t0, v_g)
        a.e("v_add_u32 v%d, s%d, v%d", v_t, s_r0, v_r)
        a.e("v_lshlrev_b32 v%d, 4, v%d", v_u, v_t)
        a.e("v_lshl_add_u32 v%d, v%d, 9, v%d", v_u, v_h2, v_u)
        a.e("v_lshl_add_u32 v%d, v%d, 10, v%d", v_u, v_g, v_u)
        a.e("v_lshlrev_b32 v%d, 10, v%d", v_x, v_t)
        a.e("v_lshl_add_u32 v%d, v%d, 5, v%d", v_x, v_g, v_x)
        a.e("v_lshl_add_u32 v%d, v%d, 3, v%d", v_x, v_h2, v_x)
        a.e("s_lshl_b32 s%d, s%d, 15", s_rb, s_rb)
        if cont:
            for u in range(2):
                a.e("buffer_load_dwordx2 v[%d:%d], v%d, s[%d:%d], s%d offen offset:%d", XR + 4 * u, XR + 4 * u + 1, v_x, S_X, S_X + 3, s_rb, u * 128)
                a.e("buffer_load_dwordx2 v[%d:%d], v%d, s[%d:%d], s%d offen offset:%d", XR + 4 * u + 2, XR + 4 * u + 3, v_x, S_X, S_X + 3, s_rb, u * 128 + 16)
            ok1, sp1 = a.newlabel("Lfok"), a.newlabel("Lfsp")
            a.e("v_and_b32 v%d, 3, v%d", F, v_lane)
            a.e("v_lshlrev_b32 v%d, 3, v%d", F, F)
            a.e("v_bfe_u32 v%d, v%d, 2, 2", F + 1, v_lane)
            a.e("v_lshl_add_u32 v%d, v%d, 1, v%d", F, F + 1, F)
            a.e("s_lshr_b32 s%d, s2, 4", s_t0)
            a.e("s_and_b32 s%d, s%d, 7", s_t1, s_t0)
            a.e("s_lshl_b32 s%d, s%d, 5", s_t1, s_t1)
            a.e("s_lshr_b32 s%d, s%d, 3", s_t0, s_t0)
            a.e("s_add_u32 s%d, s%d, s%d", s_t0, s_t0, s_t1)
            a.e("v_add_u32 v%d, s%d, v%d", F, s_t0, F)
            a.e("v_lshlrev_b32 v%d, 7, v%d", F, F)
            a.e("s_mov_b32 s%d, 0x%x", s_t2, WS_FLAG1)
            poll_flags(a, F, F + 1, F + 2, S_WS, s_t2, 47, "dblpoll" in exp)
        a.e("s_add_u32 s%d, s%d, 0x%x", s_t1, s_rb, WS_P)
        for p in range(4):
            for u in range(2):
                r = PR + (p * 2 + u) * 4
                a.e("s_add_u32 s%d, s%d, %d", s_t0, s_t1, u * 4096)
                a.e("buffer_load_dwordx4 v[%d:%d], v%d, s[%d:%d], s%d offen%s", r, r + 3, v_u, S_WS, S_WS + 3, s_t0, " sc1" if cont else "")
            if p < 3: a.e("s_add_u32 s%d, s%d, 0x%x", s_t1, s_t1, 64 * 32768)
        if not cont:
            for u in range(2):
                a.e("buffer_load_dwordx2 v[%d:%d], v%d, s[%d:%d], s%d offen offset:%d", XR + 4 * u, XR + 4 * u + 1, v_x, S_X, S_X + 3, s_rb, u * 128)
                a.e("buffer_load_dwordx2 v[%d:%d], v%d, s[%d:%d], s%d offen offset:%d", XR + 4 * u + 2, XR + 4 * u + 3, v_x, S_X, S_X + 3, s_rb, u * 128 + 16)
        a.e("s_barrier")
        st.mark()
        def unpack(src, dst):
            for i in range(4):
                a.e("v_lshlrev_b32 v%d, 16, v%d", dst + 2 * i, src + i)
                a.e("v_and_b32 v%d, 0xffff0000, v%d", dst + 2 * i + 1, src + i)
        NX = 0 if cont else 4
        a.e("s_waitcnt vmcnt(%d)", 6 + NX)
        unpack(PR, A); unpack(PR + 4, A + 8)
        for p in range(1, 4):
            a.e("s_waitcnt vmcnt(%d)", 6 + NX - 2 * p)
            for u in range(2):
                unpack(PR + (p * 2 + u) * 4, F)
                for e in range(8): a.e("v_add_f32 v%d, v%d, v%d", A + u * 8 + e, A + u * 8 + e, F + e)
        a.e("s_waitcnt vmcnt(0)")
        for u in range(2):
            unpack(XR + 4 * u, F)
            for e in range(8): a.e("v_add_f32 v%d, v%d, v%d", A + u * 8 + e, A + u * 8 + e, F + e)
        for i in range(8): a.e("v_cvt_pk_bf16_f32 v%d, v%d, v%d", H + i, A + 2 * i, A + 2 * i + 1)
        a.e("s_add_u32 s%d, s%d, 0x%x", s_t1, s_rb, WS_H)
        a.e("s_add_u32 s%d, s%d, 4096", s_t0, s_t1)
        a.e("buffer_store_dwordx4 v[%d:%d], v%d, s[%d:%d], s%d offen", H, H + 3, v_u, S_WS, S_WS + 3, s_t1)
        a.e("buffer_store_dwordx4 v[%d:%d], v%d, s[%d:%d], s%d offen", H + 4, H + 7, v_u, S_WS, S_WS + 3, s_t0)
        unpack(H, A); unpack(H + 4, A + 8)
        def rowreduce(r, slot):
            a.e("s_nop 1")
            a.e("v_add_f32_dpp v%d, v%d, v%d row_ror:8 row_mask:0xf bank_mask:0xf", r, r, r)
            a.e("v_mov_b32 v%d, v%d", F, r)
            a.e("s_nop 1")
            a.e("v_permlane16_swap_b32 v%d, v%d", r, F)
            a.e("s_nop 1")
            a.e("v_add_f32 v%d, v%d, v%d", r, r, F)
            a.e("v_mov_b32 v%d, v%d", F, r)
            a.e("s_nop 1")
            a.e("v_permlane32_swap_b32 v%d, v%d", r, F)
            a.e("s_nop 1")
            a.e("v_add_f32 v%d, v%d, v%d", r, r, F)
            a.e("v_lshlrev_b32 v%d, 4, v%d", F, v_r)
            a.e("v_add_u32 v%d, %d, v%d", F, SCR + slot * 128, F)
            a.e("s_lshl_b32 s%d, s%d, 2", s_t1, s_w)
            a.e("v_add_u32 v%d, s%d, v%d", F + 1, s_t1, F)
            a.e("ds_write_b32 v%d, v%d", F + 1, r)
            a.e("s_waitcnt lgkmcnt(0)")
            a.e("s_barrier")
            a.e("ds_read_b128 v[%d:%d], v%d", F + 4, F + 7, F)
            a.e("s_waitcnt lgkmcnt(0)")
            a.e("v_add_f32 v%d, v%d, v%d", r, F + 4, F + 5)
            a.e("v_add_f32 v%d, v%d, v%d", r, r, F + 6)
            a.e("v_add_f32 v%d, v%d, v%d", r, r, F + 7)
        M, V2 = 136, 137
        a.e("v_add_f32 v%d, v%d, v%d", M, A, A + 1)
        for e in range(2, 16): a.e("v_add_f32 v%d, v%d, v%d", M, M, A + e)
        rowreduce(M, 0)
        a.e("v_mul_f32 v%d, 0x3b000000, v%d", M, M)
        for e in range(16): a.e("v_sub_f32 v%d, v%d, v%d", A + e, A + e, M)
        a.e("v_mul_f32 v%d, v%d, v%d", V2, A, A)
        for e in range(1, 16): a.e("v_fmac_f32 v%d, v%d, v%d", V2, A + e, A + e)
        rowreduce(V2, 1)
        a.e("v_mov_b32 v%d, 0x3727c5ac", M)
        a.e("v_fmac_f32 v%d, 0x3b000000, v%d", M, V2)
        a.e("v_rsq_f32 v%d, v%d", M, M)
        a.e("s_nop 0")
        for e in range(16): a.e("v_mul_f32 v%d, v%d, v%d", A + e, A + e, M)
        HN = 140
        for i in range(8): a.e("v_cvt_pk_bf16_f32 v%d, v%d, v%d", HN + i, A + 2 * i, A + 2 * i + 1)
        a.e("s_add_u32 s%d, s%d, 0x%x", s_t1, s_rb, WS_HN)
        a.e("s_add_u32 s%d, s%d, 4096", s_t0, s_t1)
        a.e("buffer_store_dwordx4 v[%d:%d], v%d, s[%d:%d], s%d offen", HN, HN + 3, v_u, S_WS, S_WS + 3, s_t1)
        a.e("buffer_store_dwordx4 v[%d:%d], v%d, s[%d:%d], s%d offen", HN + 4, HN + 7, v_u, S_WS, S_WS + 3, s_t0)
        a.e("s_waitcnt vmcnt(0)")
        a.e("s_barrier")
        l_ = a.newlabel("Lfl")
        a.e("s_cmp_lg_u32 s%d, 0", s_w); a.e("s_cbranch_scc1 %s", l_)
        flag_store(WS_FLAG2, 1, F)
        a.label(l_)
        a.e("s_cmp_ge_u32 s2, 224")
        a.e("s_cbranch_scc1 %s", LT1 if t2 else name + "_end")
        st.mark()
        ok, sp = a.newlabel("Lfok"), a.newlabel("Lfsp")
        a.e("v_and_b32 v%d, 15, v%d", F, v_lane)
        a.e("v_lshlrev_b32 v%d, 7, v%d", F, F)
        a.e("s_lshl_b32 s%d, s%d, 11", s_t2, s_rt)
        a.e("s_add_u32 s%d, s%d, 0x%x", s_t2, s_t2, WS_FLAG2)
        poll_flags(a, F, F + 1, F + 2, S_WS, s_t2, s_r0, "dblpoll" in exp)
        if "fine" in exp: st.mark()
    LC = name + "_compute"
    a.e("s_cmp_eq_u32 s%d, 0", s_isL)
    a.e("s_cbranch_scc1 %s", LC)
    vl = Cnt(a, "vmcnt", 63)
    if fr:
        lt = a.newlabel("Ltile")
        a.e("s_cmp_lt_u32 s2, 224"); a.e("s_cbranch_scc1 %s", lt)
        for _ in range(4): a.e("s_barrier")
        if t2: a.e("s_branch %s", LT1)
        else: a.e("s_endpgm")
        a.label(lt)
        if not cont: a.e("s_barrier")
    w_loads(0, vl)
    if not proj:
        a.e("v_lshlrev_b32 v%d, 2, v%d", v_t, v_lane)
        a.e("s_lshl_b32 s%d, s%d, 8", s_t0, s_ct)
        a.e("s_mov_b32 m0, %d", LDS_B)
        a.e("s_nop 0")
        a.e("buffer_load_dword v%d, s[%d:%d], s%d offen lds", v_t, S_B, S_B + 3, s_t0)
        vl.issue("b")
    if fr:
        w_loads(1, vl)
        if cont and "w2first" in exp: w_loads(2, vl)
        if cont and "w3first" in exp: w_loads(2, vl); w_loads(3, vl)
        if cont: a.e("s_barrier")
        a.e("s_barrier"); a.e("s_barrier")
        if cont and "w3first" in exp:
            a.e("s_barrier")
        elif cont and "w2first" in exp:
            a.e("s_barrier")
            w_loads(3, vl)
        elif "wmid" in exp:
            w_loads(2, vl)
            a.e("s_barrier")
            w_loads(3, vl)
        elif "wlate" in exp:
            a.e("s_barrier")
            w_loads(2, vl); w_loads(3, vl)
        else:
            w_loads(2, vl); w_loads(3, vl)
            a.e("s_barrier")
    nxt = NPH if fr else 1
    if proj and cont and "winit3" in exp:
        w_loads(1, vl); w_loads(2, vl); nxt = 3
    for p in range(NPH):
        if fr and "strict" in exp: vl.wait([("w", 0), "b"] if p == 0 else [("w", p)])
        else: vl.wait([("w", 0), "b"] if p == 0 else ([("w", 1)] if p == 1 else [("w", p), ("w", min(p + 1, NPH - 1))]))
        a.e("s_barrier")
        upto = 2 if p == 0 else min(p + 3, NPH - 1)
        while nxt <= min(upto, NPH - 1):
            w_loads(nxt, vl); nxt += 1
        if "pf" in exp and proj and p == NPH - 4:
            a.e("s_lshr_b32 s34, s2, 3")
            for ins in l2_prefetch(a, (B_W1, 1792 * 1024), 1792 * 1024, 32, 4, 34, s_w, 36, 35, s_t1, v_l16, 64):
                a.e(ins)
                if ins.startswith("buffer"): vl.issue("pf")
        if "pf" in exp and not proj:
            PFAT = NPH - 1 if "pflast" in exp else 1
            if p == PFAT or ("pfspread" in exp and p == 1):
                a.e("s_lshr_b32 s34, s2, 3")
                pfl = l2_prefetch(a, (B_W2, 1792 * 1024), 1792 * 1024, 28, 4, 34, s_w, 36, 35, s_t1, v_l16, 64)
            if "pfspread" in exp:
                if p >= 1:
                    n_ = 0
                    while pfl and (n_ < 4 or p == NPH - 1):
                        ins = pfl.pop(0); a.e(ins)
                        if ins.startswith("buffer"): vl.issue("pf"); n_ += 1
            elif p == PFAT:
                for ins in pfl:
                    a.e(ins)
                    if ins.startswith("buffer"): vl.issue("pf")
    if "cpnext" in exp and not t2 and not chain:
        l_ = a.newlabel("Lcp")
        a.e("s_cmp_lg_u32 s%d, 0", s_w); a.e("s_cbranch_scc1 %s", l_)
        nxt_k = ("redffn1_kernel" if proj else "ffn2_kernel")
        code_prefetch(a, None, nxt_k, nxt_k + "_end", 36, s_t0, v_lane, v_t, 64)
        a.label(l_)
    if t2: a.e("s_branch %s", LT1)
    elif chain: a.e("s_branch %s", LT0)
    else: a.e("s_endpgm")
    a.label(LC)
    if "prio" in exp: a.e("s_setprio 1")
    if fr: red_part()
    if proj and cont:
        okc, spc = a.newlabel("Lfok"), a.newlabel("Lfsp")
        a.e("s_sub_u32 s%d, 15, s%d", s_t0, s_rt)
        a.e("s_min_u32 s%d, s%d, s%d", s_t0, s_t0, s_rt)
        a.e("s_lshl_b32 s%d, s%d, 5", s_t0, s_t0)
        a.e("s_lshl_b32 s%d, s%d, 3", s_t1, s_ksq)
        a.e("s_add_u32 s%d, s%d, s%d", s_t0, s_t0, s_t1)
        a.e("v_and_b32 v%d, 7, v%d", 9, v_lane)
        a.e("v_add_u32 v%d, s%d, v%d", 9, s_t0, 9)
        a.e("v_lshlrev_b32 v%d, 7, v%d", 9, 9)
        a.e("s_mov_b32 s%d, 0x%x", s_t2, WS_FLAGC)
        poll_flags(a, 9, 10, 11, S_WS, s_t2, 47, "dblpoll" in exp)
    ALLA = fr and "alla" in exp
    for em in a_loads(0): em()
    if ALLA:
        for p_ in range(1, NPH):
            for em in a_loads(p_): em()
    if not fr: st.mark()
    EOV = "epiov" in exp
    frs = []
    for p in range(NPH):
        if EOV and p == NPH - 1: frs += [(p, j, cb) for cb in range(4) for j in range(8)]
        else: frs += [(p, j, cb) for j in range(8) for cb in range(4)]
    def w_read(gi):
        p, j, cb = frs[gi]
        r = WFR + (gi % NRW) * 4
        for t in range(2):
            off = (p & 3) * 32768 + (4 * j + 2 * t) * 1024 + cb * 256
            a.e("ds_read_b64_tr_b16 v[%d:%d], v%d offset:%d", r + 2 * t, r + 2 * t + 1, v_tr if off < 65536 else v_tr2, off & 0xffff)
            lg.issue(("w", gi))
    s_e0, s_e1 = 48, 49
    def epi_addr():
        if proj:
            a.e("s_lshl_b32 s%d, s%d, 6", s_e0, s_ksq)
            a.e("s_add_u32 s%d, s%d, s%d", s_e0, s_e0, s_qb)
            a.e("s_lshl_b32 s%d, s%d, 15", s_e0, s_e0)
            a.e("s_lshl_b32 s%d, s%d, 13", s_e1, s_ct)
            a.e("s_add_u32 s%d, s%d, s%d", s_e0, s_e0, s_e1)
            a.e("s_add_u32 s%d, s%d, 0x%x", s_e0, s_e0, WS_P)
        else:
            a.e("s_mul_i32 s%d, s%d, %d", s_e0, s_qb, 112 * 1024)
            a.e("s_lshl_b32 s%d, s%d, 13", s_e1, s_ct)
            a.e("s_add_u32 s%d, s%d, s%d", s_e0, s_e0, s_e1)
            a.e("s_add_u32 s%d, s%d, 0x%x", s_e0, s_e0, WS_F)
        a.e("s_add_u32 s%d, s%d, 4096", s_e1, s_e0)
    BR = 128
    def bias_reads(cbs):
        a.e("v_lshlrev_b32 v%d, 3, v%d", v_t, v_hf)
        a.e("v_add_u32 v%d, %d, v%d", v_t, LDS_B, v_t)
        for cb in cbs:
            for i in range(4):
                r = BR + (cb * 4 + i) * 2
                a.e("ds_read_b64 v[%d:%d], v%d offset:%d", r, r + 1, v_t, cb * 64 + i * 16)
                lg.issue("bias")
        lg.wait("bias")
    def epi_items(cb):
        L = []
        for hz in range(2):
            base = ACC + cb * 16 + hz * 8
            if not proj:
                for ii in range(2):
                    r = BR + (cb * 4 + hz * 2 + ii) * 2
                    T = 176
                    L.append("v_lshlrev_b32 v%d, 16, v%d" % (T, r))
                    L.append("v_and_b32 v%d, 0xffff0000, v%d" % (T + 1, r))
                    L.append("v_lshlrev_b32 v%d, 16, v%d" % (T + 2, r + 1))
                    L.append("v_and_b32 v%d, 0xffff0000, v%d" % (T + 3, r + 1))
                    for j in range(4):
                        L.append("v_add_f32 v%d, v%d, v%d" % (base + ii * 4 + j, base + ii * 4 + j, T + j))
                for e in range(8): L.append("v_max_f32 v%d, 0, v%d" % (base + e, base + e))
                for e in range(8): L.append("v_mul_f32 v%d, v%d, v%d" % (base + e, base + e, base + e))
            for i in range(4):
                L.append("v_cvt_pk_bf16_f32 v%d, v%d, v%d" % (base + i, base + 2 * i, base + 2 * i + 1))
            ds = 2 * cb + hz
            L.append("buffer_store_dwordx4 v[%d:%d], v%d, s[%d:%d], s%d offen offset:%d" % (base, base + 3, v_l16, S_WS, S_WS + 3,
                     s_e0 if ds < 4 else s_e1, (ds & 3) * 1024))
        return L
    PRE = NRW - 1
    pend = []
    nread = 0
    eq = []
    for gi, (p, j, cb) in enumerate(frs):
        k = gi % 32
        if k == 0:
            a.e("s_barrier")
            if (p == 0 and not fr) or (fr and "fine" in exp and p in (0, 1, 2)): st.mark()
            pend = [] if ALLA else ((a_loads(1) if p == 0 else []) + (a_loads(p + 2) if p + 2 < NPH else []))
            if EOV and p == NPH - 1: epi_addr()
            if EOV and not proj and p in (1, 2):
                lg.waitall()
                bias_reads([0, 1] if p == 1 else [2, 3])
        lim = 32 * (p + 1) if (p <= 1 or (fr and "strict" in exp)) else len(frs)
        while nread < min(gi + PRE + 1, lim, len(frs)):
            w_read(nread); nread += 1
        if k == 0: vm.wait(("a", p))
        if fr and "fine" in exp and gi == 0: st.mark()
        if gi % 2 == 0: lg.wait([("w", gi), ("w", gi + 1)])
        wf = WFR + (gi % NRW) * 4
        d = ACC + cb * 16
        af = AF + ((p & 3) * 8 + j) * 4
        c = "0" if gi < 4 else "v[%d:%d]" % (d, d + 15)
        a.e("v_mfma_f32_32x32x16_bf16 v[%d:%d], v[%d:%d], v[%d:%d], %s", d, d + 15, wf, wf + 3, af, af + 3, c)
        if pend and (k % 3 == 2 or (p == 0 and k % 3 != 0) or (p == 0 and k < 12)): pend.pop(0)()
        if EOV and p == NPH - 1:
            if k % 8 == 3 and k >= 8: eq += ["s_nop 3"] + epi_items(k // 8 - 1)
            n_ = 0
            while eq and n_ < (3 if proj else 12): a.e(eq.pop(0)); n_ += 1
    st.mark()
    if EOV:
        for ins in eq: a.e(ins)
        a.e("s_nop 7"); a.e("s_nop 3")
        for ins in epi_items(3): a.e(ins)
    else:
        a.e("s_nop 7")
        epi_addr()
        if not proj:
            lg.waitall()
            bias_reads([0, 1]); bias_reads([2, 3])
        a.e("s_nop 3")
        for cb in range(4):
            for ins in epi_items(cb): a.e(ins)
    if diag:
        a.e("s_waitcnt vmcnt(0)")
        st.mark()
        st.dump(S_WS, s_w, 10, s_t2)
    if t2:
        a.e("s_waitcnt vmcnt(0)")
        a.label(LT1)
        if "prio" in exp: a.e("s_setprio 0")
        a.e("s_barrier")
        l_ = a.newlabel("Lf3")
        a.e("s_cmp_lg_u32 s%d, 0", S_WAVE); a.e("s_cbranch_scc1 %s", l_)
        a.e("s_cmp_ge_u32 s2, 224"); a.e("s_cbranch_scc1 %s", l_)
        flag_store(WS_FLAG3, 1, v_t)
        a.label(l_)
        gen_k35(a, "ffn2", name + "_ffn2", 4, diag=diag, exp=exp5, s_wave_in=S_WAVE)
    if chain:
        a.e("s_waitcnt vmcnt(0)")
        a.label(LT0)
        if "prio" in exp: a.e("s_setprio 0")
        a.e("s_barrier")
        l_ = a.newlabel("Lf1")
        a.e("s_cmp_lg_u32 s%d, 0", S_WAVE); a.e("s_cbranch_scc1 %s", l_)
        flag_store(WS_FLAG1, 1, v_t)
        a.label(l_)
        chain()
    if not cont: a.label(name + "_end")
    a.e("s_endpgm")


def gen_red(a, name, kidx, diag=False, exp=""):
    kernel_begin(a, name)
    st = Stamps(a, diag, kidx, base=56, maxn=10)
    S_X, S_WS = 4, 8
    s_w, s_t0, s_t1, s_qb, s_r0 = 12, 13, 14, 15, 16
    v_lane, v_r, v_hf, v_g, v_u, v_t = 0, 1, 2, 3, 4, 5
    PR, XR, A, F = 16, 32, 40, 48
    a.e("s_cmp_ge_u32 s2, 256")
    a.e("s_cbranch_scc1 %s_end", name)
    st.mark()
    a.e("s_load_dwordx2 s[4:5], s[0:1], %d", A_X)
    a.e("s_load_dwordx2 s[8:9], s[0:1], %d", WS)
    a.e("v_lshrrev_b32 v%d, 6, v0", v_t)
    a.e("v_and_b32 v%d, 63, v0", v_lane)
    a.e("v_readfirstlane_b32 s%d, v%d", s_w, v_t)
    a.e("s_lshr_b32 s%d, s2, 2", s_qb)
    a.e("s_and_b32 s%d, s2, 3", s_r0)
    a.e("s_lshl_b32 s%d, s%d, 3", s_r0, s_r0)
    a.e("v_and_b32 v%d, 7, v%d", v_r, v_lane)
    a.e("v_bfe_u32 v%d, v%d, 3, 1", v_hf, v_lane)
    a.e("v_lshrrev_b32 v%d, 4, v%d", v_g, v_lane)
    a.e("s_lshl_b32 s%d, s%d, 2", s_t0, s_w)
    a.e("v_add_u32 v%d, s%d, v%d", v_g, s_t0, v_g)
    a.e("v_add_u32 v%d, s%d, v%d", v_t, s_r0, v_r)
    a.e("v_lshlrev_b32 v%d, 4, v%d", v_u, v_t)
    a.e("v_lshl_add_u32 v%d, v%d, 9, v%d", v_u, v_hf, v_u)
    a.e("v_lshl_add_u32 v%d, v%d, 10, v%d", v_u, v_g, v_u)
    a.e("v_lshlrev_b32 v%d, 10, v%d", v_t + 1, v_t)
    a.e("v_lshl_add_u32 v%d, v%d, 5, v%d", v_t + 1, v_g, v_t + 1)
    a.e("v_lshl_add_u32 v%d, v%d, 3, v%d", v_t + 1, v_hf, v_t + 1)
    a.e("s_waitcnt lgkmcnt(0)")
    srd(a, S_X, S_X, 2 << 20); srd(a, S_WS, S_WS, WS_BYTES)
    a.e("s_lshl_b32 s%d, s%d, 15", s_t0, s_qb)
    a.e("s_add_u32 s%d, s%d, 0x%x", s_t1, s_t0, WS_P)
    for p in range(4):
        a.e("buffer_load_dwordx4 v[%d:%d], v%d, s[%d:%d], s%d offen", PR + 4 * p, PR + 4 * p + 3, v_u, S_WS, S_WS + 3, s_t1)
        if p < 3: a.e("s_add_u32 s%d, s%d, 0x%x", s_t1, s_t1, 64 * 32768)
    a.e("buffer_load_dwordx2 v[%d:%d], v%d, s[%d:%d], s%d offen", XR, XR + 1, v_t + 1, S_X, S_X + 3, s_t0)
    a.e("buffer_load_dwordx2 v[%d:%d], v%d, s[%d:%d], s%d offen offset:16", XR + 2, XR + 3, v_t + 1, S_X, S_X + 3, s_t0)
    if "pf" in exp:
        a.e("v_lshlrev_b32 v12, 4, v%d", v_lane)
        a.e("s_lshr_b32 s20, s2, 3")
        for ins in l2_prefetch(a, (B_W1, 1792 * 1024), 1792 * 1024, 32, 8, 20, s_w, 24, 21, 22, 12, 64 - 16 + 16): a.e(ins)
    st.mark()
    def unpack(src, dst):
        for i in range(4):
            a.e("v_lshlrev_b32 v%d, 16, v%d", dst + 2 * i, src + i)
            a.e("v_and_b32 v%d, 0xffff0000, v%d", dst + 2 * i + 1, src + i)
    NPF = 7 if "pf" in exp else 0
    a.e("s_waitcnt vmcnt(%d)", 5 + NPF)
    unpack(PR, A)
    for p in range(1, 4):
        a.e("s_waitcnt vmcnt(%d)", 5 - p + NPF)
        unpack(PR + 4 * p, F)
        for e in range(8): a.e("v_add_f32 v%d, v%d, v%d", A + e, A + e, F + e)
    a.e("s_waitcnt vmcnt(%d)", NPF)
    unpack(XR, F)
    for e in range(8): a.e("v_add_f32 v%d, v%d, v%d", A + e, A + e, F + e)
    H = 56
    for i in range(4): a.e("v_cvt_pk_bf16_f32 v%d, v%d, v%d", H + i, A + 2 * i, A + 2 * i + 1)
    a.e("s_add_u32 s%d, s%d, 0x%x", s_t1, s_t0, WS_H)
    a.e("buffer_store_dwordx4 v[%d:%d], v%d, s[%d:%d], s%d offen", H, H + 3, v_u, S_WS, S_WS + 3, s_t1)
    unpack(H, A)
    def rowreduce(r, slot):
        a.e("s_nop 1")
        a.e("v_add_f32_dpp v%d, v%d, v%d row_ror:8 row_mask:0xf bank_mask:0xf", r, r, r)
        a.e("v_mov_b32 v%d, v%d", F, r)
        a.e("s_nop 1")
        a.e("v_permlane16_swap_b32 v%d, v%d", r, F)
        a.e("s_nop 1")
        a.e("v_add_f32 v%d, v%d, v%d", r, r, F)
        a.e("v_mov_b32 v%d, v%d", F, r)
        a.e("s_nop 1")
        a.e("v_permlane32_swap_b32 v%d, v%d", r, F)
        a.e("s_nop 1")
        a.e("v_add_f32 v%d, v%d, v%d", r, r, F)
        a.e("v_lshlrev_b32 v%d, 5, v%d", F, v_r)
        a.e("s_lshl_b32 s%d, s%d, 2", s_t1, s_w)
        a.e("v_add_u32 v%d, s%d, v%d", F + 1, s_t1, F)
        a.e("ds_write_b32 v%d, v%d offset:%d", F + 1, r, slot * 256)
        a.e("s_waitcnt lgkmcnt(0)")
        a.e("s_barrier")
        a.e("ds_read_b128 v[%d:%d], v%d offset:%d", F + 4, F + 7, F, slot * 256)
        a.e("ds_read_b128 v[%d:%d], v%d offset:%d", F + 8, F + 11, F, slot * 256 + 16)
        a.e("s_waitcnt lgkmcnt(0)")
        a.e("v_add_f32 v%d, v%d, v%d", r, F + 4, F + 5)
        for i in range(6, 12): a.e("v_add_f32 v%d, v%d, v%d", r, r, F + i)
    M, V2 = 60, 61
    a.e("v_add_f32 v%d, v%d, v%d", M, A, A + 1)
    for e in range(2, 8): a.e("v_add_f32 v%d, v%d, v%d", M, M, A + e)
    rowreduce(M, 0)
    a.e("v_mul_f32 v%d, 0x3b000000, v%d", M, M)
    for e in range(8): a.e("v_sub_f32 v%d, v%d, v%d", A + e, A + e, M)
    a.e("v_mul_f32 v%d, v%d, v%d", V2, A, A)
    for e in range(1, 8): a.e("v_fmac_f32 v%d, v%d, v%d", V2, A + e, A + e)
    rowreduce(V2, 1)
    a.e("v_mov_b32 v%d, 0x3727c5ac", M)
    a.e("v_fmac_f32 v%d, 0x3b000000, v%d", M, V2)
    a.e("v_rsq_f32 v%d, v%d", M, M)
    a.e("s_nop 0")
    for e in range(8): a.e("v_mul_f32 v%d, v%d, v%d", A + e, A + e, M)
    for i in range(4): a.e("v_cvt_pk_bf16_f32 v%d, v%d, v%d", H + i - 0, A + 2 * i, A + 2 * i + 1) if False else None
    HN = 32
    for i in range(4): a.e("v_cvt_pk_bf16_f32 v%d, v%d, v%d", HN + i, A + 2 * i, A + 2 * i + 1)
    a.e("s_add_u32 s%d, s%d, 0x%x", s_t1, s_t0, WS_HN)
    a.e("buffer_store_dwordx4 v[%d:%d], v%d, s[%d:%d], s%d offen", HN, HN + 3, v_u, S_WS, S_WS + 3, s_t1)
    if diag:
        a.e("s_waitcnt vmcnt(0)")
        st.mark()
        st.dump(S_WS, s_w, 10, s_t0)
    a.label(name + "_end")
    a.e("s_endpgm")
```

```python
from gen_common import *
import math, struct
QSCALE_BITS = struct.unpack('<I', struct.pack('<f', math.log2(math.e) / math.sqrt(128.0)))[0]
import gen_common

def gen_k1(a, name="kv_kernel", diag=False, exp="", fused=None):
    kernel_begin(a, name)
    st = Stamps(a, diag, 0) if fused is None else Stamps(a, diag, 0, base=76, maxn=6)
    vm = Cnt(a, "vmcnt", 63); lg = Cnt(a, "lgkmcnt", 15)
    k2, H = None, None
    if fused is not None:
        k2 = fused(vm, lg, st)
        H = next(k2)
    mark = st.mark if fused is None else (lambda: None)
    S_X, S_C, S_WUK, S_WUV, S_W1, S_WS = 4, 8, 12, 16, 20, 24
    s_h, s_j, s_w, s_t0, s_t1, s_t2, s_kk0, s_wof, s_kst, s_vst, s_oct = 28, 29, 30, 31, 32, 33, 34, 35, 36, 37, 38
    s_c0, s_wm0, s_cm0, s_t3 = 39, 40, 41, 42
    s_cp = 62
    v_lane, v_wdma, v_cdE, v_cdO, v_trE, v_trO, v_cr0, v_cr1, v_kst, v_vst, v_t = 0, 1, 2, 3, 4, 5, 6, 7, 8, 9, 10
    WF, NRING = 12, 5
    ACCA, ACCB, CF = 32, 96, 128
    LDS_W, LDS_C, LDS_SCR = 0, 65536, 131072
    T = ACCB

    a.e("s_cmp_ge_u32 s2, 256")
    a.e("s_cbranch_scc1 %s_end", name)
    st.mark()
    a.e("s_load_dwordx4 s[4:7], s[0:1], %d", A_X)
    a.e("s_load_dwordx4 s[12:15], s[0:1], %d", A_WUK)
    a.e("s_load_dwordx2 s[24:25], s[0:1], %d", WS)
    a.e("s_load_dwordx2 s[20:21], s[0:1], %d", A_WQ)
    if fused is not None: a.e("s_load_dwordx2 s[%d:%d], s[0:1], %d", H["S_DBG"], H["S_DBG"] + 1, DBG)
    a.e("v_lshrrev_b32 v%d, 6, v0", v_t)
    a.e("v_mov_b32 v%d, v0", T + 31)
    a.e("v_readfirstlane_b32 s%d, v%d", s_w, v_t)
    a.e("v_and_b32 v%d, 63, v0", v_lane)
    v_x16, v_g = T + 29, T + 30
    a.e("v_and_b32 v%d, 15, v%d", v_x16, v_lane)
    a.e("v_lshrrev_b32 v%d, 4, v%d", v_g, v_lane)
    a.e("s_and_b32 s%d, s2, 31", s_h)
    if "hrot" in exp:
        a.e("s_add_u32 s%d, s%d, 3", s_h, s_h); a.e("s_and_b32 s%d, s%d, 31", s_h, s_h)
    a.e("s_lshr_b32 s%d, s2, 5", s_j)
    a.e("s_lshr_b32 s%d, s%d, 3", s_t0, s_h)
    a.e("s_lshl_b32 s%d, s%d, 1", s_t0, s_t0)
    a.e("s_add_u32 s%d, s%d, s%d", s_kk0, s_t0, s_j)
    a.e("s_and_b32 s%d, s%d, 7", s_kk0, s_kk0)
    if "norot" in exp: a.e("s_mov_b32 s%d, 0", s_kk0)
    if "rot2" in exp or "rot4" in exp:
        a.e("s_lshr_b32 s%d, s%d, 3", s_t0, s_h)
        a.e("s_add_u32 s%d, s%d, s%d", s_kk0, s_t0, s_j)
        if "rot2" in exp:
            a.e("s_and_b32 s%d, s%d, 1", s_kk0, s_kk0); a.e("s_lshl_b32 s%d, s%d, 2", s_kk0, s_kk0)
        else:
            a.e("s_and_b32 s%d, s%d, 3", s_kk0, s_kk0); a.e("s_lshl_b32 s%d, s%d, 1", s_kk0, s_kk0)
    a.e("v_bfe_u32 v%d, v%d, 2, 2", v_t, v_lane)
    a.e("v_bfe_u32 v%d, v%d, 4, 1", v_t + 1, v_lane)
    a.e("v_lshl_add_u32 v%d, v%d, 2, v%d", v_t, v_t + 1, v_t)
    a.e("v_lshlrev_b32 v%d, 13, v%d", v_t, v_t)
    a.e("s_and_b32 s%d, s%d, 1", s_t0, s_w)
    a.e("s_lshl_b32 s%d, s%d, 1", s_t0, s_t0)
    a.e("v_and_b32 v%d, 3, v%d", v_t + 1, v_lane)
    a.e("v_xor_b32 v%d, s%d, v%d", v_t + 1, s_t0, v_t + 1)
    a.e("v_lshrrev_b32 v%d, 5, v%d", v_wdma, v_lane)
    a.e("v_lshl_add_u32 v%d, v%d, 2, v%d", v_t + 1, v_wdma, v_t + 1)
    a.e("v_lshl_add_u32 v%d, v%d, 4, v%d", v_wdma, v_t + 1, v_t)
    a.e("v_lshrrev_b32 v%d, 3, v%d", v_t, v_lane)
    a.e("v_lshrrev_b32 v%d, 1, v%d", v_t + 1, v_t)
    a.e("v_and_b32 v%d, 7, v%d", v_cdE, v_lane)
    a.e("v_xor_b32 v%d, v%d, v%d", v_cdE, v_cdE, v_t + 1)
    a.e("v_lshlrev_b32 v%d, 4, v%d", v_cdE, v_cdE)
    a.e("v_lshl_add_u32 v%d, v%d, 10, v%d", v_cdE, v_t, v_cdE)
    a.e("v_xor_b32 v%d, 64, v%d", v_cdO, v_cdE)
    a.e("s_waitcnt lgkmcnt(0)")
    mark()
    a.e("s_mov_b32 s8, s6"); a.e("s_mov_b32 s9, s7")
    a.e("s_mov_b32 s16, s14"); a.e("s_mov_b32 s17, s15")
    srd(a, S_X, S_X, 2 << 20); srd(a, S_C, S_C, 2 << 20)
    srd(a, S_WUK, S_WUK, 4 << 20); srd(a, S_WUV, S_WUV, 4 << 20)
    srd(a, S_WS, S_WS, WS_BYTES); srd(a, S_W1, S_W1, 4 << 20)
    if fused is not None: srd(a, H["S_DBG"], H["S_DBG"], 256)
    a.e("s_lshl_b32 s%d, s%d, 16", s_wof, s_w)
    a.e("s_lshl_b32 s%d, s%d, 8", s_t0, s_h)
    a.e("s_add_u32 s%d, s%d, s%d", s_wof, s_wof, s_t0)
    a.e("s_lshl_b32 s%d, s%d, 10", s_wm0, s_w)
    a.e("s_lshl_b32 s%d, s%d, 18", s_c0, s_j)
    a.e("s_lshl_b32 s%d, s%d, 15", s_t0, s_w)
    a.e("s_add_u32 s%d, s%d, s%d", s_c0, s_c0, s_t0)
    a.e("s_lshl_b32 s%d, s%d, 13", s_cm0, s_w)
    a.e("s_add_u32 s%d, s%d, %d", s_cm0, s_cm0, LDS_C)

    def kk_of(i, dst):
        a.e("s_add_u32 s%d, s%d, %d", dst, s_kk0, i)
        a.e("s_and_b32 s%d, s%d, 7", dst, dst)
    def w_dma(step):
        slot = step & 3
        L = []
        for hf in range(2):
            if step < 8:
                S, kki, col = S_WUK, step, hf * 128
            else:
                cv = (step - 8) >> 2
                S, kki, col = S_WUV, 2 * ((step - 8) & 3) + hf, cv * 128
            def em(S=S, kki=kki, col=col, hf=hf):
                kk_of(kki, s_t0)
                a.e("s_lshl_b32 s%d, s%d, 19", s_t0, s_t0)
                a.e("s_add_u32 m0, s%d, %d", s_wm0, LDS_W + slot * 16384 + hf * 8192)
                a.e("s_add_u32 s%d, s%d, s%d", s_t0, s_t0, s_wof)
                if col: a.e("s_add_u32 s%d, s%d, %d", s_t0, s_t0, col)
                a.e("buffer_load_dwordx4 v%d, s[%d:%d], s%d offen lds", v_wdma, S, S + 3, s_t0)
                vm.issue(("W", step))
            L.append(em)
        return L
    def c_dma(step):
        slot = step & 1
        L = []
        for q in range(4):
            def em(q=q):
                if q == 0:
                    kk_of(step, s_t1)
                    a.e("s_lshl_b32 s%d, s%d, 7", s_t1, s_t1)
                    a.e("s_add_u32 s%d, s%d, s%d", s_t1, s_t1, s_c0)
                else:
                    a.e("s_add_u32 s%d, s%d, 8192", s_t1, s_t1)
                a.e("s_add_u32 m0, s%d, %d", s_cm0, slot * 4096 + q * 1024)
                a.e("s_nop 0")
                a.e("buffer_load_dwordx4 v%d, s[%d:%d], s%d offen lds", v_cdE if (q & 1) == 0 else v_cdO, S_C, S_C + 3, s_t1)
                vm.issue(("c", step))
            L.append(em)
        return L

    if "wpfk0" in exp:
        a.e("v_lshlrev_b32 v%d, 4, v%d", v_t + 1, v_lane)
        a.e("s_lshl_b32 s%d, s2, 14", s_t0)
        a.e("s_lshl_b32 s%d, s%d, 11", s_t1, s_w)
        a.e("s_add_u32 s%d, s%d, s%d", s_t0, s_t0, s_t1)
        a.e("s_mov_b32 m0, %d", LDS_SCR + 8192)
        for i in range(2):
            a.e("s_add_u32 s%d, s%d, %d", s_t1, s_t0, i * 1024)
            a.e("buffer_load_dwordx4 v%d, s[%d:%d], s%d offen lds", v_t + 1, S_WUK, S_WUK + 3, s_t1)
            vm.issue("wpf")
    for em in c_dma(0) + w_dma(0): em()
    if "cpf" in exp:
        a.e("v_lshlrev_b32 v%d, 4, v%d", v_t + 1, v_lane)
        a.e("s_lshr_b32 s%d, s2, 3", s_t0)
        a.e("s_lshl_b32 s%d, s%d, 16", s_t0, s_t0)
        a.e("s_lshl_b32 s%d, s%d, 13", s_t1, s_w)
        a.e("s_add_u32 s%d, s%d, s%d", s_t0, s_t0, s_t1)
        a.e("s_mov_b32 m0, %d", LDS_SCR + 8192)
        NCP = 4 if "cpf4" in exp else 8
        for i in range(NCP):
            a.e("s_add_u32 s%d, s%d, %d", s_t1, s_t0, i * 1024 * (8 // NCP))
            a.e("buffer_load_dwordx4 v%d, s[%d:%d], s%d offen lds", v_t + 1, S_C, S_C + 3, s_t1)
            vm.issue("cpf")
    for em in c_dma(1) + w_dma(1): em()
    a.e("s_lshl_b32 s%d, s2, 3", s_t0)
    a.e("s_add_u32 s%d, s%d, s%d", s_t0, s_t0, s_w)
    a.e("s_lshl_b32 s%d, s%d, 10", s_t0, s_t0)
    a.e("v_lshlrev_b32 v%d, 4, v%d", v_t, v_lane)
    a.e("buffer_load_dwordx4 v[%d:%d], v%d, s[%d:%d], s%d offen", T, T + 3, v_t, S_X, S_X + 3, s_t0)
    vm.issue("x")
    mark()

    if "wpf" in exp:
        a.e("v_lshlrev_b32 v%d, 4, v%d", v_t + 1, v_lane)
        a.e("s_lshl_b32 s%d, s2, 14", s_t0)
        a.e("s_lshl_b32 s%d, s%d, 11", s_t1, s_w)
        a.e("s_add_u32 s%d, s%d, s%d", s_t0, s_t0, s_t1)
        a.e("s_mov_b32 m0, %d", LDS_SCR + 8192)
        a.e("s_nop 0")
        for S_ in ([S_WUV] if "wpfv" in exp else ([S_WUV, S_W1] if "wpfq" in exp else [S_WUK, S_WUV])):
            for i in range(2):
                a.e("s_add_u32 s%d, s%d, %d", s_t1, s_t0, i * 1024)
                a.e("buffer_load_dwordx4 v%d, s[%d:%d], s%d offen lds", v_t + 1, S_, S_ + 3, s_t1)
                vm.issue("wpf")
    if "cp0" in exp:
        lpc = name + "_pc"
        a.e("s_getpc_b64 s[%d:%d]", s_cp, s_cp + 1)
        a.label(lpc)
        a.e("s_sub_u32 s%d, s%d, %s - %s", s_cp, s_cp, lpc, name)
        a.e("s_subb_u32 s%d, s%d, 0", s_cp + 1, s_cp + 1)
        a.e("s_lshr_b32 s%d, s2, 3", s_t0)
        a.e("s_lshl_b32 s%d, s%d, 3", s_t0, s_t0)
        a.e("s_add_u32 s%d, s%d, s%d", s_t0, s_t0, s_w)
        a.e("s_lshl_b32 s%d, s%d, 8", s_t0, s_t0)
        a.e("v_lshl_add_u32 v%d, v%d, 2, s%d", v_t + 1, v_lane, s_t0)
        a.e("s_mov_b32 s%d, all_code_end - %s - 4", s_t0, name)
        a.e("v_min_u32 v%d, s%d, v%d", v_t + 1, s_t0, v_t + 1)
        a.e("global_load_dword v%d, v%d, s[%d:%d]", T + 28, v_t + 1, s_cp, s_cp + 1)
        vm.issue("cpf")
    if fused is not None:
        H["role_setup"]()
        H["flag_store"](0, "clr")
        if "clrtail" in exp:
            for base in (WS_FLAG1, WS_FLAG2, WS_FLAG3) + ((WS_FLAGC,) if "onel" in exp else ()): H["flag_store"](0, "clr", base)
    a.e("v_bfe_u32 v%d, v%d, 2, 2", v_t, v_lane)
    a.e("v_lshlrev_b32 v%d, 6, v%d", v_t, v_t)
    a.e("v_and_b32 v%d, 3, v%d", v_t + 1, v_lane)
    a.e("v_lshl_add_u32 v%d, v%d, 3, v%d", v_t, v_t + 1, v_t)
    a.e("v_lshl_add_u32 v%d, v%d, 10, v%d", v_t, v_g, v_t)
    a.e("v_and_b32 v%d, 1, v%d", v_t + 1, v_g)
    a.e("v_lshl_add_u32 v%d, v%d, 5, v%d", v_trE, v_t + 1, v_t)
    a.e("v_xor_b32 v%d, 32, v%d", v_trO, v_trE)
    a.e("v_lshrrev_b32 v%d, 1, v%d", v_t, v_x16)
    a.e("v_xor_b32 v%d, v%d, v%d", v_t, v_t, v_g)
    a.e("v_lshlrev_b32 v%d, 4, v%d", v_t, v_t)
    a.e("v_lshl_add_u32 v%d, v%d, 7, v%d", v_t, v_x16, v_t)
    a.e("v_add_u32 v%d, s%d, v%d", v_cr0, s_cm0, v_t)
    a.e("v_xor_b32 v%d, 64, v%d", v_cr1, v_cr0)
    a.e("v_and_b32 v%d, 1, v%d", v_t, v_g)
    a.e("v_lshlrev_b32 v%d, 10, v%d", v_kst, v_t)
    a.e("v_lshrrev_b32 v%d, 1, v%d", v_t, v_g)
    a.e("v_lshl_add_u32 v%d, v%d, 9, v%d", v_kst, v_t, v_kst)
    a.e("v_lshrrev_b32 v%d, 3, v%d", v_t, v_x16)
    a.e("v_lshl_add_u32 v%d, v%d, 8, v%d", v_kst, v_t, v_kst)
    a.e("v_and_b32 v%d, 7, v%d", v_t, v_x16)
    a.e("v_lshl_add_u32 v%d, v%d, 4, v%d", v_kst, v_t, v_kst)
    a.e("v_lshrrev_b32 v%d, 1, v%d", v_t, v_g)
    a.e("v_lshlrev_b32 v%d, 12, v%d", v_vst, v_t)
    a.e("v_and_b32 v%d, 1, v%d", v_t, v_g)
    a.e("v_lshl_add_u32 v%d, v%d, 9, v%d", v_vst, v_t, v_vst)
    a.e("v_lshl_add_u32 v%d, v%d, 4, v%d", v_vst, v_x16, v_vst)
    a.e("s_mul_i32 s%d, s%d, %d", s_kst, s_h, HEAD_STRIDE)
    a.e("s_lshl_b32 s%d, s%d, 16", s_t0, s_j)
    a.e("s_add_u32 s%d, s%d, s%d", s_kst, s_kst, s_t0)
    a.e("s_lshl_b32 s%d, s%d, 13", s_t0, s_w)
    a.e("s_add_u32 s%d, s%d, s%d", s_kst, s_kst, s_t0)
    a.e("s_add_u32 s%d, s%d, 0x%x", s_vst, s_kst, WS_V)

    class Rec:
        def __init__(self): self.L = []
        def e(self, fmt, *x): self.L.append(fmt % x if x else fmt)
    r_ = Rec()
    F = T + 8
    for i in range(4):
        r_.e("v_lshlrev_b32 v%d, 16, v%d", F + 2 * i, T + i)
        r_.e("v_and_b32 v%d, 0xffff0000, v%d", F + 2 * i + 1, T + i)
    M, TT, V2, RS = T + 16, T + 17, T + 18, T + 19
    r_.e("v_add_f32 v%d, v%d, v%d", M, F, F + 1)
    for i in range(2, 8):
        r_.e("v_add_f32 v%d, v%d, v%d", M, M, F + i)
    allsum64(r_, M, TT)
    r_.e("v_mul_f32 v%d, 0x3b000000, v%d", M, M)
    for i in range(8):
        r_.e("v_sub_f32 v%d, v%d, v%d", F + i, F + i, M)
    r_.e("v_mul_f32 v%d, v%d, v%d", V2, F, F)
    for i in range(1, 8):
        r_.e("v_fmac_f32 v%d, v%d, v%d", V2, F + i, F + i)
    allsum64(r_, V2, TT)
    r_.e("v_mov_b32 v%d, 0x3727c5ac", RS)
    r_.e("v_fmac_f32 v%d, 0x3b000000, v%d", RS, V2)
    r_.e("v_rsq_f32 v%d, v%d", RS, RS)
    r_.e("s_nop 0")
    r_.e("v_mul_f32 v%d, 0x%x, v%d", RS, QSCALE_BITS, RS)
    for i in range(8):
        r_.e("v_mul_f32 v%d, v%d, v%d", F + i, F + i, RS)
    for i in range(4):
        r_.e("v_cvt_pk_bf16_f32 v%d, v%d, v%d", T + i, F + 2 * i, F + 2 * i + 1)
    r_.e("s_lshl_b32 s%d, s%d, 10", s_t3, s_w)
    r_.e("s_add_u32 s%d, s%d, %d", s_t3, s_t3, LDS_SCR)
    r_.e("v_lshl_add_u32 v%d, v%d, 4, s%d", T + 20, v_lane, s_t3)
    LN1 = r_.L
    r2 = Rec()
    X0, X1, X2 = T + 20, T + 21, T + 22
    r2.e("v_and_b32 v%d, 7, v%d", X0, v_lane)
    r2.e("v_lshrrev_b32 v%d, 3, v%d", X1, v_lane)
    r2.e("s_lshl_b32 s%d, s%d, 3", s_t3, s_w)
    r2.e("v_add_u32 v%d, s%d, v%d", X1, s_t3, X1)
    r2.e("v_lshlrev_b32 v%d, 10, v%d", F, X0)
    r2.e("v_lshl_add_u32 v%d, v%d, 4, v%d", F, X1, F)
    r2.e("v_add_u32 v%d, %d, v%d", F, LDS_SCR, F)
    LN2a = r2.L
    r3 = Rec()
    r3.e("v_lshrrev_b32 v%d, 2, v%d", F + 1, X1)
    r3.e("v_lshlrev_b32 v%d, 10, v%d", F + 1, F + 1)
    r3.e("v_and_b32 v%d, 3, v%d", X1, X1)
    r3.e("v_lshl_add_u32 v%d, v%d, 8, v%d", F + 1, X1, F + 1)
    r3.e("v_lshl_add_u32 v%d, v%d, 4, v%d", F + 1, X0, F + 1)
    r3.e("s_lshr_b32 s%d, s2, 1", s_t3)
    r3.e("s_lshl_b32 s%d, s%d, 14", s_t3, s_t3)
    r3.e("s_and_b32 s%d, s2, 1", s_oct)
    r3.e("s_lshl_b32 s%d, s%d, 7", s_oct, s_oct)
    r3.e("s_add_u32 s%d, s%d, s%d", s_t3, s_t3, s_oct)
    r3.e("s_add_u32 s%d, s%d, 0x%x", s_t3, s_t3, WS_XN)
    LN2b = r3.L

    v_lin = v_trO
    if 'b128test' in exp: a.e('v_lshlrev_b32 v%d, 4, v%d', v_lin, v_lane)
    def c_reads(step):
        for u in range(2):
            for kb in range(2):
                r = CF + ((step * 2 + u) * 2 + kb) * 4
                a.e("ds_read_b128 v[%d:%d], v%d offset:%d", r, r + 3, v_cr0 if u == 0 else v_cr1, (step & 1) * 4096 + kb * 2048)
                lg.issue(("c", step))

    vm.wait([("c", 0), ("W", 0)])
    c_reads(0)
    mark()
    a.e("s_barrier")
    mark()

    def step_frags(step):
        L = []
        if step < 8:
            for u in range(2):
                for cb in range(8):
                    off = (cb >> 2) * 8192 + u * 4096 + ((cb >> 1) & 1) * 512
                    dg = cb >> 1
                    accs = [ACCA + ((dg * 2 + kb) * 2 + (cb & 1)) * 4 for kb in range(2)]
                    cfs = [CF + ((step * 2 + u) * 2 + kb) * 4 for kb in range(2)]
                    L.append((off, cb & 1, accs, cfs, step == 0 and u == 0))
        else:
            base = ACCB if step < 12 else ACCA
            i2 = (step - 8) & 3
            for hf in range(2):
                for u in range(2):
                    for cb in range(4):
                        off = hf * 8192 + u * 4096 + (cb >> 1) * 512
                        accs = [base + (cb * 2 + kb) * 4 for kb in range(2)]
                        ci = (2 * i2 + hf)
                        cfs = [CF + ((ci * 2 + u) * 2 + kb) * 4 for kb in range(2)]
                        L.append((off, cb & 1, accs, cfs, i2 == 0 and hf == 0 and u == 0))
        return L
    frags = [(s, f) for s in range(16) for f in step_frags(s)]
    def w_read(gi):
        s, (off, odd, accs, cfs, first) = frags[gi]
        r = WF + (gi % NRING) * 4
        if "b128test" in exp:
            a.e("ds_read_b128 v[%d:%d], v%d offset:%d", r, r + 3, v_cr0 if False else v_lin, LDS_W + (s & 3) * 16384 + (gi % 16) * 1024)
            lg.issue(("W", gi))
            return
        for t in range(2):
            a.e("ds_read_b64_tr_b16 v[%d:%d], v%d offset:%d", r + 2 * t, r + 2 * t + 1, v_trO if odd else v_trE,
                LDS_W + (s & 3) * 16384 + off + t * 256)
            lg.issue(("W", gi))
    def epi(kind):
        L = []
        if kind == "K":
            for dg in range(4):
                for kb in range(2):
                    A = ACCA + (dg * 2 + kb) * 8
                    g = []
                    for i in range(4):
                        g.append("v_cvt_pk_bf16_f32 v%d, v%d, v%d" % (A + i, A + 2 * i, A + 2 * i + 1))
                    g.append("s_add_u32 s%d, s%d, %d" % (s_t2, s_kst, (dg >> 1) * 4096))
                    g.append(("st", "buffer_store_dwordx4 v[%d:%d], v%d, s[%d:%d], s%d offen offset:%d" % (A, A + 3, v_kst, S_WS, S_WS + 3, s_t2, kb * 128 + (dg & 1) * 2048)))
                    L += g
        else:
            cv = 0 if kind == "V0" else 1
            base = ACCB if cv == 0 else ACCA
            for cb in range(4):
                A = base + cb * 8
                for i in range(4):
                    L.append("v_cvt_pk_bf16_f32 v%d, v%d, v%d" % (A + i, A + 2 * i, A + 2 * i + 1))
                L.append("s_add_u32 s%d, s%d, %d" % (s_t2, s_vst, cv * 2048))
                L.append(("st", "buffer_store_dwordx4 v[%d:%d], v%d, s[%d:%d], s%d offen offset:%d" % (A, A + 3, v_vst, S_WS, S_WS + 3, s_t2, (cb >> 1) * 1024 + (cb & 1) * 256)))
        return L
    def emit_epi(x):
        if isinstance(x, tuple):
            if "nost" in exp: return
            a.e(x[1]); vm.issue("st")
        else:
            a.e(x)

    def emit_main(dk0, epk0, last):
        PRE = NRING - 1
        nread = 0
        npoll = [0]
        pend_epi = []
        ln = list(LN1); ln2a = list(LN2a); ln2b = list(LN2b)
        for gi, (s, (off, odd, accs, cfs, first)) in enumerate(frags):
            k = gi % 16
            dmas = []
            if k == 0:
                a("; ---- step %d" % s)
                if s in (4, 8, 12): (mark() if last else None)
                if s > 0 and "nobar" not in exp and not ("bar2" in exp and s >= 9 and s % 2 == 1):
                    a.e("s_barrier")
                if s == 8 and "even" in exp:
                    ek = epi("K"); ev = epi("V0")
                    groups = [ek[6 * n:6 * n + 6] for n in range(8)] + [ev[6 * n:6 * n + 6] for n in range(4)]
                    sched = {8 * 16 + 6 + 12 * n: groups[n] for n in range(11)}
                    sched[15 * 16 + 15] = groups[11][:4]
                    def v0last(g=groups[11]):
                        for x in g[4:]: emit_epi(x)
                    H["late_stores"].append(v0last)
                    pend_epi = []; ek_rest = []
                elif s == 8:
                    ek = epi("K"); pend_epi = ek[:36]; ek_rest = ek[36:]
                if s == 12 and "even" not in exp:
                    if fused is not None and "latev0" in exp:
                        ev = epi("V0")
                        pend_epi = ek_rest + [x for x in ev if not isinstance(x, tuple) and not x.startswith("s_add")]
                        for cb in range(4):
                            def st0(cb=cb):
                                A = ACCB + cb * 8
                                a.e("s_add_u32 s%d, s%d, 0", s_t2, s_vst)
                                a.e("buffer_store_dwordx4 v[%d:%d], v%d, s[%d:%d], s%d offen offset:%d", A, A + 3, v_vst, S_WS, S_WS + 3, s_t2, (cb >> 1) * 1024 + (cb & 1) * 256)
                                vm.issue("st")
                            H["late_stores"].append(st0)
                    else:
                        pend_epi = ek_rest + epi("V0")
                step_dmas = []
                if s == 0: step_dmas += w_dma(2)
                if s + 3 < 16: step_dmas += w_dma(s + 3)
                if s + 2 < 8: step_dmas += c_dma(s + 2)
            lim = 16 if s == 0 else len(frags)
            while nread < min(gi + PRE + 1, lim):
                w_read(nread); nread += 1
            lg.wait([("W", gi), ("c", s)] if k == 0 else ("W", gi))
            wf = WF + (gi % NRING) * 4
            for kb in range(2):
                d, cf = accs[kb], cfs[kb]
                c = "0" if first else "v[%d:%d]" % (d, d + 3)
                if s < 8:
                    a.e("v_mfma_f32_16x16x32_bf16 v[%d:%d], v[%d:%d], v[%d:%d], %s", d, d + 3, wf, wf + 3, cf, cf + 3, c)
                else:
                    a.e("v_mfma_f32_16x16x32_bf16 v[%d:%d], v[%d:%d], v[%d:%d], %s", d, d + 3, cf, cf + 3, wf, wf + 3, c)
            if k >= dk0 and step_dmas:
                if "nodma" in exp and s >= 2: step_dmas.pop(0)
                else: step_dmas.pop(0)()
            if s == 1 and k == 0: vm.wait("x")
            if s in (1, 2) and ln:
                for _ in range(4):
                    if ln: a.e(ln.pop(0))
            if s == 2 and k == 15:
                assert not ln
                a.e("ds_write_b128 v%d, v[%d:%d]", T + 20, T, T + 3); lg.issue("lnw")
                lg.wait("lnw")
            if s == 3:
                if k < 4:
                    for _ in range(2):
                        if ln2a: a.e(ln2a.pop(0))
                if k == 4:
                    a.e("ds_read_b128 v[%d:%d], v%d", T, T + 3, F); lg.issue("lnr")
                if 5 <= k < 11:
                    for _ in range(2):
                        if ln2b: a.e(ln2b.pop(0))
                if k == 12:
                    assert not ln2a and not ln2b
                    lg.wait("lnr")
                    a.e("buffer_store_dwordx4 v[%d:%d], v%d, s[%d:%d], s%d offen", T, T + 3, F + 1, S_WS, S_WS + 3, s_t3)
                    vm.issue("xn")
            if k == (15 if s == 0 else 11) and s + 1 < 16:
                tags = [("W", s + 1), ("W", s + 2), ("c", s + 1)]
                if fused is not None and s == 5: tags += ["xn", "clr"]
                vm.wait(tags)
                if s + 1 < 8: c_reads(s + 1)
            if fused is not None:
                if s == 6 and k == 12: H["signal"]("0", True)
                if s == 8 and k == 1: H["vec_setup"]()
                if "early" in exp:
                    if 9 <= s <= 12 and k in (5, 9): H["w_dma_l"](s - 9)[0 if k == 5 else 1]()
                elif "mid" in exp:
                    if s >= 12 and k in (6, 10): H["w_dma_l"](s - 12)[0 if k == 6 else 1]()
                else:
                    if s in (12, 13) and k in (5, 9): H["w_dma_l"](s - 12)[0 if k == 5 else 1]()
                if s == 10 and k == 2:
                    H["poll"](0, "0"); npoll[0] = vm.total
                if s == 12 and k == 13: H["poll_check"](0, "0", 256, min(vm.total - npoll[0], len(vm.ops)))
                if "early" in exp:
                    if s >= 13 and k in (1, 3, 5, 7, 9, 10, 12, 14):
                        i_ = (1, 3, 5, 7, 9, 10, 12, 14).index(k)
                        if i_ == 0: xl = H["xn_load_l"](2 * (s - 13)) + H["xn_load_l"](2 * (s - 13) + 1)
                        xl[i_]()
                elif "mid" in exp:
                    if s == 14 and k in (1, 3, 5, 7, 9, 11, 13, 15):
                        i_ = (1, 3, 5, 7, 9, 11, 13, 15).index(k)
                        if i_ == 0: xl = H["xn_load_l"](0) + H["xn_load_l"](1)
                        xl[i_]()
                    if s == 15 and k in (2, 5, 8, 12):
                        i_ = (2, 5, 8, 12).index(k)
                        if i_ == 0: xl = H["xn_load_l"](2)
                        xl[i_]()
                elif s >= 14 and k in (2, 5, 8, 12):
                    i_ = (2, 5, 8, 12).index(k)
                    if i_ == 0: xl = H["xn_load_l"](s - 14)
                    xl[i_]()
            if "pf" in exp and fused is None and s == 10 and k in (4, 8):
                a.e("v_lshrrev_b32 v%d, 4, v%d", v_t, v_lane)
                a.e("v_lshlrev_b32 v%d, 13, v%d", v_t, v_t)
                a.e("v_and_b32 v%d, 15, v%d", v_t + 1, v_lane)
                a.e("v_lshl_add_u32 v%d, v%d, 4, v%d", v_t, v_t + 1, v_t)
                a.e("s_lshl_b32 s%d, s%d, 3", s_t3, s_j)
                a.e("s_add_u32 s%d, s%d, s%d", s_t3, s_t3, s_w)
                a.e("s_lshl_b32 s%d, s%d, 16", s_t3, s_t3)
                a.e("s_lshl_b32 s%d, s%d, 8", s_t1, s_h)
                a.e("s_add_u32 s%d, s%d, s%d", s_t3, s_t3, s_t1)
                if k == 8: a.e("s_add_u32 s%d, s%d, 32768", s_t3, s_t3)
                a.e("s_mov_b32 m0, s%d", s_cm0)
                a.e("s_nop 0")
                a.e("buffer_load_dwordx4 v%d, s[%d:%d], s%d offen lds", v_t, S_W1, S_W1 + 3, s_t3)
                vm.issue("pf")
            if "even" in exp and s >= 8:
                for n_, (g0, grp) in enumerate(sorted(sched.items())):
                    j_ = gi - (g0 - 5)
                    if 0 <= j_ < len(grp): emit_epi(grp[j_])
            if pend_epi and k >= 3:
                emit_epi(pend_epi.pop(0))
                if pend_epi and s >= 12: emit_epi(pend_epi.pop(0))
        assert not pend_epi
        (st.mark() if last else None)
        a.e("s_nop 7")
        if fused is not None and "early" not in exp:
            late = []
            for cb in range(4):
                A, D = ACCA + cb * 8, ACCB + cb * 8 + 4
                for i in range(4):
                    a.e("v_cvt_pk_bf16_f32 v%d, v%d, v%d", D + i, A + 2 * i, A + 2 * i + 1)
                def st_(cb=cb, D=D):
                    a.e("s_add_u32 s%d, s%d, 2048", s_t2, s_vst)
                    a.e("buffer_store_dwordx4 v[%d:%d], v%d, s[%d:%d], s%d offen offset:%d", D, D + 3, v_vst, S_WS, S_WS + 3, s_t2, (cb >> 1) * 1024 + (cb & 1) * 256)
                    vm.issue("st")
                late.append(st_)
            H["late_stores"].extend(late)
        else:
            for x in epi("V1"): emit_epi(x)
        if fused is not None:
            for _ in k2: pass
            return
        if diag and last:
            a.e("s_waitcnt vmcnt(0)")
            (mark() if last else None)
            st.dump(S_WS, s_w, 10, s_t0)

    if "stag" in exp:
        l2 = name + "_late"
        vm0, lg0 = list(vm.ops), list(lg.ops)
        a.e("s_cmp_ge_u32 s%d, 4", s_w)
        a.e("s_cbranch_scc1 %s", l2)
        emit_main(1, 3, True)
        a.e("s_endpgm")
        a.label(l2)
        vm.ops, lg.ops = vm0, lg0
        emit_main(6 if "stag6" in exp else 8, 3, False)
    else:
        emit_main(1, 3, True)
    if fused is None:
        a.label(name + "_end")
        a.e("s_endpgm")
```

```python
from gen_common import *
import gen_common

def gen_k35(a, kind, name, kidx, diag=False, exp="", s_wave_in=None):
    fused = s_wave_in is not None
    SC1 = " sc1" if fused else ""
    if not fused: kernel_begin(a, name)
    st = Stamps(a, diag, kidx, base=56, maxn=10)
    vm = Cnt(a, "vmcnt", 63); lg = Cnt(a, "lgkmcnt", 15)
    proj = kind == "proj"
    NKS = 32 if proj else 14
    ACT_QB = 256 * 1024 if proj else 112 * 1024
    WS_ACT = WS_CTX if proj else WS_F
    S_W, S_WS, S_X, S_O, S_B = 4, 8, 12, 16, 20
    s_w, s_rt, s_ct, s_t0, s_t1, s_t2, s_a0, s_a1, s_wb, s_m0, s_rot = 24, 25, 26, 27, 28, 29, 30, 31, 32, 33, 34
    v_lane, v_l16, v_wd, v_tr, v_t = 0, 1, 2, 3, 4
    ACC = 64
    DEPTH = 6 if proj else 7
    for d_ in (2, 3, 4, 5, 8, 9):
        if 'depth%d' % d_ in exp: DEPTH = d_
    AF = 128
    WFR = 16
    PRIV = "privred" in exp
    LDSW = 18432 if PRIV else DEPTH * 2048

    if not fused:
        a.e("s_cmp_ge_u32 s2, 256")
        a.e("s_cbranch_scc1 %s_end", name)
    st.mark()
    if proj:
        a.e("s_load_dwordx2 s[4:5], s[0:1], %d", A_WO)
        a.e("s_load_dwordx2 s[12:13], s[0:1], %d", A_X)
    else:
        a.e("s_load_dwordx2 s[4:5], s[0:1], %d", B_W2)
        a.e("s_load_dwordx2 s[16:17], s[0:1], %d", OUT)
        a.e("s_load_dwordx2 s[20:21], s[0:1], %d", B_B2)
    a.e("s_load_dwordx2 s[8:9], s[0:1], %d", WS)
    if fused:
        a.e("s_mov_b32 s%d, s%d", s_w, s_wave_in)
    else:
        a.e("v_lshrrev_b32 v%d, 6, v0", v_t)
        a.e("v_and_b32 v%d, 63, v0", v_lane)
        a.e("v_readfirstlane_b32 s%d, v%d", s_w, v_t)
    if "map84" in exp:
        a.e("s_and_b32 s%d, s2, 7", s_t0)
        a.e("s_lshr_b32 s%d, s2, 3", s_t1)
        a.e("s_and_b32 s%d, s%d, 1", s_ct, s_t0)
        a.e("s_lshl_b32 s%d, s%d, 2", s_ct, s_ct)
        a.e("s_and_b32 s%d, s%d, 3", s_t2, s_t1)
        a.e("s_add_u32 s%d, s%d, s%d", s_ct, s_ct, s_t2)
        a.e("s_lshr_b32 s%d, s%d, 1", s_rt, s_t0)
        a.e("s_lshl_b32 s%d, s%d, 3", s_rt, s_rt)
        a.e("s_lshr_b32 s%d, s%d, 2", s_t1, s_t1)
        a.e("s_add_u32 s%d, s%d, s%d", s_rt, s_rt, s_t1)
    else:
        a.e("s_and_b32 s%d, s2, 31", s_rt)
        a.e("s_lshr_b32 s%d, s2, 5", s_ct)
    a.e("v_lshlrev_b32 v%d, 4, v%d", v_l16, v_lane)
    a.e("v_lshrrev_b32 v%d, 5, v%d", v_t, v_lane)
    a.e("v_bfe_u32 v%d, v%d, 2, 2", v_t + 1, v_lane)
    a.e("v_lshl_add_u32 v%d, v%d, 2, v%d", v_t, v_t, v_t + 1)
    a.e("v_lshlrev_b32 v%d, 10, v%d", v_wd, v_t)
    a.e("v_bfe_u32 v%d, v%d, 4, 1", v_t, v_lane)
    a.e("v_lshl_add_u32 v%d, v%d, 6, v%d", v_wd, v_t, v_wd)
    a.e("v_and_b32 v%d, 3, v%d", v_t, v_lane)
    a.e("v_lshl_add_u32 v%d, v%d, 4, v%d", v_wd, v_t, v_wd)
    a.e("v_lshrrev_b32 v%d, 5, v%d", v_t, v_lane)
    a.e("v_lshlrev_b32 v%d, 9, v%d", v_tr, v_t)
    a.e("v_bfe_u32 v%d, v%d, 2, 2", v_t, v_lane)
    a.e("v_lshl_add_u32 v%d, v%d, 6, v%d", v_tr, v_t, v_tr)
    a.e("v_bfe_u32 v%d, v%d, 4, 1", v_t, v_lane)
    a.e("v_lshl_add_u32 v%d, v%d, 5, v%d", v_tr, v_t, v_tr)
    a.e("v_and_b32 v%d, 3, v%d", v_t, v_lane)
    a.e("v_lshl_add_u32 v%d, v%d, 3, v%d", v_tr, v_t, v_tr)
    a.e("s_mul_i32 s%d, s%d, %d", s_m0, s_w, LDSW)
    a.e("v_add_u32 v%d, s%d, v%d", v_tr, s_m0, v_tr)
    a.e("s_waitcnt lgkmcnt(0)")
    srd(a, S_W, S_W, (4096 if proj else 1792) * 1024); srd(a, S_WS, S_WS, WS_BYTES)
    if proj: srd(a, S_X, S_X, 2 << 20)
    else:
        srd(a, S_O, S_O, 2 << 20); srd(a, S_B, S_B, 1024)
    a.e("s_mul_i32 s%d, s%d, %d", s_a0, s_rt, 2 * ACT_QB)
    a.e("s_mul_i32 s%d, s%d, %d", s_t0, s_w, NKS * 1024)
    a.e("s_add_u32 s%d, s%d, s%d", s_a0, s_a0, s_t0)
    a.e("s_add_u32 s%d, s%d, 0x%x", s_a0, s_a0, WS_ACT)
    a.e("s_add_u32 s%d, s%d, %d", s_a1, s_a0, ACT_QB)
    a.e("s_mul_i32 s%d, s%d, %d", s_wb, s_w, NKS * 16384)
    a.e("s_lshl_b32 s%d, s%d, 7", s_t0, s_ct)
    a.e("s_add_u32 s%d, s%d, s%d", s_wb, s_wb, s_t0)

    a.e("s_lshl_b32 s%d, s%d, 2", s_rot, s_ct)
    a.e("s_lshr_b32 s%d, s%d, 3", s_t0, s_rt)
    a.e("s_lshl_b32 s%d, s%d, 3", s_t0, s_t0)
    a.e("s_add_u32 s%d, s%d, s%d", s_rot, s_rot, s_t0)
    if proj:
        a.e("s_and_b32 s%d, s%d, 31", s_rot, s_rot)
    else:
        a.e("s_and_b32 s%d, s%d, 31", s_rot, s_rot)
        a.e("s_mul_i32 s%d, s%d, 7", s_rot, s_rot)
        a.e("s_lshr_b32 s%d, s%d, 4", s_rot, s_rot)
    if "norot" in exp: a.e("s_mov_b32 s%d, 0", s_rot)
    def loads(ks, part="wa"):
        sl = ks % DEPTH
        if "w" in part:
            a.e("s_lshl_b32 s%d, s%d, 14", s_t0, s_rot)
            a.e("s_add_u32 s%d, s%d, s%d", s_t0, s_t0, s_wb)
            a.e("s_add_u32 m0, s%d, %d", s_m0, sl * 2048)
            a.e("s_add_u32 s%d, s%d, 8192", s_t1, s_t0)
            a.e("buffer_load_dwordx4 v%d, s[%d:%d], s%d offen lds", v_wd, S_W, S_W + 3, s_t0)
            vm.issue(("w", ks))
            a.e("s_add_u32 m0, s%d, %d", s_m0, sl * 2048 + 1024)
            a.e("s_nop 0")
            a.e("buffer_load_dwordx4 v%d, s[%d:%d], s%d offen lds", v_wd, S_W, S_W + 3, s_t1)
            vm.issue(("w", ks))
        if "a" in part:
            a.e("s_lshl_b32 s%d, s%d, 10", s_t0, s_rot)
            a.e("s_add_u32 s%d, s%d, s%d", s_t2, s_a0, s_t0)
            a.e("s_add_u32 s%d, s%d, s%d", s_t1, s_a1, s_t0)
        a.e("s_add_u32 s%d, s%d, 1", s_rot, s_rot)
        a.e("s_cmp_eq_u32 s%d, %d", s_rot, NKS)
        a.e("s_cselect_b32 s%d, 0, s%d", s_rot, s_rot)
        if "a" in part:
            r = AF + sl * 8
            a.e("buffer_load_dwordx4 v[%d:%d], v%d, s[%d:%d], s%d offen%s", r, r + 3, v_l16, S_WS, S_WS + 3, s_t2, SC1)
            vm.issue(("a", ks))
            a.e("buffer_load_dwordx4 v[%d:%d], v%d, s[%d:%d], s%d offen%s", r + 4, r + 7, v_l16, S_WS, S_WS + 3, s_t1, SC1)
            vm.issue(("a", ks))
    def wreads(ks):
        sl = ks % DEPTH
        for fb in range(2):
            r = WFR + (ks & 1) * 8 + fb * 4
            for t in range(2):
                a.e("ds_read_b64_tr_b16 v[%d:%d], v%d offset:%d", r + 2 * t, r + 2 * t + 1, v_tr, sl * 2048 + t * 1024 + fb * 256)
                lg.issue(("w", ks))

    INIT = 2 if "ramp" in exp else DEPTH
    issued = [0]
    if fused:
        s_rot0 = 41
        a.e("s_mov_b32 s%d, s%d", s_rot0, s_rot)
        for ks in range(min(INIT, NKS)): loads(ks, "w")
        a.e("s_mov_b32 s%d, s%d", s_rot, s_rot0)
        lw, ok, sp = a.newlabel("Lpw"), a.newlabel("Lfok"), a.newlabel("Lfsp")
        a.e("s_cmp_lg_u32 s%d, 0", s_w); a.e("s_cbranch_scc1 %s", lw)
        a.e("v_cmp_gt_u32 vcc, 14, v%d", v_lane)
        a.e("s_nop 1")
        a.e("v_cndmask_b32 v%d, 0, v%d, vcc", v_t, v_lane)
        a.e("v_lshrrev_b32 v%d, 1, v%d", v_t + 1, v_t)
        a.e("v_lshlrev_b32 v%d, 5, v%d", v_t + 1, v_t + 1)
        a.e("v_and_b32 v%d, 1, v%d", v_t, v_t)
        a.e("v_add_u32 v%d, v%d, v%d", v_t, v_t, v_t + 1)
        a.e("s_lshr_b32 s%d, s%d, 1", s_t0, s_rt)
        a.e("s_and_b32 s%d, s%d, 3", s_t1, s_t0)
        a.e("s_lshl_b32 s%d, s%d, 3", s_t1, s_t1)
        a.e("s_lshr_b32 s%d, s%d, 2", s_t0, s_t0)
        a.e("s_lshl_b32 s%d, s%d, 1", s_t0, s_t0)
        a.e("s_add_u32 s%d, s%d, s%d", s_t0, s_t0, s_t1)
        a.e("v_add_u32 v%d, s%d, v%d", v_t, s_t0, v_t)
        a.e("v_lshlrev_b32 v%d, 7, v%d", v_t, v_t)
        a.e("s_mov_b32 s%d, 0x%x", s_t2, WS_FLAG3)
        from gen_rr import poll_flags
        poll_flags(a, v_t, v_t + 1, v_t + 2, S_WS, s_t2, 42, "dblpoll" in exp)
        a.label(lw)
        a.e("s_barrier")
        for ks in range(min(INIT, NKS)): loads(ks, "a"); issued[0] += 1
    else:
        for ks in range(min(INIT, NKS)): loads(ks); issued[0] += 1
    s_fb, s_qb, s_s, s_row, s_f16 = 36, 37, 38, 39, 40
    a.e("s_lshr_b32 s%d, s%d, 2", s_fb, s_w)
    a.e("s_bfe_u32 s%d, s%d, 0x10001", s_qb, s_w)
    a.e("s_and_b32 s%d, s%d, 1", s_s, s_w)
    a.e("s_lshl_b32 s%d, s%d, 1", s_row, s_rt)
    a.e("s_add_u32 s%d, s%d, s%d", s_row, s_row, s_qb)
    a.e("s_lshl_b32 s%d, s%d, 2", s_f16, s_ct)
    a.e("s_lshl_b32 s%d, s%d, 1", s_t0, s_fb)
    a.e("s_add_u32 s%d, s%d, s%d", s_f16, s_f16, s_t0)
    a.e("s_add_u32 s%d, s%d, s%d", s_f16, s_f16, s_s)
    R0 = 40
    v_q, v_hf = 8, 9
    a.e("v_and_b32 v%d, 31, v%d", v_q, v_lane)
    a.e("v_lshrrev_b32 v%d, 5, v%d", v_hf, v_lane)
    if proj:
        a.e("v_lshlrev_b32 v%d, 10, v%d", 10, v_q)
        a.e("v_lshl_add_u32 v%d, v%d, 3, v%d", 10, v_hf, 10)
        a.e("s_lshl_b32 s%d, s%d, 15", s_t0, s_row)
        a.e("s_lshl_b32 s%d, s%d, 5", s_t1, s_f16)
        a.e("s_add_u32 s%d, s%d, s%d", s_t0, s_t0, s_t1)
        a.e("buffer_load_dwordx2 v[%d:%d], v10, s[%d:%d], s%d offen", R0, R0 + 1, S_X, S_X + 3, s_t0)
        a.e("buffer_load_dwordx2 v[%d:%d], v10, s[%d:%d], s%d offen offset:16", R0 + 2, R0 + 3, S_X, S_X + 3, s_t0)
        vm.issue("res"); vm.issue("res")
    else:
        a.e("s_lshl_b32 s%d, s%d, 5", s_t0, s_row)
        a.e("s_add_u32 s%d, s%d, s%d", s_t0, s_t0, s_f16)
        a.e("s_lshl_b32 s%d, s%d, 10", s_t0, s_t0)
        a.e("s_add_u32 s%d, s%d, 0x%x", s_t0, s_t0, WS_H)
        a.e("buffer_load_dwordx4 v[%d:%d], v%d, s[%d:%d], s%d offen%s", R0, R0 + 3, v_l16, S_WS, S_WS + 3, s_t0, SC1)
        a.e("v_lshlrev_b32 v10, 3, v%d", v_hf)
        a.e("s_lshl_b32 s%d, s%d, 5", s_t1, s_f16)
        a.e("buffer_load_dwordx2 v[%d:%d], v10, s[%d:%d], s%d offen", R0 + 4, R0 + 5, S_B, S_B + 3, s_t1)
        a.e("buffer_load_dwordx2 v[%d:%d], v10, s[%d:%d], s%d offen offset:16", R0 + 6, R0 + 7, S_B, S_B + 3, s_t1)
        vm.issue("res"); vm.issue("res"); vm.issue("res")
    st.mark()
    vm.wait([("w", 0), ("a", 0)])
    wreads(0)
    for ks in range(NKS):
        if ks + 1 < NKS:
            assert issued[0] > ks + 1
            vm.wait([("w", ks + 1), ("a", ks + 1)])
            wreads(ks + 1)
        lg.wait(("w", ks))
        sl = ks % DEPTH
        for fb in range(2):
            for qb in range(2):
                d = ACC + (fb * 2 + qb) * 16
                wf = WFR + (ks & 1) * 8 + fb * 4
                af = AF + sl * 8 + qb * 4
                c = "0" if ks == 0 else "v[%d:%d]" % (d, d + 15)
                a.e("v_mfma_f32_32x32x16_bf16 v[%d:%d], v[%d:%d], v[%d:%d], %s", d, d + 15, wf, wf + 3, af, af + 3, c)
        n = 0
        while issued[0] < min(ks + DEPTH + 1, NKS) and n < 2:
            loads(issued[0]); issued[0] += 1; n += 1
    st.mark()
    if not PRIV: a.e("s_barrier")
    PSTR = LDSW if PRIV else 16384
    a.e("s_mul_i32 s%d, s%d, %d", s_t0, s_w, PSTR)
    a.e("v_add_u32 v%d, s%d, v%d", v_t, s_t0, v_l16)
    a.e("s_nop 7")
    for tile in range(4):
        for i in range(4):
            r = ACC + tile * 16 + i * 4
            a.e("ds_write_b128 v%d, v[%d:%d] offset:%d", v_t, r, r + 3, (tile * 4 + i) * 1024)
    a.e("s_waitcnt lgkmcnt(0)")
    st.mark()
    a.e("s_barrier")
    a.e("s_lshr_b32 s%d, s%d, 1", s_t0, s_w)
    a.e("s_lshl_b32 s%d, s%d, 2", s_t0, s_t0)
    a.e("s_lshl_b32 s%d, s%d, 1", s_t1, s_s)
    a.e("s_add_u32 s%d, s%d, s%d", s_t0, s_t0, s_t1)
    a.e("s_lshl_b32 s%d, s%d, 10", s_t0, s_t0)
    a.e("v_add_u32 v%d, s%d, v%d", v_t, s_t0, v_l16)
    a.e("v_add_u32 v%d, %d, v%d", v_t + 1, 3 * PSTR, v_t)
    a.e("v_add_u32 v%d, %d, v%d", v_t + 2, 6 * PSTR, v_t)
    PR = 64
    for p in range(8):
        for u in range(2):
            r = PR + (p * 2 + u) * 4
            a.e("ds_read_b128 v[%d:%d], v%d offset:%d", r, r + 3, v_t + p // 3, (p % 3) * PSTR + u * 1024)
        if p == 3: a.e("s_waitcnt lgkmcnt(0)")
    a.e("s_waitcnt lgkmcnt(0)")
    for p in range(1, 8):
        for e in range(8):
            a.e("v_add_f32 v%d, v%d, v%d", PR + e, PR + e, PR + p * 8 + e)
    A = PR
    vm.waitall()
    F = 48
    def unpack(src, n, dst):
        for i in range(n):
            a.e("v_lshlrev_b32 v%d, 16, v%d", dst + 2 * i, src + i)
            a.e("v_and_b32 v%d, 0xffff0000, v%d", dst + 2 * i + 1, src + i)
    if proj:
        unpack(R0, 4, F)
        for e in range(8): a.e("v_add_f32 v%d, v%d, v%d", A + e, A + e, F + e)
        for i in range(4): a.e("v_cvt_pk_bf16_f32 v%d, v%d, v%d", F + 8 + i, A + 2 * i, A + 2 * i + 1)
        a.e("s_lshl_b32 s%d, s%d, 5", s_t0, s_row)
        a.e("s_add_u32 s%d, s%d, s%d", s_t0, s_t0, s_f16)
        a.e("s_lshl_b32 s%d, s%d, 10", s_t1, s_t0)
        a.e("s_add_u32 s%d, s%d, 0x%x", s_t1, s_t1, WS_H)
        a.e("buffer_store_dwordx4 v[%d:%d], v%d, s[%d:%d], s%d offen", F + 8, F + 11, v_l16, S_WS, S_WS + 3, s_t1)
        unpack(F + 8, 4, F)
        a.e("v_add_f32 v%d, v%d, v%d", A, F, F + 1)
        for e in range(2, 8): a.e("v_add_f32 v%d, v%d, v%d", A, A, F + e)
        a.e("v_mov_b32 v%d, v%d", A + 1, A)
        a.e("s_nop 1")
        a.e("v_permlane32_swap_b32 v%d, v%d", A, A + 1)
        a.e("s_nop 1")
        a.e("v_add_f32 v%d, v%d, v%d", A, A, A + 1)
        a.e("v_mul_f32 v%d, 0x3d800000, v%d", A, A)
        for e in range(8): a.e("v_sub_f32 v%d, v%d, v%d", F + e, F + e, A)
        a.e("v_mul_f32 v%d, v%d, v%d", A + 1, F, F)
        for e in range(1, 8): a.e("v_fmac_f32 v%d, v%d, v%d", A + 1, F + e, F + e)
        a.e("v_mov_b32 v%d, v%d", A + 2, A + 1)
        a.e("s_nop 1")
        a.e("v_permlane32_swap_b32 v%d, v%d", A + 1, A + 2)
        a.e("s_nop 1")
        a.e("v_add_f32 v%d, v%d, v%d", A + 1, A + 1, A + 2)
        a.e("s_lshl_b32 s%d, s%d, 8", s_t1, s_t0)
        a.e("s_add_u32 s%d, s%d, 0x%x", s_t1, s_t1, WS_ST)
        a.e("v_lshlrev_b32 v10, 3, v%d", v_q)
        a.e("v_cmp_gt_u32 vcc, 32, v%d", v_lane)
        a.e("s_and_saveexec_b64 s[42:43], vcc")
        a.e("buffer_store_dwordx2 v[%d:%d], v10, s[%d:%d], s%d offen", A, A + 1, S_WS, S_WS + 3, s_t1)
        a.e("s_mov_b64 exec, s[42:43]")
    else:
        unpack(R0, 4, F)
        for e in range(8): a.e("v_add_f32 v%d, v%d, v%d", A + e, A + e, F + e)
        unpack(R0 + 4, 4, F)
        for e in range(8): a.e("v_add_f32 v%d, v%d, v%d", A + e, A + e, F + e)
        for i in range(4): a.e("v_cvt_pk_bf16_f32 v%d, v%d, v%d", F + i, A + 2 * i, A + 2 * i + 1)
        a.e("s_nop 1")
        a.e("v_permlane32_swap_b32 v%d, v%d", F, F + 2)
        a.e("v_permlane32_swap_b32 v%d, v%d", F + 1, F + 3)
        a.e("v_lshlrev_b32 v10, 10, v%d", v_q)
        a.e("v_lshl_add_u32 v10, v%d, 4, v10", v_hf)
        a.e("s_lshl_b32 s%d, s%d, 15", s_t0, s_row)
        a.e("s_lshl_b32 s%d, s%d, 5", s_t1, s_f16)
        a.e("s_add_u32 s%d, s%d, s%d", s_t0, s_t0, s_t1)
        pol_ = gen_common.STORE_POLICY["v"]
        if "outplain" in exp: gen_common.STORE_POLICY["v"] = ""
        if "outnt" in exp: gen_common.STORE_POLICY["v"] = "nt"
        a.e("buffer_store_dwordx4 v[%d:%d], v10, s[%d:%d], s%d offen", F, F + 3, S_O, S_O + 3, s_t0)
        gen_common.STORE_POLICY["v"] = pol_
    if diag:
        a.e("s_waitcnt vmcnt(0)")
        st.mark()
        st.dump(S_WS, s_w, 10, s_t0)
        if "dbgst" in exp:
            a.e("s_load_dwordx2 s[44:45], s[0:1], %d", DBG)
            a.e("s_waitcnt lgkmcnt(0)")
            srd(a, 44, 44, 256)
            st.dump_dbg(44, s_w, 10, 9)
    if not fused: a.label(name + "_end")
    a.e("s_endpgm")
```

```python
from gen_common import *
import gen_common
import math, struct

def f32bits(x):
    return struct.unpack("<I", struct.pack("<f", x))[0]

def gen_k2(a, name="attn_kernel", diag=False, exp="", thr_log2=40):
    for _ in gen_k2_iter(a, name, diag, exp, thr_log2, None): pass

def gen_k2_iter(a, name, diag, exp, thr_log2, fuse):
    if fuse is None:
        kernel_begin(a, name)
        st = Stamps(a, diag, 1, base=56, maxn=11)
        vm = Cnt(a, "vmcnt", 63); lg = Cnt(a, "lgkmcnt", 15)
    else:
        vm, lg, st = fuse["vm"], fuse["lg"], fuse["st"]
    SC1 = " sc1" if fuse is not None else ""
    NEXTK = "tail_kernel" if "nexttail" in exp else "proj_kernel"
    QSCALE = f32bits(math.log2(math.e) / math.sqrt(128.0))
    THR = f32bits(2.0 ** thr_log2)
    S_WQ, S_WS = 4, 8
    s_h, s_x, s_w, s_t0, s_t1, s_t2, s_kk0, s_wof, s_wm0 = 12, 13, 14, 15, 16, 17, 18, 19, 20
    s_xn, s_T, s_TB, s_t, s_cur, s_nxt, s_ld, s_kof, s_vof, s_wl = 21, 22, 23, 24, 25, 26, 27, 28, 29, 30
    s_qb, s_mfrom, s_kb, s_isA, s_lslot, s_lst, s_thr, s_oob = 31, 32, 33, 34, 35, 36, 37, 38
    s_ret = 40
    s_m = 42
    s_hb = 50
    s_n = 51
    s_cnt = 52
    s_x1, s_x2 = 53, 54
    SPF = 56
    if fuse is not None:
        S_WQ, S_WS = 20, 24
        s_h, s_x, s_w, s_t0, s_t1, s_t2, s_kk0, s_wof, s_wm0 = 28, 29, 30, 31, 32, 33, 34, 35, 40
        s_xn, s_T, s_TB, s_t, s_cur, s_nxt, s_ld, s_kof, s_vof, s_wl = 44, 45, 46, 47, 48, 49, 50, 51, 52, 53
        s_qb, s_mfrom, s_kb, s_isA, s_lslot, s_lst, s_thr, s_oob = 54, 55, 56, 57, 58, 59, 60, 61
        s_m = 8
        s_hb, s_n, s_cnt, s_x1, s_x2, s_poll = 64, 65, 66, 67, 68, 69
        s_ret = 70
        S_DBG = 72
        SPF = 4
    v_lane, v_wdma, v_trE, v_trO, v_l16, v_rd, v_rdn, v_qrel, v_t = 0, 1, 2, 3, 4, 5, 6, 7, 8
    v_hiE, v_hiO = v_rd, v_rdn
    if fuse is not None:
        v_lane, v_wdma, v_l16, v_qrel, v_trE, v_trO, v_hiE, v_hiO, v_rd, v_rdn, v_t = 0, 1, 2, 3, 4, 5, 6, 7, 8, 9, 10
    WF, NRW = 12, 5
    ACC = 32
    XN = 128
    Q = 96
    RING, NR, PD = 12, 16, 12
    TT = 80
    v_ps, v_l, v_D, v_ninf, v_mx, v_f = [84, 85], 86, 87, 88, 89, 90
    U = 76
    v_pk = [92, 94]
    NEGM, P, S, O = 128, [144, 152], [160, 176], 192
    SLOT = 32768

    def role_setup():
        a.e("s_lshr_b32 s%d, s%d, 2", s_isA, s_w)
        a.e("s_sub_u32 s%d, 15, s%d", s_t0, s_x)
        a.e("s_lshl_b32 s%d, s%d, 1", s_TB, s_t0)
        a.e("s_add_u32 s%d, s%d, 2", s_TB, s_TB)
        a.e("s_sub_u32 s%d, 7, s%d", s_t1, s_w)
        a.e("s_cmp_eq_u32 s%d, 0", s_isA)
        a.e("s_cselect_b32 s%d, s%d, s%d", s_t0, s_t0, s_x)
        a.e("s_cselect_b32 s%d, s%d, s%d", s_t1, s_w, s_t1)
        a.e("s_lshl_b32 s%d, s%d, 1", s_T, s_t0)
        a.e("s_lshr_b32 s%d, s%d, 1", s_t2, s_t1)
        a.e("s_add_u32 s%d, s%d, s%d", s_T, s_T, s_t2)
        a.e("s_add_u32 s%d, s%d, 1", s_T, s_T)
        a.e("s_lshl_b32 s%d, s%d, 2", s_qb, s_t0)
        a.e("s_add_u32 s%d, s%d, s%d", s_qb, s_qb, s_t1)
        a.e("s_sub_u32 s%d, s%d, 3", s_mfrom, s_T)
        a.e("s_and_b32 s%d, s%d, 3", s_wl, s_w)
        a.e("s_lshl_b32 s%d, s%d, 15", s_xn, s_qb)
        a.e("s_add_u32 s%d, s%d, 0x%x", s_xn, s_xn, WS_XN)
        a.e("s_mul_i32 s%d, s%d, %d", s_hb, s_h, HEAD_STRIDE)
        a.e("s_lshl_b32 s%d, s%d, 12", s_t0, s_wl)
        a.e("s_add_u32 s%d, s%d, s%d", s_hb, s_hb, s_t0)
        a.e("s_mov_b32 s%d, 0x7ff00000", s_oob)
        a.e("s_mov_b32 s%d, 0x%x", s_thr, THR)

    if fuse is None:
        a.e("s_cmp_ge_u32 s2, 256")
        a.e("s_cbranch_scc1 %s_end", name)
        st.mark()
        a.e("s_load_dwordx2 s[4:5], s[0:1], %d", A_WQ)
        a.e("s_load_dwordx2 s[8:9], s[0:1], %d", WS)
        a.e("v_lshrrev_b32 v%d, 6, v0", v_t)
        a.e("v_and_b32 v%d, 63, v0", v_lane)
        a.e("v_readfirstlane_b32 s%d, v%d", s_w, v_t)
        a.e("s_and_b32 s%d, s2, 31", s_h)
        a.e("s_lshr_b32 s%d, s2, 5", s_x)
        a.e("s_lshr_b32 s%d, s%d, 3", s_t0, s_h)
        a.e("s_lshl_b32 s%d, s%d, 1", s_t0, s_t0)
        a.e("s_add_u32 s%d, s%d, s%d", s_kk0, s_t0, s_x)
        a.e("s_and_b32 s%d, s%d, 7", s_kk0, s_kk0)
        a.e("v_bfe_u32 v%d, v%d, 2, 2", v_t, v_lane)
        a.e("v_bfe_u32 v%d, v%d, 4, 1", v_t + 1, v_lane)
        a.e("v_lshl_add_u32 v%d, v%d, 2, v%d", v_t, v_t + 1, v_t)
        a.e("v_lshlrev_b32 v%d, 13, v%d", v_t, v_t)
        a.e("s_and_b32 s%d, s%d, 1", s_t0, s_w)
        a.e("s_lshl_b32 s%d, s%d, 1", s_t0, s_t0)
        a.e("v_and_b32 v%d, 3, v%d", v_t + 1, v_lane)
        a.e("v_xor_b32 v%d, s%d, v%d", v_t + 1, s_t0, v_t + 1)
        a.e("v_lshrrev_b32 v%d, 5, v%d", v_wdma, v_lane)
        a.e("v_lshl_add_u32 v%d, v%d, 2, v%d", v_t + 1, v_wdma, v_t + 1)
        a.e("v_lshl_add_u32 v%d, v%d, 4, v%d", v_wdma, v_t + 1, v_t)
        a.e("v_lshlrev_b32 v%d, 4, v%d", v_l16, v_lane)
        a.e("s_waitcnt lgkmcnt(0)")
        srd(a, S_WQ, S_WQ, 4 << 20); srd(a, S_WS, S_WS, WS_BYTES)
        a.e("s_lshl_b32 s%d, s%d, 16", s_wof, s_w)
        a.e("s_lshl_b32 s%d, s%d, 8", s_t0, s_h)
        a.e("s_add_u32 s%d, s%d, s%d", s_wof, s_wof, s_t0)
        a.e("s_lshl_b32 s%d, s%d, 10", s_wm0, s_w)
        role_setup()

    def kk_of(i, dst):
        a.e("s_add_u32 s%d, s%d, %d", dst, s_kk0, i)
        a.e("s_and_b32 s%d, s%d, 7", dst, dst)
    def wq_lds(step):
        return (step * 16384) if fuse is None else (((step + 4) & 7) * 16384)
    def stage_slot(stage):
        return ((stage if fuse is None else stage + 2) % 4) * SLOT
    def w_dma(step):
        for em in w_dma_l(step): em()
    def w_dma_l(step):
        return [lambda hf=hf: w_dma1(step, hf) for hf in range(2)]
    def w_dma1(step, hf):
        if True:
            kk_of(step, s_t0)
            a.e("s_lshl_b32 s%d, s%d, 19", s_t0, s_t0)
            a.e("s_add_u32 m0, s%d, %d", s_wm0, wq_lds(step) + hf * 8192)
            a.e("s_add_u32 s%d, s%d, s%d", s_t0, s_t0, s_wof)
            if hf: a.e("s_add_u32 s%d, s%d, 128", s_t0, s_t0)
            a.e("buffer_load_dwordx4 v%d, s[%d:%d], s%d offen lds", v_wdma, S_WQ, S_WQ + 3, s_t0)
            vm.issue(("W", step))
    def xn_load(step):
        for em in xn_load_l(step): em()
    def xn_load_l(step):
        L = []
        for u in range(2):
            for qb in range(2):
                def em(u=u, qb=qb):
                    if u == 0 and qb == 0:
                        kk_of(step, s_x1)
                        a.e("s_lshl_b32 s%d, s%d, 11", s_x1, s_x1)
                        a.e("s_add_u32 s%d, s%d, s%d", s_x1, s_x1, s_xn)
                        a.e("s_add_u32 s%d, s%d, 16384", s_x2, s_x1)
                    r = XN + ((step * 2 + u) * 2 + qb) * 4
                    a.e("buffer_load_dwordx4 v[%d:%d], v%d, s[%d:%d], s%d offen offset:%d%s", r, r + 3, v_l16, S_WS, S_WS + 3,
                        s_x1 if qb == 0 else s_x2, u * 1024, SC1)
                    vm.issue(("x", step))
                L.append(em)
        return L
    def stage_addr_static(stage):
        a.e("s_add_u32 s%d, s%d, 0x%x", s_kof, s_hb, WS_K + (stage + 1) * 16384)
        a.e("s_add_u32 s%d, s%d, 0x%x", s_vof, s_hb, WS_V + max(stage, 0) * 16384)
        a.e("s_lshl_b32 s%d, s%d, 12", s_lslot, s_wl)
        a.e("s_add_u32 s%d, s%d, %d", s_lslot, s_lslot, stage_slot(stage) if stage >= 0 else 4 * SLOT)
    def stage_loads(part, tag=None, track=True):
        L = []
        for i in range(4):
            def em(i=i):
                if i == 0:
                    a.e("s_add_u32 m0, s%d, %d", s_lslot, 0 if part == "K" else 16384)
                    a.e("s_nop 0")
                a.e("buffer_load_dwordx4 v%d, s[%d:%d], s%d offen offset:%d%s lds", v_l16, S_WS, S_WS + 3,
                    s_kof if part == "K" else s_vof, i * 1024, SC1)
                if track: vm.issue(tag)
            L.append(em)
        return L
    def only_A(fn):
        l = a.newlabel("LnA")
        a.e("s_cmp_eq_u32 s%d, 0", s_isA)
        a.e("s_cbranch_scc1 %s", l)
        fn()
        a.label(l)

    def vec_setup():
        if fuse is not None: a.e("v_lshlrev_b32 v%d, 4, v%d", v_l16, v_lane)
        a.e("v_add_u32 v%d, 0x10000, v%d", v_hiE, v_trE)
        a.e("v_add_u32 v%d, 0x10000, v%d", v_hiO, v_trO)
        a.e("v_and_b32 v%d, 31, v%d", v_qrel, v_lane)
        a.e("s_lshl_b32 s%d, s%d, 5", s_t0, s_qb)
        a.e("v_add_u32 v%d, s%d, v%d", v_qrel, s_t0, v_qrel)
        a.e("v_lshrrev_b32 v%d, 5, v%d", v_t, v_lane)
        a.e("v_lshlrev_b32 v%d, 2, v%d", v_t, v_t)
        a.e("v_sub_u32 v%d, v%d, v%d", v_qrel, v_qrel, v_t)
    def only_wave(w, fn):
        l = a.newlabel("Lw1")
        a.e("s_cmp_lg_u32 s%d, %d", s_w, w)
        a.e("s_cbranch_scc1 %s", l)
        fn()
        a.label(l)
    def poll(wave, s_off):
        only_wave(wave, lambda: a.e("buffer_load_dword v%d, off, s[%d:%d], %s sc1", v_t, S_DBG, S_DBG + 3, s_off))
    def poll_check(wave, s_off, target, younger):
        only_wave(wave, lambda: poll_check1(s_off, target, younger))
    def poll_check1(s_off, target, younger):
        ok, sp = a.newlabel("Lpok"), a.newlabel("Lpsp")
        a.e("s_waitcnt vmcnt(%d)", younger)
        a.e("v_readfirstlane_b32 s%d, v%d", s_poll, v_t)
        a.e("s_nop 3")
        a.e("s_cmp_ge_u32 s%d, %d", s_poll, target)
        a.e("s_cbranch_scc1 %s", ok)
        a.e("s_mov_b32 s%d, 0x20000", s_n)
        a.label(sp)
        a.e("s_sleep 16")
        a.e("buffer_load_dword v%d, off, s[%d:%d], %s sc1", v_t, S_DBG, S_DBG + 3, s_off)
        a.e("s_waitcnt vmcnt(0)")
        a.e("v_readfirstlane_b32 s%d, v%d", s_poll, v_t)
        a.e("s_nop 3")
        a.e("s_cmp_ge_u32 s%d, %d", s_poll, target)
        a.e("s_cbranch_scc1 %s", ok)
        a.e("s_sub_u32 s%d, s%d, 1", s_n, s_n)
        a.e("s_cbranch_scc0 %s", sp)
        a.label(ok)
    def signal(s_off, track=False):
        l, l2 = a.newlabel("Lsig"), a.newlabel("Lsig")
        a.e("s_cmp_lg_u32 s%d, 0", s_w)
        a.e("s_cbranch_scc1 %s", l)
        a.e("v_mov_b32 v%d, 1", v_t + 1)
        a.e("s_mov_b64 exec, 1")
        a.e("buffer_atomic_add v%d, off, s[%d:%d], %s sc1", v_t + 1, S_DBG, S_DBG + 3, s_off)
        a.e("s_mov_b64 exec, -1")
        if track: a.e("s_branch %s", l2)
        a.label(l)
        if track:
            a.e("buffer_load_dword v%d, off, s[%d:%d], s%d", v_t + 1, S_DBG, S_DBG + 3, s_oob)
            a.label(l2)
            vm.issue("sig")
    def flag_store(val, tag=None, base=WS_FLAG):
        a.e("s_lshl_b32 s%d, s2, 7", s_poll)
        a.e("s_add_u32 s%d, s%d, 0x%x", s_poll, s_poll, base)
        a.e("v_mov_b32 v%d, %d", v_t + 1, val)
        a.e("s_mov_b64 exec, 1")
        a.e("buffer_store_dword v%d, off, s[%d:%d], s%d sc1", v_t + 1, S_WS, S_WS + 3, s_poll)
        a.e("s_mov_b64 exec, -1")
        if tag: vm.issue(tag)
    def flags_load():
        a.e("v_and_b32 v%d, 7, v%d", v_t + 1, v_lane)
        a.e("v_lshlrev_b32 v%d, 12, v%d", v_t + 1, v_t + 1)
        a.e("s_lshl_b32 s%d, s%d, 7", s_poll, s_h)
        a.e("s_add_u32 s%d, s%d, 0x%x", s_poll, s_poll, WS_FLAG)
        a.e("buffer_load_dword v%d, v%d, s[%d:%d], s%d offen sc1", v_t, v_t + 1, S_WS, S_WS + 3, s_poll)
    def flags_check():
        ok, sp = a.newlabel("Lfok"), a.newlabel("Lfsp")
        a.e("s_waitcnt vmcnt(0)")
        a.e("v_cmp_eq_u32 vcc, 1, v%d", v_t)
        a.e("s_nop 3")
        a.e("s_cmp_eq_u64 vcc, -1")
        a.e("s_cbranch_scc1 %s", ok)
        a.e("s_mov_b32 s%d, 0x20000", s_n)
        a.label(sp)
        a.e("s_sleep 8")
        a.e("buffer_load_dword v%d, v%d, s[%d:%d], s%d offen sc1", v_t, v_t + 1, S_WS, S_WS + 3, s_poll)
        a.e("s_waitcnt vmcnt(0)")
        a.e("v_cmp_eq_u32 vcc, 1, v%d", v_t)
        a.e("s_nop 3")
        a.e("s_cmp_eq_u64 vcc, -1")
        a.e("s_cbranch_scc1 %s", ok)
        a.e("s_sub_u32 s%d, s%d, 1", s_n, s_n)
        a.e("s_cbranch_scc0 %s", sp)
        a.label(ok)
    if fuse is not None:
        late_stores = []
        yield dict(late_stores=late_stores, flag_store=flag_store, role_setup=role_setup, vec_setup=vec_setup, w_dma_l=w_dma_l, xn_load_l=xn_load_l, poll=poll, poll_check=poll_check,
                   signal=signal, S_DBG=S_DBG, s_h=s_h, s_poll=s_poll)
    vmB = Cnt(a, "vmcnt", 63)
    vmB.ops = list(vm.ops)
    class Both:
        def issue(self, tag, onlyA=False):
            pass
    def issue_both(tag):
        vmB.ops.append(tag)
    _issue = vm.issue
    state = {"A_only": False}
    def issue2(tag):
        _issue(tag)
        if not state["A_only"]: vmB.ops.append(tag)
    vm.issue = issue2
    def wait_common(tags):
        nA, nB = vm.need(tags), vmB.need(tags)
        if nA is None and nB is None: return
        if nA == nB or nB is None or nA is None:
            n = min(x for x in (nA, nB) if x is not None)
            a.e("s_waitcnt vmcnt(%d)", n)
        else:
            l1, l2 = a.newlabel("Lw"), a.newlabel("Lw")
            a.e("s_cmp_eq_u32 s%d, 0", s_isA)
            a.e("s_cbranch_scc1 %s", l1)
            a.e("s_waitcnt vmcnt(%d)", nA)
            a.e("s_branch %s", l2)
            a.label(l1)
            a.e("s_waitcnt vmcnt(%d)", nB)
            a.label(l2)
        for tr, n in ((vm, nA), (vmB, nB)):
            if n is not None: tr.ops = tr.ops[len(tr.ops) - n:] if n > 0 else []
    def a_loads(stage, part=None):
        def fn():
            state["A_only"] = True
            stage_addr_static(stage)
            if part in (None, "K"):
                for em in stage_loads("K", ("st", stage)): em()
            if stage >= 0 and part in (None, "V"):
                for em in stage_loads("V", ("st", stage)): em()
            state["A_only"] = False
        only_A(fn)
    if fuse is not None:
        s_hoff = s_mfrom
        a.e("s_lshl_b32 s%d, s%d, 2", s_hoff, s_h)
        a.e("s_add_u32 s%d, s%d, 128", s_hoff, s_hoff)
    def mark_poll(): pass

    if fuse is None:
        for s in range(2):
            w_dma(s); xn_load(s)
        st.mark()
        a.e("v_bfe_u32 v%d, v%d, 2, 2", v_t, v_lane)
        a.e("v_lshlrev_b32 v%d, 6, v%d", v_t, v_t)
        a.e("v_and_b32 v%d, 3, v%d", v_t + 1, v_lane)
        a.e("v_lshl_add_u32 v%d, v%d, 3, v%d", v_t, v_t + 1, v_t)
        a.e("v_lshrrev_b32 v%d, 4, v%d", v_t + 1, v_lane)
        a.e("v_lshl_add_u32 v%d, v%d, 10, v%d", v_t, v_t + 1, v_t)
        a.e("v_and_b32 v%d, 1, v%d", v_t + 1, v_t + 1)
        a.e("v_lshl_add_u32 v%d, v%d, 5, v%d", v_trE, v_t + 1, v_t)
        a.e("v_xor_b32 v%d, 32, v%d", v_trO, v_trE)
        vec_setup()

    qfr = []
    for s in range(8):
        for u in range(2):
            for cb in range(8):
                off = (wq_lds(s) & 0xffff) + (cb >> 2) * 8192 + u * 4096 + ((cb >> 1) & 1) * 512
                dg = cb >> 1
                accs = [ACC + ((dg * 2 + qb) * 2 + (cb & 1)) * 4 for qb in range(2)]
                xfs = [XN + ((s * 2 + u) * 2 + qb) * 4 for qb in range(2)]
                qfr.append((s, off, cb & 1, accs, xfs, s == 0 and u == 0))
    def w_read(gi):
        s, off, odd, accs, xfs, first = qfr[gi]
        r = WF + (gi % NRW) * 4
        base = (v_trO if odd else v_trE) if wq_lds(s) < 65536 else (v_hiO if odd else v_hiE)
        for t in range(2):
            a.e("ds_read_b64_tr_b16 v[%d:%d], v%d offset:%d", r + 2 * t, r + 2 * t + 1, base, off + t * 256)
            lg.issue(("W", gi))
    wait_common([("W", 0), ("x", 0)] + ([("W", 1)] if fuse is not None else []))
    a.e("s_barrier")
    if fuse is None: st.mark()
    PRE = NRW - 1
    _x6 = {}
    nread = [0]
    FQS = (1, 2, 4, 5) if 'fqb' not in exp else (3, 5, 6, 7)
    SIGSTEP = 2 if 'early' in exp else (5 if 'even' in exp else (4 if 'latev0' in exp else 3))
    POLLSTEP = 5 if 'poll5' in exp else 4
    assert POLLSTEP >= SIGSTEP
    for gi, (s, off, odd, accs, xfs, first) in enumerate(qfr):
        k = gi % 16
        if k == 0:
            if s > 0: a.e("s_barrier")
            if "fq" in exp and s in FQS: st.mark()
            pend = []
            if fuse is None:
                if s == 0:
                    pend = w_dma_l(2) + xn_load_l(2) + w_dma_l(3) + xn_load_l(3) + [lambda: a_loads(-1)]
                elif s + 3 < 8:
                    pend = w_dma_l(s + 3) + xn_load_l(s + 3)
                if s in (2, 4, 6): pend.append(lambda s=s: a_loads(s // 2 - 1))
            else:
                if "early" in exp:
                    if s < 4: pend = w_dma_l(s + 4)
                    if s == 0: pend += xn_load_l(6) + xn_load_l(7)
                else:
                    if "even" in exp:
                        ls = late_stores
                        if s == 0: pend = xn_load_l(3) + [ls[0]] + w_dma_l(4) + [lambda: None] * 4 + [ls[1]]
                        elif s == 1: pend = xn_load_l(4) + w_dma_l(5) + [lambda: None] * 2 + [ls[2]]
                        elif s == 2: pend = xn_load_l(5) + [ls[3]] + w_dma_l(6)
                        elif s == 3:
                            x6 = xn_load_l(6); pend = x6[:2] + [ls[4]] + x6[2:] + w_dma_l(7)
                        elif s == 4: pend = xn_load_l(7)
                    elif "mid" in exp:
                        if s == 0: pend = xn_load_l(3) + w_dma_l(4) + late_stores[:4]
                        elif s == 1: pend = xn_load_l(4) + w_dma_l(5) + late_stores[4:]
                        elif s <= 3: pend = xn_load_l(s + 3) + w_dma_l(s + 4)
                        elif s == 4: pend = xn_load_l(7)
                    elif s == 0: pend = w_dma_l(2) + xn_load_l(2) + w_dma_l(3) + late_stores[:4]
                    elif s == 1: pend = xn_load_l(3) + w_dma_l(4) + xn_load_l(4) + late_stores[4:]
                    elif s + 3 < 8: pend = w_dma_l(s + 3) + xn_load_l(s + 3)
                if s == SIGSTEP: pend = pend + [lambda: only_wave(0, lambda: flag_store(1))]
                if s == POLLSTEP:
                    pend = pend + [lambda: only_wave(4, flags_load)]
                if s == POLLSTEP + 1: pend = pend + [lambda: a_loads(-1, "K"), lambda: None, lambda: a_loads(0, "K"), lambda: None, lambda: a_loads(0, "V"),
                                   lambda: None, lambda: a_loads(1, "K"), lambda: None, lambda: a_loads(1, "V")]
                if s == max(6, POLLSTEP + 2) - (0): pend = pend + [lambda: a_loads(2, "K"), lambda: a_loads(2, "V")]
        lim = 16 if (s == 0 and fuse is None) else len(qfr)
        while nread[0] < min(gi + PRE + 1, lim): w_read(nread[0]); nread[0] += 1
        lg.wait(("W", gi))
        wf = WF + (gi % NRW) * 4
        for qb in range(2):
            d, xf = accs[qb], xfs[qb]
            c = "0" if first else "v[%d:%d]" % (d, d + 3)
            a.e("v_mfma_f32_16x16x32_bf16 v[%d:%d], v[%d:%d], v[%d:%d], %s", d, d + 3, wf, wf + 3, xf, xf + 3, c)
        if pend and k >= 1: pend.pop(0)()
        if k == (15 if ((s == 0 and (fuse is None or "early" not in exp)) or (s == 1 and "latev0" in exp)) else 11) and s + 1 < 8:
            assert not pend
            tags = [("x", s + 1), ("W", s + 1)] + ([("W", s + 2)] if s + 2 < 8 else [])
            if fuse is not None and s == SIGSTEP - 1: tags.append("st")
            wait_common(tags)
        if fuse is not None and s == POLLSTEP and k == 15:
            only_wave(4, flags_check)
    if "fq" not in exp: st.mark()
    a.e("s_nop 7")
    for blk in range(8):
        for i in range(4):
            a.e("v_cvt_pk_bf16_f32 v%d, v%d, v%d", Q + blk * 4 + i, ACC + blk * 8 + 2 * i, ACC + blk * 8 + 2 * i + 1)
    a.e("s_nop 1")
    for dg in range(4):
        for i in range(4):
            a.e("v_permlane16_swap_b32 v%d, v%d", Q + (dg * 2) * 4 + i, Q + (dg * 2 + 1) * 4 + i)
    wait_common([("st", -1), ("st", 0)])
    a.e("s_barrier")
    a.e("v_mov_b32 v%d, 0", v_l)
    a.e("v_mov_b32 v%d, 0xff800000", v_ninf)
    a.e("s_mov_b32 s%d, %d", s_cur, stage_slot(0))
    a.e("v_add_u32 v%d, %d, v%d", v_rd, stage_slot(0), v_l16)
    a.e("s_mov_b32 s%d, 3", s_ld)
    a.e("s_mov_b32 s%d, %d", s_lst, stage_slot(3))
    if fuse is None: st.mark()

    def dyn_stage_setup():
        L = []
        L.append("s_lshl_b32 s%d, s%d, 14" % (s_t0, s_ld))
        L.append("s_add_u32 s%d, s%d, s%d" % (s_t0, s_t0, s_hb))
        L.append("s_add_u32 s%d, s%d, 0x%x" % (s_kof, s_t0, WS_K + 16384))
        L.append("s_add_u32 s%d, s%d, 0x%x" % (s_vof, s_t0, WS_V))
        L.append("s_cmp_lt_u32 s%d, s%d" % (s_ld, s_TB))
        L.append("s_cselect_b32 s%d, s%d, s%d" % (s_kof, s_kof, s_oob))
        L.append("s_cselect_b32 s%d, s%d, s%d" % (s_vof, s_vof, s_oob))
        L.append("s_lshl_b32 s%d, s%d, 12" % (s_lslot, s_wl))
        L.append("s_add_u32 s%d, s%d, s%d" % (s_lslot, s_lslot, s_lst))
        return L
    def dyn_stage_advance():
        return ["s_add_u32 s%d, s%d, 1" % (s_ld, s_ld),
                "s_add_u32 s%d, s%d, %d" % (s_lst, s_lst, SLOT),
                "s_and_b32 s%d, s%d, %d" % (s_lst, s_lst, 4 * SLOT - 1)]
    def kfrag_off(b, ks): return (b * 8 + ks) * 1024
    def vfrag_off(b, s_, db): return 16384 + (b * 8 + s_ * 4 + db) * 1024
    seq = []
    for ks in range(8): seq.append(("QK", 0, ks, kfrag_off(0, ks)))
    for s_ in range(2):
        for db in range(4): seq.append(("PV", 0, (s_, db), vfrag_off(0, s_, db)))
    for ks in range(8): seq.append(("QK", 1, ks, kfrag_off(1, ks)))
    for s_ in range(2):
        for db in range(4): seq.append(("PV", 1, (s_, db), vfrag_off(1, s_, db)))
    def mfma(item, reg, c0=None):
        kind, b, idx, off = item
        if "m16" in exp:
            if kind == "QK":
                for z in range(2):
                    d = S[b] + 4 * ((2 * idx + z) % 4)
                    q = Q + ((idx + z) % 8) * 4
                    c = ("v[%d:%d]" % (NEGM, NEGM + 3)) if idx < 2 else "v[%d:%d]" % (d, d + 3)
                    a.e("v_mfma_f32_16x16x32_bf16 v[%d:%d], v[%d:%d], v[%d:%d], %s", d, d + 3, reg, reg + 3, q, q + 3, c)
            else:
                s_, db = idx
                for z in range(2):
                    d = O + db * 16 + s_ * 8 + z * 4
                    a.e("v_mfma_f32_16x16x32_bf16 v[%d:%d], v[%d:%d], v[%d:%d], v[%d:%d]", d, d + 3, reg, reg + 3, P[b] + 4 * z, P[b] + 4 * z + 3, d, d + 3)
            return
        if kind == "QK":
            c = ("v[%d:%d]" % (NEGM, NEGM + 15) if c0 is None else c0) if idx == 0 else "v[%d:%d]" % (S[b], S[b] + 15)
            a.e("v_mfma_f32_32x32x16_bf16 v[%d:%d], v[%d:%d], v[%d:%d], %s", S[b], S[b] + 15, reg, reg + 3, Q + idx * 4, Q + idx * 4 + 3, c)
        else:
            s_, db = idx
            a.e("v_mfma_f32_32x32x16_bf16 v[%d:%d], v[%d:%d], v[%d:%d], v[%d:%d]", O + db * 16, O + db * 16 + 15, reg, reg + 3,
                P[b] + 4 * s_, P[b] + 4 * s_ + 3, O + db * 16, O + db * 16 + 15)
    def sm_stream(b):
        L = []
        for r in range(17):
            if r < 16: L.append((r, 0, "v_exp_f32 v%d, v%d" % (TT + r % 4, S[b] + r)))
            if "pk" in exp:
                pp = v_pk[b]
                if r == 2: L.append((r, 1, "v_mov_b32 v%d, v%d" % (pp, TT + 0)))
                elif r == 3: L.append((r, 1, "v_mov_b32 v%d, v%d" % (pp + 1, TT + 1)))
                elif r >= 4 and r % 2 == 0:
                    t0 = TT + (r - 2) % 4
                    L.append((r, 1, "v_pk_add_f32 v[%d:%d], v[%d:%d], v[%d:%d]" % (pp, pp + 1, pp, pp + 1, t0, t0 + 1)))
                    if r == 16: L.append((r, 1, "v_add_f32 v%d, v%d, v%d" % (v_ps[b], pp, pp + 1)))
            elif r == 2: L.append((r, 1, "v_add_f32 v%d, v%d, v%d" % (v_ps[b], TT + 0, TT + 1)))
            elif r >= 3: L.append((r, 1, "v_add_f32 v%d, v%d, v%d" % (v_ps[b], v_ps[b], TT + (r - 1) % 4)))
            if r >= 2 and r % 2 == 0:
                i = r // 2 - 1
                L.append((r, 2, "v_cvt_pk_bf16_f32 v%d, v%d, v%d" % (P[b] + i, TT + (2 * i) % 4, TT + (2 * i + 1) % 4)))
        return L
    def sm_plain(b, lo=0, hi=16):
        for r in range(lo, hi + 1):
            for (rr, pos, ins) in sm_stream(b):
                if rr == r: a.e(ins)
            if r == 15 or r == hi: a.e("s_nop 0")
    START = [12, 28]
    stubs = []
    def cmp_ps(b): a.e("v_cmp_lt_f32 vcc, s%d, v%d", s_thr, v_ps[b])
    def br_slow(b, tag, replay):
        lab = "%s_chk%d_%s" % (name, b, tag)
        a.e("s_cbranch_vccnz %s", lab)
        a.label(lab + "_ret")
        stubs.append((lab, "%s_slow%d_%d" % (name, b, replay), lab + "_ret"))
    def ladd(b): a.e("v_add_f32 v%d, v%d, v%d", v_l, v_l, v_ps[b])

    def emit_mask(b, tile_expr_off):
        a.e("s_add_u32 s%d, s%d, %d", s_kb, s_t, tile_expr_off)
        a.e("s_lshl_b32 s%d, s%d, 6", s_kb, s_kb)
        a.e("s_add_u32 s%d, s%d, %d", s_kb, s_kb, 32 * b)
        a.e("v_subrev_u32 v%d, s%d, v%d", v_D, s_kb, v_qrel)
        for r0 in range(0, 16, 4):
            for j in range(4):
                r = r0 + j; i = r >> 2
                cst = 16 * (i & 1) + 8 * (i >> 1) + (r & 3)
                a.e("v_cmp_le_i32 s[%d:%d], %d, v%d", s_m + 2 * j, s_m + 2 * j + 1, cst, v_D)
            a.e("s_nop 1")
            for j in range(4):
                r = r0 + j
                a.e("v_cndmask_b32 v%d, v%d, v%d, s[%d:%d]", S[b] + r, v_ninf, S[b] + r, s_m + 2 * j, s_m + 2 * j + 1)

    def max16(dst, regs):
        a.e("v_max3_f32 v%d, v%d, v%d, v%d", dst, regs[0], regs[1], regs[2])
        i = 3
        while i < len(regs):
            if i + 1 < len(regs):
                a.e("v_max3_f32 v%d, v%d, v%d, v%d", dst, dst, regs[i], regs[i + 1]); i += 2
            else:
                a.e("v_max_f32 v%d, v%d, v%d", dst, dst, regs[i]); i += 1
    def crosshalf_max(r, t):
        a.e("v_mov_b32 v%d, v%d", t, r)
        a.e("s_nop 1")
        a.e("v_permlane32_swap_b32 v%d, v%d", r, t)
        a.e("s_nop 1")
        a.e("v_max_f32 v%d, v%d, v%d", r, r, t)

    def kv_read(i, base):
        item = seq[i % 32]
        r = RING + (i % NR) * 4
        a.e("ds_read_b128 v[%d:%d], v%d offset:%d", r, r + 3, base, item[3])

    def preloop(tag):
        def k0read(i):
            a.e("ds_read_b128 v[%d:%d], v%d offset:%d", RING + i * 4, RING + i * 4 + 3, v_rdn, kfrag_off(i >> 3, i & 7))
        for i in range(12): k0read(i)
        oz = 0
        for ks in range(8):
            if ks % 4 == 0: a.e("s_waitcnt lgkmcnt(8)")
            mfma(("QK", 0, ks, 0), RING + ks * 4, c0="0")
            if ks < 4: k0read(12 + ks)
            for _ in range(5):
                if oz < 64: a.e("v_mov_b32 v%d, 0", O + oz); oz += 1
        while oz < 64: a.e("v_mov_b32 v%d, 0", O + oz); oz += 1
        l = a.newlabel("Lpm")
        a.e("s_cmp_lg_u32 s%d, 1", s_T)
        a.e("s_cbranch_scc1 %s", l)
        a.e("s_mov_b32 s%d, -1", s_t)
        emit_mask(0, 1)
        a.label(l)
        max16(v_mx, [S[0] + i for i in range(16)])
        crosshalf_max(v_mx, v_f)
        for i in range(16):
            a.e("v_sub_f32 v%d, 0, v%d", NEGM + i, v_mx)
        for i in range(16):
            a.e("v_sub_f32 v%d, v%d, v%d", S[0] + i, S[0] + i, v_mx)
        a.e("s_waitcnt lgkmcnt(0)")
        items = [ins for (r, pos, ins) in sm_stream(0)]
        per = (len(items) + 7) // 8
        for ks in range(8):
            mfma(("QK", 1, ks, 0), RING + (8 + ks) * 4)
            for ins in items[ks * per:(ks + 1) * per]: a.e(ins)
        for i in range(PD): kv_read(i, v_rd)
        l = a.newlabel("Lpm")
        a.e("s_cmp_lg_u32 s%d, 1", s_T)
        a.e("s_cbranch_scc1 %s", l)
        emit_mask(1, 1)
        a.label(l)
        sm_plain(1, 0, 3)
        a.e("s_waitcnt lgkmcnt(0)")

    def iteration(tag, masked, even=False):
        tg = tag + ("m" if masked else "") + ("e" if even else "")
        top = "%s_loop%s" % (name, tg)
        streams = {}
        for b in range(2):
            for (r, pos, ins) in sm_stream(b):
                if even and b == 1 and r <= 3: continue
                streams.setdefault(((START[b] + r) % 32, pos), []).append(ins)
        misc = {k: [] for k in range(32)}
        misc[1].append("s_waitcnt lgkmcnt(4)"); misc[9].append("s_waitcnt lgkmcnt(4)")
        misc[17].append("s_waitcnt lgkmcnt(4)"); misc[25].append("s_waitcnt lgkmcnt(4)")
        misc[3].append(lambda: ladd(0)); misc[21].append(lambda: ladd(1))
        misc[5].append("s_add_u32 s%d, s%d, %d" % (s_cur, s_cur, SLOT))
        misc[7].append("s_and_b32 s%d, s%d, %d" % (s_cur, s_cur, 4 * SLOT - 1))
        if tag == "A": misc[13].append("s_waitcnt vmcnt(8)")
        if "nobar" not in exp: misc[13].append("s_barrier")
        misc[15].append(lambda: br_slow(1, tg, 3))
        misc[19].append("v_add_u32 v%d, s%d, v%d" % (v_rd, s_cur, v_l16))
        misc[31].append(lambda: br_slow(0, tg, 9 if even else 3))
        if masked: misc[23].append("s_add_u32 s%d, s%d, 1" % (s_t, s_t))
        if tag == "A":
            setup = dyn_stage_setup()
            ld = stage_loads("K", track=False) + stage_loads("V", track=False)
            adv = dyn_stage_advance()
            for l_ in setup[:5]: misc[14].append(l_)
            for l_ in setup[5:]: misc[16].append(l_)
            for i, em in enumerate(ld): misc[[18, 20, 22, 23, 24, 26, 27, 28][i]].append(em)
            for l_ in adv: misc[29].append(l_)
        a(".p2align 3")
        a.label(top)
        for k in range(32):
            if not (even and 16 <= k < 24): mfma(seq[k], RING + (k % NR) * 4)
            if "nords" not in exp: kv_read(k + PD, v_rd)
            if masked and k == START[0]: emit_mask(0, 1)
            if masked and k == START[1] and not even: emit_mask(1, 0)
            for pos in range(3):
                if pos == 1 and k == 29: cmp_ps(0)
                if pos == 1 and k == 13: cmp_ps(1)
                for ins in streams.get((k, pos), []):
                    if "nosm" in exp: continue
                    a.e(ins)
            for m_ in misc[k]:
                if callable(m_): m_()
                else: a.e(m_)
        a.e("s_sub_u32 s%d, s%d, 1", s_cnt, s_cnt)
        a.e("s_cbranch_scc0 %s", top)

    def mainloop(tag):
        lsk, lend = a.newlabel("Lsk"), a.newlabel("Lend")
        a.e("s_cmp_lt_u32 s%d, 2", s_T)
        a.e("s_cbranch_scc1 %s", lend)
        a.e("s_cmp_lt_u32 s%d, 3", s_T)
        a.e("s_cbranch_scc1 %s", lsk)
        a.e("s_sub_u32 s%d, s%d, 3", s_cnt, s_T)
        iteration(tag, False)
        a.label(lsk)
        a.e("s_sub_u32 s%d, s%d, 2", s_t, s_T)
        a.e("s_mov_b32 s%d, 0", s_cnt)
        if "hbskip" in exp:
            le = a.newlabel("Lev")
            a.e("s_bitcmp0_b32 s%d, 0", s_qb)
            a.e("s_cbranch_scc1 %s", le)
            iteration(tag, True)
            a.e("s_branch %s", lend)
            a.label(le)
            iteration(tag, True, True)
        else:
            iteration(tag, True)
        a.label(lend)

    def final(tag):
        a.e("s_waitcnt lgkmcnt(0)")
        if tag == "B" and "nobar" not in exp:
            lb = a.newlabel("Lnb")
            a.e("s_cmp_eq_u32 s%d, s%d", s_T, s_TB)
            a.e("s_cbranch_scc1 %s", lb)
            a.e("s_barrier")
            a.label(lb)
        if "hbskip" in exp:
            le, lf = a.newlabel("Lfe"), a.newlabel("Lff")
            a.e("s_bitcmp0_b32 s%d, 0", s_qb)
            a.e("s_cbranch_scc1 %s", le)
            final_body(tag, False)
            a.e("s_branch %s", lf)
            a.label(le)
            final_body(tag, True)
            a.label(lf)
        else:
            final_body(tag, False)
    def final_body(tag, even):
        pv0 = [("PV", 0, (s_, db), vfrag_off(0, s_, db)) for s_ in range(2) for db in range(4)]
        pv1 = [("PV", 1, (s_, db), vfrag_off(1, s_, db)) for db in range(4) for s_ in range(2)]
        pv = pv0 + pv1
        for i in range(12):
            r = RING + i * 4
            a.e("ds_read_b128 v[%d:%d], v%d offset:%d", r, r + 3, v_rd, pv[i][3])
        ladd(0)
        rest = [] if even else [ins for (r, pos, ins) in sm_stream(1) if r >= 4]
        per = (len(rest) + 7) // 8
        for i in range(8):
            if i % 4 == 0: a.e("s_waitcnt lgkmcnt(8)")
            mfma(pv[i], RING + i * 4)
            if i < 4:
                r = RING + (12 + i) * 4
                a.e("ds_read_b128 v[%d:%d], v%d offset:%d", r, r + 3, v_rd, pv[12 + i][3])
            for ins in rest[i * per:(i + 1) * per]: a.e(ins)
        if not even:
            cmp_ps(1)
            a.e("s_nop 1")
            br_slow(1, "fin" + tag, 9)
            ladd(1)
        a.e("v_mov_b32 v%d, v%d", v_f, v_l)
        a.e("s_lshl_b32 s%d, s%d, 5", s_t0, s_qb)
        a.e("s_add_u32 s%d, s%d, s%d", s_t0, s_t0, s_h)
        a.e("v_permlane32_swap_b32 v%d, v%d", v_l, v_f)
        a.e("s_lshl_b32 s%d, s%d, 13", s_t0, s_t0)
        a.e("s_add_u32 s%d, s%d, 0x%x", s_t0, s_t0, WS_CTX)
        a.e("v_add_f32 v%d, v%d, v%d", v_l, v_l, v_f)
        a.e("v_rcp_f32 v%d, v%d", v_l, v_l)
        a.e("s_add_u32 s%d, s%d, 4096", s_t1, s_t0)
        def epi(db):
            L = []
            for hfz in range(2):
                base = O + db * 16 + hfz * 8
                for i in range(8): L.append("v_mul_f32 v%d, v%d, v%d" % (base + i, base + i, v_l))
                for i in range(4): L.append("v_cvt_pk_bf16_f32 v%d, v%d, v%d" % (base + i, base + 2 * i, base + 2 * i + 1))
                ds = 2 * db + hfz
                L.append("buffer_store_dwordx4 v[%d:%d], v%d, s[%d:%d], s%d offen offset:%d" % (base, base + 3, v_l16, S_WS, S_WS + 3,
                         s_t0 if ds < 4 else s_t1, (ds & 3) * 1024))
            return L
        a.e("s_waitcnt lgkmcnt(0)")
        if even:
            a.e("s_nop 7")
            for db in range(4):
                for ins in epi(db): a.e(ins)
            return
        pend = []
        for i in range(8):
            mfma(pv[8 + i], RING + (8 + i) * 4)
            if i >= 4 and i % 2 == 0:
                pend += epi((i - 4) // 2)
            n = 0
            while pend and n < 13: a.e(pend.pop(0)); n += 1
            if not pend and i < 4: a.e("s_nop 3")
        a.e("s_nop 7")
        for ins in pend: a.e(ins)
        a.e("s_nop 3")
        for db in (2, 3):
            for ins in epi(db): a.e(ins)

    LA = name + "_roleA"
    a.e("v_add_u32 v%d, %d, v%d", v_rdn, 4 * SLOT, v_l16)
    a.e("s_cmp_lg_u32 s%d, 0", s_isA)
    a.e("s_cbranch_scc1 %s", LA)
    if "prioB" in exp: a.e("s_setprio 1")
    preloop("B")
    if "fq" not in exp: st.mark()
    mainloop("B")
    if "fq" not in exp: st.mark()
    final("B")
    if diag:
        a.e("s_waitcnt vmcnt(0)")
        if "fq" not in exp: st.mark()
        st.dump(S_WS, s_w, v_t, s_t0)
        if "dbgst" in exp: st.dump_dbg(S_DBG, s_w, v_t, 2)
    after = fuse.get("after") if fuse is not None else None
    LTA = name + "_ta"
    if after:
        a.e("s_waitcnt vmcnt(0)")
        a.e("s_branch %s", LTA)
    else:
        a.e("s_endpgm")
    a.label(LA)
    preloop("A")
    mainloop("A")
    final("A")
    NPF = 0
    if "pf" in exp:
        NPF = 8
        SP = SPF
        for (karg, size, per, n_i) in ((A_WO, 4 << 20, 16384, 4), (B_W1, 1792 * 1024, 8192, 2), (B_W2, 1792 * 1024, 8192, 2)):
            a.e("s_load_dwordx2 s[%d:%d], s[0:1], %d", SP, SP + 1, karg)
            a.e("s_mul_i32 s%d, s2, %d", s_t0, per)
            a.e("s_mul_i32 s%d, s%d, %d", s_t1, s_wl, per // 4)
            a.e("s_add_u32 s%d, s%d, s%d", s_t0, s_t0, s_t1)
            a.e("s_waitcnt lgkmcnt(0)")
            srd(a, SP, SP, size)
            for i in range(n_i):
                a.e("buffer_load_dwordx4 v[%d:%d], v%d, s[%d:%d], s%d offen offset:%d", 144 + 4 * i, 147 + 4 * i, v_l16, SP, SP + 3, s_t0, i * 1024)
    a.e("s_mov_b32 s%d, 0", s_n)
    ll = name + "_ldloop"
    a.label(ll)
    a.e("s_cmp_lt_u32 s%d, 2", s_n)
    a.e("s_cbranch_scc1 %s_w16", ll)
    a.e("s_waitcnt vmcnt(8)")
    a.e("s_branch %s_go", ll)
    a.label(ll + "_w16")
    a.e("s_waitcnt vmcnt(%d)", 16 + NPF)
    a.label(ll + "_go")
    if "nobar" not in exp: a.e("s_barrier")
    for l in dyn_stage_setup(): a.e(l)
    for em in stage_loads("K", track=False) + stage_loads("V", track=False): em()
    for l in dyn_stage_advance(): a.e(l)
    a.e("s_add_u32 s%d, s%d, 1", s_n, s_n)
    a.e("s_add_u32 s%d, s%d, s%d", s_t0, s_n, s_T)
    a.e("s_cmp_lt_u32 s%d, s%d", s_t0, s_TB)
    a.e("s_cbranch_scc1 %s", ll)
    if "pf" in exp:
        SP = SPF
        a.e("s_load_dwordx2 s[%d:%d], s[0:1], %d", SP, SP + 1, A_WO)
        a.e("s_bfe_u32 s%d, s2, 0x20001", s_t0)
        a.e("s_lshl_b32 s%d, s%d, 20", s_t0, s_t0)
        a.e("s_lshr_b32 s%d, s2, 3", s_t1)
        a.e("s_lshl_b32 s%d, s%d, 15", s_t1, s_t1)
        a.e("s_add_u32 s%d, s%d, s%d", s_t0, s_t0, s_t1)
        a.e("s_lshl_b32 s%d, s%d, 13", s_t1, s_wl)
        a.e("s_add_u32 s%d, s%d, s%d", s_t0, s_t0, s_t1)
        a.e("s_waitcnt lgkmcnt(0)")
        srd(a, SP, SP, 4 << 20)
        for i in range(8):
            if i == 4: a.e("s_add_u32 s%d, s%d, 4096", s_t0, s_t0)
            a.e("buffer_load_dwordx4 v[%d:%d], v%d, s[%d:%d], s%d offen offset:%d", 144 + 4 * (i & 3), 147 + 4 * (i & 3), v_l16, SP, SP + 3, s_t0, (i & 3) * 1024)
    if "cpnext" in exp:
        l_ = a.newlabel("Lcp")
        a.e("s_cmp_lg_u32 s%d, 0", s_wl); a.e("s_cbranch_scc1 %s", l_)
        code_prefetch(a, None, NEXTK, NEXTK + "_end", SPF, s_t0, v_lane, v_t, 160)
        a.label(l_)
    if after:
        a.e("s_waitcnt vmcnt(0)")
        a.label(LTA)
        if "prioB" in exp: a.e("s_setprio 0")
        a.e("s_barrier")
        only_wave(0, lambda: flag_store(1, None, WS_FLAGC))
        a.e("s_mov_b32 s46, s%d", s_w)
        after()
    a.label(name + "_end")
    a.e("s_endpgm")

    done = set()
    for (lab, target, ret) in stubs:
        a.label(lab)
        a.e("s_call_b64 s[%d:%d], %s", s_ret, s_ret + 1, target)
        a.e("s_branch %s", ret)
    for (lab, target, ret) in stubs:
        if target in done: continue
        done.add(target)
        b = int(target.split("_slow")[1][0]); replay = int(target.split("_slow")[1][2:])
        a.label(target)
        a.e("s_nop 15")
        max16(v_mx, [S[b] + i for i in range(16)])
        crosshalf_max(v_mx, v_f)
        a.e("v_ceil_f32 v%d, v%d", v_mx, v_mx)
        a.e("v_max_f32 v%d, 0, v%d", v_mx, v_mx)
        a.e("v_sub_f32 v%d, 0, v%d", v_f, v_mx)
        a.e("v_exp_f32 v%d, v%d", v_f, v_f)
        a.e("s_nop 0")
        for i in range(64): a.e("v_mul_f32 v%d, v%d, v%d", O + i, O + i, v_f)
        a.e("v_mul_f32 v%d, v%d, v%d", v_l, v_l, v_f)
        if False:
            o = 1 - b
            for i in range(8):
                a.e("v_lshlrev_b32 v%d, 16, v%d", U, P[o] + i)
                a.e("v_and_b32 v%d, 0xffff0000, v%d", U + 1, P[o] + i)
                a.e("v_mul_f32 v%d, v%d, v%d", U, U, v_f)
                a.e("v_mul_f32 v%d, v%d, v%d", U + 1, U + 1, v_f)
                a.e("v_cvt_pk_bf16_f32 v%d, v%d, v%d", P[o] + i, U, U + 1)
        for bb in range(2):
            for i in range(16): a.e("v_sub_f32 v%d, v%d, v%d", S[bb] + i, S[bb] + i, v_mx)
        for i in range(16): a.e("v_sub_f32 v%d, v%d, v%d", NEGM + i, NEGM + i, v_mx)
        sm_plain(b)
        if replay != 9: sm_plain(1 - b, 0, replay)
        a.e("s_nop 1")
        a.e("s_setpc_b64 s[%d:%d]", s_ret, s_ret + 1)
```

```python
from gen_common import *
import math, struct
QSCALE_BITS = struct.unpack('<I', struct.pack('<f', math.log2(math.e) / math.sqrt(128.0)))[0]
import gen_common

def gen_k1(a, name="kv_kernel", diag=False, exp="", fused=None):
    kernel_begin(a, name)
    st = Stamps(a, diag, 0) if fused is None else Stamps(a, diag, 0, base=76, maxn=6)
    vm = Cnt(a, "vmcnt", 63); lg = Cnt(a, "lgkmcnt", 15)
    k2, H = None, None
    if fused is not None:
        k2 = fused(vm, lg, st)
        H = next(k2)
    mark = st.mark if fused is None else (lambda: None)
    S_X, S_C, S_WUK, S_WUV, S_W1, S_WS = 4, 8, 12, 16, 20, 24
    s_h, s_j, s_w, s_t0, s_t1, s_t2, s_kk0, s_wof, s_kst, s_vst, s_oct = 28, 29, 30, 31, 32, 33, 34, 35, 36, 37, 38
    s_c0, s_wm0, s_cm0, s_t3 = 39, 40, 41, 42
    s_cp = 62
    v_lane, v_wdma, v_cdE, v_cdO, v_trE, v_trO, v_cr0, v_cr1, v_kst, v_vst, v_t = 0, 1, 2, 3, 4, 5, 6, 7, 8, 9, 10
    WF, NRING = 12, 5
    ACCA, ACCB, CF = 32, 96, 128
    LDS_W, LDS_C, LDS_SCR = 0, 65536, 131072
    T = ACCB

    a.e("s_cmp_ge_u32 s2, 256")
    a.e("s_cbranch_scc1 %s_end", name)
    st.mark()
    a.e("s_load_dwordx4 s[4:7], s[0:1], %d", A_X)
    a.e("s_load_dwordx4 s[12:15], s[0:1], %d", A_WUK)
    a.e("s_load_dwordx2 s[24:25], s[0:1], %d", WS)
    a.e("s_load_dwordx2 s[20:21], s[0:1], %d", A_WQ)
    if fused is not None: a.e("s_load_dwordx2 s[%d:%d], s[0:1], %d", H["S_DBG"], H["S_DBG"] + 1, DBG)
    a.e("v_lshrrev_b32 v%d, 6, v0", v_t)
    a.e("v_mov_b32 v%d, v0", T + 31)
    a.e("v_readfirstlane_b32 s%d, v%d", s_w, v_t)
    a.e("v_and_b32 v%d, 63, v0", v_lane)
    v_x16, v_g = T + 29, T + 30
    a.e("v_and_b32 v%d, 15, v%d", v_x16, v_lane)
    a.e("v_lshrrev_b32 v%d, 4, v%d", v_g, v_lane)
    a.e("s_and_b32 s%d, s2, 31", s_h)
    if "hrot" in exp:
        a.e("s_add_u32 s%d, s%d, 3", s_h, s_h); a.e("s_and_b32 s%d, s%d, 31", s_h, s_h)
    a.e("s_lshr_b32 s%d, s2, 5", s_j)
    a.e("s_lshr_b32 s%d, s%d, 3", s_t0, s_h)
    a.e("s_lshl_b32 s%d, s%d, 1", s_t0, s_t0)
    a.e("s_add_u32 s%d, s%d, s%d", s_kk0, s_t0, s_j)
    a.e("s_and_b32 s%d, s%d, 7", s_kk0, s_kk0)
    if "norot" in exp: a.e("s_mov_b32 s%d, 0", s_kk0)
    if "rot2" in exp or "rot4" in exp:
        a.e("s_lshr_b32 s%d, s%d, 3", s_t0, s_h)
        a.e("s_add_u32 s%d, s%d, s%d", s_kk0, s_t0, s_j)
        if "rot2" in exp:
            a.e("s_and_b32 s%d, s%d, 1", s_kk0, s_kk0); a.e("s_lshl_b32 s%d, s%d, 2", s_kk0, s_kk0)
        else:
            a.e("s_and_b32 s%d, s%d, 3", s_kk0, s_kk0); a.e("s_lshl_b32 s%d, s%d, 1", s_kk0, s_kk0)
    a.e("v_bfe_u32 v%d, v%d, 2, 2", v_t, v_lane)
    a.e("v_bfe_u32 v%d, v%d, 4, 1", v_t + 1, v_lane)
    a.e("v_lshl_add_u32 v%d, v%d, 2, v%d", v_t, v_t + 1, v_t)
    a.e("v_lshlrev_b32 v%d, 13, v%d", v_t, v_t)
    a.e("s_and_b32 s%d, s%d, 1", s_t0, s_w)
    a.e("s_lshl_b32 s%d, s%d, 1", s_t0, s_t0)
    a.e("v_and_b32 v%d, 3, v%d", v_t + 1, v_lane)
    a.e("v_xor_b32 v%d, s%d, v%d", v_t + 1, s_t0, v_t + 1)
    a.e("v_lshrrev_b32 v%d, 5, v%d", v_wdma, v_lane)
    a.e("v_lshl_add_u32 v%d, v%d, 2, v%d", v_t + 1, v_wdma, v_t + 1)
    a.e("v_lshl_add_u32 v%d, v%d, 4, v%d", v_wdma, v_t + 1, v_t)
    a.e("v_lshrrev_b32 v%d, 3, v%d", v_t, v_lane)
    a.e("v_lshrrev_b32 v%d, 1, v%d", v_t + 1, v_t)
    a.e("v_and_b32 v%d, 7, v%d", v_cdE, v_lane)
    a.e("v_xor_b32 v%d, v%d, v%d", v_cdE, v_cdE, v_t + 1)
    a.e("v_lshlrev_b32 v%d, 4, v%d", v_cdE, v_cdE)
    a.e("v_lshl_add_u32 v%d, v%d, 10, v%d", v_cdE, v_t, v_cdE)
    a.e("v_xor_b32 v%d, 64, v%d", v_cdO, v_cdE)
    a.e("s_waitcnt lgkmcnt(0)")
    mark()
    a.e("s_mov_b32 s8, s6"); a.e("s_mov_b32 s9, s7")
    a.e("s_mov_b32 s16, s14"); a.e("s_mov_b32 s17, s15")
    srd(a, S_X, S_X, 2 << 20); srd(a, S_C, S_C, 2 << 20)
    srd(a, S_WUK, S_WUK, 4 << 20); srd(a, S_WUV, S_WUV, 4 << 20)
    srd(a, S_WS, S_WS, WS_BYTES); srd(a, S_W1, S_W1, 4 << 20)
    if fused is not None: srd(a, H["S_DBG"], H["S_DBG"], 256)
    a.e("s_lshl_b32 s%d, s%d, 16", s_wof, s_w)
    a.e("s_lshl_b32 s%d, s%d, 8", s_t0, s_h)
    a.e("s_add_u32 s%d, s%d, s%d", s_wof, s_wof, s_t0)
    a.e("s_lshl_b32 s%d, s%d, 10", s_wm0, s_w)
    a.e("s_lshl_b32 s%d, s%d, 18", s_c0, s_j)
    a.e("s_lshl_b32 s%d, s%d, 15", s_t0, s_w)
    a.e("s_add_u32 s%d, s%d, s%d", s_c0, s_c0, s_t0)
    a.e("s_lshl_b32 s%d, s%d, 13", s_cm0, s_w)
    a.e("s_add_u32 s%d, s%d, %d", s_cm0, s_cm0, LDS_C)

    def kk_of(i, dst):
        a.e("s_add_u32 s%d, s%d, %d", dst, s_kk0, i)
        a.e("s_and_b32 s%d, s%d, 7", dst, dst)
    def w_dma(step):
        slot = step & 3
        L = []
        for hf in range(2):
            if step < 8:
                S, kki, col = S_WUK, step, hf * 128
            else:
                cv = (step - 8) >> 2
                S, kki, col = S_WUV, 2 * ((step - 8) & 3) + hf, cv * 128
            def em(S=S, kki=kki, col=col, hf=hf):
                kk_of(kki, s_t0)
                a.e("s_lshl_b32 s%d, s%d, 19", s_t0, s_t0)
                a.e("s_add_u32 m0, s%d, %d", s_wm0, LDS_W + slot * 16384 + hf * 8192)
                a.e("s_add_u32 s%d, s%d, s%d", s_t0, s_t0, s_wof)
                if col: a.e("s_add_u32 s%d, s%d, %d", s_t0, s_t0, col)
                a.e("buffer_load_dwordx4 v%d, s[%d:%d], s%d offen lds", v_wdma, S, S + 3, s_t0)
                vm.issue(("W", step))
            L.append(em)
        return L
    def c_dma(step):
        slot = step & 1
        L = []
        for q in range(4):
            def em(q=q):
                if q == 0:
                    kk_of(step, s_t1)
                    a.e("s_lshl_b32 s%d, s%d, 7", s_t1, s_t1)
                    a.e("s_add_u32 s%d, s%d, s%d", s_t1, s_t1, s_c0)
                else:
                    a.e("s_add_u32 s%d, s%d, 8192", s_t1, s_t1)
                a.e("s_add_u32 m0, s%d, %d", s_cm0, slot * 4096 + q * 1024)
                a.e("s_nop 0")
                a.e("buffer_load_dwordx4 v%d, s[%d:%d], s%d offen lds", v_cdE if (q & 1) == 0 else v_cdO, S_C, S_C + 3, s_t1)
                vm.issue(("c", step))
            L.append(em)
        return L

    if "wpfk0" in exp:
        a.e("v_lshlrev_b32 v%d, 4, v%d", v_t + 1, v_lane)
        a.e("s_lshl_b32 s%d, s2, 14", s_t0)
        a.e("s_lshl_b32 s%d, s%d, 11", s_t1, s_w)
        a.e("s_add_u32 s%d, s%d, s%d", s_t0, s_t0, s_t1)
        a.e("s_mov_b32 m0, %d", LDS_SCR + 8192)
        for i in range(2):
            a.e("s_add_u32 s%d, s%d, %d", s_t1, s_t0, i * 1024)
            a.e("buffer_load_dwordx4 v%d, s[%d:%d], s%d offen lds", v_t + 1, S_WUK, S_WUK + 3, s_t1)
            vm.issue("wpf")
    for em in c_dma(0) + w_dma(0): em()
    if "cpf" in exp:
        a.e("v_lshlrev_b32 v%d, 4, v%d", v_t + 1, v_lane)
        a.e("s_lshr_b32 s%d, s2, 3", s_t0)
        a.e("s_lshl_b32 s%d, s%d, 16", s_t0, s_t0)
        a.e("s_lshl_b32 s%d, s%d, 13", s_t1, s_w)
        a.e("s_add_u32 s%d, s%d, s%d", s_t0, s_t0, s_t1)
        a.e("s_mov_b32 m0, %d", LDS_SCR + 8192)
        NCP = 4 if "cpf4" in exp else 8
        for i in range(NCP):
            a.e("s_add_u32 s%d, s%d, %d", s_t1, s_t0, i * 1024 * (8 // NCP))
            a.e("buffer_load_dwordx4 v%d, s[%d:%d], s%d offen lds", v_t + 1, S_C, S_C + 3, s_t1)
            vm.issue("cpf")
    for em in c_dma(1) + w_dma(1): em()
    a.e("s_lshl_b32 s%d, s2, 3", s_t0)
    a.e("s_add_u32 s%d, s%d, s%d", s_t0, s_t0, s_w)
    a.e("s_lshl_b32 s%d, s%d, 10", s_t0, s_t0)
    a.e("v_lshlrev_b32 v%d, 4, v%d", v_t, v_lane)
    a.e("buffer_load_dwordx4 v[%d:%d], v%d, s[%d:%d], s%d offen", T, T + 3, v_t, S_X, S_X + 3, s_t0)
    vm.issue("x")
    mark()

    def wpf_block():
        a.e("v_lshlrev_b32 v%d, 4, v%d", v_t + 1, v_lane)
        a.e("s_lshl_b32 s%d, s2, 14", s_t0)
        a.e("s_lshl_b32 s%d, s%d, 11", s_t1, s_w)
        a.e("s_add_u32 s%d, s%d, s%d", s_t0, s_t0, s_t1)
        a.e("s_mov_b32 m0, %d", LDS_SCR + 8192)
        a.e("s_nop 0")
        for S_ in ([S_WUV] if "wpfv" in exp else ([S_WUV, S_W1] if "wpfq" in exp else [S_WUK, S_WUV])):
            for i in range(2):
                a.e("s_add_u32 s%d, s%d, %d", s_t1, s_t0, i * 1024)
                a.e("buffer_load_dwordx4 v%d, s[%d:%d], s%d offen lds", v_t + 1, S_, S_ + 3, s_t1)
                vm.issue("wpf")
    if "wpf" in exp and "wpflate" not in exp: wpf_block()
    def cp0_block():
        lpc = name + "_pc"
        a.e("s_getpc_b64 s[%d:%d]", s_cp, s_cp + 1)
        a.label(lpc)
        a.e("s_sub_u32 s%d, s%d, %s - %s", s_cp, s_cp, lpc, name)
        a.e("s_subb_u32 s%d, s%d, 0", s_cp + 1, s_cp + 1)
        a.e("s_lshr_b32 s%d, s2, 3", s_t0)
        a.e("s_lshl_b32 s%d, s%d, 3", s_t0, s_t0)
        a.e("s_add_u32 s%d, s%d, s%d", s_t0, s_t0, s_w)
        a.e("s_lshl_b32 s%d, s%d, 8", s_t0, s_t0)
        a.e("v_lshl_add_u32 v%d, v%d, 2, s%d", v_t + 1, v_lane, s_t0)
        a.e("s_mov_b32 s%d, all_code_end - %s - 4", s_t0, name)
        a.e("v_min_u32 v%d, s%d, v%d", v_t + 1, s_t0, v_t + 1)
        a.e("global_load_dword v%d, v%d, s[%d:%d]", T + 28, v_t + 1, s_cp, s_cp + 1)
        vm.issue("cpf")
    if "cp0" in exp and "cplate" not in exp: cp0_block()
    if fused is not None:
        H["role_setup"]()
        if "clrone" in exp: H["flags_clear"]()
        elif "clrlate" not in exp:
            H["flag_store"](0, "clr")
            if "clrtail" in exp:
                for base in (WS_FLAG1, WS_FLAG2, WS_FLAG3) + ((WS_FLAGC,) if "onel" in exp else ()): H["flag_store"](0, "clr", base)
    a.e("v_bfe_u32 v%d, v%d, 2, 2", v_t, v_lane)
    a.e("v_lshlrev_b32 v%d, 6, v%d", v_t, v_t)
    a.e("v_and_b32 v%d, 3, v%d", v_t + 1, v_lane)
    a.e("v_lshl_add_u32 v%d, v%d, 3, v%d", v_t, v_t + 1, v_t)
    a.e("v_lshl_add_u32 v%d, v%d, 10, v%d", v_t, v_g, v_t)
    a.e("v_and_b32 v%d, 1, v%d", v_t + 1, v_g)
    a.e("v_lshl_add_u32 v%d, v%d, 5, v%d", v_trE, v_t + 1, v_t)
    a.e("v_xor_b32 v%d, 32, v%d", v_trO, v_trE)
    a.e("v_lshrrev_b32 v%d, 1, v%d", v_t, v_x16)
    a.e("v_xor_b32 v%d, v%d, v%d", v_t, v_t, v_g)
    a.e("v_lshlrev_b32 v%d, 4, v%d", v_t, v_t)
    a.e("v_lshl_add_u32 v%d, v%d, 7, v%d", v_t, v_x16, v_t)
    a.e("v_add_u32 v%d, s%d, v%d", v_cr0, s_cm0, v_t)
    a.e("v_xor_b32 v%d, 64, v%d", v_cr1, v_cr0)
    a.e("v_and_b32 v%d, 1, v%d", v_t, v_g)
    a.e("v_lshlrev_b32 v%d, 10, v%d", v_kst, v_t)
    a.e("v_lshrrev_b32 v%d, 1, v%d", v_t, v_g)
    a.e("v_lshl_add_u32 v%d, v%d, 9, v%d", v_kst, v_t, v_kst)
    a.e("v_lshrrev_b32 v%d, 3, v%d", v_t, v_x16)
    a.e("v_lshl_add_u32 v%d, v%d, 8, v%d", v_kst, v_t, v_kst)
    a.e("v_and_b32 v%d, 7, v%d", v_t, v_x16)
    a.e("v_lshl_add_u32 v%d, v%d, 4, v%d", v_kst, v_t, v_kst)
    a.e("v_lshrrev_b32 v%d, 1, v%d", v_t, v_g)
    a.e("v_lshlrev_b32 v%d, 12, v%d", v_vst, v_t)
    a.e("v_and_b32 v%d, 1, v%d", v_t, v_g)
    a.e("v_lshl_add_u32 v%d, v%d, 9, v%d", v_vst, v_t, v_vst)
    a.e("v_lshl_add_u32 v%d, v%d, 4, v%d", v_vst, v_x16, v_vst)
    a.e("s_mul_i32 s%d, s%d, %d", s_kst, s_h, HEAD_STRIDE)
    a.e("s_lshl_b32 s%d, s%d, 16", s_t0, s_j)
    a.e("s_add_u32 s%d, s%d, s%d", s_kst, s_kst, s_t0)
    a.e("s_lshl_b32 s%d, s%d, 13", s_t0, s_w)
    a.e("s_add_u32 s%d, s%d, s%d", s_kst, s_kst, s_t0)
    a.e("s_add_u32 s%d, s%d, 0x%x", s_vst, s_kst, WS_V)

    class Rec:
        def __init__(self): self.L = []
        def e(self, fmt, *x): self.L.append(fmt % x if x else fmt)
    r_ = Rec()
    F = T + 8
    for i in range(4):
        r_.e("v_lshlrev_b32 v%d, 16, v%d", F + 2 * i, T + i)
        r_.e("v_and_b32 v%d, 0xffff0000, v%d", F + 2 * i + 1, T + i)
    M, TT, V2, RS = T + 16, T + 17, T + 18, T + 19
    r_.e("v_add_f32 v%d, v%d, v%d", M, F, F + 1)
    for i in range(2, 8):
        r_.e("v_add_f32 v%d, v%d, v%d", M, M, F + i)
    allsum64(r_, M, TT)
    r_.e("v_mul_f32 v%d, 0x3b000000, v%d", M, M)
    for i in range(8):
        r_.e("v_sub_f32 v%d, v%d, v%d", F + i, F + i, M)
    r_.e("v_mul_f32 v%d, v%d, v%d", V2, F, F)
    for i in range(1, 8):
        r_.e("v_fmac_f32 v%d, v%d, v%d", V2, F + i, F + i)
    allsum64(r_, V2, TT)
    r_.e("v_mov_b32 v%d, 0x3727c5ac", RS)
    r_.e("v_fmac_f32 v%d, 0x3b000000, v%d", RS, V2)
    r_.e("v_rsq_f32 v%d, v%d", RS, RS)
    r_.e("s_nop 0")
    r_.e("v_mul_f32 v%d, 0x%x, v%d", RS, QSCALE_BITS, RS)
    for i in range(8):
        r_.e("v_mul_f32 v%d, v%d, v%d", F + i, F + i, RS)
    for i in range(4):
        r_.e("v_cvt_pk_bf16_f32 v%d, v%d, v%d", T + i, F + 2 * i, F + 2 * i + 1)
    r_.e("s_lshl_b32 s%d, s%d, 10", s_t3, s_w)
    r_.e("s_add_u32 s%d, s%d, %d", s_t3, s_t3, LDS_SCR)
    r_.e("v_lshl_add_u32 v%d, v%d, 4, s%d", T + 20, v_lane, s_t3)
    LN1 = r_.L
    r2 = Rec()
    X0, X1, X2 = T + 20, T + 21, T + 22
    r2.e("v_and_b32 v%d, 7, v%d", X0, v_lane)
    r2.e("v_lshrrev_b32 v%d, 3, v%d", X1, v_lane)
    r2.e("s_lshl_b32 s%d, s%d, 3", s_t3, s_w)
    r2.e("v_add_u32 v%d, s%d, v%d", X1, s_t3, X1)
    r2.e("v_lshlrev_b32 v%d, 10, v%d", F, X0)
    r2.e("v_lshl_add_u32 v%d, v%d, 4, v%d", F, X1, F)
    r2.e("v_add_u32 v%d, %d, v%d", F, LDS_SCR, F)
    LN2a = r2.L
    r3 = Rec()
    r3.e("v_lshrrev_b32 v%d, 2, v%d", F + 1, X1)
    r3.e("v_lshlrev_b32 v%d, 10, v%d", F + 1, F + 1)
    r3.e("v_and_b32 v%d, 3, v%d", X1, X1)
    r3.e("v_lshl_add_u32 v%d, v%d, 8, v%d", F + 1, X1, F + 1)
    r3.e("v_lshl_add_u32 v%d, v%d, 4, v%d", F + 1, X0, F + 1)
    r3.e("s_lshr_b32 s%d, s2, 1", s_t3)
    r3.e("s_lshl_b32 s%d, s%d, 14", s_t3, s_t3)
    r3.e("s_and_b32 s%d, s2, 1", s_oct)
    r3.e("s_lshl_b32 s%d, s%d, 7", s_oct, s_oct)
    r3.e("s_add_u32 s%d, s%d, s%d", s_t3, s_t3, s_oct)
    r3.e("s_add_u32 s%d, s%d, 0x%x", s_t3, s_t3, WS_XN)
    LN2b = r3.L

    v_lin = v_trO
    if 'b128test' in exp: a.e('v_lshlrev_b32 v%d, 4, v%d', v_lin, v_lane)
    def c_reads(step):
        for u in range(2):
            for kb in range(2):
                r = CF + ((step * 2 + u) * 2 + kb) * 4
                a.e("ds_read_b128 v[%d:%d], v%d offset:%d", r, r + 3, v_cr0 if u == 0 else v_cr1, (step & 1) * 4096 + kb * 2048)
                lg.issue(("c", step))

    vm.wait([("c", 0), ("W", 0)])
    c_reads(0)
    mark()
    a.e("s_barrier")
    mark()

    def step_frags(step):
        L = []
        if step < 8:
            for u in range(2):
                for cb in range(8):
                    off = (cb >> 2) * 8192 + u * 4096 + ((cb >> 1) & 1) * 512
                    dg = cb >> 1
                    accs = [ACCA + ((dg * 2 + kb) * 2 + (cb & 1)) * 4 for kb in range(2)]
                    cfs = [CF + ((step * 2 + u) * 2 + kb) * 4 for kb in range(2)]
                    L.append((off, cb & 1, accs, cfs, step == 0 and u == 0))
        else:
            base = ACCB if step < 12 else ACCA
            i2 = (step - 8) & 3
            for hf in range(2):
                for u in range(2):
                    for cb in range(4):
                        off = hf * 8192 + u * 4096 + (cb >> 1) * 512
                        accs = [base + (cb * 2 + kb) * 4 for kb in range(2)]
                        ci = (2 * i2 + hf)
                        cfs = [CF + ((ci * 2 + u) * 2 + kb) * 4 for kb in range(2)]
                        L.append((off, cb & 1, accs, cfs, i2 == 0 and hf == 0 and u == 0))
        return L
    frags = [(s, f) for s in range(16) for f in step_frags(s)]
    def w_read(gi):
        s, (off, odd, accs, cfs, first) = frags[gi]
        r = WF + (gi % NRING) * 4
        if "b128test" in exp:
            a.e("ds_read_b128 v[%d:%d], v%d offset:%d", r, r + 3, v_cr0 if False else v_lin, LDS_W + (s & 3) * 16384 + (gi % 16) * 1024)
            lg.issue(("W", gi))
            return
        for t in range(2):
            a.e("ds_read_b64_tr_b16 v[%d:%d], v%d offset:%d", r + 2 * t, r + 2 * t + 1, v_trO if odd else v_trE,
                LDS_W + (s & 3) * 16384 + off + t * 256)
            lg.issue(("W", gi))
    def epi(kind):
        L = []
        if kind == "K":
            for dg in range(4):
                for kb in range(2):
                    A = ACCA + (dg * 2 + kb) * 8
                    g = []
                    for i in range(4):
                        g.append("v_cvt_pk_bf16_f32 v%d, v%d, v%d" % (A + i, A + 2 * i, A + 2 * i + 1))
                    g.append("s_add_u32 s%d, s%d, %d" % (s_t2, s_kst, (dg >> 1) * 4096))
                    g.append(("st", "buffer_store_dwordx4 v[%d:%d], v%d, s[%d:%d], s%d offen offset:%d" % (A, A + 3, v_kst, S_WS, S_WS + 3, s_t2, kb * 128 + (dg & 1) * 2048)))
                    L += g
        else:
            cv = 0 if kind == "V0" else 1
            base = ACCB if cv == 0 else ACCA
            for cb in range(4):
                A = base + cb * 8
                for i in range(4):
                    L.append("v_cvt_pk_bf16_f32 v%d, v%d, v%d" % (A + i, A + 2 * i, A + 2 * i + 1))
                L.append("s_add_u32 s%d, s%d, %d" % (s_t2, s_vst, cv * 2048))
                L.append(("st", "buffer_store_dwordx4 v[%d:%d], v%d, s[%d:%d], s%d offen offset:%d" % (A, A + 3, v_vst, S_WS, S_WS + 3, s_t2, (cb >> 1) * 1024 + (cb & 1) * 256)))
        return L
    def emit_epi(x):
        if isinstance(x, tuple):
            if "nost" in exp: return
            a.e(x[1]); vm.issue("st")
        else:
            a.e(x)

    def emit_main(dk0, epk0, last):
        PRE = NRING - 1
        nread = 0
        npoll = [0]
        pend_epi = []
        ln = list(LN1); ln2a = list(LN2a); ln2b = list(LN2b)
        for gi, (s, (off, odd, accs, cfs, first)) in enumerate(frags):
            k = gi % 16
            dmas = []
            if k == 0:
                a("; ---- step %d" % s)
                if s in (4, 8, 12): (mark() if last else None)
                if s > 0 and "nobar" not in exp and not ("bar2" in exp and s >= 9 and s % 2 == 1):
                    a.e("s_barrier")
                if s == 8 and "even" in exp:
                    ek = epi("K"); ev = epi("V0")
                    groups = [ek[6 * n:6 * n + 6] for n in range(8)] + [ev[6 * n:6 * n + 6] for n in range(4)]
                    sched = {8 * 16 + 6 + 12 * n: groups[n] for n in range(11)}
                    sched[15 * 16 + 15] = groups[11][:4]
                    def v0last(g=groups[11]):
                        for x in g[4:]: emit_epi(x)
                    H["late_stores"].append(v0last)
                    pend_epi = []; ek_rest = []
                elif s == 8:
                    ek = epi("K"); pend_epi = ek[:36]; ek_rest = ek[36:]
                if s == 12 and "even" not in exp:
                    if fused is not None and "latev0" in exp:
                        ev = epi("V0")
                        pend_epi = ek_rest + [x for x in ev if not isinstance(x, tuple) and not x.startswith("s_add")]
                        for cb in range(4):
                            def st0(cb=cb):
                                A = ACCB + cb * 8
                                a.e("s_add_u32 s%d, s%d, 0", s_t2, s_vst)
                                a.e("buffer_store_dwordx4 v[%d:%d], v%d, s[%d:%d], s%d offen offset:%d", A, A + 3, v_vst, S_WS, S_WS + 3, s_t2, (cb >> 1) * 1024 + (cb & 1) * 256)
                                vm.issue("st")
                            H["late_stores"].append(st0)
                    else:
                        pend_epi = ek_rest + epi("V0")
                step_dmas = []
                if s == 0: step_dmas += w_dma(2)
                if s + 3 < 16: step_dmas += w_dma(s + 3)
                if s + 2 < 8: step_dmas += c_dma(s + 2)
            lim = 16 if s == 0 else len(frags)
            while nread < min(gi + PRE + 1, lim):
                w_read(nread); nread += 1
            lg.wait([("W", gi), ("c", s)] if k == 0 else ("W", gi))
            wf = WF + (gi % NRING) * 4
            for kb in range(2):
                d, cf = accs[kb], cfs[kb]
                c = "0" if first else "v[%d:%d]" % (d, d + 3)
                if s < 8:
                    a.e("v_mfma_f32_16x16x32_bf16 v[%d:%d], v[%d:%d], v[%d:%d], %s", d, d + 3, wf, wf + 3, cf, cf + 3, c)
                else:
                    a.e("v_mfma_f32_16x16x32_bf16 v[%d:%d], v[%d:%d], v[%d:%d], %s", d, d + 3, cf, cf + 3, wf, wf + 3, c)
            if k >= dk0 and step_dmas:
                if "nodma" in exp and s >= 2: step_dmas.pop(0)
                else: step_dmas.pop(0)()
            if "wpf" in exp and "wpflate" in exp and s == 3 and k == 8: wpf_block()
            if fused is not None and "clrlate" in exp and s == 2 and k == 9: H["flags_clear"]()
            if "cp0" in exp and "cplate" in exp and s == 0 and k == 10: cp0_block()
            if s == 1 and k == 0: vm.wait("x")
            if s in (1, 2) and ln:
                for _ in range(4):
                    if ln: a.e(ln.pop(0))
            if s == 2 and k == 15:
                assert not ln
                a.e("ds_write_b128 v%d, v[%d:%d]", T + 20, T, T + 3); lg.issue("lnw")
                lg.wait("lnw")
            if s == 3:
                if k < 4:
                    for _ in range(2):
                        if ln2a: a.e(ln2a.pop(0))
                if k == 4:
                    a.e("ds_read_b128 v[%d:%d], v%d", T, T + 3, F); lg.issue("lnr")
                if 5 <= k < 11:
                    for _ in range(2):
                        if ln2b: a.e(ln2b.pop(0))
                if k == 12:
                    assert not ln2a and not ln2b
                    lg.wait("lnr")
                    a.e("buffer_store_dwordx4 v[%d:%d], v%d, s[%d:%d], s%d offen", T, T + 3, F + 1, S_WS, S_WS + 3, s_t3)
                    vm.issue("xn")
            if k == (15 if s == 0 else 11) and s + 1 < 16:
                tags = [("W", s + 1), ("W", s + 2), ("c", s + 1)]
                if fused is not None and s == 5: tags += ["xn", "clr"]
                vm.wait(tags)
                if s + 1 < 8: c_reads(s + 1)
            if fused is not None:
                if s == 6 and k == 12: H["signal"]("0", True)
                if s == 8 and k == 1: H["vec_setup"]()
                if "early" in exp:
                    if 9 <= s <= 12 and k in (5, 9): H["w_dma_l"](s - 9)[0 if k == 5 else 1]()
                elif "mid" in exp:
                    if s >= 12 and k in (6, 10): H["w_dma_l"](s - 12)[0 if k == 6 else 1]()
                else:
                    if s in (12, 13) and k in (5, 9): H["w_dma_l"](s - 12)[0 if k == 5 else 1]()
                if s == 10 and k == 2:
                    H["poll"](0, "0"); npoll[0] = vm.total
                if s == 12 and k == 13: H["poll_check"](0, "0", 256, min(vm.total - npoll[0], len(vm.ops)))
                if "early" in exp:
                    if s >= 13 and k in (1, 3, 5, 7, 9, 10, 12, 14):
                        i_ = (1, 3, 5, 7, 9, 10, 12, 14).index(k)
                        if i_ == 0: xl = H["xn_load_l"](2 * (s - 13)) + H["xn_load_l"](2 * (s - 13) + 1)
                        xl[i_]()
                elif "mid" in exp:
                    if s == 14 and k in (1, 3, 5, 7, 9, 11, 13, 15):
                        i_ = (1, 3, 5, 7, 9, 11, 13, 15).index(k)
                        if i_ == 0: xl = H["xn_load_l"](0) + H["xn_load_l"](1)
                        xl[i_]()
                    if s == 15 and k in (2, 5, 8, 12):
                        i_ = (2, 5, 8, 12).index(k)
                        if i_ == 0: xl = H["xn_load_l"](2)
                        xl[i_]()
                elif s >= 14 and k in (2, 5, 8, 12):
                    i_ = (2, 5, 8, 12).index(k)
                    if i_ == 0: xl = H["xn_load_l"](s - 14)
                    xl[i_]()
            if "pf" in exp and fused is None and s == 10 and k in (4, 8):
                a.e("v_lshrrev_b32 v%d, 4, v%d", v_t, v_lane)
                a.e("v_lshlrev_b32 v%d, 13, v%d", v_t, v_t)
                a.e("v_and_b32 v%d, 15, v%d", v_t + 1, v_lane)
                a.e("v_lshl_add_u32 v%d, v%d, 4, v%d", v_t, v_t + 1, v_t)
                a.e("s_lshl_b32 s%d, s%d, 3", s_t3, s_j)
                a.e("s_add_u32 s%d, s%d, s%d", s_t3, s_t3, s_w)
                a.e("s_lshl_b32 s%d, s%d, 16", s_t3, s_t3)
                a.e("s_lshl_b32 s%d, s%d, 8", s_t1, s_h)
                a.e("s_add_u32 s%d, s%d, s%d", s_t3, s_t3, s_t1)
                if k == 8: a.e("s_add_u32 s%d, s%d, 32768", s_t3, s_t3)
                a.e("s_mov_b32 m0, s%d", s_cm0)
                a.e("s_nop 0")
                a.e("buffer_load_dwordx4 v%d, s[%d:%d], s%d offen lds", v_t, S_W1, S_W1 + 3, s_t3)
                vm.issue("pf")
            if "even" in exp and s >= 8:
                for n_, (g0, grp) in enumerate(sorted(sched.items())):
                    j_ = gi - (g0 - 5)
                    if 0 <= j_ < len(grp): emit_epi(grp[j_])
            if pend_epi and k >= 3:
                emit_epi(pend_epi.pop(0))
                if pend_epi and s >= 12: emit_epi(pend_epi.pop(0))
        assert not pend_epi
        (st.mark() if last else None)
        a.e("s_nop 7")
        if fused is not None and "early" not in exp:
            late = []
            for cb in range(4):
                A, D = ACCA + cb * 8, ACCB + cb * 8 + 4
                for i in range(4):
                    a.e("v_cvt_pk_bf16_f32 v%d, v%d, v%d", D + i, A + 2 * i, A + 2 * i + 1)
                def st_(cb=cb, D=D):
                    a.e("s_add_u32 s%d, s%d, 2048", s_t2, s_vst)
                    a.e("buffer_store_dwordx4 v[%d:%d], v%d, s[%d:%d], s%d offen offset:%d", D, D + 3, v_vst, S_WS, S_WS + 3, s_t2, (cb >> 1) * 1024 + (cb & 1) * 256)
                    vm.issue("st")
                late.append(st_)
            H["late_stores"].extend(late)
        else:
            for x in epi("V1"): emit_epi(x)
        if fused is not None:
            for _ in k2: pass
            return
        if diag and last:
            a.e("s_waitcnt vmcnt(0)")
            (mark() if last else None)
            st.dump(S_WS, s_w, 10, s_t0)

    if "stag" in exp:
        l2 = name + "_late"
        vm0, lg0 = list(vm.ops), list(lg.ops)
        a.e("s_cmp_ge_u32 s%d, 4", s_w)
        a.e("s_cbranch_scc1 %s", l2)
        emit_main(1, 3, True)
        a.e("s_endpgm")
        a.label(l2)
        vm.ops, lg.ops = vm0, lg0
        emit_main(6 if "stag6" in exp else 8, 3, False)
    else:
        emit_main(1, 3, True)
    if fused is None:
        a.label(name + "_end")
        a.e("s_endpgm")
```

```python
from gen_common import *
import gen_common
import math, struct

def f32bits(x):
    return struct.unpack("<I", struct.pack("<f", x))[0]

def gen_k2(a, name="attn_kernel", diag=False, exp="", thr_log2=40):
    for _ in gen_k2_iter(a, name, diag, exp, thr_log2, None): pass

def gen_k2_iter(a, name, diag, exp, thr_log2, fuse):
    if fuse is None:
        kernel_begin(a, name)
        st = Stamps(a, diag, 1, base=56, maxn=11)
        vm = Cnt(a, "vmcnt", 63); lg = Cnt(a, "lgkmcnt", 15)
    else:
        vm, lg, st = fuse["vm"], fuse["lg"], fuse["st"]
    SC1 = " sc1" if fuse is not None else ""
    NEXTK = "tail_kernel" if "nexttail" in exp else "proj_kernel"
    QSCALE = f32bits(math.log2(math.e) / math.sqrt(128.0))
    THR = f32bits(2.0 ** thr_log2)
    S_WQ, S_WS = 4, 8
    s_h, s_x, s_w, s_t0, s_t1, s_t2, s_kk0, s_wof, s_wm0 = 12, 13, 14, 15, 16, 17, 18, 19, 20
    s_xn, s_T, s_TB, s_t, s_cur, s_nxt, s_ld, s_kof, s_vof, s_wl = 21, 22, 23, 24, 25, 26, 27, 28, 29, 30
    s_qb, s_mfrom, s_kb, s_isA, s_lslot, s_lst, s_thr, s_oob = 31, 32, 33, 34, 35, 36, 37, 38
    s_ret = 40
    s_m = 42
    s_hb = 50
    s_n = 51
    s_cnt = 52
    s_x1, s_x2 = 53, 54
    SPF = 56
    if fuse is not None:
        S_WQ, S_WS = 20, 24
        s_h, s_x, s_w, s_t0, s_t1, s_t2, s_kk0, s_wof, s_wm0 = 28, 29, 30, 31, 32, 33, 34, 35, 40
        s_xn, s_T, s_TB, s_t, s_cur, s_nxt, s_ld, s_kof, s_vof, s_wl = 44, 45, 46, 47, 48, 49, 50, 51, 52, 53
        s_qb, s_mfrom, s_kb, s_isA, s_lslot, s_lst, s_thr, s_oob = 54, 55, 56, 57, 58, 59, 60, 61
        s_m = 8
        s_hb, s_n, s_cnt, s_x1, s_x2, s_poll = 64, 65, 66, 67, 68, 69
        s_ret = 70
        S_DBG = 72
        SPF = 4
    v_lane, v_wdma, v_trE, v_trO, v_l16, v_rd, v_rdn, v_qrel, v_t = 0, 1, 2, 3, 4, 5, 6, 7, 8
    v_hiE, v_hiO = v_rd, v_rdn
    if fuse is not None:
        v_lane, v_wdma, v_l16, v_qrel, v_trE, v_trO, v_hiE, v_hiO, v_rd, v_rdn, v_t = 0, 1, 2, 3, 4, 5, 6, 7, 8, 9, 10
    WF, NRW = 12, 5
    ACC = 32
    XN = 128
    Q = 96
    RING, NR, PD = 12, 16, 12
    TT = 80
    v_ps, v_l, v_D, v_ninf, v_mx, v_f = [84, 85], 86, 87, 88, 89, 90
    U = 76
    v_pk = [92, 94]
    NEGM, P, S, O = 128, [144, 152], [160, 176], 192
    SLOT = 32768

    def role_setup():
        a.e("s_lshr_b32 s%d, s%d, 2", s_isA, s_w)
        a.e("s_sub_u32 s%d, 15, s%d", s_t0, s_x)
        a.e("s_lshl_b32 s%d, s%d, 1", s_TB, s_t0)
        a.e("s_add_u32 s%d, s%d, 2", s_TB, s_TB)
        a.e("s_sub_u32 s%d, 7, s%d", s_t1, s_w)
        a.e("s_cmp_eq_u32 s%d, 0", s_isA)
        a.e("s_cselect_b32 s%d, s%d, s%d", s_t0, s_t0, s_x)
        a.e("s_cselect_b32 s%d, s%d, s%d", s_t1, s_w, s_t1)
        a.e("s_lshl_b32 s%d, s%d, 1", s_T, s_t0)
        a.e("s_lshr_b32 s%d, s%d, 1", s_t2, s_t1)
        a.e("s_add_u32 s%d, s%d, s%d", s_T, s_T, s_t2)
        a.e("s_add_u32 s%d, s%d, 1", s_T, s_T)
        a.e("s_lshl_b32 s%d, s%d, 2", s_qb, s_t0)
        a.e("s_add_u32 s%d, s%d, s%d", s_qb, s_qb, s_t1)
        a.e("s_sub_u32 s%d, s%d, 3", s_mfrom, s_T)
        a.e("s_and_b32 s%d, s%d, 3", s_wl, s_w)
        a.e("s_lshl_b32 s%d, s%d, 15", s_xn, s_qb)
        a.e("s_add_u32 s%d, s%d, 0x%x", s_xn, s_xn, WS_XN)
        a.e("s_mul_i32 s%d, s%d, %d", s_hb, s_h, HEAD_STRIDE)
        a.e("s_lshl_b32 s%d, s%d, 12", s_t0, s_wl)
        a.e("s_add_u32 s%d, s%d, s%d", s_hb, s_hb, s_t0)
        a.e("s_mov_b32 s%d, 0x7ff00000", s_oob)
        a.e("s_mov_b32 s%d, 0x%x", s_thr, THR)

    if fuse is None:
        a.e("s_cmp_ge_u32 s2, 256")
        a.e("s_cbranch_scc1 %s_end", name)
        st.mark()
        a.e("s_load_dwordx2 s[4:5], s[0:1], %d", A_WQ)
        a.e("s_load_dwordx2 s[8:9], s[0:1], %d", WS)
        a.e("v_lshrrev_b32 v%d, 6, v0", v_t)
        a.e("v_and_b32 v%d, 63, v0", v_lane)
        a.e("v_readfirstlane_b32 s%d, v%d", s_w, v_t)
        a.e("s_and_b32 s%d, s2, 31", s_h)
        a.e("s_lshr_b32 s%d, s2, 5", s_x)
        a.e("s_lshr_b32 s%d, s%d, 3", s_t0, s_h)
        a.e("s_lshl_b32 s%d, s%d, 1", s_t0, s_t0)
        a.e("s_add_u32 s%d, s%d, s%d", s_kk0, s_t0, s_x)
        a.e("s_and_b32 s%d, s%d, 7", s_kk0, s_kk0)
        a.e("v_bfe_u32 v%d, v%d, 2, 2", v_t, v_lane)
        a.e("v_bfe_u32 v%d, v%d, 4, 1", v_t + 1, v_lane)
        a.e("v_lshl_add_u32 v%d, v%d, 2, v%d", v_t, v_t + 1, v_t)
        a.e("v_lshlrev_b32 v%d, 13, v%d", v_t, v_t)
        a.e("s_and_b32 s%d, s%d, 1", s_t0, s_w)
        a.e("s_lshl_b32 s%d, s%d, 1", s_t0, s_t0)
        a.e("v_and_b32 v%d, 3, v%d", v_t + 1, v_lane)
        a.e("v_xor_b32 v%d, s%d, v%d", v_t + 1, s_t0, v_t + 1)
        a.e("v_lshrrev_b32 v%d, 5, v%d", v_wdma, v_lane)
        a.e("v_lshl_add_u32 v%d, v%d, 2, v%d", v_t + 1, v_wdma, v_t + 1)
        a.e("v_lshl_add_u32 v%d, v%d, 4, v%d", v_wdma, v_t + 1, v_t)
        a.e("v_lshlrev_b32 v%d, 4, v%d", v_l16, v_lane)
        a.e("s_waitcnt lgkmcnt(0)")
        srd(a, S_WQ, S_WQ, 4 << 20); srd(a, S_WS, S_WS, WS_BYTES)
        a.e("s_lshl_b32 s%d, s%d, 16", s_wof, s_w)
        a.e("s_lshl_b32 s%d, s%d, 8", s_t0, s_h)
        a.e("s_add_u32 s%d, s%d, s%d", s_wof, s_wof, s_t0)
        a.e("s_lshl_b32 s%d, s%d, 10", s_wm0, s_w)
        role_setup()

    def kk_of(i, dst):
        a.e("s_add_u32 s%d, s%d, %d", dst, s_kk0, i)
        a.e("s_and_b32 s%d, s%d, 7", dst, dst)
    def wq_lds(step):
        return (step * 16384) if fuse is None else (((step + 4) & 7) * 16384)
    def stage_slot(stage):
        return ((stage if fuse is None else stage + 2) % 4) * SLOT
    def w_dma(step):
        for em in w_dma_l(step): em()
    def w_dma_l(step):
        return [lambda hf=hf: w_dma1(step, hf) for hf in range(2)]
    def w_dma1(step, hf):
        if True:
            kk_of(step, s_t0)
            a.e("s_lshl_b32 s%d, s%d, 19", s_t0, s_t0)
            a.e("s_add_u32 m0, s%d, %d", s_wm0, wq_lds(step) + hf * 8192)
            a.e("s_add_u32 s%d, s%d, s%d", s_t0, s_t0, s_wof)
            if hf: a.e("s_add_u32 s%d, s%d, 128", s_t0, s_t0)
            a.e("buffer_load_dwordx4 v%d, s[%d:%d], s%d offen lds", v_wdma, S_WQ, S_WQ + 3, s_t0)
            vm.issue(("W", step))
    def xn_load(step):
        for em in xn_load_l(step): em()
    def xn_load_l(step):
        L = []
        for u in range(2):
            for qb in range(2):
                def em(u=u, qb=qb):
                    if u == 0 and qb == 0:
                        kk_of(step, s_x1)
                        a.e("s_lshl_b32 s%d, s%d, 11", s_x1, s_x1)
                        a.e("s_add_u32 s%d, s%d, s%d", s_x1, s_x1, s_xn)
                        a.e("s_add_u32 s%d, s%d, 16384", s_x2, s_x1)
                    r = XN + ((step * 2 + u) * 2 + qb) * 4
                    a.e("buffer_load_dwordx4 v[%d:%d], v%d, s[%d:%d], s%d offen offset:%d%s", r, r + 3, v_l16, S_WS, S_WS + 3,
                        s_x1 if qb == 0 else s_x2, u * 1024, SC1)
                    vm.issue(("x", step))
                L.append(em)
        return L
    def stage_addr_static(stage):
        a.e("s_add_u32 s%d, s%d, 0x%x", s_kof, s_hb, WS_K + (stage + 1) * 16384)
        a.e("s_add_u32 s%d, s%d, 0x%x", s_vof, s_hb, WS_V + max(stage, 0) * 16384)
        a.e("s_lshl_b32 s%d, s%d, 12", s_lslot, s_wl)
        a.e("s_add_u32 s%d, s%d, %d", s_lslot, s_lslot, stage_slot(stage) if stage >= 0 else 4 * SLOT)
    def stage_loads(part, tag=None, track=True):
        L = []
        for i in range(4):
            def em(i=i):
                if i == 0:
                    a.e("s_add_u32 m0, s%d, %d", s_lslot, 0 if part == "K" else 16384)
                    a.e("s_nop 0")
                a.e("buffer_load_dwordx4 v%d, s[%d:%d], s%d offen offset:%d%s lds", v_l16, S_WS, S_WS + 3,
                    s_kof if part == "K" else s_vof, i * 1024, SC1)
                if track: vm.issue(tag)
            L.append(em)
        return L
    def only_A(fn):
        l = a.newlabel("LnA")
        a.e("s_cmp_eq_u32 s%d, 0", s_isA)
        a.e("s_cbranch_scc1 %s", l)
        fn()
        a.label(l)

    def vec_setup():
        if fuse is not None: a.e("v_lshlrev_b32 v%d, 4, v%d", v_l16, v_lane)
        a.e("v_add_u32 v%d, 0x10000, v%d", v_hiE, v_trE)
        a.e("v_add_u32 v%d, 0x10000, v%d", v_hiO, v_trO)
        a.e("v_and_b32 v%d, 31, v%d", v_qrel, v_lane)
        a.e("s_lshl_b32 s%d, s%d, 5", s_t0, s_qb)
        a.e("v_add_u32 v%d, s%d, v%d", v_qrel, s_t0, v_qrel)
        a.e("v_lshrrev_b32 v%d, 5, v%d", v_t, v_lane)
        a.e("v_lshlrev_b32 v%d, 2, v%d", v_t, v_t)
        a.e("v_sub_u32 v%d, v%d, v%d", v_qrel, v_qrel, v_t)
    def only_wave(w, fn):
        l = a.newlabel("Lw1")
        a.e("s_cmp_lg_u32 s%d, %d", s_w, w)
        a.e("s_cbranch_scc1 %s", l)
        fn()
        a.label(l)
    def poll(wave, s_off):
        only_wave(wave, lambda: a.e("buffer_load_dword v%d, off, s[%d:%d], %s sc1", v_t, S_DBG, S_DBG + 3, s_off))
    def poll_check(wave, s_off, target, younger):
        only_wave(wave, lambda: poll_check1(s_off, target, younger))
    def poll_check1(s_off, target, younger):
        ok, sp = a.newlabel("Lpok"), a.newlabel("Lpsp")
        a.e("s_waitcnt vmcnt(%d)", younger)
        a.e("v_readfirstlane_b32 s%d, v%d", s_poll, v_t)
        a.e("s_nop 3")
        a.e("s_cmp_ge_u32 s%d, %d", s_poll, target)
        a.e("s_cbranch_scc1 %s", ok)
        a.e("s_mov_b32 s%d, 0x20000", s_n)
        a.label(sp)
        a.e("s_sleep 16")
        a.e("buffer_load_dword v%d, off, s[%d:%d], %s sc1", v_t, S_DBG, S_DBG + 3, s_off)
        a.e("s_waitcnt vmcnt(0)")
        a.e("v_readfirstlane_b32 s%d, v%d", s_poll, v_t)
        a.e("s_nop 3")
        a.e("s_cmp_ge_u32 s%d, %d", s_poll, target)
        a.e("s_cbranch_scc1 %s", ok)
        a.e("s_sub_u32 s%d, s%d, 1", s_n, s_n)
        a.e("s_cbranch_scc0 %s", sp)
        a.label(ok)
    def signal(s_off, track=False):
        l, l2 = a.newlabel("Lsig"), a.newlabel("Lsig")
        a.e("s_cmp_lg_u32 s%d, 0", s_w)
        a.e("s_cbranch_scc1 %s", l)
        a.e("v_mov_b32 v%d, 1", v_t + 1)
        a.e("s_mov_b64 exec, 1")
        a.e("buffer_atomic_add v%d, off, s[%d:%d], %s sc1", v_t + 1, S_DBG, S_DBG + 3, s_off)
        a.e("s_mov_b64 exec, -1")
        if track: a.e("s_branch %s", l2)
        a.label(l)
        if track:
            a.e("buffer_load_dword v%d, off, s[%d:%d], s%d", v_t + 1, S_DBG, S_DBG + 3, s_oob)
            a.label(l2)
            vm.issue("sig")
    def flag_store(val, tag=None, base=WS_FLAG):
        a.e("s_lshl_b32 s%d, s2, 7", s_poll)
        a.e("s_add_u32 s%d, s%d, 0x%x", s_poll, s_poll, base)
        a.e("v_mov_b32 v%d, %d", v_t + 1, val)
        a.e("s_mov_b64 exec, 1")
        a.e("buffer_store_dword v%d, off, s[%d:%d], s%d sc1", v_t + 1, S_WS, S_WS + 3, s_poll)
        a.e("s_mov_b64 exec, -1")
        if tag: vm.issue(tag)
    def flags_clear():
        assert (WS_FLAG2, WS_FLAG3, WS_FLAG1, WS_FLAGC) == tuple(WS_FLAG + 65536 * i for i in (1, 2, 3, 4))
        a.e("s_lshl_b32 s%d, s2, 7", s_poll)
        a.e("s_add_u32 s%d, s%d, 0x%x", s_poll, s_poll, WS_FLAG)
        a.e("v_lshlrev_b32 v%d, 16, v%d", v_t, v_lane)
        a.e("v_mov_b32 v%d, 0", v_t + 1)
        a.e("s_mov_b64 exec, 31")
        a.e("buffer_store_dword v%d, v%d, s[%d:%d], s%d offen sc1", v_t + 1, v_t, S_WS, S_WS + 3, s_poll)
        a.e("s_mov_b64 exec, -1")
        vm.issue("clr")
    def flags_load():
        a.e("v_and_b32 v%d, 7, v%d", v_t + 1, v_lane)
        a.e("v_lshlrev_b32 v%d, 12, v%d", v_t + 1, v_t + 1)
        a.e("s_lshl_b32 s%d, s%d, 7", s_poll, s_h)
        a.e("s_add_u32 s%d, s%d, 0x%x", s_poll, s_poll, WS_FLAG)
        a.e("buffer_load_dword v%d, v%d, s[%d:%d], s%d offen sc1", v_t, v_t + 1, S_WS, S_WS + 3, s_poll)
    def flags_check():
        ok, sp = a.newlabel("Lfok"), a.newlabel("Lfsp")
        a.e("s_waitcnt vmcnt(0)")
        a.e("v_cmp_eq_u32 vcc, 1, v%d", v_t)
        a.e("s_nop 3")
        a.e("s_cmp_eq_u64 vcc, -1")
        a.e("s_cbranch_scc1 %s", ok)
        a.e("s_mov_b32 s%d, 0x20000", s_n)
        a.label(sp)
        a.e("s_sleep 8")
        a.e("buffer_load_dword v%d, v%d, s[%d:%d], s%d offen sc1", v_t, v_t + 1, S_WS, S_WS + 3, s_poll)
        a.e("s_waitcnt vmcnt(0)")
        a.e("v_cmp_eq_u32 vcc, 1, v%d", v_t)
        a.e("s_nop 3")
        a.e("s_cmp_eq_u64 vcc, -1")
        a.e("s_cbranch_scc1 %s", ok)
        a.e("s_sub_u32 s%d, s%d, 1", s_n, s_n)
        a.e("s_cbranch_scc0 %s", sp)
        a.label(ok)
    if fuse is not None:
        late_stores = []
        yield dict(late_stores=late_stores, flag_store=flag_store, flags_clear=flags_clear, role_setup=role_setup, vec_setup=vec_setup, w_dma_l=w_dma_l, xn_load_l=xn_load_l, poll=poll, poll_check=poll_check,
                   signal=signal, S_DBG=S_DBG, s_h=s_h, s_poll=s_poll)
    vmB = Cnt(a, "vmcnt", 63)
    vmB.ops = list(vm.ops)
    class Both:
        def issue(self, tag, onlyA=False):
            pass
    def issue_both(tag):
        vmB.ops.append(tag)
    _issue = vm.issue
    state = {"A_only": False}
    def issue2(tag):
        _issue(tag)
        if not state["A_only"]: vmB.ops.append(tag)
    vm.issue = issue2
    def wait_common(tags):
        nA, nB = vm.need(tags), vmB.need(tags)
        if nA is None and nB is None: return
        if nA == nB or nB is None or nA is None:
            n = min(x for x in (nA, nB) if x is not None)
            a.e("s_waitcnt vmcnt(%d)", n)
        else:
            l1, l2 = a.newlabel("Lw"), a.newlabel("Lw")
            a.e("s_cmp_eq_u32 s%d, 0", s_isA)
            a.e("s_cbranch_scc1 %s", l1)
            a.e("s_waitcnt vmcnt(%d)", nA)
            a.e("s_branch %s", l2)
            a.label(l1)
            a.e("s_waitcnt vmcnt(%d)", nB)
            a.label(l2)
        for tr, n in ((vm, nA), (vmB, nB)):
            if n is not None: tr.ops = tr.ops[len(tr.ops) - n:] if n > 0 else []
    def a_loads(stage, part=None):
        def fn():
            state["A_only"] = True
            stage_addr_static(stage)
            if part in (None, "K"):
                for em in stage_loads("K", ("st", stage)): em()
            if stage >= 0 and part in (None, "V"):
                for em in stage_loads("V", ("st", stage)): em()
            state["A_only"] = False
        only_A(fn)
    if fuse is not None:
        s_hoff = s_mfrom
        a.e("s_lshl_b32 s%d, s%d, 2", s_hoff, s_h)
        a.e("s_add_u32 s%d, s%d, 128", s_hoff, s_hoff)
    def mark_poll(): pass

    if fuse is None:
        for s in range(2):
            w_dma(s); xn_load(s)
        st.mark()
        a.e("v_bfe_u32 v%d, v%d, 2, 2", v_t, v_lane)
        a.e("v_lshlrev_b32 v%d, 6, v%d", v_t, v_t)
        a.e("v_and_b32 v%d, 3, v%d", v_t + 1, v_lane)
        a.e("v_lshl_add_u32 v%d, v%d, 3, v%d", v_t, v_t + 1, v_t)
        a.e("v_lshrrev_b32 v%d, 4, v%d", v_t + 1, v_lane)
        a.e("v_lshl_add_u32 v%d, v%d, 10, v%d", v_t, v_t + 1, v_t)
        a.e("v_and_b32 v%d, 1, v%d", v_t + 1, v_t + 1)
        a.e("v_lshl_add_u32 v%d, v%d, 5, v%d", v_trE, v_t + 1, v_t)
        a.e("v_xor_b32 v%d, 32, v%d", v_trO, v_trE)
        vec_setup()

    qfr = []
    for s in range(8):
        for u in range(2):
            for cb in range(8):
                off = (wq_lds(s) & 0xffff) + (cb >> 2) * 8192 + u * 4096 + ((cb >> 1) & 1) * 512
                dg = cb >> 1
                accs = [ACC + ((dg * 2 + qb) * 2 + (cb & 1)) * 4 for qb in range(2)]
                xfs = [XN + ((s * 2 + u) * 2 + qb) * 4 for qb in range(2)]
                qfr.append((s, off, cb & 1, accs, xfs, s == 0 and u == 0))
    def w_read(gi):
        s, off, odd, accs, xfs, first = qfr[gi]
        r = WF + (gi % NRW) * 4
        base = (v_trO if odd else v_trE) if wq_lds(s) < 65536 else (v_hiO if odd else v_hiE)
        for t in range(2):
            a.e("ds_read_b64_tr_b16 v[%d:%d], v%d offset:%d", r + 2 * t, r + 2 * t + 1, base, off + t * 256)
            lg.issue(("W", gi))
    wait_common([("W", 0), ("x", 0)] + ([("W", 1)] if fuse is not None else []))
    a.e("s_barrier")
    if fuse is None: st.mark()
    PRE = NRW - 1
    _x6 = {}
    nread = [0]
    FQS = (1, 2, 4, 5) if 'fqb' not in exp else (3, 5, 6, 7)
    SIGSTEP = 2 if 'early' in exp else (5 if 'even' in exp else (4 if 'latev0' in exp else 3))
    POLLSTEP = 5 if 'poll5' in exp else 4
    assert POLLSTEP >= SIGSTEP
    for gi, (s, off, odd, accs, xfs, first) in enumerate(qfr):
        k = gi % 16
        if k == 0:
            if s > 0: a.e("s_barrier")
            if "fq" in exp and s in FQS: st.mark()
            pend = []
            if fuse is None:
                if s == 0:
                    pend = w_dma_l(2) + xn_load_l(2) + w_dma_l(3) + xn_load_l(3) + [lambda: a_loads(-1)]
                elif s + 3 < 8:
                    pend = w_dma_l(s + 3) + xn_load_l(s + 3)
                if s in (2, 4, 6): pend.append(lambda s=s: a_loads(s // 2 - 1))
            else:
                if "early" in exp:
                    if s < 4: pend = w_dma_l(s + 4)
                    if s == 0: pend += xn_load_l(6) + xn_load_l(7)
                else:
                    if "even" in exp:
                        ls = late_stores
                        if s == 0: pend = xn_load_l(3) + [ls[0]] + w_dma_l(4) + [lambda: None] * 4 + [ls[1]]
                        elif s == 1: pend = xn_load_l(4) + w_dma_l(5) + [lambda: None] * 2 + [ls[2]]
                        elif s == 2: pend = xn_load_l(5) + [ls[3]] + w_dma_l(6)
                        elif s == 3:
                            x6 = xn_load_l(6); pend = x6[:2] + [ls[4]] + x6[2:] + w_dma_l(7)
                        elif s == 4: pend = xn_load_l(7)
                    elif "mid" in exp:
                        if s == 0: pend = xn_load_l(3) + w_dma_l(4) + late_stores[:4]
                        elif s == 1: pend = xn_load_l(4) + w_dma_l(5) + late_stores[4:]
                        elif s <= 3: pend = xn_load_l(s + 3) + w_dma_l(s + 4)
                        elif s == 4: pend = xn_load_l(7)
                    elif s == 0: pend = w_dma_l(2) + xn_load_l(2) + w_dma_l(3) + late_stores[:4]
                    elif s == 1: pend = xn_load_l(3) + w_dma_l(4) + xn_load_l(4) + late_stores[4:]
                    elif s + 3 < 8: pend = w_dma_l(s + 3) + xn_load_l(s + 3)
                if s == SIGSTEP: pend = pend + [lambda: only_wave(0, lambda: flag_store(1))]
                if s == POLLSTEP:
                    pend = pend + [lambda: only_wave(4, flags_load)]
                if s == POLLSTEP + 1: pend = pend + [lambda: a_loads(-1, "K"), lambda: None, lambda: a_loads(0, "K"), lambda: None, lambda: a_loads(0, "V"),
                                   lambda: None, lambda: a_loads(1, "K"), lambda: None, lambda: a_loads(1, "V")]
                if s == max(6, POLLSTEP + 2) - (0): pend = pend + [lambda: a_loads(2, "K"), lambda: a_loads(2, "V")]
        lim = 16 if (s == 0 and fuse is None) else len(qfr)
        while nread[0] < min(gi + PRE + 1, lim): w_read(nread[0]); nread[0] += 1
        lg.wait(("W", gi))
        wf = WF + (gi % NRW) * 4
        for qb in range(2):
            d, xf = accs[qb], xfs[qb]
            c = "0" if first else "v[%d:%d]" % (d, d + 3)
            a.e("v_mfma_f32_16x16x32_bf16 v[%d:%d], v[%d:%d], v[%d:%d], %s", d, d + 3, wf, wf + 3, xf, xf + 3, c)
        if pend and k >= 1: pend.pop(0)()
        if k == (15 if ((s == 0 and (fuse is None or "early" not in exp)) or (s == 1 and "latev0" in exp)) else 11) and s + 1 < 8:
            assert not pend
            tags = [("x", s + 1), ("W", s + 1)] + ([("W", s + 2)] if s + 2 < 8 else [])
            if fuse is not None and s == SIGSTEP - 1: tags.append("st")
            wait_common(tags)
        if fuse is not None and s == POLLSTEP and k == 15:
            only_wave(4, flags_check)
    if "fq" not in exp: st.mark()
    a.e("s_nop 7")
    for blk in range(8):
        for i in range(4):
            a.e("v_cvt_pk_bf16_f32 v%d, v%d, v%d", Q + blk * 4 + i, ACC + blk * 8 + 2 * i, ACC + blk * 8 + 2 * i + 1)
    a.e("s_nop 1")
    for dg in range(4):
        for i in range(4):
            a.e("v_permlane16_swap_b32 v%d, v%d", Q + (dg * 2) * 4 + i, Q + (dg * 2 + 1) * 4 + i)
    wait_common([("st", -1), ("st", 0)])
    a.e("s_barrier")
    a.e("v_mov_b32 v%d, 0", v_l)
    a.e("v_mov_b32 v%d, 0xff800000", v_ninf)
    a.e("s_mov_b32 s%d, %d", s_cur, stage_slot(0))
    a.e("v_add_u32 v%d, %d, v%d", v_rd, stage_slot(0), v_l16)
    a.e("s_mov_b32 s%d, 3", s_ld)
    a.e("s_mov_b32 s%d, %d", s_lst, stage_slot(3))
    if fuse is None: st.mark()

    def dyn_stage_setup():
        L = []
        L.append("s_lshl_b32 s%d, s%d, 14" % (s_t0, s_ld))
        L.append("s_add_u32 s%d, s%d, s%d" % (s_t0, s_t0, s_hb))
        L.append("s_add_u32 s%d, s%d, 0x%x" % (s_kof, s_t0, WS_K + 16384))
        L.append("s_add_u32 s%d, s%d, 0x%x" % (s_vof, s_t0, WS_V))
        L.append("s_cmp_lt_u32 s%d, s%d" % (s_ld, s_TB))
        L.append("s_cselect_b32 s%d, s%d, s%d" % (s_kof, s_kof, s_oob))
        L.append("s_cselect_b32 s%d, s%d, s%d" % (s_vof, s_vof, s_oob))
        L.append("s_lshl_b32 s%d, s%d, 12" % (s_lslot, s_wl))
        L.append("s_add_u32 s%d, s%d, s%d" % (s_lslot, s_lslot, s_lst))
        return L
    def dyn_stage_advance():
        return ["s_add_u32 s%d, s%d, 1" % (s_ld, s_ld),
                "s_add_u32 s%d, s%d, %d" % (s_lst, s_lst, SLOT),
                "s_and_b32 s%d, s%d, %d" % (s_lst, s_lst, 4 * SLOT - 1)]
    def kfrag_off(b, ks): return (b * 8 + ks) * 1024
    def vfrag_off(b, s_, db): return 16384 + (b * 8 + s_ * 4 + db) * 1024
    seq = []
    for ks in range(8): seq.append(("QK", 0, ks, kfrag_off(0, ks)))
    for s_ in range(2):
        for db in range(4): seq.append(("PV", 0, (s_, db), vfrag_off(0, s_, db)))
    for ks in range(8): seq.append(("QK", 1, ks, kfrag_off(1, ks)))
    for s_ in range(2):
        for db in range(4): seq.append(("PV", 1, (s_, db), vfrag_off(1, s_, db)))
    def mfma(item, reg, c0=None):
        kind, b, idx, off = item
        if "m16" in exp:
            if kind == "QK":
                for z in range(2):
                    d = S[b] + 4 * ((2 * idx + z) % 4)
                    q = Q + ((idx + z) % 8) * 4
                    c = ("v[%d:%d]" % (NEGM, NEGM + 3)) if idx < 2 else "v[%d:%d]" % (d, d + 3)
                    a.e("v_mfma_f32_16x16x32_bf16 v[%d:%d], v[%d:%d], v[%d:%d], %s", d, d + 3, reg, reg + 3, q, q + 3, c)
            else:
                s_, db = idx
                for z in range(2):
                    d = O + db * 16 + s_ * 8 + z * 4
                    a.e("v_mfma_f32_16x16x32_bf16 v[%d:%d], v[%d:%d], v[%d:%d], v[%d:%d]", d, d + 3, reg, reg + 3, P[b] + 4 * z, P[b] + 4 * z + 3, d, d + 3)
            return
        if kind == "QK":
            c = ("v[%d:%d]" % (NEGM, NEGM + 15) if c0 is None else c0) if idx == 0 else "v[%d:%d]" % (S[b], S[b] + 15)
            a.e("v_mfma_f32_32x32x16_bf16 v[%d:%d], v[%d:%d], v[%d:%d], %s", S[b], S[b] + 15, reg, reg + 3, Q + idx * 4, Q + idx * 4 + 3, c)
        else:
            s_, db = idx
            a.e("v_mfma_f32_32x32x16_bf16 v[%d:%d], v[%d:%d], v[%d:%d], v[%d:%d]", O + db * 16, O + db * 16 + 15, reg, reg + 3,
                P[b] + 4 * s_, P[b] + 4 * s_ + 3, O + db * 16, O + db * 16 + 15)
    def sm_stream(b):
        L = []
        for r in range(17):
            if r < 16: L.append((r, 0, "v_exp_f32 v%d, v%d" % (TT + r % 4, S[b] + r)))
            if "pk" in exp:
                pp = v_pk[b]
                if r == 2: L.append((r, 1, "v_mov_b32 v%d, v%d" % (pp, TT + 0)))
                elif r == 3: L.append((r, 1, "v_mov_b32 v%d, v%d" % (pp + 1, TT + 1)))
                elif r >= 4 and r % 2 == 0:
                    t0 = TT + (r - 2) % 4
                    L.append((r, 1, "v_pk_add_f32 v[%d:%d], v[%d:%d], v[%d:%d]" % (pp, pp + 1, pp, pp + 1, t0, t0 + 1)))
                    if r == 16: L.append((r, 1, "v_add_f32 v%d, v%d, v%d" % (v_ps[b], pp, pp + 1)))
            elif r == 2: L.append((r, 1, "v_add_f32 v%d, v%d, v%d" % (v_ps[b], TT + 0, TT + 1)))
            elif r >= 3: L.append((r, 1, "v_add_f32 v%d, v%d, v%d" % (v_ps[b], v_ps[b], TT + (r - 1) % 4)))
            if r >= 2 and r % 2 == 0:
                i = r // 2 - 1
                L.append((r, 2, "v_cvt_pk_bf16_f32 v%d, v%d, v%d" % (P[b] + i, TT + (2 * i) % 4, TT + (2 * i + 1) % 4)))
        return L
    def sm_plain(b, lo=0, hi=16):
        for r in range(lo, hi + 1):
            for (rr, pos, ins) in sm_stream(b):
                if rr == r: a.e(ins)
            if r == 15 or r == hi: a.e("s_nop 0")
    START = [12, 28]
    stubs = []
    def cmp_ps(b): a.e("v_cmp_lt_f32 vcc, s%d, v%d", s_thr, v_ps[b])
    def br_slow(b, tag, replay):
        lab = "%s_chk%d_%s" % (name, b, tag)
        a.e("s_cbranch_vccnz %s", lab)
        a.label(lab + "_ret")
        stubs.append((lab, "%s_slow%d_%d" % (name, b, replay), lab + "_ret"))
    def ladd(b): a.e("v_add_f32 v%d, v%d, v%d", v_l, v_l, v_ps[b])

    def emit_mask(b, tile_expr_off):
        a.e("s_add_u32 s%d, s%d, %d", s_kb, s_t, tile_expr_off)
        a.e("s_lshl_b32 s%d, s%d, 6", s_kb, s_kb)
        a.e("s_add_u32 s%d, s%d, %d", s_kb, s_kb, 32 * b)
        a.e("v_subrev_u32 v%d, s%d, v%d", v_D, s_kb, v_qrel)
        for r0 in range(0, 16, 4):
            for j in range(4):
                r = r0 + j; i = r >> 2
                cst = 16 * (i & 1) + 8 * (i >> 1) + (r & 3)
                a.e("v_cmp_le_i32 s[%d:%d], %d, v%d", s_m + 2 * j, s_m + 2 * j + 1, cst, v_D)
            a.e("s_nop 1")
            for j in range(4):
                r = r0 + j
                a.e("v_cndmask_b32 v%d, v%d, v%d, s[%d:%d]", S[b] + r, v_ninf, S[b] + r, s_m + 2 * j, s_m + 2 * j + 1)

    def max16(dst, regs):
        a.e("v_max3_f32 v%d, v%d, v%d, v%d", dst, regs[0], regs[1], regs[2])
        i = 3
        while i < len(regs):
            if i + 1 < len(regs):
                a.e("v_max3_f32 v%d, v%d, v%d, v%d", dst, dst, regs[i], regs[i + 1]); i += 2
            else:
                a.e("v_max_f32 v%d, v%d, v%d", dst, dst, regs[i]); i += 1
    def crosshalf_max(r, t):
        a.e("v_mov_b32 v%d, v%d", t, r)
        a.e("s_nop 1")
        a.e("v_permlane32_swap_b32 v%d, v%d", r, t)
        a.e("s_nop 1")
        a.e("v_max_f32 v%d, v%d, v%d", r, r, t)

    def kv_read(i, base):
        item = seq[i % 32]
        r = RING + (i % NR) * 4
        a.e("ds_read_b128 v[%d:%d], v%d offset:%d", r, r + 3, base, item[3])

    def preloop(tag):
        def k0read(i):
            a.e("ds_read_b128 v[%d:%d], v%d offset:%d", RING + i * 4, RING + i * 4 + 3, v_rdn, kfrag_off(i >> 3, i & 7))
        for i in range(12): k0read(i)
        oz = 0
        for ks in range(8):
            if ks % 4 == 0: a.e("s_waitcnt lgkmcnt(8)")
            mfma(("QK", 0, ks, 0), RING + ks * 4, c0="0")
            if ks < 4: k0read(12 + ks)
            for _ in range(5):
                if oz < 64: a.e("v_mov_b32 v%d, 0", O + oz); oz += 1
        while oz < 64: a.e("v_mov_b32 v%d, 0", O + oz); oz += 1
        l = a.newlabel("Lpm")
        a.e("s_cmp_lg_u32 s%d, 1", s_T)
        a.e("s_cbranch_scc1 %s", l)
        a.e("s_mov_b32 s%d, -1", s_t)
        emit_mask(0, 1)
        a.label(l)
        max16(v_mx, [S[0] + i for i in range(16)])
        crosshalf_max(v_mx, v_f)
        for i in range(16):
            a.e("v_sub_f32 v%d, 0, v%d", NEGM + i, v_mx)
        for i in range(16):
            a.e("v_sub_f32 v%d, v%d, v%d", S[0] + i, S[0] + i, v_mx)
        a.e("s_waitcnt lgkmcnt(0)")
        items = [ins for (r, pos, ins) in sm_stream(0)]
        per = (len(items) + 7) // 8
        for ks in range(8):
            mfma(("QK", 1, ks, 0), RING + (8 + ks) * 4)
            for ins in items[ks * per:(ks + 1) * per]: a.e(ins)
        for i in range(PD): kv_read(i, v_rd)
        l = a.newlabel("Lpm")
        a.e("s_cmp_lg_u32 s%d, 1", s_T)
        a.e("s_cbranch_scc1 %s", l)
        emit_mask(1, 1)
        a.label(l)
        sm_plain(1, 0, 3)
        a.e("s_waitcnt lgkmcnt(0)")

    def iteration(tag, masked, even=False):
        tg = tag + ("m" if masked else "") + ("e" if even else "")
        top = "%s_loop%s" % (name, tg)
        streams = {}
        for b in range(2):
            for (r, pos, ins) in sm_stream(b):
                if even and b == 1 and r <= 3: continue
                streams.setdefault(((START[b] + r) % 32, pos), []).append(ins)
        misc = {k: [] for k in range(32)}
        misc[1].append("s_waitcnt lgkmcnt(4)"); misc[9].append("s_waitcnt lgkmcnt(4)")
        misc[17].append("s_waitcnt lgkmcnt(4)"); misc[25].append("s_waitcnt lgkmcnt(4)")
        misc[3].append(lambda: ladd(0)); misc[21].append(lambda: ladd(1))
        misc[5].append("s_add_u32 s%d, s%d, %d" % (s_cur, s_cur, SLOT))
        misc[7].append("s_and_b32 s%d, s%d, %d" % (s_cur, s_cur, 4 * SLOT - 1))
        if tag == "A": misc[13].append("s_waitcnt vmcnt(8)")
        if "nobar" not in exp: misc[13].append("s_barrier")
        misc[15].append(lambda: br_slow(1, tg, 3))
        misc[19].append("v_add_u32 v%d, s%d, v%d" % (v_rd, s_cur, v_l16))
        misc[31].append(lambda: br_slow(0, tg, 9 if even else 3))
        if masked: misc[23].append("s_add_u32 s%d, s%d, 1" % (s_t, s_t))
        if tag == "A":
            setup = dyn_stage_setup()
            ld = stage_loads("K", track=False) + stage_loads("V", track=False)
            adv = dyn_stage_advance()
            for l_ in setup[:5]: misc[14].append(l_)
            for l_ in setup[5:]: misc[16].append(l_)
            for i, em in enumerate(ld): misc[[18, 20, 22, 23, 24, 26, 27, 28][i]].append(em)
            for l_ in adv: misc[29].append(l_)
        a(".p2align 3")
        a.label(top)
        for k in range(32):
            if not (even and 16 <= k < 24): mfma(seq[k], RING + (k % NR) * 4)
            if "nords" not in exp: kv_read(k + PD, v_rd)
            if masked and k == START[0]: emit_mask(0, 1)
            if masked and k == START[1] and not even: emit_mask(1, 0)
            for pos in range(3):
                if pos == 1 and k == 29: cmp_ps(0)
                if pos == 1 and k == 13: cmp_ps(1)
                for ins in streams.get((k, pos), []):
                    if "nosm" in exp: continue
                    a.e(ins)
            for m_ in misc[k]:
                if callable(m_): m_()
                else: a.e(m_)
        a.e("s_sub_u32 s%d, s%d, 1", s_cnt, s_cnt)
        a.e("s_cbranch_scc0 %s", top)

    def mainloop(tag):
        lsk, lend = a.newlabel("Lsk"), a.newlabel("Lend")
        a.e("s_cmp_lt_u32 s%d, 2", s_T)
        a.e("s_cbranch_scc1 %s", lend)
        a.e("s_cmp_lt_u32 s%d, 3", s_T)
        a.e("s_cbranch_scc1 %s", lsk)
        a.e("s_sub_u32 s%d, s%d, 3", s_cnt, s_T)
        iteration(tag, False)
        a.label(lsk)
        a.e("s_sub_u32 s%d, s%d, 2", s_t, s_T)
        a.e("s_mov_b32 s%d, 0", s_cnt)
        if "hbskip" in exp:
            le = a.newlabel("Lev")
            a.e("s_bitcmp0_b32 s%d, 0", s_qb)
            a.e("s_cbranch_scc1 %s", le)
            iteration(tag, True)
            a.e("s_branch %s", lend)
            a.label(le)
            iteration(tag, True, True)
        else:
            iteration(tag, True)
        a.label(lend)

    def final(tag):
        a.e("s_waitcnt lgkmcnt(0)")
        if tag == "B" and "nobar" not in exp:
            lb = a.newlabel("Lnb")
            a.e("s_cmp_eq_u32 s%d, s%d", s_T, s_TB)
            a.e("s_cbranch_scc1 %s", lb)
            a.e("s_barrier")
            a.label(lb)
        if "hbskip" in exp:
            le, lf = a.newlabel("Lfe"), a.newlabel("Lff")
            a.e("s_bitcmp0_b32 s%d, 0", s_qb)
            a.e("s_cbranch_scc1 %s", le)
            final_body(tag, False)
            a.e("s_branch %s", lf)
            a.label(le)
            final_body(tag, True)
            a.label(lf)
        else:
            final_body(tag, False)
    def final_body(tag, even):
        pv0 = [("PV", 0, (s_, db), vfrag_off(0, s_, db)) for s_ in range(2) for db in range(4)]
        pv1 = [("PV", 1, (s_, db), vfrag_off(1, s_, db)) for db in range(4) for s_ in range(2)]
        pv = pv0 + pv1
        for i in range(12):
            r = RING + i * 4
            a.e("ds_read_b128 v[%d:%d], v%d offset:%d", r, r + 3, v_rd, pv[i][3])
        ladd(0)
        rest = [] if even else [ins for (r, pos, ins) in sm_stream(1) if r >= 4]
        per = (len(rest) + 7) // 8
        for i in range(8):
            if i % 4 == 0: a.e("s_waitcnt lgkmcnt(8)")
            mfma(pv[i], RING + i * 4)
            if i < 4:
                r = RING + (12 + i) * 4
                a.e("ds_read_b128 v[%d:%d], v%d offset:%d", r, r + 3, v_rd, pv[12 + i][3])
            for ins in rest[i * per:(i + 1) * per]: a.e(ins)
        if not even:
            cmp_ps(1)
            a.e("s_nop 1")
            br_slow(1, "fin" + tag, 9)
            ladd(1)
        a.e("v_mov_b32 v%d, v%d", v_f, v_l)
        a.e("s_lshl_b32 s%d, s%d, 5", s_t0, s_qb)
        a.e("s_add_u32 s%d, s%d, s%d", s_t0, s_t0, s_h)
        a.e("v_permlane32_swap_b32 v%d, v%d", v_l, v_f)
        a.e("s_lshl_b32 s%d, s%d, 13", s_t0, s_t0)
        a.e("s_add_u32 s%d, s%d, 0x%x", s_t0, s_t0, WS_CTX)
        a.e("v_add_f32 v%d, v%d, v%d", v_l, v_l, v_f)
        a.e("v_rcp_f32 v%d, v%d", v_l, v_l)
        a.e("s_add_u32 s%d, s%d, 4096", s_t1, s_t0)
        def epi(db):
            L = []
            for hfz in range(2):
                base = O + db * 16 + hfz * 8
                for i in range(8): L.append("v_mul_f32 v%d, v%d, v%d" % (base + i, base + i, v_l))
                for i in range(4): L.append("v_cvt_pk_bf16_f32 v%d, v%d, v%d" % (base + i, base + 2 * i, base + 2 * i + 1))
                ds = 2 * db + hfz
                L.append("buffer_store_dwordx4 v[%d:%d], v%d, s[%d:%d], s%d offen offset:%d" % (base, base + 3, v_l16, S_WS, S_WS + 3,
                         s_t0 if ds < 4 else s_t1, (ds & 3) * 1024))
            return L
        a.e("s_waitcnt lgkmcnt(0)")
        if even:
            a.e("s_nop 7")
            for db in range(4):
                for ins in epi(db): a.e(ins)
            return
        pend = []
        for i in range(8):
            mfma(pv[8 + i], RING + (8 + i) * 4)
            if i >= 4 and i % 2 == 0:
                pend += epi((i - 4) // 2)
            n = 0
            while pend and n < 13: a.e(pend.pop(0)); n += 1
            if not pend and i < 4: a.e("s_nop 3")
        a.e("s_nop 7")
        for ins in pend: a.e(ins)
        a.e("s_nop 3")
        for db in (2, 3):
            for ins in epi(db): a.e(ins)

    LA = name + "_roleA"
    a.e("v_add_u32 v%d, %d, v%d", v_rdn, 4 * SLOT, v_l16)
    a.e("s_cmp_lg_u32 s%d, 0", s_isA)
    a.e("s_cbranch_scc1 %s", LA)
    if "prioB" in exp: a.e("s_setprio 1")
    preloop("B")
    if "fq" not in exp: st.mark()
    mainloop("B")
    if "fq" not in exp: st.mark()
    final("B")
    if diag:
        a.e("s_waitcnt vmcnt(0)")
        if "fq" not in exp: st.mark()
        st.dump(S_WS, s_w, v_t, s_t0)
        if "dbgst" in exp: st.dump_dbg(S_DBG, s_w, v_t, 2)
    after = fuse.get("after") if fuse is not None else None
    LTA = name + "_ta"
    if after:
        a.e("s_waitcnt vmcnt(0)")
        a.e("s_branch %s", LTA)
    else:
        a.e("s_endpgm")
    a.label(LA)
    preloop("A")
    mainloop("A")
    final("A")
    NPF = 0
    if "pf" in exp:
        NPF = 8
        SP = SPF
        for (karg, size, per, n_i) in ((A_WO, 4 << 20, 16384, 4), (B_W1, 1792 * 1024, 8192, 2), (B_W2, 1792 * 1024, 8192, 2)):
            a.e("s_load_dwordx2 s[%d:%d], s[0:1], %d", SP, SP + 1, karg)
            a.e("s_mul_i32 s%d, s2, %d", s_t0, per)
            a.e("s_mul_i32 s%d, s%d, %d", s_t1, s_wl, per // 4)
            a.e("s_add_u32 s%d, s%d, s%d", s_t0, s_t0, s_t1)
            a.e("s_waitcnt lgkmcnt(0)")
            srd(a, SP, SP, size)
            for i in range(n_i):
                a.e("buffer_load_dwordx4 v[%d:%d], v%d, s[%d:%d], s%d offen offset:%d", 144 + 4 * i, 147 + 4 * i, v_l16, SP, SP + 3, s_t0, i * 1024)
    a.e("s_mov_b32 s%d, 0", s_n)
    ll = name + "_ldloop"
    a.label(ll)
    a.e("s_cmp_lt_u32 s%d, 2", s_n)
    a.e("s_cbranch_scc1 %s_w16", ll)
    a.e("s_waitcnt vmcnt(8)")
    a.e("s_branch %s_go", ll)
    a.label(ll + "_w16")
    a.e("s_waitcnt vmcnt(%d)", 16 + NPF)
    a.label(ll + "_go")
    if "nobar" not in exp: a.e("s_barrier")
    for l in dyn_stage_setup(): a.e(l)
    for em in stage_loads("K", track=False) + stage_loads("V", track=False): em()
    for l in dyn_stage_advance(): a.e(l)
    a.e("s_add_u32 s%d, s%d, 1", s_n, s_n)
    a.e("s_add_u32 s%d, s%d, s%d", s_t0, s_n, s_T)
    a.e("s_cmp_lt_u32 s%d, s%d", s_t0, s_TB)
    a.e("s_cbranch_scc1 %s", ll)
    if "pf" in exp:
        SP = SPF
        a.e("s_load_dwordx2 s[%d:%d], s[0:1], %d", SP, SP + 1, A_WO)
        a.e("s_bfe_u32 s%d, s2, 0x20001", s_t0)
        a.e("s_lshl_b32 s%d, s%d, 20", s_t0, s_t0)
        a.e("s_lshr_b32 s%d, s2, 3", s_t1)
        a.e("s_lshl_b32 s%d, s%d, 15", s_t1, s_t1)
        a.e("s_add_u32 s%d, s%d, s%d", s_t0, s_t0, s_t1)
        a.e("s_lshl_b32 s%d, s%d, 13", s_t1, s_wl)
        a.e("s_add_u32 s%d, s%d, s%d", s_t0, s_t0, s_t1)
        a.e("s_waitcnt lgkmcnt(0)")
        srd(a, SP, SP, 4 << 20)
        for i in range(8):
            if i == 4: a.e("s_add_u32 s%d, s%d, 4096", s_t0, s_t0)
            a.e("buffer_load_dwordx4 v[%d:%d], v%d, s[%d:%d], s%d offen offset:%d", 144 + 4 * (i & 3), 147 + 4 * (i & 3), v_l16, SP, SP + 3, s_t0, (i & 3) * 1024)
    if "cpnext" in exp:
        l_ = a.newlabel("Lcp")
        a.e("s_cmp_lg_u32 s%d, 0", s_wl); a.e("s_cbranch_scc1 %s", l_)
        code_prefetch(a, None, NEXTK, NEXTK + "_end", SPF, s_t0, v_lane, v_t, 160)
        a.label(l_)
    if after:
        a.e("s_waitcnt vmcnt(0)")
        a.label(LTA)
        if "prioB" in exp: a.e("s_setprio 0")
        a.e("s_barrier")
        only_wave(0, lambda: flag_store(1, None, WS_FLAGC))
        a.e("s_mov_b32 s46, s%d", s_w)
        after()
    a.label(name + "_end")
    a.e("s_endpgm")

    done = set()
    for (lab, target, ret) in stubs:
        a.label(lab)
        a.e("s_call_b64 s[%d:%d], %s", s_ret, s_ret + 1, target)
        a.e("s_branch %s", ret)
    for (lab, target, ret) in stubs:
        if target in done: continue
        done.add(target)
        b = int(target.split("_slow")[1][0]); replay = int(target.split("_slow")[1][2:])
        a.label(target)
        a.e("s_nop 15")
        max16(v_mx, [S[b] + i for i in range(16)])
        crosshalf_max(v_mx, v_f)
        a.e("v_ceil_f32 v%d, v%d", v_mx, v_mx)
        a.e("v_max_f32 v%d, 0, v%d", v_mx, v_mx)
        a.e("v_sub_f32 v%d, 0, v%d", v_f, v_mx)
        a.e("v_exp_f32 v%d, v%d", v_f, v_f)
        a.e("s_nop 0")
        for i in range(64): a.e("v_mul_f32 v%d, v%d, v%d", O + i, O + i, v_f)
        a.e("v_mul_f32 v%d, v%d, v%d", v_l, v_l, v_f)
        if False:
            o = 1 - b
            for i in range(8):
                a.e("v_lshlrev_b32 v%d, 16, v%d", U, P[o] + i)
                a.e("v_and_b32 v%d, 0xffff0000, v%d", U + 1, P[o] + i)
                a.e("v_mul_f32 v%d, v%d, v%d", U, U, v_f)
                a.e("v_mul_f32 v%d, v%d, v%d", U + 1, U + 1, v_f)
                a.e("v_cvt_pk_bf16_f32 v%d, v%d, v%d", P[o] + i, U, U + 1)
        for bb in range(2):
            for i in range(16): a.e("v_sub_f32 v%d, v%d, v%d", S[bb] + i, S[bb] + i, v_mx)
        for i in range(16): a.e("v_sub_f32 v%d, v%d, v%d", NEGM + i, NEGM + i, v_mx)
        sm_plain(b)
        if replay != 9: sm_plain(1 - b, 0, replay)
        a.e("s_nop 1")
        a.e("s_setpc_b64 s[%d:%d]", s_ret, s_ret + 1)
```

```python
from gen_common import *
from gen_k35 import gen_k35

def poll_flags(a, v_off, v_a, v_b, S_WS, s_base, s_cnt, dbl):
    ok, sp = a.newlabel("Lfok"), a.newlabel("Lfsp")
    a.e("s_mov_b32 s%d, 0x40000", s_cnt)
    ld = lambda v: a.e("buffer_load_dword v%d, v%d, s[%d:%d], s%d offen sc1", v, v_off, S_WS, S_WS + 3, s_base)
    def chk(v, n):
        a.e("s_waitcnt vmcnt(%d)", n)
        a.e("v_cmp_eq_u32 vcc, 1, v%d", v)
        a.e("s_nop 3")
        a.e("s_cmp_eq_u64 vcc, -1")
        a.e("s_cbranch_scc1 %s", ok)
    if dbl:
        ld(v_a)
        a.label(sp)
        a.e("s_sleep 2"); ld(v_b); chk(v_a, 1)
        a.e("s_sleep 2"); ld(v_a); chk(v_b, 1)
    else:
        a.label(sp)
        ld(v_a); chk(v_a, 0)
        a.e("s_sleep 3")
    a.e("s_sub_u32 s%d, s%d, 1", s_cnt, s_cnt)
    a.e("s_cbranch_scc0 %s", sp)
    a.label(ok)
    if dbl: a.e("s_waitcnt vmcnt(0)")

def gen_rr(a, kind, name, kidx, diag=False, exp="", exp5="", cont=False, chain=None):
    if not cont: kernel_begin(a, name)
    st = Stamps(a, diag, kidx, base=56, maxn=10)
    vm = Cnt(a, "vmcnt", 63); lg = Cnt(a, "lgkmcnt", 15)
    proj = kind == "proj"
    fr = kind == "redffn1"
    NPH = 8 if proj else 4
    NWG = 256 if (proj or fr) else 224
    ROW = 1024 if proj else 3584
    S_W, S_WS, S_B = 4, 8, 12
    s_w, s_rt, s_ct, s_t0, s_t1, s_t2, s_ab, s_wb, s_m0, s_qb, s_rot, s_ksq, s_ph, s_isL = 16, 17, 18, 19, 20, 21, 22, 23, 24, 25, 26, 27, 28, 29
    v_lane, v_l16, v_wd, v_tr, v_tr2, v_t, v_hf = 0, 1, 2, 3, 4, 5, 8
    AF = 128
    ACC = 64
    WFR, NRW = 16, 7
    LDS_B = 131072

    if not cont:
        a.e("s_cmp_ge_u32 s2, %d", NWG)
        a.e("s_cbranch_scc1 %s_end", name)
    st.mark()
    if proj: a.e("s_load_dwordx2 s[4:5], s[0:1], %d", A_WO)
    else: a.e("s_load_dwordx4 s[4:7], s[0:1], %d", B_W1)
    a.e("s_load_dwordx2 s[8:9], s[0:1], %d", WS)
    S_X = 40
    if fr: a.e("s_load_dwordx2 s[%d:%d], s[0:1], %d", S_X, S_X + 1, A_X)
    t2 = fr and "tail2" in exp
    S_WAVE = 46
    if cont:
        a.e("s_mov_b32 s%d, s%d", s_w, S_WAVE)
    else:
        a.e("v_lshrrev_b32 v%d, 6, v0", v_t)
        a.e("v_and_b32 v%d, 63, v0", v_lane)
        a.e("v_readfirstlane_b32 s%d, v%d", s_w, v_t)
        a.e("s_nop 3")
        if t2 or chain: a.e("s_mov_b32 s%d, s%d", S_WAVE, s_w)
    a.e("s_lshr_b32 s%d, s%d, 2", s_isL, s_w)
    a.e("s_and_b32 s%d, s%d, 3", s_w, s_w)
    LT1 = name + "_t1"
    LT0 = name + "_t0"
    if proj:
        a.e("s_bfe_u32 s%d, s2, 0x20001", s_ksq)
        a.e("s_and_b32 s%d, s2, 1", s_rt)
        a.e("s_lshl_b32 s%d, s%d, 3", s_rt, s_rt)
        a.e("s_lshr_b32 s%d, s2, 5", s_t0)
        a.e("s_add_u32 s%d, s%d, s%d", s_rt, s_rt, s_t0)
        a.e("s_bfe_u32 s%d, s2, 0x20003", s_ct)
        a.e("s_lshl_b32 s%d, s%d, 1", s_rot, s_ct)
        a.e("s_add_u32 s%d, s%d, s%d", s_rot, s_rot, s_t0)
        a.e("s_and_b32 s%d, s%d, 7", s_rot, s_rot)
    elif "map47" in exp:
        a.e("s_bfe_u32 s%d, s2, 0x20001", s_rt)
        a.e("s_lshl_b32 s%d, s%d, 2", s_rt, s_rt)
        a.e("s_bfe_u32 s%d, s2, 0x20003", s_t0)
        a.e("s_add_u32 s%d, s%d, s%d", s_rt, s_rt, s_t0)
        a.e("s_and_b32 s%d, s2, 1", s_ct)
        a.e("s_mul_i32 s%d, s%d, 7", s_ct, s_ct)
        a.e("s_lshr_b32 s%d, s2, 5", s_t0)
        a.e("s_add_u32 s%d, s%d, s%d", s_ct, s_ct, s_t0)
        a.e("s_and_b32 s%d, s%d, 3", s_rot, s_t0)
    else:
        a.e("s_and_b32 s%d, s2, 15", s_rt)
        a.e("s_lshr_b32 s%d, s2, 4", s_ct)
        a.e("s_lshr_b32 s%d, s%d, 3", s_t0, s_rt)
        a.e("s_lshl_b32 s%d, s%d, 1", s_t0, s_t0)
        a.e("s_add_u32 s%d, s%d, s%d", s_rot, s_ct, s_t0)
        a.e("s_and_b32 s%d, s%d, 3", s_rot, s_rot)
    if "norot" in exp: a.e("s_mov_b32 s%d, 0", s_rot)
    a.e("v_lshlrev_b32 v%d, 4, v%d", v_l16, v_lane)
    a.e("v_lshrrev_b32 v%d, 5, v%d", v_hf, v_lane)
    a.e("v_bfe_u32 v%d, v%d, 2, 2", v_t, v_lane)
    a.e("s_movk_i32 s%d, %d", s_t0, ROW)
    a.e("v_mul_lo_u32 v%d, v%d, s%d", v_wd, v_t, s_t0)
    a.e("v_lshrrev_b32 v%d, 4, v%d", v_t, v_lane)
    a.e("v_lshl_add_u32 v%d, v%d, 6, v%d", v_wd, v_t, v_wd)
    a.e("v_and_b32 v%d, 3, v%d", v_t, v_lane)
    a.e("v_lshl_add_u32 v%d, v%d, 4, v%d", v_wd, v_t, v_wd)
    a.e("v_lshlrev_b32 v%d, 10, v%d", v_tr, v_hf)
    a.e("v_bfe_u32 v%d, v%d, 2, 2", v_t, v_lane)
    a.e("v_lshl_add_u32 v%d, v%d, 6, v%d", v_tr, v_t, v_tr)
    a.e("v_bfe_u32 v%d, v%d, 4, 1", v_t, v_lane)
    a.e("v_lshl_add_u32 v%d, v%d, 5, v%d", v_tr, v_t, v_tr)
    a.e("v_and_b32 v%d, 3, v%d", v_t, v_lane)
    a.e("v_lshl_add_u32 v%d, v%d, 3, v%d", v_tr, v_t, v_tr)
    a.e("v_add_u32 v%d, 0x10000, v%d", v_tr2, v_tr)
    a.e("s_waitcnt lgkmcnt(0)")
    if not proj:
        a.e("s_mov_b32 s12, s6"); a.e("s_mov_b32 s13, s7")
        srd(a, S_B, S_B, 1792 * 2)
    srd(a, S_W, S_W, (4096 if proj else 512) * ROW); srd(a, S_WS, S_WS, WS_BYTES)
    if fr: srd(a, S_X, S_X, 2 << 20)
    SC1 = " sc1" if (fr or cont) else ""
    def flag_store(base, val, v1):
        a.e("s_lshl_b32 s%d, s2, 7", s_t2)
        a.e("s_add_u32 s%d, s%d, 0x%x", s_t2, s_t2, base)
        a.e("v_mov_b32 v%d, %d", v1, val)
        a.e("s_mov_b64 exec, 1")
        a.e("buffer_store_dword v%d, off, s[%d:%d], s%d sc1", v1, S_WS, S_WS + 3, s_t2)
        a.e("s_mov_b64 exec, -1")
    if proj and "clr2" in exp:
        l_ = a.newlabel("Lclr")
        a.e("s_cmp_lg_u32 s%d, 0", s_w); a.e("s_cbranch_scc1 %s", l_)
        a.e("s_cmp_lg_u32 s%d, 1", s_isL); a.e("s_cbranch_scc1 %s", l_)
        flag_store(WS_FLAG2, 0, v_t)
        flag_store(WS_FLAG3, 0, v_t)
        a.label(l_)
    a.e("s_lshl_b32 s%d, s%d, 2", s_qb, s_rt)
    a.e("s_add_u32 s%d, s%d, s%d", s_qb, s_qb, s_w)
    if proj:
        a.e("s_lshl_b32 s%d, s%d, 18", s_ab, s_qb)
        a.e("s_lshl_b32 s%d, s%d, 16", s_t0, s_ksq)
        a.e("s_add_u32 s%d, s%d, s%d", s_ab, s_ab, s_t0)
        a.e("s_add_u32 s%d, s%d, 0x%x", s_ab, s_ab, WS_CTX)
        a.e("s_lshl_b32 s%d, s%d, 20", s_wb, s_ksq)
    else:
        a.e("s_lshl_b32 s%d, s%d, 15", s_ab, s_qb)
        a.e("s_add_u32 s%d, s%d, 0x%x", s_ab, s_ab, WS_HN)
        a.e("s_mov_b32 s%d, 0", s_wb)
    a.e("s_mul_i32 s%d, s%d, %d", s_t0, s_w, 4 * ROW)
    a.e("s_add_u32 s%d, s%d, s%d", s_wb, s_wb, s_t0)
    a.e("s_lshl_b32 s%d, s%d, 8", s_t0, s_ct)
    a.e("s_add_u32 s%d, s%d, s%d", s_wb, s_wb, s_t0)
    a.e("s_lshl_b32 s%d, s%d, 10", s_m0, s_w)

    def phase_head(p, dst_w, dst_a):
        a.e("s_add_u32 s%d, s%d, %d", s_ph, s_rot, p)
        a.e("s_and_b32 s%d, s%d, %d", s_ph, s_ph, NPH - 1)
        if dst_w is not None:
            a.e("s_mul_i32 s%d, s%d, %d", dst_w, s_ph, 128 * ROW)
            a.e("s_add_u32 s%d, s%d, s%d", dst_w, dst_w, s_wb)
        if dst_a is not None:
            a.e("s_lshl_b32 s%d, s%d, 13", dst_a, s_ph)
            a.e("s_add_u32 s%d, s%d, s%d", dst_a, dst_a, s_ab)
    def w_loads(p, cnt):
        phase_head(p, s_t1, None)
        if "whit" in exp: a.e("s_mov_b32 s%d, 0", s_t1)
        for i in range(8):
            a.e("s_add_u32 m0, s%d, %d", s_m0, (p & 3) * 32768 + i * 4096)
            a.e("s_add_u32 s%d, s%d, %d", s_t0, s_t1, i * 16 * ROW)
            a.e("buffer_load_dwordx4 v%d, s[%d:%d], s%d offen lds", v_wd, S_W, S_W + 3, s_t0)
            cnt.issue(("w", p))
    def a_loads(p):
        L = []
        for i in range(8):
            def em(i=i):
                if i == 0:
                    phase_head(p, None, s_t2)
                    if "ahit" in exp: a.e("s_mov_b32 s%d, 0x%x", s_t2, WS_CTX)
                r = AF + ((p & 3) * 8 + i) * 4
                if i == 4: a.e("s_add_u32 s%d, s%d, 4096", s_t2, s_t2)
                a.e("buffer_load_dwordx4 v[%d:%d], v%d, s[%d:%d], s%d offen offset:%d%s", r, r + 3, v_l16, S_WS, S_WS + 3, s_t2, (i & 3) * 1024, SC1)
                vm.issue(("a", p))
            L.append(em)
        return L
    def red_part():
        PR, XR, A, F, H = 64, 96, 104, 120, 128
        v_r, v_h2, v_g, v_u, v_x = 9, 10, 11, 12, 13
        SCR = LDS_B + 256
        s_rb, s_r0 = 44, 45
        a.e("s_lshr_b32 s%d, s2, 2", s_rb)
        a.e("s_and_b32 s%d, s2, 3", s_r0)
        a.e("s_lshl_b32 s%d, s%d, 3", s_r0, s_r0)
        a.e("v_and_b32 v%d, 7, v%d", v_r, v_lane)
        a.e("v_bfe_u32 v%d, v%d, 3, 1", v_h2, v_lane)
        a.e("v_lshrrev_b32 v%d, 4, v%d", v_g, v_lane)
        a.e("s_lshl_b32 s%d, s%d, 3", s_t0, s_w)
        a.e("v_add_u32 v%d, s%d, v%d", v_g, s_t0, v_g)
        a.e("v_add_u32 v%d, s%d, v%d", v_t, s_r0, v_r)
        a.e("v_lshlrev_b32 v%d, 4, v%d", v_u, v_t)
        a.e("v_lshl_add_u32 v%d, v%d, 9, v%d", v_u, v_h2, v_u)
        a.e("v_lshl_add_u32 v%d, v%d, 10, v%d", v_u, v_g, v_u)
        a.e("v_lshlrev_b32 v%d, 10, v%d", v_x, v_t)
        a.e("v_lshl_add_u32 v%d, v%d, 5, v%d", v_x, v_g, v_x)
        a.e("v_lshl_add_u32 v%d, v%d, 3, v%d", v_x, v_h2, v_x)
        a.e("s_lshl_b32 s%d, s%d, 15", s_rb, s_rb)
        if cont:
            for u in range(2):
                a.e("buffer_load_dwordx2 v[%d:%d], v%d, s[%d:%d], s%d offen offset:%d", XR + 4 * u, XR + 4 * u + 1, v_x, S_X, S_X + 3, s_rb, u * 128)
                a.e("buffer_load_dwordx2 v[%d:%d], v%d, s[%d:%d], s%d offen offset:%d", XR + 4 * u + 2, XR + 4 * u + 3, v_x, S_X, S_X + 3, s_rb, u * 128 + 16)
            ok1, sp1 = a.newlabel("Lfok"), a.newlabel("Lfsp")
            a.e("v_and_b32 v%d, 3, v%d", F, v_lane)
            a.e("v_lshlrev_b32 v%d, 3, v%d", F, F)
            a.e("v_bfe_u32 v%d, v%d, 2, 2", F + 1, v_lane)
            a.e("v_lshl_add_u32 v%d, v%d, 1, v%d", F, F + 1, F)
            a.e("s_lshr_b32 s%d, s2, 4", s_t0)
            a.e("s_and_b32 s%d, s%d, 7", s_t1, s_t0)
            a.e("s_lshl_b32 s%d, s%d, 5", s_t1, s_t1)
            a.e("s_lshr_b32 s%d, s%d, 3", s_t0, s_t0)
            a.e("s_add_u32 s%d, s%d, s%d", s_t0, s_t0, s_t1)
            a.e("v_add_u32 v%d, s%d, v%d", F, s_t0, F)
            a.e("v_lshlrev_b32 v%d, 7, v%d", F, F)
            a.e("s_mov_b32 s%d, 0x%x", s_t2, WS_FLAG1)
            poll_flags(a, F, F + 1, F + 2, S_WS, s_t2, 47, "dblpoll" in exp)
        a.e("s_add_u32 s%d, s%d, 0x%x", s_t1, s_rb, WS_P)
        for p in range(4):
            for u in range(2):
                r = PR + (p * 2 + u) * 4
                a.e("s_add_u32 s%d, s%d, %d", s_t0, s_t1, u * 4096)
                a.e("buffer_load_dwordx4 v[%d:%d], v%d, s[%d:%d], s%d offen%s", r, r + 3, v_u, S_WS, S_WS + 3, s_t0, " sc1" if cont else "")
            if p < 3: a.e("s_add_u32 s%d, s%d, 0x%x", s_t1, s_t1, 64 * 32768)
        if not cont:
            for u in range(2):
                a.e("buffer_load_dwordx2 v[%d:%d], v%d, s[%d:%d], s%d offen offset:%d", XR + 4 * u, XR + 4 * u + 1, v_x, S_X, S_X + 3, s_rb, u * 128)
                a.e("buffer_load_dwordx2 v[%d:%d], v%d, s[%d:%d], s%d offen offset:%d", XR + 4 * u + 2, XR + 4 * u + 3, v_x, S_X, S_X + 3, s_rb, u * 128 + 16)
        a.e("s_barrier")
        st.mark()
        def unpack(src, dst):
            for i in range(4):
                a.e("v_lshlrev_b32 v%d, 16, v%d", dst + 2 * i, src + i)
                a.e("v_and_b32 v%d, 0xffff0000, v%d", dst + 2 * i + 1, src + i)
        NX = 0 if cont else 4
        a.e("s_waitcnt vmcnt(%d)", 6 + NX)
        unpack(PR, A); unpack(PR + 4, A + 8)
        for p in range(1, 4):
            a.e("s_waitcnt vmcnt(%d)", 6 + NX - 2 * p)
            for u in range(2):
                unpack(PR + (p * 2 + u) * 4, F)
                for e in range(8): a.e("v_add_f32 v%d, v%d, v%d", A + u * 8 + e, A + u * 8 + e, F + e)
        a.e("s_waitcnt vmcnt(0)")
        for u in range(2):
            unpack(XR + 4 * u, F)
            for e in range(8): a.e("v_add_f32 v%d, v%d, v%d", A + u * 8 + e, A + u * 8 + e, F + e)
        for i in range(8): a.e("v_cvt_pk_bf16_f32 v%d, v%d, v%d", H + i, A + 2 * i, A + 2 * i + 1)
        a.e("s_add_u32 s%d, s%d, 0x%x", s_t1, s_rb, WS_H)
        a.e("s_add_u32 s%d, s%d, 4096", s_t0, s_t1)
        a.e("buffer_store_dwordx4 v[%d:%d], v%d, s[%d:%d], s%d offen", H, H + 3, v_u, S_WS, S_WS + 3, s_t1)
        a.e("buffer_store_dwordx4 v[%d:%d], v%d, s[%d:%d], s%d offen", H + 4, H + 7, v_u, S_WS, S_WS + 3, s_t0)
        unpack(H, A); unpack(H + 4, A + 8)
        def rowreduce(r, slot):
            a.e("s_nop 1")
            a.e("v_add_f32_dpp v%d, v%d, v%d row_ror:8 row_mask:0xf bank_mask:0xf", r, r, r)
            a.e("v_mov_b32 v%d, v%d", F, r)
            a.e("s_nop 1")
            a.e("v_permlane16_swap_b32 v%d, v%d", r, F)
            a.e("s_nop 1")
            a.e("v_add_f32 v%d, v%d, v%d", r, r, F)
            a.e("v_mov_b32 v%d, v%d", F, r)
            a.e("s_nop 1")
            a.e("v_permlane32_swap_b32 v%d, v%d", r, F)
            a.e("s_nop 1")
            a.e("v_add_f32 v%d, v%d, v%d", r, r, F)
            a.e("v_lshlrev_b32 v%d, 4, v%d", F, v_r)
            a.e("v_add_u32 v%d, %d, v%d", F, SCR + slot * 128, F)
            a.e("s_lshl_b32 s%d, s%d, 2", s_t1, s_w)
            a.e("v_add_u32 v%d, s%d, v%d", F + 1, s_t1, F)
            a.e("ds_write_b32 v%d, v%d", F + 1, r)
            a.e("s_waitcnt lgkmcnt(0)")
            a.e("s_barrier")
            a.e("ds_read_b128 v[%d:%d], v%d", F + 4, F + 7, F)
            a.e("s_waitcnt lgkmcnt(0)")
            a.e("v_add_f32 v%d, v%d, v%d", r, F + 4, F + 5)
            a.e("v_add_f32 v%d, v%d, v%d", r, r, F + 6)
            a.e("v_add_f32 v%d, v%d, v%d", r, r, F + 7)
        M, V2 = 136, 137
        a.e("v_add_f32 v%d, v%d, v%d", M, A, A + 1)
        for e in range(2, 16): a.e("v_add_f32 v%d, v%d, v%d", M, M, A + e)
        rowreduce(M, 0)
        a.e("v_mul_f32 v%d, 0x3b000000, v%d", M, M)
        for e in range(16): a.e("v_sub_f32 v%d, v%d, v%d", A + e, A + e, M)
        a.e("v_mul_f32 v%d, v%d, v%d", V2, A, A)
        for e in range(1, 16): a.e("v_fmac_f32 v%d, v%d, v%d", V2, A + e, A + e)
        rowreduce(V2, 1)
        a.e("v_mov_b32 v%d, 0x3727c5ac", M)
        a.e("v_fmac_f32 v%d, 0x3b000000, v%d", M, V2)
        a.e("v_rsq_f32 v%d, v%d", M, M)
        a.e("s_nop 0")
        for e in range(16): a.e("v_mul_f32 v%d, v%d, v%d", A + e, A + e, M)
        HN = 140
        for i in range(8): a.e("v_cvt_pk_bf16_f32 v%d, v%d, v%d", HN + i, A + 2 * i, A + 2 * i + 1)
        a.e("s_add_u32 s%d, s%d, 0x%x", s_t1, s_rb, WS_HN)
        a.e("s_add_u32 s%d, s%d, 4096", s_t0, s_t1)
        a.e("buffer_store_dwordx4 v[%d:%d], v%d, s[%d:%d], s%d offen", HN, HN + 3, v_u, S_WS, S_WS + 3, s_t1)
        a.e("buffer_store_dwordx4 v[%d:%d], v%d, s[%d:%d], s%d offen", HN + 4, HN + 7, v_u, S_WS, S_WS + 3, s_t0)
        a.e("s_waitcnt vmcnt(0)")
        a.e("s_barrier")
        l_ = a.newlabel("Lfl")
        a.e("s_cmp_lg_u32 s%d, 0", s_w); a.e("s_cbranch_scc1 %s", l_)
        flag_store(WS_FLAG2, 1, F)
        a.label(l_)
        a.e("s_cmp_ge_u32 s2, 224")
        a.e("s_cbranch_scc1 %s", LT1 if t2 else name + "_end")
        st.mark()
        ok, sp = a.newlabel("Lfok"), a.newlabel("Lfsp")
        a.e("v_and_b32 v%d, 15, v%d", F, v_lane)
        a.e("v_lshlrev_b32 v%d, 7, v%d", F, F)
        a.e("s_lshl_b32 s%d, s%d, 11", s_t2, s_rt)
        a.e("s_add_u32 s%d, s%d, 0x%x", s_t2, s_t2, WS_FLAG2)
        poll_flags(a, F, F + 1, F + 2, S_WS, s_t2, s_r0, "dblpoll" in exp)
        if "fine" in exp: st.mark()
    LC = name + "_compute"
    a.e("s_cmp_eq_u32 s%d, 0", s_isL)
    a.e("s_cbranch_scc1 %s", LC)
    vl = Cnt(a, "vmcnt", 63)
    if fr:
        lt = a.newlabel("Ltile")
        a.e("s_cmp_lt_u32 s2, 224"); a.e("s_cbranch_scc1 %s", lt)
        for _ in range(4): a.e("s_barrier")
        if t2: a.e("s_branch %s", LT1)
        else: a.e("s_endpgm")
        a.label(lt)
        if not cont: a.e("s_barrier")
    w_loads(0, vl)
    if not proj:
        a.e("v_lshlrev_b32 v%d, 2, v%d", v_t, v_lane)
        a.e("s_lshl_b32 s%d, s%d, 8", s_t0, s_ct)
        a.e("s_mov_b32 m0, %d", LDS_B)
        a.e("s_nop 0")
        a.e("buffer_load_dword v%d, s[%d:%d], s%d offen lds", v_t, S_B, S_B + 3, s_t0)
        vl.issue("b")
    if fr:
        w_loads(1, vl)
        if cont and "w2first" in exp: w_loads(2, vl)
        if cont and "w3first" in exp: w_loads(2, vl); w_loads(3, vl)
        if cont: a.e("s_barrier")
        a.e("s_barrier"); a.e("s_barrier")
        if cont and "w3first" in exp:
            a.e("s_barrier")
        elif cont and "w2first" in exp:
            a.e("s_barrier")
            w_loads(3, vl)
        elif "wmid" in exp:
            w_loads(2, vl)
            a.e("s_barrier")
            w_loads(3, vl)
        elif "wlate" in exp:
            a.e("s_barrier")
            w_loads(2, vl); w_loads(3, vl)
        else:
            w_loads(2, vl); w_loads(3, vl)
            a.e("s_barrier")
    nxt = NPH if fr else 1
    if proj and cont and "winit3" in exp:
        w_loads(1, vl); w_loads(2, vl); nxt = 3
    for p in range(NPH):
        if fr and "strict" in exp: vl.wait([("w", 0), "b"] if p == 0 else [("w", p)])
        else: vl.wait([("w", 0), "b"] if p == 0 else ([("w", 1)] if p == 1 else [("w", p), ("w", min(p + 1, NPH - 1))]))
        a.e("s_barrier")
        upto = 2 if p == 0 else min(p + 3, NPH - 1)
        while nxt <= min(upto, NPH - 1):
            w_loads(nxt, vl); nxt += 1
        if "pf" in exp and proj and p == NPH - 4:
            a.e("s_lshr_b32 s34, s2, 3")
            for ins in l2_prefetch(a, (B_W1, 1792 * 1024), 1792 * 1024, 32, 4, 34, s_w, 36, 35, s_t1, v_l16, 64):
                a.e(ins)
                if ins.startswith("buffer"): vl.issue("pf")
        if "pf" in exp and not proj:
            PFAT = NPH - 1 if "pflast" in exp else 1
            if p == PFAT or ("pfspread" in exp and p == 1):
                a.e("s_lshr_b32 s34, s2, 3")
                pfl = l2_prefetch(a, (B_W2, 1792 * 1024), 1792 * 1024, 28, 4, 34, s_w, 36, 35, s_t1, v_l16, 64)
            if "pfspread" in exp:
                if p >= 1:
                    n_ = 0
                    while pfl and (n_ < 4 or p == NPH - 1):
                        ins = pfl.pop(0); a.e(ins)
                        if ins.startswith("buffer"): vl.issue("pf"); n_ += 1
            elif p == PFAT:
                for ins in pfl:
                    a.e(ins)
                    if ins.startswith("buffer"): vl.issue("pf")
    if "cpnext" in exp and not t2 and not chain:
        l_ = a.newlabel("Lcp")
        a.e("s_cmp_lg_u32 s%d, 0", s_w); a.e("s_cbranch_scc1 %s", l_)
        nxt_k = ("redffn1_kernel" if proj else "ffn2_kernel")
        code_prefetch(a, None, nxt_k, nxt_k + "_end", 36, s_t0, v_lane, v_t, 64)
        a.label(l_)
    if t2: a.e("s_branch %s", LT1)
    elif chain: a.e("s_branch %s", LT0)
    else: a.e("s_endpgm")
    a.label(LC)
    if "prio" in exp: a.e("s_setprio 1")
    if fr: red_part()
    if proj and cont:
        okc, spc = a.newlabel("Lfok"), a.newlabel("Lfsp")
        a.e("s_sub_u32 s%d, 15, s%d", s_t0, s_rt)
        a.e("s_min_u32 s%d, s%d, s%d", s_t0, s_t0, s_rt)
        a.e("s_lshl_b32 s%d, s%d, 5", s_t0, s_t0)
        a.e("s_lshl_b32 s%d, s%d, 3", s_t1, s_ksq)
        a.e("s_add_u32 s%d, s%d, s%d", s_t0, s_t0, s_t1)
        a.e("v_and_b32 v%d, 7, v%d", 9, v_lane)
        a.e("v_add_u32 v%d, s%d, v%d", 9, s_t0, 9)
        a.e("v_lshlrev_b32 v%d, 7, v%d", 9, 9)
        a.e("s_mov_b32 s%d, 0x%x", s_t2, WS_FLAGC)
        poll_flags(a, 9, 10, 11, S_WS, s_t2, 47, "dblpoll" in exp)
    ALLA = fr and "alla" in exp
    for em in a_loads(0): em()
    if "adeep" in exp and proj:
        for em in a_loads(1): em()
    if ALLA:
        for p_ in range(1, NPH):
            for em in a_loads(p_): em()
    if not fr: st.mark()
    EOV = "epiov" in exp
    frs = []
    for p in range(NPH):
        if EOV and p == NPH - 1: frs += [(p, j, cb) for cb in range(4) for j in range(8)]
        else: frs += [(p, j, cb) for j in range(8) for cb in range(4)]
    def w_read(gi):
        p, j, cb = frs[gi]
        r = WFR + (gi % NRW) * 4
        for t in range(2):
            off = (p & 3) * 32768 + (4 * j + 2 * t) * 1024 + cb * 256
            a.e("ds_read_b64_tr_b16 v[%d:%d], v%d offset:%d", r + 2 * t, r + 2 * t + 1, v_tr if off < 65536 else v_tr2, off & 0xffff)
            lg.issue(("w", gi))
    s_e0, s_e1 = 48, 49
    def epi_addr():
        if proj:
            a.e("s_lshl_b32 s%d, s%d, 6", s_e0, s_ksq)
            a.e("s_add_u32 s%d, s%d, s%d", s_e0, s_e0, s_qb)
            a.e("s_lshl_b32 s%d, s%d, 15", s_e0, s_e0)
            a.e("s_lshl_b32 s%d, s%d, 13", s_e1, s_ct)
            a.e("s_add_u32 s%d, s%d, s%d", s_e0, s_e0, s_e1)
            a.e("s_add_u32 s%d, s%d, 0x%x", s_e0, s_e0, WS_P)
        else:
            a.e("s_mul_i32 s%d, s%d, %d", s_e0, s_qb, 112 * 1024)
            a.e("s_lshl_b32 s%d, s%d, 13", s_e1, s_ct)
            a.e("s_add_u32 s%d, s%d, s%d", s_e0, s_e0, s_e1)
            a.e("s_add_u32 s%d, s%d, 0x%x", s_e0, s_e0, WS_F)
        a.e("s_add_u32 s%d, s%d, 4096", s_e1, s_e0)
    BR = 128
    def bias_reads(cbs):
        a.e("v_lshlrev_b32 v%d, 3, v%d", v_t, v_hf)
        a.e("v_add_u32 v%d, %d, v%d", v_t, LDS_B, v_t)
        for cb in cbs:
            for i in range(4):
                r = BR + (cb * 4 + i) * 2
                a.e("ds_read_b64 v[%d:%d], v%d offset:%d", r, r + 1, v_t, cb * 64 + i * 16)
                lg.issue("bias")
        lg.wait("bias")
    def epi_items(cb):
        L = []
        for hz in range(2):
            base = ACC + cb * 16 + hz * 8
            if not proj:
                for ii in range(2):
                    r = BR + (cb * 4 + hz * 2 + ii) * 2
                    T = 176
                    L.append("v_lshlrev_b32 v%d, 16, v%d" % (T, r))
                    L.append("v_and_b32 v%d, 0xffff0000, v%d" % (T + 1, r))
                    L.append("v_lshlrev_b32 v%d, 16, v%d" % (T + 2, r + 1))
                    L.append("v_and_b32 v%d, 0xffff0000, v%d" % (T + 3, r + 1))
                    for j in range(4):
                        L.append("v_add_f32 v%d, v%d, v%d" % (base + ii * 4 + j, base + ii * 4 + j, T + j))
                for e in range(8): L.append("v_max_f32 v%d, 0, v%d" % (base + e, base + e))
                for e in range(8): L.append("v_mul_f32 v%d, v%d, v%d" % (base + e, base + e, base + e))
            for i in range(4):
                L.append("v_cvt_pk_bf16_f32 v%d, v%d, v%d" % (base + i, base + 2 * i, base + 2 * i + 1))
            ds = 2 * cb + hz
            L.append("buffer_store_dwordx4 v[%d:%d], v%d, s[%d:%d], s%d offen offset:%d" % (base, base + 3, v_l16, S_WS, S_WS + 3,
                     s_e0 if ds < 4 else s_e1, (ds & 3) * 1024))
        return L
    PRE = NRW - 1
    pend = []
    nread = 0
    eq = []
    for gi, (p, j, cb) in enumerate(frs):
        k = gi % 32
        if k == 0:
            a.e("s_barrier")
            if (p == 0 and not fr) or (fr and "fine" in exp and p in (0, 1, 2)): st.mark()
            if "adeep" in exp and proj:
                pend = (a_loads(2) if p == 0 else []) + (a_loads(p + 3) if p + 3 < NPH else [])
            else:
                pend = [] if ALLA else ((a_loads(1) if p == 0 else []) + (a_loads(p + 2) if p + 2 < NPH else []))
            if EOV and p == NPH - 1: epi_addr()
            if EOV and not proj and p in (1, 2):
                lg.waitall()
                bias_reads([0, 1] if p == 1 else [2, 3])
        lim = 32 * (p + 1) if (p <= 1 or (fr and "strict" in exp)) else len(frs)
        while nread < min(gi + PRE + 1, lim, len(frs)):
            w_read(nread); nread += 1
        if k == 0: vm.wait(("a", p))
        if fr and "fine" in exp and gi == 0: st.mark()
        if gi % 2 == 0: lg.wait([("w", gi), ("w", gi + 1)])
        wf = WFR + (gi % NRW) * 4
        d = ACC + cb * 16
        af = AF + ((p & 3) * 8 + j) * 4
        c = "0" if gi < 4 else "v[%d:%d]" % (d, d + 15)
        a.e("v_mfma_f32_32x32x16_bf16 v[%d:%d], v[%d:%d], v[%d:%d], %s", d, d + 15, wf, wf + 3, af, af + 3, c)
        if pend and (k % 3 == 2 or (p == 0 and k % 3 != 0) or (p == 0 and k < 12)): pend.pop(0)()
        if EOV and p == NPH - 1:
            if k % 8 == 3 and k >= 8: eq += ["s_nop 3"] + epi_items(k // 8 - 1)
            n_ = 0
            while eq and n_ < (3 if proj else 12): a.e(eq.pop(0)); n_ += 1
    st.mark()
    if EOV:
        for ins in eq: a.e(ins)
        a.e("s_nop 7"); a.e("s_nop 3")
        for ins in epi_items(3): a.e(ins)
    else:
        a.e("s_nop 7")
        epi_addr()
        if not proj:
            lg.waitall()
            bias_reads([0, 1]); bias_reads([2, 3])
        a.e("s_nop 3")
        for cb in range(4):
            for ins in epi_items(cb): a.e(ins)
    if diag:
        a.e("s_waitcnt vmcnt(0)")
        st.mark()
        st.dump(S_WS, s_w, 10, s_t2)
    if t2:
        a.e("s_waitcnt vmcnt(0)")
        a.label(LT1)
        if "prio" in exp: a.e("s_setprio 0")
        a.e("s_barrier")
        l_ = a.newlabel("Lf3")
        a.e("s_cmp_lg_u32 s%d, 0", S_WAVE); a.e("s_cbranch_scc1 %s", l_)
        a.e("s_cmp_ge_u32 s2, 224"); a.e("s_cbranch_scc1 %s", l_)
        flag_store(WS_FLAG3, 1, v_t)
        a.label(l_)
        gen_k35(a, "ffn2", name + "_ffn2", 4, diag=diag, exp=exp5, s_wave_in=S_WAVE)
    if chain:
        a.e("s_waitcnt vmcnt(0)")
        a.label(LT0)
        if "prio" in exp: a.e("s_setprio 0")
        a.e("s_barrier")
        l_ = a.newlabel("Lf1")
        a.e("s_cmp_lg_u32 s%d, 0", S_WAVE); a.e("s_cbranch_scc1 %s", l_)
        flag_store(WS_FLAG1, 1, v_t)
        a.label(l_)
        chain()
    if not cont: a.label(name + "_end")
    a.e("s_endpgm")


def gen_red(a, name, kidx, diag=False, exp=""):
    kernel_begin(a, name)
    st = Stamps(a, diag, kidx, base=56, maxn=10)
    S_X, S_WS = 4, 8
    s_w, s_t0, s_t1, s_qb, s_r0 = 12, 13, 14, 15, 16
    v_lane, v_r, v_hf, v_g, v_u, v_t = 0, 1, 2, 3, 4, 5
    PR, XR, A, F = 16, 32, 40, 48
    a.e("s_cmp_ge_u32 s2, 256")
    a.e("s_cbranch_scc1 %s_end", name)
    st.mark()
    a.e("s_load_dwordx2 s[4:5], s[0:1], %d", A_X)
    a.e("s_load_dwordx2 s[8:9], s[0:1], %d", WS)
    a.e("v_lshrrev_b32 v%d, 6, v0", v_t)
    a.e("v_and_b32 v%d, 63, v0", v_lane)
    a.e("v_readfirstlane_b32 s%d, v%d", s_w, v_t)
    a.e("s_lshr_b32 s%d, s2, 2", s_qb)
    a.e("s_and_b32 s%d, s2, 3", s_r0)
    a.e("s_lshl_b32 s%d, s%d, 3", s_r0, s_r0)
    a.e("v_and_b32 v%d, 7, v%d", v_r, v_lane)
    a.e("v_bfe_u32 v%d, v%d, 3, 1", v_hf, v_lane)
    a.e("v_lshrrev_b32 v%d, 4, v%d", v_g, v_lane)
    a.e("s_lshl_b32 s%d, s%d, 2", s_t0, s_w)
    a.e("v_add_u32 v%d, s%d, v%d", v_g, s_t0, v_g)
    a.e("v_add_u32 v%d, s%d, v%d", v_t, s_r0, v_r)
    a.e("v_lshlrev_b32 v%d, 4, v%d", v_u, v_t)
    a.e("v_lshl_add_u32 v%d, v%d, 9, v%d", v_u, v_hf, v_u)
    a.e("v_lshl_add_u32 v%d, v%d, 10, v%d", v_u, v_g, v_u)
    a.e("v_lshlrev_b32 v%d, 10, v%d", v_t + 1, v_t)
    a.e("v_lshl_add_u32 v%d, v%d, 5, v%d", v_t + 1, v_g, v_t + 1)
    a.e("v_lshl_add_u32 v%d, v%d, 3, v%d", v_t + 1, v_hf, v_t + 1)
    a.e("s_waitcnt lgkmcnt(0)")
    srd(a, S_X, S_X, 2 << 20); srd(a, S_WS, S_WS, WS_BYTES)
    a.e("s_lshl_b32 s%d, s%d, 15", s_t0, s_qb)
    a.e("s_add_u32 s%d, s%d, 0x%x", s_t1, s_t0, WS_P)
    for p in range(4):
        a.e("buffer_load_dwordx4 v[%d:%d], v%d, s[%d:%d], s%d offen", PR + 4 * p, PR + 4 * p + 3, v_u, S_WS, S_WS + 3, s_t1)
        if p < 3: a.e("s_add_u32 s%d, s%d, 0x%x", s_t1, s_t1, 64 * 32768)
    a.e("buffer_load_dwordx2 v[%d:%d], v%d, s[%d:%d], s%d offen", XR, XR + 1, v_t + 1, S_X, S_X + 3, s_t0)
    a.e("buffer_load_dwordx2 v[%d:%d], v%d, s[%d:%d], s%d offen offset:16", XR + 2, XR + 3, v_t + 1, S_X, S_X + 3, s_t0)
    if "pf" in exp:
        a.e("v_lshlrev_b32 v12, 4, v%d", v_lane)
        a.e("s_lshr_b32 s20, s2, 3")
        for ins in l2_prefetch(a, (B_W1, 1792 * 1024), 1792 * 1024, 32, 8, 20, s_w, 24, 21, 22, 12, 64 - 16 + 16): a.e(ins)
    st.mark()
    def unpack(src, dst):
        for i in range(4):
            a.e("v_lshlrev_b32 v%d, 16, v%d", dst + 2 * i, src + i)
            a.e("v_and_b32 v%d, 0xffff0000, v%d", dst + 2 * i + 1, src + i)
    NPF = 7 if "pf" in exp else 0
    a.e("s_waitcnt vmcnt(%d)", 5 + NPF)
    unpack(PR, A)
    for p in range(1, 4):
        a.e("s_waitcnt vmcnt(%d)", 5 - p + NPF)
        unpack(PR + 4 * p, F)
        for e in range(8): a.e("v_add_f32 v%d, v%d, v%d", A + e, A + e, F + e)
    a.e("s_waitcnt vmcnt(%d)", NPF)
    unpack(XR, F)
    for e in range(8): a.e("v_add_f32 v%d, v%d, v%d", A + e, A + e, F + e)
    H = 56
    for i in range(4): a.e("v_cvt_pk_bf16_f32 v%d, v%d, v%d", H + i, A + 2 * i, A + 2 * i + 1)
    a.e("s_add_u32 s%d, s%d, 0x%x", s_t1, s_t0, WS_H)
    a.e("buffer_store_dwordx4 v[%d:%d], v%d, s[%d:%d], s%d offen", H, H + 3, v_u, S_WS, S_WS + 3, s_t1)
    unpack(H, A)
    def rowreduce(r, slot):
        a.e("s_nop 1")
        a.e("v_add_f32_dpp v%d, v%d, v%d row_ror:8 row_mask:0xf bank_mask:0xf", r, r, r)
        a.e("v_mov_b32 v%d, v%d", F, r)
        a.e("s_nop 1")
        a.e("v_permlane16_swap_b32 v%d, v%d", r, F)
        a.e("s_nop 1")
        a.e("v_add_f32 v%d, v%d, v%d", r, r, F)
        a.e("v_mov_b32 v%d, v%d", F, r)
        a.e("s_nop 1")
        a.e("v_permlane32_swap_b32 v%d, v%d", r, F)
        a.e("s_nop 1")
        a.e("v_add_f32 v%d, v%d, v%d", r, r, F)
        a.e("v_lshlrev_b32 v%d, 5, v%d", F, v_r)
        a.e("s_lshl_b32 s%d, s%d, 2", s_t1, s_w)
        a.e("v_add_u32 v%d, s%d, v%d", F + 1, s_t1, F)
        a.e("ds_write_b32 v%d, v%d offset:%d", F + 1, r, slot * 256)
        a.e("s_waitcnt lgkmcnt(0)")
        a.e("s_barrier")
        a.e("ds_read_b128 v[%d:%d], v%d offset:%d", F + 4, F + 7, F, slot * 256)
        a.e("ds_read_b128 v[%d:%d], v%d offset:%d", F + 8, F + 11, F, slot * 256 + 16)
        a.e("s_waitcnt lgkmcnt(0)")
        a.e("v_add_f32 v%d, v%d, v%d", r, F + 4, F + 5)
        for i in range(6, 12): a.e("v_add_f32 v%d, v%d, v%d", r, r, F + i)
    M, V2 = 60, 61
    a.e("v_add_f32 v%d, v%d, v%d", M, A, A + 1)
    for e in range(2, 8): a.e("v_add_f32 v%d, v%d, v%d", M, M, A + e)
    rowreduce(M, 0)
    a.e("v_mul_f32 v%d, 0x3b000000, v%d", M, M)
    for e in range(8): a.e("v_sub_f32 v%d, v%d, v%d", A + e, A + e, M)
    a.e("v_mul_f32 v%d, v%d, v%d", V2, A, A)
    for e in range(1, 8): a.e("v_fmac_f32 v%d, v%d, v%d", V2, A + e, A + e)
    rowreduce(V2, 1)
    a.e("v_mov_b32 v%d, 0x3727c5ac", M)
    a.e("v_fmac_f32 v%d, 0x3b000000, v%d", M, V2)
    a.e("v_rsq_f32 v%d, v%d", M, M)
    a.e("s_nop 0")
    for e in range(8): a.e("v_mul_f32 v%d, v%d, v%d", A + e, A + e, M)
    for i in range(4): a.e("v_cvt_pk_bf16_f32 v%d, v%d, v%d", H + i - 0, A + 2 * i, A + 2 * i + 1) if False else None
    HN = 32
    for i in range(4): a.e("v_cvt_pk_bf16_f32 v%d, v%d, v%d", HN + i, A + 2 * i, A + 2 * i + 1)
    a.e("s_add_u32 s%d, s%d, 0x%x", s_t1, s_t0, WS_HN)
    a.e("buffer_store_dwordx4 v[%d:%d], v%d, s[%d:%d], s%d offen", HN, HN + 3, v_u, S_WS, S_WS + 3, s_t1)
    if diag:
        a.e("s_waitcnt vmcnt(0)")
        st.mark()
        st.dump(S_WS, s_w, 10, s_t0)
    a.label(name + "_end")
    a.e("s_endpgm")
```
